```python
import torch

def _softmax(x, axis=-1):
    return torch.softmax(x, dim=axis)

def _gelu(x):
    return torch.nn.functional.gelu(x, approximate='tanh')

def _silu(x):
    return torch.nn.functional.silu(x)

def _sigmoid(x):
    return torch.sigmoid(x)

def _layernorm(x, axis=-1, eps=1e-05):
    m = x.mean(dim=axis, keepdim=True)
    v = x.var(dim=axis, keepdim=True, unbiased=False)
    return (x - m) / torch.sqrt(v + eps)

def _scatter_add(tgt, idx, src, axis=0):
    return tgt.clone().index_add_(axis, idx, src)

def _segment_sum(src, seg, n):
    out = torch.zeros((n,) + src.shape[1:], dtype=src.dtype)
    return out.index_add_(0, seg, src)

def _pad(x, pw):
    flat = tuple((v for pair in reversed(pw) for v in pair))
    return torch.nn.functional.pad(x, flat)
kernel_name = 'concat_heads__ssm_conv_h3__memory_aug_recurrent_mem_tr__prompt'

def setup_inputs():

    _w = lambda a: (lambda t: t.to(torch.bfloat16) if t.is_floating_point() else t)(torch.as_tensor(a))

    def _A_setup():
        B, S, D = (1, 2048, 512)
        ks = 4
        return {'q': _w((lambda *s: torch.randn(*s, dtype=torch.bfloat16) * 0.05)(B, S, D)), 'k': _w((lambda *s: torch.randn(*s, dtype=torch.bfloat16) * 0.4)(B, S, D)), 'v': _w((lambda *s: torch.randn(*s, dtype=torch.bfloat16) * 0.4)(B, S, D)), 'shift_k': _w((lambda *s: torch.randn(*s, dtype=torch.bfloat16) * 0.4)(D, ks) * 0.5), 'ssm_k': _w((lambda *s: torch.randn(*s, dtype=torch.bfloat16) * 0.4)(D, S) * (1.0 / S ** 0.5)), 'ssm_D': _w((lambda *s: torch.randn(*s, dtype=torch.bfloat16) * 0.4)(D))}
    _A_in = _A_setup()

    def _B_setup():
        B, S, Dm = (1, 2048, 512)
        H, Dh = (32, 128)
        M, seg = (8, 32)
        seg = min(seg, S)
        S = S // seg * seg
        return {'x': _w((lambda *s: torch.randn(*s, dtype=torch.bfloat16) * 0.05)(B, S, Dm)), 'mem0': _w((lambda *s: torch.randn(*s, dtype=torch.bfloat16) * 0.4)(B, M, Dm)), 'Wq': _w((lambda *s: torch.randn(*s, dtype=torch.bfloat16) * 6.4)(Dm, H, Dh) * Dm ** (-0.5)), 'Wk': _w((lambda *s: torch.randn(*s, dtype=torch.bfloat16) * 6.4)(Dm, H, Dh) * Dm ** (-0.5)), 'Wv': _w((lambda *s: torch.randn(*s, dtype=torch.bfloat16) * 0.4)(Dm, H, Dh) * Dm ** (-0.5)), 'Wo': _w((lambda *s: torch.randn(*s, dtype=torch.bfloat16) * 0.4)(H, Dh, Dm) * (H * Dh) ** (-0.5)), 'seg_len': seg}
    _B_in = _B_setup()
    return {'A_q': _A_in['q'], 'A_k': _A_in['k'], 'A_v': _A_in['v'], 'A_shift_k': _A_in['shift_k'], 'A_ssm_k': _A_in['ssm_k'], 'A_ssm_D': _A_in['ssm_D'], 'B_x': _B_in['x'], 'B_mem0': _B_in['mem0'], 'B_Wq': _B_in['Wq'], 'B_Wk': _B_in['Wk'], 'B_Wv': _B_in['Wv'], 'B_Wo': _B_in['Wo'], 'B_seg_len': _B_in['seg_len']}

def reference(A_q, A_k, A_v, A_shift_k, A_ssm_k, A_ssm_D, B_x, B_mem0, B_Wq, B_Wk, B_Wv, B_Wo, B_seg_len):

    def _A_ref(q, k, v, shift_k, ssm_k, ssm_D):
        B, S, D = q.shape
        ks = shift_k.shape[-1]
        k_pad = _pad(k, ((0, 0), (ks - 1, 0), (0, 0)))
        k_shift = torch.zeros_like(k)
        for t in range(ks):
            k_shift = k_shift + k_pad[:, t:t + S, :] * shift_k[:, ks - 1 - t][None, None, :]
        kv = k_shift * v
        L = 2 * S
        kv_pad = _pad(kv, ((0, 0), (0, S), (0, 0)))
        kf_pad = _pad(ssm_k, ((0, 0), (0, S)))
        kv_f = (lambda x, axes=(-2, -1): torch.fft.rfft2(x.float(), dim=axes))(kv_pad[:, None, :, :], axes=(1, 2))
        kf_f = (lambda x, axes=(-2, -1): torch.fft.rfft2(x.float(), dim=axes))(kf_pad[:, None, :], axes=(1, 2))
        kf_f = (lambda x, *d: x.permute(*d))(kf_f, 1, 2, 0)
        y_f = kv_f * kf_f[None, :, :, :]
        y = (lambda x, s, axes=(-2, -1): torch.fft.irfft2(x, s=s, dim=axes).to(torch.bfloat16))(y_f, (1, L), axes=(1, 2))[:, 0, :S, :]
        y = y + kv * ssm_D[None, None, :]
        return q * y

    def _B_ref(x, mem0, Wq, Wk, Wv, Wo, seg_len):
        B, S, Dm = x.shape
        H, Dh = (Wq.shape[1], Wq.shape[2])
        M = mem0.shape[1]
        scale = Dh ** (-0.5)
        n_seg = S // seg_len
        L = M + seg_len
        idx = torch.arange(L)
        mask = (idx[:, None] < M) | (idx[:, None] >= idx[None, :])
        mem = mem0
        outs = []
        for s in range(n_seg):
            xs = x[:, s * seg_len:(s + 1) * seg_len, :].clone()
            h = torch.concatenate([mem, xs], axis=1)
            q = torch.einsum('btd,dhe->bhte', h, Wq)
            k = torch.einsum('btd,dhe->bhte', h, Wk)
            v = torch.einsum('btd,dhe->bhte', h, Wv)
            scores = torch.einsum('bhqe,bhke->bhqk', q, k) * scale
            scores = torch.where(mask[None, None], scores, -1000000000.0)
            p = _softmax(scores, axis=-1)
            o = torch.einsum('bhqk,bhke->bhqe', p, v)
            o = torch.einsum('bhte,hed->btd', o, Wo)
            mem = o[:, :M, :].clone()
            outs.append(o[:, M:, :])
        return torch.concatenate(outs, axis=1)
    a = _A_ref(A_q, A_k, A_v, A_shift_k, A_ssm_k, A_ssm_D)
    b = _B_ref(B_x, B_mem0, B_Wq, B_Wk, B_Wv, B_Wo, B_seg_len)
    return torch.concatenate([a, b], axis=-1)
```

```python
class Asm:
    def __init__(self):
        self.L = []
        self.lds = []
        self.vm = []
        self.uid = 0
    def e(self, s):
        self.L.append("    " + s)
    def c(self, s):
        self.L.append("    ; " + s)
    def lab(self, s):
        self.L.append(s + ":")
    def newlab(self, p="L"):
        self.uid += 1
        return "%s_%d" % (p, self.uid)
    def ds(self, s, tag=None):
        self.e(s); self.lds.append(tag)
    def vmem(self, s, tag=None):
        self.e(s); self.vm.append(tag)
    def wait_lds(self, tag):
        if tag not in self.lds: return
        idx = max(i for i, t in enumerate(self.lds) if t == tag)
        n = len(self.lds) - 1 - idx
        self.e("s_waitcnt lgkmcnt(%d)" % min(n, 15))
        if n <= 15: self.lds = self.lds[idx + 1:]
        else: self.lds = self.lds[len(self.lds) - 15:]
    def wait_lds_all(self):
        self.e("s_waitcnt lgkmcnt(0)"); self.lds = []
    def wait_vm(self, tag):
        if tag not in self.vm: return
        idx = max(i for i, t in enumerate(self.vm) if t == tag)
        n = len(self.vm) - 1 - idx
        assert n <= 63
        self.e("s_waitcnt vmcnt(%d)" % n)
        self.vm = self.vm[idx + 1:]
    def wait_vm_all(self):
        self.e("s_waitcnt vmcnt(0)"); self.vm = []
    def has_lds(self, tag):
        return tag in self.lds
    def nop(self, n):
        while n > 0:
            k = min(n, 16)
            self.e("s_nop %d" % (k - 1)); n -= k
    def text(self):
        return "\n".join(self.L) + "\n"

def vr(a, n=1):
    return "v%d" % a if n == 1 else "v[%d:%d]" % (a, a + n - 1)
def ar(a, n=1):
    return "a%d" % a if n == 1 else "a[%d:%d]" % (a, a + n - 1)
def sr(a, n=1):
    return "s%d" % a if n == 1 else "s[%d:%d]" % (a, a + n - 1)
```

```python
import sys, os, struct, math
sys.path.insert(0, os.path.dirname(os.path.abspath(__file__)))
from asmlib import *

KNAME = "concat_heads__ssm_conv_h3__memory_aug_recurrent_mem_tr__prompt_kernel"
OPT = dict(final=0, nowait=0, stage=1, hist=0, stamps=0, nsteps=64, dly_red=0, dly_mem=0)
for a in sys.argv[1:]:
    if "=" in a:
        k, v = a.split("="); OPT[k] = int(v) if v.lstrip("-").isdigit() else v
OUTP = OPT.get("out", "chain.s")

KA = dict(q=0, k=8, v=16, shift=24, ssmk=32, ssmd=40, x=48, mem0=56, wq=64, wk=72, wv=80, wo=88, seg=96, out=104, dbg=112, ws=120)
WS_KX = 0x0000000
WS_VX = 0x1000000
WS_KM = 0x2000000
WS_VM = 0x3000000
WS_PB = 0x2C00000
WS_MB = 0x2CC0000
WS_FL = 0x2CD0000
WS_HIST = 0x2D00000
WS_STAMP = 0x2E00000
WS_XP = 0x4000000
FL_KV, FL_KM, FL_XP = WS_FL, WS_FL + 1024, WS_FL + 2048
WVSTRIDE = 28672
L_KX, L_VX, L_MEM, L_X, L_O, L_SEL, L_DUM = 114688, 131072, 147456, 155648, 159744, 161792, 162816
LDS_TOTAL = 163840
S_WS = 4
S_W = 8
S_XCC, S_WAVE, S_HEAD, S_TEAM = 20, 21, 22, 23
S_DBG = 24
S_ALL = 26
S_STEP, S_MCUR, S_MNXT, S_PCUR, S_RED, S_MQ, S_KXO, S_VXO = 40, 41, 42, 43, 44, 45, 46, 47
S_DMA = 39
S_LO8 = 48
S_LO32 = 50
S_C, S_SPIN, S_FIRST, S_PAR = 52, 53, 54, 55
S_PW = 56
S_ST = 64
S_MPREV, S_H13, S_H8, S_PPREV = 96, 97, 98, 99
S_RDY = 100
V_L16, V_XWR, V_OWR, V_PS0, V_IDX, V_WVA = 0, 1, 2, 3, 4, 5
VT = 6
V_KX = 12
V_LD = 12
V_S = 28
V_MEM = 40
V_QK = 72
V_VA = 88
V_WVR = 96
V_WV0 = 112
V_WO = 128
VLANE = 30
VS = 32

A = Asm()
e, c, lab = A.e, A.c, A.lab
def v(i): return "v%d" % i

def srd(base_s, ptr_s, size):
    e("s_mov_b32 s%d, s%d" % (base_s, ptr_s)); e("s_mov_b32 s%d, s%d" % (base_s + 1, ptr_s + 1))
    e("s_mov_b32 s%d, 0x%x" % (base_s + 2, size)); e("s_mov_b32 s%d, 0x20000" % (base_s + 3))

TS = [int(x) for x in str(OPT.get("ts", "")).split(",") if x != ""]
def ts(i):
    if i in TS:
        k = TS.index(i)
        e("s_memtime s[%d:%d]" % (64 + 2 * k, 65 + 2 * k))
def stamp(i, lvl=1):
    ts(i)
    if OPT["stamps"] < lvl: return
    if OPT["stamps"] == 2 and lvl == 1: pass
    e("s_memtime s[82:83]"); e("s_waitcnt lgkmcnt(0)"); A.lds = []
    e("s_sub_u32 s81, s82, s80"); e("s_add_u32 s%d, s%d, s81" % (S_ST + i, S_ST + i)); e("s_mov_b32 s80, s82")

def prologue():
    e("s_cmp_ge_u32 s2, 256"); e("s_cbranch_scc1 L_end")
    e("s_load_dwordx2 s[24:25], s[0:1], %d" % KA["dbg"])
    e("s_load_dwordx2 s[28:29], s[0:1], %d" % KA["ws"])
    e("s_load_dwordx4 s[56:59], s[0:1], %d" % KA["wq"])
    e("s_load_dwordx4 s[60:63], s[0:1], %d" % KA["wv"])
    e("s_getreg_b32 s%d, hwreg(HW_REG_XCC_ID)" % S_XCC)
    e("s_and_b32 s%d, s%d, 15" % (S_XCC, S_XCC))
    e("v_lshrrev_b32 v1, 6, v0"); e("s_nop 0"); e("v_readfirstlane_b32 s%d, v1" % S_WAVE)
    e("v_and_b32 v%d, 63, v0" % VLANE)
    e("s_mov_b64 s[26:27], exec")
    e("s_waitcnt lgkmcnt(0)")
    srd(S_WS, 28, 0x10000000)
    e("s_cmp_lg_u32 s%d, 0" % S_WAVE); e("s_cbranch_scc1 L_roles_wait")
    e("s_mov_b64 exec, 1")
    e("s_lshl_b32 s28, s%d, 2" % S_XCC); e("v_mov_b32 v3, s28"); e("v_mov_b32 v4, 1")
    e("global_atomic_add v5, v3, v4, s[24:25] sc0 sc1"); e("s_waitcnt vmcnt(0)")
    e("v_readfirstlane_b32 s%d, v5" % S_HEAD)
    e("v_add_u32 v6, 128, v3")
    e("s_cmp_lg_u32 s%d, 31" % S_HEAD); e("s_cbranch_scc1 L_poll_team")
    e("v_mov_b32 v3, 64")
    e("global_atomic_add v5, v3, v4, s[24:25] sc0 sc1"); e("s_waitcnt vmcnt(0)")
    e("v_add_u32 v5, 1, v5")
    e("global_store_dword v6, v5, s[24:25] sc0 sc1"); e("s_waitcnt vmcnt(0)")
    lab("L_poll_team")
    e("s_mov_b32 s29, 0")
    lab("L_pt")
    e("global_load_dword v5, v6, s[24:25] sc0 sc1"); e("s_waitcnt vmcnt(0)")
    e("v_readfirstlane_b32 s30, v5")
    e("s_add_u32 s29, s29, 1"); e("s_cmp_gt_u32 s29, 0x40000"); e("s_cbranch_scc1 L_pt_done")
    e("s_cmp_eq_u32 s30, 0"); e("s_cbranch_scc1 L_pt")
    lab("L_pt_done")
    e("s_sub_u32 s30, s30, 1")
    e("v_mov_b32 v4, s%d" % S_HEAD); e("v_mov_b32 v5, s30"); e("v_mov_b32 v3, %d" % L_DUM)
    e("ds_write_b64 v3, v[4:5]"); e("s_waitcnt lgkmcnt(0)")
    e("s_mov_b64 exec, s[26:27]")
    lab("L_roles_wait")
    e("s_barrier")
    e("v_mov_b32 v3, %d" % L_DUM); e("ds_read_b64 v[4:5], v3"); e("s_waitcnt lgkmcnt(0)")
    e("v_readfirstlane_b32 s%d, v4" % S_HEAD); e("v_readfirstlane_b32 s%d, v5" % S_TEAM)
    e("s_barrier")
    e("s_cmp_ge_u32 s%d, 32" % S_HEAD); e("s_cbranch_scc1 L_end")
    e("s_cmp_ge_u32 s%d, 8" % S_TEAM); e("s_cbranch_scc1 L_end")
    e("s_lshl_b32 s%d, s%d, 13" % (S_H13, S_HEAD)); e("s_lshl_b32 s%d, s%d, 8" % (S_H8, S_HEAD))

LW_VQ, LW_VO, LW_A0, LW_A1, LW_AO = 40, 41, 43, 44, 45
LW_WB = 53
LW_TMP = 72
def load_setup(wave_stride):
    L = VLANE; a, b_, c_, d_, f_ = VS, VS + 1, VS + 2, VS + 3, VS + 4
    e("s_mul_i32 s34, s%d, %d" % (S_WAVE, wave_stride))
    e("s_lshl_b32 s36, s%d, 20" % S_WAVE)
    e("v_lshrrev_b32 v%d, 2, v%d" % (a, L)); e("v_lshlrev_b32 v%d, 13, v%d" % (b_, a))
    e("v_lshrrev_b32 v%d, 5, v%d" % (c_, L)); e("v_lshlrev_b32 v%d, 1, v%d" % (c_, c_))
    e("v_and_b32 v%d, 3, v%d" % (d_, L)); e("v_xor_b32 v%d, v%d, v%d" % (d_, d_, c_)); e("v_lshlrev_b32 v%d, 4, v%d" % (d_, d_))
    e("v_add_u32 v%d, v%d, v%d" % (b_, b_, d_))
    e("s_lshl_b32 s29, s%d, 6" % S_WAVE); e("s_add_u32 s28, s%d, s29" % S_H8)
    e("v_add_u32 v%d, s28, v%d" % (LW_VQ, b_))
    e("v_lshrrev_b32 v%d, 4, v%d" % (a, L)); e("v_lshlrev_b32 v%d, 10, v%d" % (b_, a))
    e("s_lshl_b32 s28, s%d, 8" % S_WAVE); e("v_add_u32 v%d, s28, v%d" % (b_, b_))
    e("v_and_b32 v%d, 1, v%d" % (c_, a)); e("v_lshrrev_b32 v%d, 1, v%d" % (f_, a)); e("v_lshlrev_b32 v%d, 3, v%d" % (f_, f_)); e("v_add_u32 v%d, v%d, v%d" % (c_, c_, f_))
    e("v_and_b32 v%d, 15, v%d" % (d_, L)); e("v_xor_b32 v%d, v%d, v%d" % (d_, d_, c_)); e("v_lshlrev_b32 v%d, 4, v%d" % (d_, d_))
    e("v_add_u32 v%d, v%d, v%d" % (LW_VO, b_, d_))
    e("v_lshrrev_b32 v%d, 5, v%d" % (a, L)); e("v_lshlrev_b32 v%d, 10, v%d" % (a, a))
    e("v_bfe_u32 v%d, v%d, 4, 1" % (b_, L)); e("v_lshlrev_b32 v%d, 9, v%d" % (c_, b_)); e("v_add_u32 v%d, v%d, v%d" % (a, a, c_))
    e("v_bfe_u32 v%d, v%d, 2, 2" % (c_, L)); e("v_lshlrev_b32 v%d, 6, v%d" % (c_, c_)); e("v_add_u32 v%d, v%d, v%d" % (a, a, c_))
    e("v_and_b32 v%d, 3, v%d" % (c_, L)); e("v_lshlrev_b32 v%d, 3, v%d" % (c_, c_)); e("v_add_u32 v%d, v%d, v%d" % (a, a, c_))
    e("v_add_u32 v%d, s34, v%d" % (a, a))
    e("v_lshlrev_b32 v%d, 5, v%d" % (c_, b_)); e("v_add_u32 v%d, v%d, v%d" % (LW_A0, a, c_))
    e("v_xor_b32 v%d, 32, v%d" % (c_, c_)); e("v_add_u32 v%d, v%d, v%d" % (LW_A1, a, c_))
    e("v_lshrrev_b32 v%d, 4, v%d" % (a, L)); e("v_lshlrev_b32 v%d, 10, v%d" % (a, a))
    e("v_bfe_u32 v%d, v%d, 2, 2" % (c_, L)); e("v_lshlrev_b32 v%d, 8, v%d" % (d_, c_)); e("v_add_u32 v%d, v%d, v%d" % (a, a, d_))
    e("v_and_b32 v%d, 3, v%d" % (d_, L)); e("v_lshlrev_b32 v%d, 5, v%d" % (d_, d_)); e("v_add_u32 v%d, v%d, v%d" % (a, a, d_))
    e("v_add_u32 v%d, s34, v%d" % (a, a))
    e("v_bfe_u32 v%d, v%d, 3, 1" % (b_, L)); e("v_lshlrev_b32 v%d, 7, v%d" % (b_, b_))
    e("v_bfe_u32 v%d, v%d, 2, 1" % (c_, L)); e("v_lshlrev_b32 v%d, 4, v%d" % (c_, c_))
    for G in range(2):
        for Th in range(2):
            e("v_xor_b32 v%d, %d, v%d" % (d_, G * 128, b_)); e("v_xor_b32 v%d, %d, v%d" % (f_, Th * 16, c_))
            e("v_add_u32 v%d, v%d, v%d" % (d_, d_, f_)); e("v_add_u32 v%d, v%d, v%d" % (LW_AO + 2 * G + Th, a, d_))
    e("v_lshlrev_b32 v%d, 4, v%d" % (a, L)); e("v_add_u32 v%d, s34, v%d" % (LW_WB, a))

def reg(kind, n, cnt):
    return ar(n, cnt) if kind == "a" else vr(n, cnt)

def load_units(units, NS):
    cur_srd = [None]
    def set_srd(which):
        if cur_srd[0] == which: return
        cur_srd[0] = which
        p = S_PW + 2 * which
        e("s_mov_b32 s8, s%d" % p); e("s_mov_b32 s9, s%d" % (p + 1)); e("s_mov_b32 s10, 0x400000"); e("s_mov_b32 s11, 0x20000")
    def issue(n):
        u = units[n]; slot = n % NS
        set_srd(u["m"])
        for i in range(4):
            e("s_add_u32 m0, s34, %d" % (slot * 4096 + i * 1024))
            if u["kind"] == "qkv":
                if u.get("perm", True):
                    e("s_xor_b32 s28, s36, %d" % (u["t"] << 19)); e("s_add_u32 s28, s28, %d" % (i * 131072))
                else:
                    e("s_mov_b32 s28, %d" % ((64 * u["t"] + 16 * i) * 8192))
                A.vmem("buffer_load_dwordx4 v%d, s[8:11], s28 offen lds" % LW_VQ, ("w", n))
            else:
                qd = 2 * u["b"] + u["hb"]
                e("s_add_u32 s28, s35, %d" % ((64 * u["t"] + 16 * qd + 4 * i) * 1024))
                A.vmem("buffer_load_dwordx4 v%d, s[8:11], s28 offen lds" % LW_VO, ("w", n))
    e("s_lshl_b32 s35, s%d, 17" % S_HEAD)
    for n in range(min(NS, len(units))): issue(n)
    for n, u in enumerate(units):
        slot = n % NS
        A.wait_vm(("w", n))
        if u["kind"] == "qkv":
            for uu in range(2):
                for b in range(2):
                    for hb in range(2):
                        if u["dest"] == "lds": d = vr(LW_TMP + uu * 8 + 4 * b + 2 * hb, 2)
                        elif u["dest"] == "flat": d = vr(u["base"] + uu * 8 + 4 * b + 2 * hb, 2)
                        else: d = reg(u["dest"], u["base"] + (uu * 8 + u["t"]) * 8 + 4 * b + 2 * hb, 2)
                        A.ds("ds_read_b64_tr_b16 %s, v%d offset:%d" % (d, LW_A0 + uu, slot * 4096 + b * 2048 + hb * 256), "tr")
            A.wait_lds_all()
            if u["dest"] == "lds":
                u["slot"] = slot
                for uu in range(2):
                    for b in range(2):
                        A.ds("ds_write_b128 v%d, %s offset:%d" % (LW_WB, vr(LW_TMP + uu * 8 + 4 * b, 4), slot * 4096 + uu * 2048 + b * 1024), "wb")
                A.wait_lds_all()
        else:
            for nt in range(8):
                d = reg(u["dest"], u["base"] + (nt * 2 + u["t"]) * 8 + 4 * u["b"] + 2 * u["hb"], 2)
                G, T = nt >> 2, nt & 3
                A.ds("ds_read_b64_tr_b16 %s, v%d offset:%d" % (d, LW_AO + 2 * G + (T >> 1), slot * 4096 + (T & 1) * 8), "tr")
            A.wait_lds_all()
        if n + NS < len(units): issue(n + NS)

def units_qkv(m, dest, base):
    return [dict(kind="qkv", m=m, t=t, dest=dest, base=base) for t in range(8)]
def units_wo(dest, base):
    return [dict(kind="wo", m=3, t=t, b=b, hb=hb, dest=dest, base=base) for t in range(2) for b in range(2) for hb in range(2)]

def pubaddr(dst, tmp):
    e("v_lshrrev_b32 v%d, 2, v%d" % (dst, V_L16)); e("v_and_b32 v%d, 0xc0, v%d" % (dst, dst))
    e("v_lshlrev_b32 v%d, 1, v%d" % (tmp, V_L16)); e("v_and_b32 v%d, 32, v%d" % (tmp, tmp)); e("v_add_u32 v%d, v%d, v%d" % (dst, dst, tmp))
    e("v_lshrrev_b32 v%d, 3, v%d" % (tmp, V_L16)); e("v_and_b32 v%d, 28, v%d" % (tmp, tmp)); e("v_add_u32 v%d, v%d, v%d" % (dst, dst, tmp))

def chain():
    L = VLANE; a, b_, c_, d_ = VS, VS + 1, VS + 2, VS + 3
    lab("L_chain")
    e("v_lshlrev_b32 v%d, 4, v%d" % (V_L16, L))
    e("s_mul_i32 s28, s%d, %d" % (S_WAVE, WVSTRIDE)); e("v_add_u32 v%d, s28, v%d" % (V_WVA, V_L16))
    e("v_and_b32 v%d, 15, v%d" % (a, L)); e("v_lshlrev_b32 v%d, 5, v%d" % (a, a)); e("v_lshrrev_b32 v%d, 4, v%d" % (b_, L)); e("v_lshlrev_b32 v%d, 3, v%d" % (b_, b_))
    e("v_add_u32 v%d, v%d, v%d" % (a, a, b_)); e("s_lshl_b32 s28, s%d, 10" % S_WAVE); e("s_add_u32 s28, s28, %d" % L_X); e("v_add_u32 v%d, s28, v%d" % (V_XWR, a))
    e("v_lshrrev_b32 v%d, 5, v%d" % (a, L)); e("v_lshlrev_b32 v%d, 8, v%d" % (a, a))
    e("v_bfe_u32 v%d, v%d, 2, 2" % (b_, L)); e("v_lshlrev_b32 v%d, 6, v%d" % (b_, b_)); e("v_add_u32 v%d, v%d, v%d" % (a, a, b_))
    e("v_and_b32 v%d, 1, v%d" % (b_, L)); e("v_lshlrev_b32 v%d, 5, v%d" % (b_, b_)); e("v_add_u32 v%d, v%d, v%d" % (a, a, b_))
    e("v_bfe_u32 v%d, v%d, 4, 1" % (b_, L)); e("v_lshlrev_b32 v%d, 3, v%d" % (b_, b_)); e("v_add_u32 v%d, v%d, v%d" % (a, a, b_))
    e("s_lshr_b32 s28, s%d, 1" % S_WAVE); e("s_lshl_b32 s28, s28, 10"); e("s_and_b32 s29, s%d, 1" % S_WAVE); e("s_lshl_b32 s29, s29, 9")
    e("s_add_u32 s28, s28, s29"); e("s_add_u32 s28, s28, %d" % L_O); e("v_add_u32 v%d, s28, v%d" % (a, a))
    e("v_and_b32 v%d, 2, v%d" % (b_, L)); e("v_cmp_ne_u32 vcc, 0, v%d" % b_)
    e("v_mov_b32 v%d, %d" % (b_, L_DUM))
    e("s_nop 0")
    e("v_cndmask_b32 v%d, v%d, v%d, vcc" % (V_OWR, b_, a))
    e("v_and_b32 v%d, 8, v%d" % (b_, L)); e("v_cmp_eq_u32 s[48:49], 0, v%d" % b_)
    e("v_bfe_u32 v%d, v%d, 2, 2" % (a, L)); e("s_lshl_b32 s28, s%d, 3" % S_WAVE); e("v_add_u32 v%d, s28, v%d" % (a, a)); e("v_lshlrev_b32 v%d, 13, v%d" % (a, a))
    e("v_lshrrev_b32 v%d, 4, v%d" % (b_, L)); e("v_lshlrev_b32 v%d, 6, v%d" % (b_, b_)); e("v_add_u32 v%d, v%d, v%d" % (a, a, b_))
    e("v_and_b32 v%d, 3, v%d" % (b_, L)); e("v_lshlrev_b32 v%d, 4, v%d" % (b_, b_)); e("v_add_u32 v%d, v%d, v%d" % (a, a, b_))
    e("v_add_u32 v%d, s%d, v%d" % (V_PS0, S_H8, a))
    e("v_and_b32 v%d, 1, v%d" % (c_, L)); e("v_cmp_eq_u32 vcc, 0, v%d" % c_)
    e("v_mov_b32 v%d, 0xEEEEEEEE" % a); e("v_mov_b32 v%d, 0x44444444" % b_); e("v_cndmask_b32 v%d, v%d, v%d, vcc" % (V_IDX, a, b_))
    cval = struct.unpack("<I", struct.pack("<f", (128 ** -0.5) * math.log2(math.e)))[0]
    e("s_mov_b32 s%d, 0x%08x" % (S_C, cval))
    e("v_and_b32 v%d, 1, v%d" % (a, L)); e("v_lshlrev_b32 v%d, 4, v%d" % (a, a)); e("v_mov_b32 v%d, 0x3f80" % b_); e("v_lshlrev_b32 v%d, v%d, v%d" % (b_, a, b_))
    e("v_bfe_u32 v%d, v%d, 1, 2" % (a, L))
    for i in range(4):
        e("v_cmp_eq_u32 vcc, %d, v%d" % (i, a)); e("s_nop 1"); e("v_cndmask_b32 v%d, 0, v%d, vcc" % (12 + i, b_))
    e("v_add_u32 v%d, %d, v%d" % (a, L_SEL, V_L16))
    e("s_cmp_lg_u32 s%d, 0" % S_WAVE); e("s_cbranch_scc1 L_noinit")
    e("ds_write_b128 v%d, v[12:15]" % a); e("s_waitcnt lgkmcnt(0)")
    pubaddr(d_, c_)
    for i in range(4): e("v_mov_b32 v%d, -1" % (12 + i))
    for b in range(3):
        for half in range(2):
            e("s_add_u32 s29, s%d, %d" % (S_H13, WS_PB + b * 0x40000 + half * 4096))
            for x in range(4):
                e("buffer_store_dwordx4 v[12:15], v%d, s[4:7], s29 offen offset:%d" % (V_L16, x * 1024))
    for b in (1, 2):
        e("s_add_u32 s29, s%d, %d" % (S_H8, WS_MB + b * 8192))
        e("buffer_store_dword v12, v%d, s[4:7], s29 offen" % d_)
    e("s_load_dwordx2 s[30:31], s[0:1], %d" % KA["mem0"])
    e("v_lshrrev_b32 v%d, 4, v%d" % (a, L)); e("v_lshlrev_b32 v%d, 11, v%d" % (a, a))
    e("v_and_b32 v%d, 1, v%d" % (b_, L)); e("v_lshlrev_b32 v%d, 10, v%d" % (b_, b_)); e("v_add_u32 v%d, v%d, v%d" % (a, a, b_))
    e("v_bfe_u32 v%d, v%d, 1, 2" % (b_, L)); e("v_lshlrev_b32 v%d, 3, v%d" % (b_, b_)); e("v_add_u32 v%d, v%d, v%d" % (a, a, b_))
    e("v_bfe_u32 v%d, v%d, 3, 1" % (b_, L)); e("v_lshlrev_b32 v%d, 2, v%d" % (b_, b_)); e("v_add_u32 v%d, v%d, v%d" % (a, a, b_))
    e("s_lshl_b32 s29, s%d, 5" % S_HEAD); e("v_add_u32 v%d, s29, v%d" % (a, a))
    e("s_waitcnt lgkmcnt(0)")
    e("global_load_dword v%d, v%d, s[30:31]" % (b_, a)); e("s_waitcnt vmcnt(0)")
    e("s_add_u32 s29, s%d, %d" % (S_H8, WS_MB))
    e("buffer_store_dword v%d, v%d, s[4:7], s29 offen" % (b_, d_))
    e("v_lshlrev_b32 v%d, 7, v%d" % (a, L)); e("v_mov_b32 v%d, 0" % b_)
    e("s_lshl_b32 s29, s%d, 2" % S_HEAD); e("s_add_u32 s29, s29, %d" % WS_FL)
    e("s_mov_b64 exec, 0x1ff")
    e("buffer_store_dword v%d, v%d, s[4:7], s29 offen sc0 sc1" % (b_, a))
    e("s_mov_b64 exec, s[26:27]")
    e("s_waitcnt vmcnt(0)")
    e("s_mov_b64 exec, 1")
    e("v_mov_b32 v%d, 192" % a); e("v_mov_b32 v%d, 1" % b_); e("global_atomic_add v%d, v%d, s[24:25] sc1" % (a, b_))
    e("s_mov_b64 exec, s[26:27]")
    e("s_waitcnt vmcnt(0)")
    lab("L_noinit")
    load_setup(WVSTRIDE)
    wvu = units_qkv(2, "lds", 0); wvu[0]["dest"] = "flat"; wvu[0]["base"] = V_WV0
    units = units_qkv(0, "a", 0) + units_qkv(1, "a", 128) + units_wo("v", V_WO) + wvu
    load_units(units, 7)
    wvslot = {u["t"]: u["slot"] for u in wvu[1:]}
    e("s_cmp_lg_u32 s%d, 0" % S_WAVE); e("s_cbranch_scc1 L_tb_done")
    e("s_mov_b64 exec, 1")
    e("v_mov_b32 v%d, 192" % a); e("s_mov_b32 s29, 0")
    lab("L_tb")
    e("global_load_dword v%d, v%d, s[24:25] sc0 sc1" % (b_, a)); e("s_waitcnt vmcnt(0)"); e("v_readfirstlane_b32 s30, v%d" % b_)
    e("s_add_u32 s29, s29, 1"); e("s_cmp_gt_u32 s29, 0x40000"); e("s_cbranch_scc1 L_tb2")
    e("s_cmp_lt_u32 s30, 32"); e("s_cbranch_scc1 L_tb")
    lab("L_tb2")
    e("s_mov_b64 exec, s[26:27]")
    lab("L_tb_done")
    e("s_mov_b32 s%d, 0" % S_STEP)
    e("s_mov_b32 s%d, %d" % (S_MCUR, WS_MB)); e("s_mov_b32 s%d, %d" % (S_MPREV, WS_MB + 2 * 8192)); e("s_mov_b32 s%d, %d" % (S_PCUR, WS_PB)); e("s_mov_b32 s%d, %d" % (S_PPREV, WS_PB + 2 * 0x40000))
    e("s_add_u32 s%d, s%d, %d" % (S_KXO, S_H13, WS_KX)); e("s_add_u32 s%d, s%d, %d" % (S_VXO, S_H13, WS_VX))
    e("s_mov_b32 s%d, 0" % S_SPIN); e("s_mov_b32 s%d, 0" % S_PAR); e("s_mov_b32 s%d, 0" % S_FIRST)
    def need_seg(target_sgpr_or_none):
        if OPT["stage"] < 2: return
        lok = A.newlab("L_rdy"); lp = A.newlab("L_rp")
        if target_sgpr_or_none is None: e("s_mov_b32 s30, 0")
        else: e("s_add_u32 s30, s%d, 1" % target_sgpr_or_none)
        e("s_cmp_lt_u32 s30, s%d" % S_RDY); e("s_cbranch_scc1 %s" % lok)
        e("s_mov_b32 s33, 0")
        lab(lp)
        e("v_lshlrev_b32 v%d, 3, v%d" % (VT, V_L16))
        e("s_lshl_b32 s29, s%d, 2" % S_HEAD); e("s_add_u32 s29, s29, %d" % FL_KV)
        e("s_mov_b64 exec, 0xff")
        e("buffer_load_dword v%d, v%d, s[4:7], s29 offen sc0 sc1" % (VT + 1, VT))
        e("s_mov_b64 exec, s[26:27]")
        e("s_waitcnt vmcnt(0)")
        e("s_mov_b32 s31, 64")
        for t in range(1, 8):
            e("v_readlane_b32 s32, v%d, %d" % (VT + 1, t)); e("s_nop 0"); e("s_mul_i32 s32, s32, 7"); e("s_add_u32 s32, s32, %d" % (t - 1)); e("s_min_u32 s31, s31, s32")
        e("s_mov_b32 s%d, s31" % S_RDY)
        e("s_add_u32 s33, s33, 1"); e("s_cmp_gt_u32 s33, 0x40000"); e("s_cbranch_scc1 %s" % lok)
        e("s_cmp_lt_u32 s30, s%d" % S_RDY); e("s_cbranch_scc0 %s" % lp)
        lab(lok)
    def dma8(so, lb, par_sgpr):
        for i in range(8):
            if i % 4 == 0:
                e("s_add_u32 s28, s%d, %d" % (so, i * 1024)); e("s_add_u32 s29, s%d, %d" % (par_sgpr, lb + i * 1024)); e("s_mov_b32 m0, s29"); e("s_nop 0")
            e("buffer_load_dwordx4 v%d, s[4:7], s28 offen offset:%d sc1 lds" % (V_L16, (i % 4) * 1024))
    e("s_mov_b32 s%d, 0" % S_RDY)
    need_seg(None)
    l0 = A.newlab("L_pf"); l1 = A.newlab("L_pf")
    e("s_cmp_eq_u32 s%d, 1" % S_WAVE); e("s_cbranch_scc0 %s" % l0); dma8(S_KXO, L_KX, S_PAR); lab(l0)
    e("s_cmp_eq_u32 s%d, 2" % S_WAVE); e("s_cbranch_scc0 %s" % l1); dma8(S_VXO, L_VX, S_PAR); lab(l1)
    e("s_waitcnt vmcnt(0)"); e("s_barrier")
    if OPT["stamps"]:
        for i in range(16): e("s_mov_b32 s%d, 0" % (S_ST + i))
        e("s_memtime s[82:83]"); e("s_waitcnt lgkmcnt(0)"); e("s_mov_b32 s80, s82")
    if not OPT["final"]:
        e("s_memtime s[84:85]"); e("s_memrealtime s[88:89]"); e("s_waitcnt lgkmcnt(0)")

    T0, T1, T2, T3, T4, T5 = range(VT, VT + 6)
    lab("L_step")
    A.lds = []; A.vm = []
    QA, KA_ = V_QK, V_QK + 8
    def wvreg(t): return V_WV0 if t == 0 else (V_WVR if t % 2 == 1 else V_KX)
    def wv_issue(t):
        r = wvreg(t)
        for u in range(2):
            for b in range(2):
                A.ds("ds_read_b128 %s, v%d offset:%d" % (vr(r + 8 * u + 4 * b, 4), V_WVA, wvslot[t] * 4096 + u * 2048 + b * 1024), ("wv", t, u))
    ts(20)
    for i in range(4): e("v_mov_b32 v%d, 0" % (V_S + i))
    e("s_lshl_b32 s28, s%d, 11" % S_WAVE); e("s_add_u32 s%d, s%d, s28" % (S_MQ, S_MCUR))
    e("v_add_u32 v%d, s28, v%d" % (T2, V_L16)); e("v_add_u32 v%d, %d, v%d" % (T2, L_MEM, T2))
    e("v_mfma_f32_32x32x16_bf16 %s, %s, %s, 0" % (vr(V_QK, 16), vr(V_S, 4), vr(V_S, 4)))
    for a2 in range(1, 4): e("v_xor_b32 v%d, %d, v%d" % (T2 + a2, a2 << 11, T2))
    if OPT["stage"] >= 2:
        lsk = A.newlab("L_sk63")
        e("s_cmp_eq_u32 s%d, 63" % S_STEP); e("s_cbranch_scc1 %s" % lsk)
        need_seg(S_STEP)
        lab(lsk)
    e("s_add_u32 s%d, s%d, 0x40000" % (S_KXO, S_KXO)); e("s_add_u32 s%d, s%d, 0x40000" % (S_VXO, S_VXO))
    e("s_cmp_lt_u32 s%d, 2" % S_WAVE); e("s_cselect_b32 s%d, s%d, s%d" % (S_DMA, S_KXO, S_VXO)); e("s_lshr_b32 s29, s%d, 1" % S_WAVE); e("s_lshl_b32 s29, s29, 13"); e("s_add_u32 s29, s29, %d" % L_KX)
    e("s_lshl_b32 s30, s%d, 12" % S_WAVE); e("s_and_b32 s31, s30, 4096"); e("s_add_u32 s%d, s%d, s31" % (S_DMA, S_DMA))
    e("s_xor_b32 s31, s%d, 8192" % S_PAR); e("s_add_u32 s29, s29, s31"); e("s_add_u32 s29, s29, s30")
    e("s_mov_b32 m0, s29")
    for i in range(OPT["dly_mem"]): e("s_nop 7")
    lab("L_pm")
    e("buffer_load_dwordx4 %s, v%d, s[4:7], s%d offen sc1" % (vr(V_LD, 4), V_L16, S_MQ))
    e("buffer_load_dwordx4 %s, v%d, s[4:7], s%d offen offset:1024 sc1" % (vr(V_LD + 4, 4), V_L16, S_MQ))
    ts(21)
    e("s_cmp_lg_u32 s%d, 0" % S_FIRST); e("s_cbranch_scc1 L_pm_w")
    e("s_mov_b32 s%d, 1" % S_FIRST)
    e("v_mfma_f32_16x16x32_bf16 %s, %s, %s, 0" % (vr(V_VA, 4), vr(V_S, 4), vr(V_S, 4)))
    e("v_mfma_f32_16x16x32_bf16 %s, %s, %s, 0" % (vr(V_VA + 4, 4), vr(V_S, 4), vr(V_S, 4)))
    wv_issue(1)
    lab("L_pm_w")
    e("s_add_u32 s%d, s%d, 1" % (S_SPIN, S_SPIN))
    e("s_waitcnt vmcnt(0)")
    ts(22)
    A.ds("ds_write_b128 v%d, %s" % (T2, vr(V_LD, 4)), "mw"); A.ds("ds_write_b128 v%d, %s offset:1024" % (T2, vr(V_LD + 4, 4)), "mw")
    e("v_max3_u32 v%d, v%d, v%d, v%d" % (T0, V_LD, V_LD + 1, V_LD + 2)); e("v_max3_u32 v%d, v%d, v%d, v%d" % (T1, V_LD + 3, V_LD + 4, V_LD + 5))
    e("v_max3_u32 v%d, v%d, v%d, v%d" % (T0, T0, V_LD + 6, V_LD + 7)); e("v_max_u32 v%d, v%d, v%d" % (T0, T0, T1))
    e("v_cmp_eq_u32 vcc, -1, v%d" % T0)
    e("s_cmp_gt_u32 s%d, 0x200000" % S_SPIN); e("s_cbranch_scc1 L_pm_done")
    if not OPT["nowait"]:
        e("s_cbranch_vccz L_pm_done")
        e("s_waitcnt lgkmcnt(0)")
        e("s_branch L_pm")
    lab("L_pm_done")
    e("s_mov_b32 s%d, 0" % S_FIRST)
    stamp(0)
    def smf(acc, areg, breg):
        e("v_smfmac_f32_16x16x64_bf16 %s, %s, %s, v%d" % (vr(acc, 4), vr(areg, 4), breg, V_IDX))
    def qk_l(tau, areg):
        return [lambda acc=acc, base=base, u=u: smf(acc, areg, ar(base + (u * 8 + tau) * 8, 8)) for (acc, base, u) in ((QA, 0, 0), (KA_, 128, 0), (QA + 4, 0, 1), (KA_ + 4, 128, 1))]
    def vv_l(tau, areg):
        return [lambda u=u: smf(V_VA + 4 * u, areg, vr(wvreg(tau) + 8 * u, 8)) for u in range(2)]
    for f in qk_l(0, V_LD) + qk_l(1, V_LD + 4): f()
    stamp(8, 2)
    A.wait_lds("mw"); e("s_barrier")
    stamp(9, 2)
    def rd_m(tau): return lambda: A.ds("ds_read_b128 %s, v%d offset:%d" % (vr(V_MEM + 4 * tau, 4), T2 + (tau >> 1), (tau & 1) * 1024), ("m", tau))
    def rd_wv(t):
        r = wvreg(t)
        return [lambda u=u, b=b: A.ds("ds_read_b128 %s, v%d offset:%d" % (vr(r + 8 * u + 4 * b, 4), V_WVA, wvslot[t] * 4096 + u * 2048 + b * 1024), ("wv", t, u)) for u in range(2) for b in range(2)]
    def rd_kx(f):
        kk, kt = f >> 1, f & 1
        return lambda: A.ds("ds_read_b128 %s, v%d offset:%d" % (vr(V_MEM + 4 * f, 4), T0, (kt * 4 + kk) * 1024), ("kx", kk))
    def rd_vx(u): return lambda: A.ds("ds_read_b128 %s, v%d offset:%d" % (vr(V_KX + 4 * u, 4), T1, u * 1024), ("vx", u))
    rd_m(2)(); rd_m(3)()
    if OPT["stage"] >= 3:
        lfk = A.newlab("L_fkm")
        e("s_cmp_eq_u32 s%d, 1" % S_WAVE); e("s_cbranch_scc0 %s" % lfk)
        e("v_mov_b32 v%d, s%d" % (T0, S_STEP)); e("v_mov_b32 v%d, 0" % T1); e("s_lshl_b32 s28, s%d, 2" % S_HEAD); e("s_add_u32 s28, s28, %d" % FL_KM)
        e("s_mov_b64 exec, 1"); e("buffer_store_dword v%d, v%d, s[4:7], s28 offen sc0 sc1" % (T0, T1)); e("s_mov_b64 exec, s[26:27]")
        lab(lfk)
    lbg = A.newlab("L_bg")
    e("s_cmp_eq_u32 s%d, 63" % S_STEP); e("s_cbranch_scc1 %s" % lbg)
    for i in range(4):
        e("buffer_load_dwordx4 v%d, s[4:7], s%d offen offset:%d sc1 lds" % (V_L16, S_DMA, i * 1024))
    lab(lbg)
    e("v_add_u32 v%d, s%d, v%d" % (T0, S_PAR, V_L16)); e("s_lshl_b32 s28, s%d, 11" % S_WAVE); e("v_add_u32 v%d, s28, v%d" % (T1, T0))
    e("v_add_u32 v%d, %d, v%d" % (T0, L_KX, T0)); e("v_add_u32 v%d, %d, v%d" % (T1, L_VX, T1))
    vl = vv_l(0, V_LD); vl[0](); rd_m(4)(); vl[1](); rd_m(5)()
    A.wait_lds(("wv", 1, 1))
    vl = vv_l(1, V_LD + 4); vl[0](); rd_m(6)(); vl[1](); rd_m(7)()
    fill = rd_wv(2) + rd_wv(3) + [rd_kx(0), rd_kx(1)]
    def run(mf, fill):
        for f in mf:
            f()
            if fill: fill.pop(0)()
    def do_vv(tau):
        vl = vv_l(tau, V_MEM + 4 * tau)
        A.wait_lds(("wv", tau, 0)); vl[0]()
        if fill: fill.pop(0)()
        A.wait_lds(("wv", tau, 1)); vl[1]()
        while fill: fill.pop(0)()
        if tau + 2 < 8: fill.extend(rd_wv(tau + 2))
        fill.append(rd_kx(tau))
        if tau == 6: fill.extend([rd_vx(0), rd_vx(1)])
    for tau in range(2, 8):
        A.wait_lds(("m", tau))
        run(qk_l(tau, V_MEM + 4 * tau), fill)
        if 3 <= tau <= 6: do_vv(tau - 1)
        ts(30 + tau)
    stamp(1)
    do_vv(6)
    e("v_lshrrev_b32 v%d, 1, v%d" % (T5, V_L16)); e("v_add_u32 v%d, %d, v%d" % (T5, L_X, T5))
    vl = vv_l(7, V_MEM + 28)
    A.wait_lds(("wv", 7, 0)); vl[0](); A.wait_lds(("wv", 7, 1)); vl[1]()
    A.nop(1)
    for u in range(2):
        q, k_ = QA + 4 * u, KA_ + 4 * u
        e("v_add_f32 v%d, v%d, v%d" % (k_, k_, k_ + 1)); e("v_add_f32 v%d, v%d, v%d" % (k_ + 2, k_ + 2, k_ + 3))
        e("v_add_f32 v%d, v%d, v%d" % (q, q, q + 1)); e("v_add_f32 v%d, v%d, v%d" % (q + 2, q + 2, q + 3))
        e("v_cvt_pk_bf16_f32 v%d, v%d, v%d" % (k_, k_, k_ + 2)); e("v_cvt_pk_bf16_f32 v%d, v%d, v%d" % (k_ + 1, q, q + 2))
        A.ds("ds_write_b64 v%d, %s offset:%d" % (V_XWR, vr(k_, 2), u * 512), "xw")
    if OPT["stage"] >= 3:
        e("s_lshl_b32 s28, s%d, 17" % S_STEP); e("s_lshl_b32 s29, s%d, 12" % S_HEAD); e("s_add_u32 s28, s28, s29"); e("s_add_u32 s28, s28, %d" % (WS_KM - L_X))
        for u in range(2):
            e("buffer_store_dwordx2 %s, v%d, s[4:7], s28 offen offset:%d sc0 sc1" % (vr(KA_ + 4 * u, 2), V_XWR, u * 512))
    while fill: fill.pop(0)()
    rd_kx(7)()
    va = V_VA
    ONES = V_KX + 8
    ZS = V_KX + 12
    for i in range(4): e("v_mov_b32 v%d, 0" % (ZS + i))
    for u in range(2):
        x = va + 4 * u
        e("v_add_f32 v%d, v%d, v%d" % (x, x, x + 1)); e("v_add_f32 v%d, v%d, v%d" % (x + 2, x + 2, x + 3))
        e("v_cvt_pk_bf16_f32 v%d, v%d, v%d" % (x, x, x + 2)); e("v_mov_b32 v%d, 0" % (x + 1))
    if OPT["stage"] >= 3:
        e("s_lshl_b32 s28, s%d, 17" % S_STEP); e("s_lshl_b32 s29, s%d, 12" % S_HEAD); e("s_add_u32 s28, s28, s29"); e("s_lshl_b32 s29, s%d, 10" % S_WAVE); e("s_add_u32 s28, s28, s29"); e("s_add_u32 s28, s28, %d" % WS_VM)
        e("v_lshrrev_b32 v%d, 1, v%d" % (T4, V_L16))
        for u in range(2):
            e("buffer_store_dwordx2 %s, v%d, s[4:7], s28 offen offset:%d sc0 sc1" % (vr(va + 4 * u, 2), T4, u * 512))
    stamp(10, 2)
    A.wait_lds("xw"); e("s_barrier")
    stamp(11, 2)
    for kk in range(4):
        for b in range(2):
            A.ds("ds_read_b64_tr_b16 %s, v%d offset:%d" % (vr(V_QK + 4 * kk + 2 * b, 2), T5, kk * 1024 + b * 512), ("x", kk))
    stamp(2)
    for kk in range(4):
        A.wait_lds(("x", kk))
        X = vr(V_QK + 4 * kk, 4)
        cs = lambda r: "0" if kk == 0 else vr(r, 4)
        e("v_mfma_f32_16x16x32_bf16 %s, %s, %s, %s" % (vr(V_S, 4), vr(V_MEM + kk * 8, 4), X, cs(V_S)))
        e("v_mfma_f32_16x16x32_bf16 %s, %s, %s, %s" % (vr(V_S + 4, 4), vr(V_MEM + kk * 8 + 4, 4), X, cs(V_S + 4)))
        e("v_mfma_f32_16x16x32_bf16 %s, %s, %s, %s" % (vr(V_S + 8, 4), X, X, cs(V_S + 8)))
    A.nop(6)
    stamp(3)
    S = V_S
    e("v_max3_f32 v%d, v%d, v%d, v%d" % (T0, S, S + 1, S + 2)); e("v_max3_f32 v%d, v%d, v%d, v%d" % (T1, S + 4, S + 5, S + 6))
    e("v_max3_f32 v%d, v%d, v%d, v%d" % (T0, T0, S + 3, S + 7)); e("v_max3_f32 v%d, v%d, v%d, v%d" % (T1, T1, S + 8, S + 9))
    e("v_max_f32 v%d, v%d, v%d" % (T0, T0, T1))
    e("v_mov_b32 v%d, v%d" % (T1, T0))
    e("v_mfma_f32_32x32x16_bf16 %s, %s, %s, 0" % (vr(V_MEM, 16), vr(ZS, 4), vr(ZS, 4)))
    A.nop(1); e("v_permlane16_swap_b32 v%d, v%d" % (T0, T1)); e("v_max_f32 v%d, v%d, v%d" % (T0, T0, T1))
    e("v_mov_b32 v%d, v%d" % (T1, T0))
    e("v_mfma_f32_32x32x16_bf16 %s, %s, %s, 0" % (vr(V_MEM + 16, 16), vr(ZS, 4), vr(ZS, 4)))
    A.nop(1); e("v_permlane32_swap_b32 v%d, v%d" % (T0, T1)); e("v_max_f32 v%d, v%d, v%d" % (T0, T0, T1))
    e("v_mul_f32 v%d, s%d, v%d" % (T0, S_C, T0))
    for i in range(10): e("v_fma_f32 v%d, v%d, s%d, -v%d" % (S + i, S + i, S_C, T0))
    for i in range(10): e("v_exp_f32 v%d, v%d" % (S + i, S + i))
    e("v_add_f32 v%d, v%d, v%d" % (T2, S, S + 1)); e("v_add_f32 v%d, v%d, v%d" % (T3, S + 2, S + 3))
    e("v_cvt_pk_bf16_f32 v%d, v%d, v%d" % (S, S, S + 1)); e("v_cvt_pk_bf16_f32 v%d, v%d, v%d" % (S + 1, S + 2, S + 3))
    e("v_cvt_pk_bf16_f32 v%d, v%d, v%d" % (S + 2, S + 4, S + 5)); e("v_cvt_pk_bf16_f32 v%d, v%d, v%d" % (S + 3, S + 6, S + 7))
    e("v_cvt_pk_bf16_f32 v%d, v%d, v%d" % (S + 10, S + 8, S + 9)); e("v_mov_b32 v%d, 0" % (S + 11))
    stamp(12, 2)
    O0, O1 = V_QK + 4, V_QK + 8
    A.wait_lds(("vx", 1))
    e("v_mfma_f32_16x16x32_bf16 %s, %s, %s, 0" % (vr(O0, 4), vr(V_KX, 4), vr(S, 4)))
    e("v_add_f32 v%d, v%d, v%d" % (T2, T2, S + 4)); e("v_add_f32 v%d, v%d, v%d" % (T3, T3, S + 5))
    e("v_mfma_f32_16x16x32_bf16 %s, %s, %s, 0" % (vr(O1, 4), vr(V_KX + 4, 4), vr(S, 4)))
    e("v_add_f32 v%d, v%d, v%d" % (T2, T2, S + 6)); e("v_add_f32 v%d, v%d, v%d" % (T3, T3, S + 7))
    e("v_mfma_f32_16x16x16_bf16 %s, %s, %s, %s" % (vr(O0, 4), vr(va, 2), vr(S + 10, 2), vr(O0, 4)))
    e("v_add_f32 v%d, v%d, v%d" % (T2, T2, S + 8)); e("v_add_f32 v%d, v%d, v%d" % (T3, T3, S + 9))
    e("v_mfma_f32_16x16x16_bf16 %s, %s, %s, %s" % (vr(O1, 4), vr(va + 4, 2), vr(S + 10, 2), vr(O1, 4)))
    e("v_add_f32 v%d, v%d, v%d" % (T2, T2, T3))
    e("v_mov_b32 v%d, v%d" % (T3, T2)); A.nop(2); e("v_permlane16_swap_b32 v%d, v%d" % (T2, T3)); e("v_add_f32 v%d, v%d, v%d" % (T2, T2, T3))
    e("v_mov_b32 v%d, v%d" % (T3, T2)); A.nop(2); e("v_permlane32_swap_b32 v%d, v%d" % (T2, T3)); e("v_add_f32 v%d, v%d, v%d" % (T2, T2, T3))
    e("v_rcp_f32 v%d, v%d" % (T2, T2))
    e("v_add_u32 v%d, %d, v%d" % (T3, L_O, V_L16))
    for r in range(4): e("v_mul_f32 v%d, v%d, v%d" % (O0 + r, O0 + r, T2))
    e("v_cvt_pk_bf16_f32 v%d, v%d, v%d" % (O0, O0, O0 + 1)); e("v_cvt_pk_bf16_f32 v%d, v%d, v%d" % (O0 + 1, O0 + 2, O0 + 3))
    A.ds("ds_write2_b32 v%d, v%d, v%d offset0:0 offset1:4" % (V_OWR, O0, O0 + 1), "ow")
    for r in range(4): e("v_mul_f32 v%d, v%d, v%d" % (O1 + r, O1 + r, T2))
    e("v_cvt_pk_bf16_f32 v%d, v%d, v%d" % (O1, O1, O1 + 1)); e("v_cvt_pk_bf16_f32 v%d, v%d, v%d" % (O1 + 1, O1 + 2, O1 + 3))
    A.ds("ds_write2_b32 v%d, v%d, v%d offset0:1 offset1:5" % (V_OWR, O1, O1 + 1), "ow")
    e("s_cmp_eq_u32 s%d, 63" % S_STEP); e("s_cbranch_scc1 L_chain_done")
    l3 = A.newlab("L_w3")
    e("s_cmp_eq_u32 s%d, 3" % S_WAVE); e("s_cbranch_scc0 %s" % l3); e("s_waitcnt vmcnt(%d)" % (8 if OPT["stage"] >= 3 else 4)); lab(l3)
    stamp(13, 2)
    A.wait_lds_all(); e("s_barrier")
    for t in range(2):
        A.ds("ds_read_b128 %s, v%d offset:%d" % (vr(V_KX + 4 * t, 4), T3, t * 1024), ("o", t))
    stamp(4)
    def wo(nt, t):
        e("v_smfmac_f32_16x16x64_bf16 %s, %s, %s, v%d" % (vr(V_MEM + 4 * nt, 4), vr(V_KX + 4 * t, 4), vr(V_WO + (nt * 2 + t) * 8, 8), V_IDX))
    e("s_add_u32 s30, s%d, %d" % (S_PCUR, 4 * 8192))
    A.wait_lds(("o", 0))
    for nt in range(4): wo(nt, 0)
    A.wait_lds(("o", 1))
    for nt in range(4): wo(nt, 1)
    def fin(nt, dst):
        T = V_MEM + 4 * nt
        e("v_add_f32 v%d, v%d, v%d" % (T, T, T + 1)); e("v_add_f32 v%d, v%d, v%d" % (T + 2, T + 2, T + 3))
        e("v_cvt_pk_bf16_f32 v%d, v%d, v%d" % (dst, T, T + 2))
    for nt in range(4, 8): wo(nt, 0)
    wo(4, 1); wo(5, 1); fin(0, V_S); wo(6, 1); fin(1, V_S + 1); wo(7, 1); fin(2, V_S + 2); fin(3, V_S + 3)
    e("buffer_store_dwordx4 %s, v%d, s[4:7], s%d offen" % (vr(V_S, 4), V_PS0, S_PCUR))
    A.nop(1)
    for i in range(4): fin(4 + i, V_S + 4 + i)
    e("buffer_store_dwordx4 %s, v%d, s[4:7], s30 offen" % (vr(V_S + 4, 4), V_PS0))
    stamp(5)
    e("s_add_u32 s%d, s%d, 8192" % (S_MNXT, S_MCUR)); e("s_cmp_eq_u32 s%d, %d" % (S_MNXT, WS_MB + 3 * 8192)); e("s_cselect_b32 s%d, %d, s%d" % (S_MNXT, WS_MB, S_MNXT))
    e("s_cmp_eq_u32 s%d, 0" % S_WAVE); e("s_cbranch_scc1 L_reduce")
    e("s_cmp_eq_u32 s%d, 3" % S_WAVE); e("s_cbranch_scc0 L_red_done")
    for i in range(4): e("v_mov_b32 v%d, -1" % (V_S + 8 + i))
    pubaddr(T0, T1)
    e("s_add_u32 s29, s%d, s%d" % (S_MPREV, S_H8)); e("s_add_u32 s28, s%d, s%d" % (S_PPREV, S_H13)); e("s_add_u32 s30, s28, 4096")
    e("s_waitcnt vmcnt(0)")
    e("buffer_store_dword v%d, v%d, s[4:7], s29 offen" % (V_S + 8, T0))
    for x in range(8):
        e("buffer_store_dwordx4 %s, v%d, s[4:7], s%d offen offset:%d" % (vr(V_S + 8, 4), V_L16, 28 if x < 4 else 30, (x & 3) * 1024))
    e("s_branch L_red_done")
    lab("L_reduce")
    e("s_add_u32 s%d, s%d, s%d" % (S_RED, S_PCUR, S_H13)); e("s_add_u32 s29, s%d, 4096" % S_RED)
    e("v_add_u32 v%d, %d, v%d" % (T3, L_SEL, V_L16))
    e("ds_read_b128 %s, v%d" % (vr(V_KX, 4), T3))
    pubaddr(T4, T5)
    e("s_add_u32 s31, s%d, s%d" % (S_MNXT, S_H8))
    for i in range(OPT["dly_red"]): e("s_nop 7")
    lab("L_pr")
    for x in range(8):
        e("buffer_load_dwordx4 %s, v%d, s[4:7], s%d offen offset:%d sc1" % (vr(V_MEM + 4 * x, 4), V_L16, S_RED if x < 4 else 29, (x & 3) * 1024))
    ts(40)
    e("s_add_u32 s%d, s%d, 1" % (S_SPIN, S_SPIN))
    e("s_waitcnt lgkmcnt(0)")
    for x in range(8):
        e("s_waitcnt vmcnt(%d)" % (7 - x))
        if x in (0, 7): ts(41 + x)
        e("v_mfma_f32_16x16x32_bf16 %s, %s, %s, %s" % (vr(V_QK, 4), vr(V_MEM + 4 * x, 4), vr(V_KX, 4), "0" if x == 0 else vr(V_QK, 4)))
        a_ = V_MEM + 4 * x
        if x == 0:
            e("v_max3_u32 v%d, v%d, v%d, v%d" % (T0, a_, a_ + 1, a_ + 2)); e("v_max_u32 v%d, v%d, v%d" % (T0, T0, a_ + 3))
        else:
            e("v_max3_u32 v%d, v%d, v%d, v%d" % (T0, T0, a_, a_ + 1)); e("v_max3_u32 v%d, v%d, v%d, v%d" % (T0, T0, a_ + 2, a_ + 3))
    e("v_cmp_eq_u32 vcc, -1, v%d" % T0)
    e("s_cmp_gt_u32 s%d, 0x200000" % S_SPIN); e("s_cbranch_scc1 L_pr_done")
    if not OPT["nowait"]: e("s_cbranch_vccnz L_pr")
    lab("L_pr_done")
    A.nop(3)
    e("v_cndmask_b32 v%d, v%d, v%d, s[48:49]" % (T0, V_QK + 2, V_QK)); e("v_cndmask_b32 v%d, v%d, v%d, s[48:49]" % (T1, V_QK + 3, V_QK + 1))
    e("v_cvt_pk_bf16_f32 v%d, v%d, v%d" % (T0, T0, T1))
    e("buffer_store_dword v%d, v%d, s[4:7], s31 offen" % (T0, T4))
    if OPT["hist"]:
        e("s_add_u32 s30, s%d, 1" % S_STEP); e("s_lshl_b32 s30, s30, 13"); e("s_add_u32 s30, s30, s%d" % S_H8); e("s_add_u32 s30, s30, %d" % WS_HIST)
        e("buffer_store_dword v%d, v%d, s[4:7], s30 offen" % (T0, T4))
    lab("L_red_done")
    stamp(6)
    e("s_barrier")
    e("s_mov_b32 s%d, s%d" % (S_MPREV, S_MCUR))
    e("s_mov_b32 s%d, s%d" % (S_MCUR, S_MNXT)); e("s_mov_b32 s%d, s%d" % (S_PPREV, S_PCUR))
    e("s_add_u32 s%d, s%d, 0x40000" % (S_PCUR, S_PCUR)); e("s_cmp_eq_u32 s%d, %d" % (S_PCUR, WS_PB + 3 * 0x40000)); e("s_cselect_b32 s%d, %d, s%d" % (S_PCUR, WS_PB, S_PCUR))
    e("s_xor_b32 s%d, s%d, 8192" % (S_PAR, S_PAR))
    e("s_add_u32 s%d, s%d, 1" % (S_STEP, S_STEP))
    stamp(7)
    e("s_cmp_lt_u32 s%d, %d" % (S_STEP, OPT["nsteps"])); e("s_cbranch_scc1 L_step")
    lab("L_chain_done")
    if OPT["stage"] >= 3:
        e("s_waitcnt vmcnt(0)"); e("s_barrier")
        lfk = A.newlab("L_fkm")
        e("s_cmp_eq_u32 s%d, 1" % S_WAVE); e("s_cbranch_scc0 %s" % lfk)
        e("v_mov_b32 v6, 64"); e("v_mov_b32 v7, 0"); e("s_lshl_b32 s28, s%d, 2" % S_HEAD); e("s_add_u32 s28, s28, %d" % FL_KM)
        e("s_mov_b64 exec, 1"); e("buffer_store_dword v6, v7, s[4:7], s28 offen sc0 sc1"); e("s_mov_b64 exec, s[26:27]")
        lab(lfk)
    if not OPT["final"]:
        e("s_memtime s[86:87]"); e("s_memrealtime s[90:91]"); e("s_waitcnt lgkmcnt(0)")
        e("s_sub_u32 s86, s86, s84"); e("s_sub_u32 s90, s90, s88")
        e("s_lshl_b32 s28, s%d, 2" % S_HEAD); e("s_add_u32 s28, s28, s%d" % S_WAVE); e("s_lshl_b32 s28, s28, 7"); e("s_add_u32 s28, s28, %d" % WS_STAMP)
        e("s_mov_b64 exec, 1"); e("v_mov_b32 v10, 0")
        vals = [86, 90, S_SPIN] + ([S_ST + i for i in range(16)] if OPT["stamps"] else []) + [64 + 2 * k for k in range(len(TS))]
        for i, r in enumerate(vals):
            e("v_mov_b32 v11, s%d" % r); e("buffer_store_dword v11, v10, s[4:7], s28 offen offset:%d" % (4 * i))
    e("s_waitcnt vmcnt(0)")
    e("s_branch L_end")

S_X = 12
S_SEG, S_K, S_NSEG, S_XB = 40, 41, 42, 43
def wait_dbg_counter(off_bytes_sgpr_or_int, target, lname):
    e("s_mov_b64 exec, 1")
    if isinstance(off_bytes_sgpr_or_int, int): e("v_mov_b32 v32, %d" % off_bytes_sgpr_or_int)
    else: e("v_mov_b32 v32, %s" % off_bytes_sgpr_or_int)
    e("s_mov_b32 s29, 0")
    lab(lname)
    e("global_load_dword v33, v32, s[24:25] sc0 sc1"); e("s_waitcnt vmcnt(0)"); e("v_readfirstlane_b32 s30, v33")
    e("s_add_u32 s29, s29, 1"); e("s_cmp_gt_u32 s29, 0x40000"); e("s_cbranch_scc1 %s_d" % lname)
    e("s_cmp_lt_u32 s30, %d" % target); e("s_cbranch_scc1 %s" % lname)
    lab(lname + "_d")
    e("s_mov_b64 exec, s[26:27]")

CV_HS, CV_CS = 4416, 17664
CV_XR, CV_XS = 70656, 7680
CV_YB = 101376
def conv_task():
    lskip = A.newlab("L_cv_skip")
    e("s_cmp_lt_u32 s%d, 2" % S_TEAM); e("s_cbranch_scc1 %s" % lskip)
    e("s_cmp_gt_u32 s%d, 5" % S_TEAM); e("s_cbranch_scc1 %s" % lskip)
    TASK, CH = 44, 45
    e("s_sub_u32 s%d, s%d, 2" % (TASK, S_TEAM)); e("s_lshl_b32 s%d, s%d, 5" % (TASK, TASK)); e("s_add_u32 s%d, s%d, s%d" % (TASK, TASK, S_HEAD))
    e("s_lshl_b32 s%d, s%d, 2" % (CH, TASK)); e("s_add_u32 s%d, s%d, s%d" % (CH, CH, S_WAVE))
    e("s_load_dwordx4 s[64:67], s[0:1], %d" % KA["q"])
    e("s_load_dwordx4 s[68:71], s[0:1], %d" % KA["v"])
    e("s_load_dwordx4 s[72:75], s[0:1], %d" % KA["ssmk"])
    e("s_load_dwordx2 s[76:77], s[0:1], %d" % KA["out"])
    e("s_waitcnt lgkmcnt(0)")
    e("s_lshl_b32 s28, s%d, 5" % TASK); e("s_add_u32 s70, s70, s28"); e("s_addc_u32 s71, s71, 0")
    e("s_lshl_b32 s28, s%d, 3" % TASK); e("s_add_u32 s74, s74, s28"); e("s_addc_u32 s75, s75, 0")
    e("s_load_dwordx8 s[80:87], s[70:71], 0"); e("s_load_dwordx2 s[88:89], s[74:75], 0")
    LN = 2
    e("v_lshrrev_b32 v%d, 4, v%d" % (LN, V_L16))
    srd(8, 72, 0x200000)
    e("s_mul_i32 s32, s%d, %d" % (S_WAVE, CV_CS))
    e("s_lshl_b32 s33, s%d, 12" % CH)
    for r in range(4):
        for i in range(4):
            e("s_add_u32 m0, s32, %d" % (r * CV_HS + 64 + i * 1024)); e("s_add_u32 s28, s33, %d" % (i * 1024 + 2 * r))
            e("buffer_load_dwordx4 v%d, s[8:11], s28 offen lds" % V_L16)
    for i in range(4): e("v_mov_b32 v%d, 0" % (4 + i))
    e("v_bfe_u32 v8, v%d, 2, 2" % LN); e("v_mul_u32_u24 v8, %d, v8" % CV_HS); e("v_and_b32 v9, 3, v%d" % LN); e("v_lshlrev_b32 v9, 4, v9"); e("v_add_u32 v8, v8, v9"); e("v_add_u32 v8, s32, v8")
    e("ds_write_b128 v8, v[4:7]")
    e("v_and_b32 v9, 3, v%d" % LN); e("v_lshlrev_b32 v10, 1, v9"); e("v_add_u32 v10, s33, v10")
    e("buffer_load_ushort v11, v10, s[8:11], 0 offen")
    e("v_bfe_u32 v12, v%d, 2, 2" % LN); e("v_mul_u32_u24 v13, %d, v12" % (CV_HS - 2)); e("v_lshlrev_b32 v14, 1, v9"); e("v_add_u32 v13, v13, v14"); e("v_add_u32 v13, 64, v13"); e("v_add_u32 v13, s32, v13")
    e("v_cmp_lt_u32 vcc, v9, v12"); e("v_cmp_gt_u32 s[30:31], 16, v%d" % LN); e("s_nop 1"); e("s_and_b64 s[30:31], s[30:31], vcc")
    e("s_mul_i32 s28, s%d, %d" % (S_WAVE, CV_XS)); e("s_add_u32 s28, s28, %d" % CV_XR); e("v_add_u32 v8, s28, v%d" % V_L16)
    e("ds_write_b128 v8, v[4:7]"); e("ds_write_b128 v8, v[4:7] offset:1024")
    e("v_cmp_gt_u32 vcc, 32, v%d" % LN); e("s_nop 1"); e("s_mov_b64 exec, vcc"); e("ds_write_b128 v8, v[4:7] offset:2048"); e("s_mov_b64 exec, s[26:27]")
    e("s_waitcnt vmcnt(0)")
    e("s_mov_b64 exec, s[30:31]"); e("ds_write_b16 v13, v11"); e("s_mov_b64 exec, s[26:27]")
    srd(8, 66, 0x200000)
    srd(12, 68, 0x200000)
    TH = 3
    e("s_lshl_b32 s28, s%d, 6" % S_WAVE); e("v_add_u32 v%d, s28, v%d" % (TH, LN))
    e("v_lshlrev_b32 v4, 13, v%d" % TH); e("s_lshl_b32 s28, s%d, 3" % TASK); e("v_add_u32 v4, s28, v4")
    KR, VR = 16, 40
    for j in range(11):
        e("v_add_u32 v5, %d, v4" % ((j - 3) * 1024 & 0xffffffff))
        e("buffer_load_dwordx2 %s, v5, s[8:11], 0 offen" % vr(KR + 2 * j, 2))
    for j in range(8):
        e("v_add_u32 v5, %d, v4" % (j * 1024))
        e("buffer_load_dwordx2 %s, v5, s[12:15], 0 offen" % vr(VR + 2 * j, 2))
    e("s_waitcnt lgkmcnt(0)")
    SK = {}
    for cch in range(4):
        for j in range(4):
            src = 80 + 2 * cch + (j >> 1)
            dst = 96 + cch * 4 + j
            if j & 1: e("s_and_b32 s28, s%d, 0xffff0000" % src)
            else: e("s_lshl_b32 s28, s%d, 16" % src)
            e("v_mov_b32 v%d, s28" % dst)
            SK[(cch, j)] = dst
    for cch in range(4):
        src = 88 + (cch >> 1)
        if cch & 1: e("s_and_b32 s28, s%d, 0xffff0000" % src)
        else: e("s_lshl_b32 s28, s%d, 16" % src)
        e("v_mov_b32 v%d, s28" % (112 + cch))
    e("s_waitcnt vmcnt(0)")
    KV = 116
    XP = 56
    for cch in range(4):
        d, hi = cch >> 1, cch & 1
        U = 72
        for j in range(11):
            if hi: e("v_and_b32 v%d, 0xffff0000, v%d" % (U + j, KR + 2 * j + d))
            else: e("v_lshlrev_b32 v%d, 16, v%d" % (U + j, KR + 2 * j + d))
        for t in range(8):
            e("v_mul_f32 v%d, v%d, v%d" % (84 + t, U + t, SK[(cch, 3)]))
            for j in (2, 1, 0):
                e("v_fmac_f32 v%d, v%d, v%d" % (84 + t, U + t + 3 - j, SK[(cch, j)]))
            if hi: e("v_and_b32 v92, 0xffff0000, v%d" % (VR + 2 * t + d))
            else: e("v_lshlrev_b32 v92, 16, v%d" % (VR + 2 * t + d))
            e("v_mul_f32 v%d, v%d, v92" % (84 + t, 84 + t))
        for p in range(4):
            e("v_cvt_pk_bf16_f32 v%d, v%d, v%d" % (XP + 4 * cch + p, 84 + 7 - 2 * p, 84 + 6 - 2 * p))
    e("v_lshrrev_b32 v4, 2, v%d" % TH); e("v_mul_u32_u24 v4, 80, v4"); e("v_and_b32 v5, 3, v%d" % TH); e("v_lshlrev_b32 v5, 4, v5"); e("v_add_u32 v4, v4, v5")
    e("v_add_u32 v4, %d, v4" % (CV_XR + 32 * 80))
    e("s_waitcnt lgkmcnt(0)"); e("s_barrier")
    for cch in range(4):
        e("ds_write_b128 v4, %s offset:%d" % (vr(XP + 4 * cch, 4), cch * CV_XS))
    srd(8, 64, 0x200000)
    e("v_lshlrev_b32 v4, 13, v%d" % TH); e("s_lshl_b32 s28, s%d, 3" % TASK); e("v_add_u32 v4, s28, v4")
    QR = 16
    for j in range(8):
        e("v_add_u32 v5, %d, v4" % (j * 1024))
        e("buffer_load_dwordx2 %s, v5, s[8:11], 0 offen" % vr(QR + 2 * j, 2))
    e("s_waitcnt lgkmcnt(0)"); e("s_barrier")
    e("v_and_b32 v6, 31, v%d" % LN); e("v_lshrrev_b32 v7, 5, v%d" % LN)
    e("v_add_u32 v8, 1, v6"); e("v_and_b32 v8, 3, v8"); e("v_mul_u32_u24 v8, %d, v8" % CV_HS)
    e("v_lshlrev_b32 v9, 3, v7"); e("v_sub_u32 v9, v6, v9"); e("v_add_u32 v9, 25, v9"); e("v_lshrrev_b32 v9, 2, v9"); e("v_lshlrev_b32 v9, 3, v9")
    e("v_add_u32 v8, v8, v9"); e("v_add_u32 v8, s32, v8"); e("v_subrev_u32 v8, 32, v8")
    e("v_mul_u32_u24 v9, 80, v6"); e("v_lshlrev_b32 v10, 4, v7"); e("v_add_u32 v9, v9, v10")
    e("s_mul_i32 s28, s%d, %d" % (S_WAVE, CV_XS)); e("s_add_u32 s28, s28, %d" % (CV_XR - 31 * 80)); e("v_add_u32 v9, s28, v9")
    Y0, Y1 = 128, 144
    FA, FB = 72, 88
    steps = []
    for dl in range(64):
        for kk in range(2):
            steps.append((dl, kk))
    A.lds = []
    def issue(n):
        dl, kk = steps[n]; u = 2 * dl - kk
        ra = FA + (n % 4) * 4
        A.ds("ds_read_b64 %s, v8 offset:%d" % (vr(ra, 2), (u + 1) * 32), ("cv", n))
        A.ds("ds_read_b64 %s, v8 offset:%d" % (vr(ra + 2, 2), (u + 1) * 32 + 8), ("cv", n))
        rb = 88 + (n % 3) * 8
        A.ds("ds_read_b128 %s, v9 offset:%d" % (vr(rb, 4), (63 - dl) * 80 + kk * 32 + 2560), ("cv", n))
        if dl <= 31:
            A.ds("ds_read_b128 %s, v9 offset:%d" % (vr(rb + 4, 4), (63 - dl) * 80 + kk * 32), ("cv", n))
    issue(0); issue(1)
    first = [True, True]
    for n in range(len(steps)):
        dl, kk = steps[n]
        A.wait_lds(("cv", n))
        ra = FA + (n % 4) * 4; rb = 88 + (n % 3) * 8
        e("v_mfma_f32_32x32x16_bf16 %s, %s, %s, %s" % (ar(Y1, 16), vr(ra, 4), vr(rb, 4), "0" if n == 0 else ar(Y1, 16)))
        if dl <= 31:
            e("v_mfma_f32_32x32x16_bf16 %s, %s, %s, %s" % (ar(Y0, 16), vr(ra, 4), vr(rb + 4, 4), "0" if n == 0 else ar(Y0, 16)))
        if n + 2 < len(steps): issue(n + 2)
    A.nop(16)
    e("v_lshlrev_b32 v10, 6, v6"); e("v_lshlrev_b32 v11, 3, v7"); e("v_add_u32 v10, v10, v11")
    e("s_lshl_b32 s28, s%d, 12" % S_WAVE); e("s_add_u32 s28, s28, %d" % CV_YB); e("v_add_u32 v10, s28, v10")
    for tile, Y in ((0, Y0), (1, Y1)):
        for q4 in range(4):
            for r in range(4): e("v_accvgpr_read_b32 v%d, a%d" % (72 + r, Y + 4 * q4 + r))
            e("s_nop 0")
            e("v_cvt_pk_bf16_f32 v76, v72, v73"); e("v_cvt_pk_bf16_f32 v77, v74, v75")
            e("ds_write_b64 v10, v[76:77] offset:%d" % (tile * 2048 + q4 * 16))
            e("s_nop 1")
    e("s_waitcnt lgkmcnt(0)"); e("s_barrier")
    e("v_lshlrev_b32 v4, 4, v%d" % TH); e("v_add_u32 v4, %d, v4" % CV_YB)
    YR = 72
    for cch in range(4):
        e("ds_read_b128 %s, v4 offset:%d" % (vr(YR + 4 * cch, 4), cch * 4096))
    e("s_waitcnt lgkmcnt(0) vmcnt(0)")
    srd(8, 76, 0x400000)
    OUTR = 40
    for t in range(8):
        for pr in range(2):
            vals = []
            for h in range(2):
                cch = 2 * pr + h
                ysrc = YR + 4 * cch + (t >> 1)
                if t & 1: e("v_and_b32 v%d, 0xffff0000, v%d" % (92 + h, ysrc))
                else: e("v_lshlrev_b32 v%d, 16, v%d" % (92 + h, ysrc))
                p = (7 - t) >> 1
                ksrc = XP + 4 * cch + p
                if (7 - t) & 1: e("v_and_b32 v94, 0xffff0000, v%d" % ksrc)
                else: e("v_lshlrev_b32 v94, 16, v%d" % ksrc)
                e("v_fmac_f32 v%d, v94, v%d" % (92 + h, 112 + cch))
                qsrc = QR + 2 * t + pr
                if h: e("v_and_b32 v94, 0xffff0000, v%d" % qsrc)
                else: e("v_lshlrev_b32 v94, 16, v%d" % qsrc)
                e("v_mul_f32 v%d, v%d, v94" % (92 + h, 92 + h))
            e("v_cvt_pk_bf16_f32 v%d, v92, v93" % (OUTR + 2 * t + pr))
    e("v_lshlrev_b32 v4, 14, v%d" % TH); e("s_lshl_b32 s28, s%d, 3" % TASK); e("v_add_u32 v4, s28, v4")
    for t in range(8):
        e("v_add_u32 v5, %d, v4" % (t * 2048))
        e("buffer_store_dwordx2 %s, v5, s[8:11], 0 offen" % vr(OUTR + 2 * t, 2))
    e("s_waitcnt vmcnt(0)"); e("s_barrier")
    e("s_load_dwordx2 s[30:31], s[0:1], %d" % KA["x"]); e("s_waitcnt lgkmcnt(0)")
    srd(S_X, 30, 0x200000)
    lab(lskip)

XL_T0, XL_QB, XL_KMI, XL_OB, XL_SEL = 0, 65536, 73728, 77824, 86016
S_OUT = 16
S_QT, S_EH, S_XPB, S_PAR2 = 44, 45, 46, 47
def xt_dma_g(seg_sgpr, buf_sgpr):
    e("s_lshr_b32 s28, s%d, 1" % S_WAVE); e("s_lshl_b32 s29, s%d, 15" % seg_sgpr); e("s_lshl_b32 s30, s28, 14"); e("s_add_u32 s29, s29, s30")
    e("s_and_b32 s30, s%d, 1" % S_WAVE); e("s_lshl_b32 s31, s30, 9"); e("s_add_u32 s29, s29, s31")
    e("s_lshl_b32 s31, s%d, 13" % S_WAVE); e("s_add_u32 s31, s31, s%d" % buf_sgpr)
    for i in range(8):
        e("s_add_u32 m0, s31, %d" % (i * 1024)); e("s_add_u32 s30, s29, %d" % (i * 64))
        e("buffer_load_dwordx4 v1, s[12:15], s30 offen lds")

def xphase2():
    L = VLANE
    e("s_barrier")
    e("v_lshrrev_b32 v%d, 4, v%d" % (L, V_L16))
    load_setup(32768)
    uq = units_qkv(0, "a", 0)
    for u in uq: u["perm"] = False
    load_units(uq + units_wo("v", V_WO), 8)
    e("s_barrier")
    if OPT.get("conv", 0): conv_task()
    KXF, VXF, QF, S, KMF, VMF, OO = 12, 44, 60, 76, 88, 104, 112
    T0, T1, T2, T3, T4, T5 = 6, 7, 8, 9, 10, 11
    V_THR, V_XPS, V_XD = 3, 4, 1
    e("v_lshrrev_b32 v%d, 4, v%d" % (L, V_L16))
    e("s_load_dwordx2 s[30:31], s[0:1], %d" % KA["out"])
    e("s_and_b32 s%d, s%d, 1" % (S_QT, S_WAVE)); e("s_lshr_b32 s%d, s%d, 1" % (S_EH, S_WAVE))
    e("v_and_b32 v1, 15, v%d" % L); e("v_lshlrev_b32 v1, 10, v1"); e("v_lshrrev_b32 v2, 4, v%d" % L); e("v_lshlrev_b32 v2, 4, v2"); e("v_add_u32 v1, v1, v2")
    e("v_and_b32 v%d, 15, v%d" % (V_THR, L)); e("v_lshrrev_b32 v2, 4, v%d" % L); e("v_lshlrev_b32 v2, 2, v2"); e("v_sub_u32 v%d, v%d, v2" % (V_THR, V_THR))
    e("s_lshl_b32 s28, s%d, 4" % S_QT); e("v_add_u32 v%d, s28, v%d" % (V_THR, V_THR))
    e("v_bfe_u32 v%d, v%d, 2, 2" % (V_XPS, L)); e("v_lshlrev_b32 v%d, 13, v%d" % (V_XPS, V_XPS))
    e("v_lshrrev_b32 v2, 4, v%d" % L); e("v_lshlrev_b32 v2, 6, v2"); e("v_add_u32 v%d, v%d, v2" % (V_XPS, V_XPS))
    e("v_and_b32 v2, 3, v%d" % L); e("v_lshlrev_b32 v2, 4, v2"); e("v_add_u32 v%d, v%d, v2" % (V_XPS, V_XPS)); e("v_add_u32 v%d, s%d, v%d" % (V_XPS, S_H8, V_XPS))
    e("v_and_b32 v6, 1, v%d" % L); e("v_lshlrev_b32 v6, 4, v6"); e("v_mov_b32 v7, 0x3f80"); e("v_lshlrev_b32 v7, v6, v7")
    e("v_bfe_u32 v6, v%d, 1, 2" % L)
    for i in range(4):
        e("v_cmp_eq_u32 vcc, %d, v6" % i); e("s_nop 1"); e("v_cndmask_b32 v%d, 0, v7, vcc" % (12 + i))
    e("v_add_u32 v6, %d, v%d" % (XL_SEL, V_L16)); e("ds_write_b128 v6, v[12:15]")
    e("s_waitcnt lgkmcnt(0)")
    srd(S_OUT, 30, 0x400000)
    cval = struct.unpack("<I", struct.pack("<f", (128 ** -0.5) * math.log2(math.e)))[0]
    e("s_mov_b32 s%d, 0x%08x" % (S_C, cval))
    e("s_lshl_b32 s%d, s%d, 21" % (S_XPB, S_TEAM)); e("s_add_u32 s%d, s%d, %d" % (S_XPB, S_XPB, WS_XP))
    e("s_sub_u32 s%d, s%d, 1" % (S_SEG, S_TEAM)); e("s_mov_b32 s%d, 0" % S_K); e("s_mov_b32 s%d, 0" % S_XB); e("s_mov_b32 s%d, 0" % S_PAR2)
    xt_dma_g(S_SEG, S_XB)
    e("s_lshl_b32 s33, s%d, 2" % S_TEAM); e("s_add_u32 s33, s33, 192")
    wait_dbg_counter("s33", 32, "L_x2_init")
    lab("L_x2")
    A.lds = []; A.vm = []
    e("s_waitcnt vmcnt(0)"); e("s_barrier")
    e("s_lshl_b32 s28, s%d, 18" % S_SEG); e("s_add_u32 s28, s28, s%d" % S_H13)
    e("s_add_u32 s29, s28, %d" % WS_KX); e("s_add_u32 s30, s29, 4096")
    for kt in range(2):
        for kk in range(4):
            A.vmem("buffer_load_dwordx4 %s, v%d, s[4:7], s%d offen offset:%d sc1" % (vr(KXF + (kt * 4 + kk) * 4, 4), V_L16, 29 + kt, kk * 1024), "kx")
    e("s_lshl_b32 s29, s%d, 12" % S_EH); e("s_add_u32 s29, s29, s28"); e("s_add_u32 s29, s29, %d" % WS_VX)
    for i in range(4):
        A.vmem("buffer_load_dwordx4 %s, v%d, s[4:7], s29 offen offset:%d sc1" % (vr(VXF + 4 * i, 4), V_L16, i * 1024), "vx")
    ln = A.newlab("L_x2n")
    e("s_add_u32 s32, s%d, 1" % S_K); e("s_cmp_ge_u32 s32, s%d" % S_NSEG); e("s_cbranch_scc1 %s" % ln)
    e("s_add_u32 s33, s%d, 7" % S_SEG); e("s_xor_b32 s36, s%d, 32768" % S_XB)
    xt_dma_g(33, 36)
    lab(ln)
    XF = KMF
    e("v_add_u32 v2, s%d, v%d" % (S_XB, V_L16))
    def rdx(kk):
        for tt in range(2):
            A.ds("ds_read_b128 %s, v2 offset:%d" % (vr(XF + (kk % 2) * 8 + tt * 4, 4), (tt * 16 + kk) * 1024), ("x", kk))
    rdx(0); rdx(1)
    for kk in range(16):
        A.wait_lds(("x", kk))
        t, b = kk >> 1, kk & 1
        for u in range(2):
            for tt in range(2):
                xf = vr(XF + (kk % 2) * 8 + tt * 4, 4)
                cq = "0" if kk == 0 else vr(QF + (u * 2 + tt) * 4, 4)
                e("v_mfma_f32_16x16x32_bf16 %s, %s, %s, %s" % (vr(QF + (u * 2 + tt) * 4, 4), ar((u * 8 + t) * 8 + 4 * b, 4), xf, cq))
        if kk + 2 < 16: rdx(kk + 2)
    A.nop(8)
    for tt in range(2):
        for u in range(2):
            a0 = QF + (u * 2 + tt) * 4
            e("v_cvt_pk_bf16_f32 v%d, v%d, v%d" % (OO + tt * 4 + 2 * u, a0, a0 + 1)); e("v_cvt_pk_bf16_f32 v%d, v%d, v%d" % (OO + tt * 4 + 2 * u + 1, a0 + 2, a0 + 3))
    e("s_lshl_b32 s28, s%d, 10" % S_WAVE); e("s_add_u32 s28, s28, %d" % XL_QB); e("v_add_u32 v2, s28, v%d" % V_L16)
    for tt in range(2):
        A.ds("ds_write_b128 v2, %s offset:%d" % (vr(OO + tt * 4, 4), tt * 4096), "qw")
    A.wait_lds_all(); e("s_barrier")
    e("s_lshl_b32 s28, s%d, 12" % S_QT); e("s_add_u32 s28, s28, %d" % XL_QB); e("v_add_u32 v2, s28, v%d" % V_L16)
    for kk in range(4):
        A.ds("ds_read_b128 %s, v2 offset:%d" % (vr(QF + 4 * kk, 4), kk * 1024), ("q", kk))
    e("s_waitcnt vmcnt(12)")
    l12 = A.newlab("L_x2w")
    e("s_cmp_lt_u32 s32, s%d" % S_NSEG); e("s_cbranch_scc1 %s" % l12); e("s_waitcnt vmcnt(4)"); lab(l12)
    for kk in range(4):
        A.wait_lds(("q", kk))
        for kt in range(2):
            cs = "0" if kk == 0 else vr(S + 4 * kt, 4)
            e("v_mfma_f32_16x16x32_bf16 %s, %s, %s, %s" % (vr(S + 4 * kt, 4), vr(KXF + (kt * 4 + kk) * 4, 4), vr(QF + 4 * kk, 4), cs))
    lw = A.newlab("L_x2km")
    e("s_mov_b64 exec, 1"); e("v_mov_b32 v%d, 0" % T0); e("s_lshl_b32 s28, s%d, 2" % S_HEAD); e("s_add_u32 s28, s28, %d" % FL_KM); e("s_mov_b32 s29, 0")
    lab(lw)
    e("buffer_load_dword v%d, v%d, s[4:7], s28 offen sc0 sc1" % (T1, T0)); e("s_waitcnt vmcnt(0)"); e("v_readfirstlane_b32 s30, v%d" % T1)
    e("s_add_u32 s29, s29, 1"); e("s_cmp_gt_u32 s29, 0x80000"); e("s_cbranch_scc1 %s_d" % lw)
    e("s_cmp_gt_u32 s30, s%d" % S_SEG); e("s_cbranch_scc1 %s_d" % lw)
    e("s_sleep 4"); e("s_branch %s" % lw)
    lab(lw + "_d")
    e("s_mov_b64 exec, s[26:27]")
    e("s_lshl_b32 s28, s%d, 17" % S_SEG); e("s_lshl_b32 s29, s%d, 12" % S_HEAD); e("s_add_u32 s28, s28, s29")
    e("s_lshl_b32 s29, s%d, 10" % S_WAVE); e("s_add_u32 s30, s29, %d" % XL_KMI); e("s_mov_b32 m0, s30"); e("s_add_u32 s29, s29, s28"); e("s_add_u32 s29, s29, %d" % WS_KM)
    e("buffer_load_dwordx4 v%d, s[4:7], s29 offen sc1 lds" % V_L16)
    e("s_lshl_b32 s29, s%d, 11" % S_EH); e("s_add_u32 s29, s29, s28"); e("s_add_u32 s29, s29, %d" % WS_VM)
    e("v_lshrrev_b32 v%d, 1, v%d" % (T0, V_L16))
    for i in range(4):
        e("buffer_load_dwordx2 %s, v%d, s[4:7], s29 offen offset:%d sc1" % (vr(VMF + 2 * i, 2), T0, i * 512))
    e("s_waitcnt vmcnt(0)"); e("s_barrier")
    e("v_add_u32 v%d, %d, v%d" % (T0, XL_KMI, T0))
    for kk in range(4):
        for b in range(2):
            A.ds("ds_read_b64_tr_b16 %s, v%d offset:%d" % (vr(KMF + 4 * kk + 2 * b, 2), T0, kk * 1024 + b * 512), ("km", kk))
    for kk in range(4):
        A.wait_lds(("km", kk))
        e("v_mfma_f32_16x16x32_bf16 %s, %s, %s, %s" % (vr(S + 8, 4), vr(KMF + 4 * kk, 4), vr(QF + 4 * kk, 4), "0" if kk == 0 else vr(S + 8, 4)))
    e("v_mov_b32 v%d, 0xff800000" % T5)
    for kt in range(2):
        for r in range(4):
            e("v_cmp_gt_i32 vcc, %d, v%d" % (16 * kt + r, V_THR)); e("s_nop 1"); e("v_cndmask_b32 v%d, v%d, v%d, vcc" % (S + 4 * kt + r, S + 4 * kt + r, T5))
    A.nop(2)
    e("v_max3_f32 v%d, v%d, v%d, v%d" % (T0, S, S + 1, S + 2)); e("v_max3_f32 v%d, v%d, v%d, v%d" % (T1, S + 4, S + 5, S + 6))
    e("v_max3_f32 v%d, v%d, v%d, v%d" % (T0, T0, S + 3, S + 7)); e("v_max3_f32 v%d, v%d, v%d, v%d" % (T1, T1, S + 8, S + 9))
    e("v_max_f32 v%d, v%d, v%d" % (T0, T0, T1))
    e("v_mov_b32 v%d, v%d" % (T1, T0)); A.nop(2); e("v_permlane16_swap_b32 v%d, v%d" % (T0, T1)); e("v_max_f32 v%d, v%d, v%d" % (T0, T0, T1))
    e("v_mov_b32 v%d, v%d" % (T1, T0)); A.nop(2); e("v_permlane32_swap_b32 v%d, v%d" % (T0, T1)); e("v_max_f32 v%d, v%d, v%d" % (T0, T0, T1))
    e("v_mul_f32 v%d, s%d, v%d" % (T0, S_C, T0))
    for i in range(10): e("v_fma_f32 v%d, v%d, s%d, -v%d" % (S + i, S + i, S_C, T0))
    for i in range(10): e("v_exp_f32 v%d, v%d" % (S + i, S + i))
    e("s_nop 0")
    e("v_add_f32 v%d, v%d, v%d" % (T2, S, S + 1)); e("v_add_f32 v%d, v%d, v%d" % (T3, S + 2, S + 3))
    for i in range(4, 10, 2):
        e("v_add_f32 v%d, v%d, v%d" % (T2, T2, S + i)); e("v_add_f32 v%d, v%d, v%d" % (T3, T3, S + i + 1))
    e("v_add_f32 v%d, v%d, v%d" % (T2, T2, T3))
    for i in range(4): e("v_cvt_pk_bf16_f32 v%d, v%d, v%d" % (S + i, S + 2 * i, S + 2 * i + 1))
    e("v_cvt_pk_bf16_f32 v%d, v%d, v%d" % (S + 10, S + 8, S + 9)); e("v_mov_b32 v%d, 0" % (S + 11))
    e("v_mov_b32 v%d, v%d" % (T3, T2)); A.nop(2); e("v_permlane16_swap_b32 v%d, v%d" % (T2, T3)); e("v_add_f32 v%d, v%d, v%d" % (T2, T2, T3))
    e("v_mov_b32 v%d, v%d" % (T3, T2)); A.nop(2); e("v_permlane32_swap_b32 v%d, v%d" % (T2, T3)); e("v_add_f32 v%d, v%d, v%d" % (T2, T2, T3))
    e("v_rcp_f32 v%d, v%d" % (T2, T2))
    for i in range(4):
        e("v_mfma_f32_16x16x32_bf16 %s, %s, %s, 0" % (vr(OO + 4 * i, 4), vr(VXF + 4 * i, 4), vr(S, 4)))
    for i in range(4):
        e("v_mfma_f32_16x16x16_bf16 %s, %s, %s, %s" % (vr(OO + 4 * i, 4), vr(VMF + 2 * i, 2), vr(S + 10, 2), vr(OO + 4 * i, 4)))
    A.nop(8)
    for i in range(16): e("v_mul_f32 v%d, v%d, v%d" % (OO + i, OO + i, T2))
    for j in range(2):
        for tsub in range(2):
            a0 = OO + (2 * j + tsub) * 4
            e("v_cvt_pk_bf16_f32 v%d, v%d, v%d" % (QF + 4 * j + 2 * tsub, a0, a0 + 1)); e("v_cvt_pk_bf16_f32 v%d, v%d, v%d" % (QF + 4 * j + 2 * tsub + 1, a0 + 2, a0 + 3))
    e("s_lshl_b32 s28, s%d, 12" % S_QT); e("s_lshl_b32 s29, s%d, 11" % S_EH); e("s_add_u32 s28, s28, s29"); e("s_add_u32 s28, s28, %d" % XL_OB); e("v_add_u32 v2, s28, v%d" % V_L16)
    for j in range(2):
        A.ds("ds_write_b128 v2, %s offset:%d" % (vr(QF + 4 * j, 4), j * 1024), "ow")
    A.wait_lds_all(); e("s_barrier")
    e("v_add_u32 v2, %d, v%d" % (XL_OB, V_L16))
    ACC, AF, PKR = 12, 44, 60
    e("s_add_u32 s33, s%d, s%d" % (S_XPB, S_PAR2))
    for qt in range(2):
        for kk in range(4):
            A.ds("ds_read_b128 %s, v2 offset:%d" % (vr(AF + 4 * kk, 4), qt * 4096 + kk * 1024), ("o", kk))
        for kk in range(4):
            A.wait_lds(("o", kk))
            t, b = kk >> 1, kk & 1
            for nt in range(8):
                e("v_mfma_f32_16x16x32_bf16 %s, %s, %s, %s" % (vr(ACC + 4 * nt, 4), vr(AF + 4 * kk, 4), vr(V_WO + (nt * 2 + t) * 8 + 4 * b, 4), "0" if kk == 0 else vr(ACC + 4 * nt, 4)))
        A.nop(8)
        for p in range(4):
            for tsub in range(2):
                a0 = ACC + 4 * (2 * p + tsub)
                e("v_cvt_pk_bf16_f32 v%d, v%d, v%d" % (PKR + 4 * p + 2 * tsub, a0, a0 + 1)); e("v_cvt_pk_bf16_f32 v%d, v%d, v%d" % (PKR + 4 * p + 2 * tsub + 1, a0 + 2, a0 + 3))
            e("s_lshl_b32 s28, s%d, 17" % S_WAVE); e("s_add_u32 s28, s28, s33"); e("s_add_u32 s28, s28, %d" % ((qt * 16 + p) * 4 * 8192))
            e("buffer_store_dwordx4 %s, v%d, s[4:7], s28 offen" % (vr(PKR + 4 * p, 4), V_XPS))
        A.nop(2)
    e("s_waitcnt vmcnt(0)"); e("s_barrier")
    lf = A.newlab("L_x2f")
    e("s_cmp_lg_u32 s%d, 0" % S_WAVE); e("s_cbranch_scc1 %s" % lf)
    e("s_add_u32 s28, s%d, 1" % S_K); e("v_mov_b32 v%d, s28" % T0); e("v_mov_b32 v%d, 0" % T1)
    e("s_lshl_b32 s28, s%d, 7" % S_TEAM); e("s_lshl_b32 s29, s%d, 2" % S_HEAD); e("s_add_u32 s28, s28, s29"); e("s_add_u32 s28, s28, %d" % FL_XP)
    e("s_mov_b64 exec, 1"); e("buffer_store_dword v%d, v%d, s[4:7], s28 offen" % (T0, T1)); e("s_mov_b64 exec, s[26:27]")
    lab(lf)
    lw = A.newlab("L_x2r")
    e("v_lshrrev_b32 v%d, 2, v%d" % (T0, V_L16)); e("v_and_b32 v%d, 127, v%d" % (T0, T0))
    e("s_lshl_b32 s28, s%d, 7" % S_TEAM); e("s_add_u32 s28, s28, %d" % FL_XP); e("s_mov_b32 s29, 0")
    e("v_add_u32 v%d, %d, v%d" % (T3, XL_SEL, V_L16)); e("ds_read_b128 v[44:47], v%d" % T3)
    lab(lw)
    e("buffer_load_dword v%d, v%d, s[4:7], s28 offen sc1" % (T1, T0)); e("s_waitcnt vmcnt(0)")
    e("v_cmp_ge_u32 vcc, s%d, v%d" % (S_K, T1))
    e("s_add_u32 s29, s29, 1"); e("s_cmp_gt_u32 s29, 0x80000"); e("s_cbranch_scc1 %s_d" % lw)
    e("s_cbranch_vccnz %s" % lw)
    lab(lw + "_d")
    e("s_lshl_b32 s28, s%d, 2" % S_HEAD); e("s_add_u32 s28, s28, s%d" % S_WAVE); e("s_lshl_b32 s28, s28, 13"); e("s_add_u32 s28, s28, s33"); e("s_add_u32 s29, s28, 4096")
    for x in range(8):
        e("buffer_load_dwordx4 %s, v%d, s[4:7], s%d offen offset:%d sc1" % (vr(12 + 4 * x, 4), V_L16, 28 if x < 4 else 29, (x & 3) * 1024))
    e("s_waitcnt lgkmcnt(0)")
    for x in range(8):
        e("s_waitcnt vmcnt(%d)" % (7 - x))
        e("v_mfma_f32_16x16x32_bf16 v[48:51], %s, v[44:47], %s" % (vr(12 + 4 * x, 4), "0" if x == 0 else "v[48:51]"))
    e("v_lshrrev_b32 v%d, 8, v%d" % (T0, V_L16)); e("v_lshlrev_b32 v%d, 2, v%d" % (T0, T0))
    e("v_bfe_u32 v%d, v%d, 4, 2" % (T1, V_L16)); e("v_add_u32 v%d, v%d, v%d" % (T0, T0, T1)); e("v_lshlrev_b32 v%d, 11, v%d" % (T0, T0))
    e("v_bfe_u32 v%d, v%d, 6, 1" % (T1, V_L16)); e("v_lshlrev_b32 v%d, 3, v%d" % (T1, T1)); e("v_add_u32 v%d, v%d, v%d" % (T0, T0, T1))
    e("s_lshr_b32 s28, s%d, 4" % S_HEAD); e("s_lshl_b32 s28, s28, 4"); e("s_lshl_b32 s29, s%d, 5" % S_SEG); e("s_add_u32 s28, s28, s29"); e("s_lshl_b32 s28, s28, 11")
    e("s_bfe_u32 s29, s%d, 0x20002" % S_HEAD); e("s_lshl_b32 s29, s29, 8"); e("s_add_u32 s28, s28, s29")
    e("s_bfe_u32 s29, s%d, 0x10001" % S_HEAD); e("s_lshl_b32 s29, s29, 7"); e("s_add_u32 s28, s28, s29")
    e("s_and_b32 s29, s%d, 1" % S_HEAD); e("s_lshl_b32 s29, s29, 4"); e("s_add_u32 s28, s28, s29")
    e("s_lshl_b32 s29, s%d, 5" % S_WAVE); e("s_add_u32 s28, s28, s29"); e("s_add_u32 s28, s28, 1024")
    A.nop(4)
    e("v_cvt_pk_bf16_f32 v48, v48, v49"); e("v_cvt_pk_bf16_f32 v49, v50, v51")
    e("v_and_b32 v%d, 128, v%d" % (T1, V_L16)); e("v_cmp_eq_u32 vcc, 0, v%d" % T1)
    e("s_nop 1")
    e("s_mov_b64 exec, vcc")
    e("buffer_store_dwordx2 v[48:49], v%d, s[16:19], s28 offen" % T0)
    e("s_mov_b64 exec, s[26:27]")
    e("s_add_u32 s%d, s%d, 7" % (S_SEG, S_SEG)); e("s_xor_b32 s%d, s%d, 32768" % (S_XB, S_XB)); e("s_xor_b32 s%d, s%d, 0x100000" % (S_PAR2, S_PAR2))
    e("s_add_u32 s%d, s%d, 1" % (S_K, S_K))
    e("s_cmp_lt_u32 s%d, s%d" % (S_K, S_NSEG)); e("s_cbranch_scc1 L_x2")
    e("s_waitcnt vmcnt(0)")
    e("s_branch L_end")

def xteam():
    L = VLANE
    lab("L_xteam")
    e("v_lshlrev_b32 v%d, 4, v%d" % (V_L16, L))
    e("s_load_dwordx2 s[30:31], s[0:1], %d" % KA["x"])
    e("v_and_b32 v1, 15, v%d" % L); e("v_lshlrev_b32 v1, 10, v1"); e("v_lshrrev_b32 v2, 4, v%d" % L); e("v_lshlrev_b32 v2, 4, v2"); e("v_add_u32 v1, v1, v2")
    e("s_waitcnt lgkmcnt(0)")
    srd(S_X, 30, 0x200000)
    e("s_cmp_eq_u32 s%d, 1" % S_TEAM); e("s_cselect_b32 s%d, 10, 9" % S_NSEG)
    if OPT["stage"] >= 3:
        lx = A.newlab("L_xi")
        e("s_cmp_lg_u32 s%d, 0" % S_WAVE); e("s_cbranch_scc1 %s" % lx)
        e("s_mov_b64 exec, 1")
        e("v_mov_b32 v32, 0"); e("s_lshl_b32 s28, s%d, 7" % S_TEAM); e("s_lshl_b32 s29, s%d, 2" % S_HEAD); e("s_add_u32 s28, s28, s29"); e("s_add_u32 s28, s28, %d" % FL_XP)
        e("buffer_store_dword v32, v32, s[4:7], s28 offen"); e("s_waitcnt vmcnt(0)")
        e("s_lshl_b32 s28, s%d, 2" % S_TEAM); e("s_add_u32 s28, s28, 192"); e("v_mov_b32 v32, s28"); e("v_mov_b32 v33, 1")
        e("global_atomic_add v32, v33, s[24:25] sc1"); e("s_waitcnt vmcnt(0)")
        e("s_mov_b64 exec, s[26:27]")
        lab(lx)
    load_setup(32768)
    uk = units_qkv(1, "a", 128); uv = units_qkv(2, "v", 128)
    for u in uk + uv: u["perm"] = False
    load_units(uk + uv, 8)
    e("s_barrier")
    def xt_dma(seg_sgpr, buf_sgpr):
        e("s_lshr_b32 s28, s%d, 1" % S_WAVE); e("s_lshl_b32 s29, s%d, 15" % seg_sgpr); e("s_lshl_b32 s30, s28, 14"); e("s_add_u32 s29, s29, s30")
        e("s_and_b32 s30, s%d, 1" % S_WAVE); e("s_lshl_b32 s31, s30, 9"); e("s_add_u32 s29, s29, s31")
        e("s_lshl_b32 s31, s%d, 13" % S_WAVE); e("s_add_u32 s31, s31, s%d" % buf_sgpr)
        for i in range(8):
            e("s_add_u32 m0, s31, %d" % (i * 1024)); e("s_add_u32 s30, s29, %d" % (i * 64))
            e("buffer_load_dwordx4 v1, s[12:15], s30 offen lds")
    e("s_sub_u32 s%d, s%d, 1" % (S_SEG, S_TEAM)); e("s_mov_b32 s%d, 0" % S_K); e("s_mov_b32 s%d, 0" % S_XB)
    xt_dma(S_SEG, S_XB)
    if OPT["stage"] >= 2:
        wait_dbg_counter(192, 32, "L_x1_init")
    AK, AV, XF, PK = 40, 56, 72, 88
    lab("L_x1")
    e("s_waitcnt vmcnt(4)")
    l0 = A.newlab("L_x1a")
    e("s_cmp_lg_u32 s%d, 0" % S_K); e("s_cbranch_scc1 %s" % l0); e("s_waitcnt vmcnt(0)"); lab(l0)
    e("s_barrier")
    lf = A.newlab("L_x1f")
    e("s_cmp_lt_u32 s%d, 2" % S_K); e("s_cbranch_scc1 %s" % lf)
    e("s_cmp_lg_u32 s%d, 0" % S_WAVE); e("s_cbranch_scc1 %s" % lf)
    e("s_sub_u32 s28, s%d, 1" % S_K); e("v_mov_b32 v32, s28"); e("v_mov_b32 v33, 0")
    e("s_lshl_b32 s28, s%d, 7" % S_TEAM); e("s_lshl_b32 s29, s%d, 2" % S_HEAD); e("s_add_u32 s28, s28, s29"); e("s_add_u32 s28, s28, %d" % FL_KV)
    e("s_mov_b64 exec, 1"); e("buffer_store_dword v32, v33, s[4:7], s28 offen sc0 sc1"); e("s_mov_b64 exec, s[26:27]")
    lab(lf)
    ln = A.newlab("L_x1n")
    e("s_add_u32 s32, s%d, 1" % S_K); e("s_cmp_ge_u32 s32, s%d" % S_NSEG); e("s_cbranch_scc1 %s" % ln)
    e("s_add_u32 s33, s%d, 7" % S_SEG); e("s_xor_b32 s36, s%d, 32768" % S_XB)
    xt_dma(33, 36)
    lab(ln)
    e("v_add_u32 v2, s%d, v%d" % (S_XB, V_L16))
    A.lds = []
    def rdx(kk):
        for tt in range(2):
            A.ds("ds_read_b128 %s, v2 offset:%d" % (vr(XF + (kk % 2) * 8 + tt * 4, 4), (tt * 16 + kk) * 1024), ("x", kk))
    rdx(0); rdx(1)
    for kk in range(16):
        A.wait_lds(("x", kk))
        t, b = kk >> 1, kk & 1
        for u in range(2):
            for tt in range(2):
                xf = vr(XF + (kk % 2) * 8 + tt * 4, 4)
                ck = "0" if kk == 0 else vr(AK + (u * 2 + tt) * 4, 4)
                cv = "0" if kk == 0 else vr(AV + (u * 2 + tt) * 4, 4)
                e("v_mfma_f32_16x16x32_bf16 %s, %s, %s, %s" % (vr(AK + (u * 2 + tt) * 4, 4), ar(128 + (u * 8 + t) * 8 + 4 * b, 4), xf, ck))
                e("v_mfma_f32_16x16x32_bf16 %s, %s, %s, %s" % (vr(AV + (u * 2 + tt) * 4, 4), xf, vr(128 + (u * 8 + t) * 8 + 4 * b, 4), cv))
        if kk + 2 < 16: rdx(kk + 2)
    A.nop(8)
    for tt in range(2):
        for u in range(2):
            a0 = AK + (u * 2 + tt) * 4
            e("v_cvt_pk_bf16_f32 v%d, v%d, v%d" % (PK + tt * 4 + 2 * u, a0, a0 + 1)); e("v_cvt_pk_bf16_f32 v%d, v%d, v%d" % (PK + tt * 4 + 2 * u + 1, a0 + 2, a0 + 3))
    for u in range(2):
        for tt in range(2):
            a0 = AV + (u * 2 + tt) * 4
            e("v_cvt_pk_bf16_f32 v%d, v%d, v%d" % (PK + 8 + u * 4 + 2 * tt, a0, a0 + 1)); e("v_cvt_pk_bf16_f32 v%d, v%d, v%d" % (PK + 8 + u * 4 + 2 * tt + 1, a0 + 2, a0 + 3))
    e("s_lshl_b32 s28, s%d, 18" % S_SEG); e("s_add_u32 s28, s28, s%d" % S_H13)
    e("s_lshl_b32 s29, s%d, 10" % S_WAVE); e("s_add_u32 s29, s29, s28"); e("s_add_u32 s30, s29, %d" % (WS_KX + 4096)); e("s_add_u32 s29, s29, %d" % WS_KX)
    e("buffer_store_dwordx4 %s, v%d, s[4:7], s29 offen sc0 sc1" % (vr(PK, 4), V_L16))
    e("buffer_store_dwordx4 %s, v%d, s[4:7], s30 offen sc0 sc1" % (vr(PK + 4, 4), V_L16))
    e("s_lshl_b32 s29, s%d, 11" % S_WAVE); e("s_add_u32 s29, s29, s28"); e("s_add_u32 s29, s29, %d" % WS_VX)
    e("buffer_store_dwordx4 %s, v%d, s[4:7], s29 offen sc0 sc1" % (vr(PK + 8, 4), V_L16))
    e("buffer_store_dwordx4 %s, v%d, s[4:7], s29 offen offset:1024 sc0 sc1" % (vr(PK + 12, 4), V_L16))
    e("s_add_u32 s%d, s%d, 7" % (S_SEG, S_SEG)); e("s_xor_b32 s%d, s%d, 32768" % (S_XB, S_XB)); e("s_add_u32 s%d, s%d, 1" % (S_K, S_K))
    e("s_cmp_lt_u32 s%d, s%d" % (S_K, S_NSEG)); e("s_cbranch_scc1 L_x1")
    e("s_waitcnt vmcnt(0)"); e("s_barrier")
    lf = A.newlab("L_x1g")
    e("s_cmp_lg_u32 s%d, 0" % S_WAVE); e("s_cbranch_scc1 %s" % lf)
    e("v_mov_b32 v32, s%d" % S_NSEG); e("v_mov_b32 v33, 0")
    e("s_lshl_b32 s28, s%d, 7" % S_TEAM); e("s_lshl_b32 s29, s%d, 2" % S_HEAD); e("s_add_u32 s28, s28, s29"); e("s_add_u32 s28, s28, %d" % FL_KV)
    e("s_mov_b64 exec, 1"); e("buffer_store_dword v32, v33, s[4:7], s28 offen sc0 sc1"); e("s_mov_b64 exec, s[26:27]")
    lab(lf)
    e("s_waitcnt vmcnt(0)")
    if OPT["stage"] < 3:
        e("s_branch L_end"); return
    xphase2()

hdr = []
if OPT["final"]:
    hdr.append("; Fused kernel: branch A (short conv + long causal conv as Toeplitz MFMA) and branch B (memory-recurrent attention).")
hdr.append("; @launch grid=(256,1,1) block=(256,1,1) lds=%d" % LDS_TOTAL)
hdr.append('.amdgcn_target "amdgcn-amd-amdhsa--gfx950"')
hdr.append(".text\n.globl %s\n.p2align 8\n.type %s,@function\n%s:" % (KNAME, KNAME, KNAME))
prologue()
e("s_cmp_eq_u32 s%d, 0" % S_TEAM); e("s_cbranch_scc1 L_chain")
if OPT["stage"] >= 2: e("s_branch L_xteam")
else: e("s_branch L_end")
chain()
if OPT["stage"] >= 2: xteam()
lab("L_end")
e("s_endpgm")
tail = '''.section .rodata,"a"
.p2align 6
.amdhsa_kernel %s
  .amdhsa_next_free_vgpr 512
  .amdhsa_next_free_sgpr 102
  .amdhsa_accum_offset 256
  .amdhsa_group_segment_fixed_size 0
  .amdhsa_kernarg_size 128
  .amdhsa_user_sgpr_count 2
  .amdhsa_user_sgpr_kernarg_segment_ptr 1
  .amdhsa_system_sgpr_workgroup_id_x 1
.end_amdhsa_kernel
''' % KNAME
open(OUTP, "w").write("\n".join(hdr) + "\n" + A.text() + tail)
print("wrote", OUTP, len(A.L), "lines")
```

```python
import sys, os, struct, math
sys.path.insert(0, os.path.dirname(os.path.abspath(__file__)))
from asmlib import *

KNAME = "concat_heads__ssm_conv_h3__memory_aug_recurrent_mem_tr__prompt_kernel"
OPT = dict(final=0, nowait=0, stage=1, hist=0, stamps=0, nsteps=64, dly_red=10, dly_mem=1, slp=32)
for a in sys.argv[1:]:
    if "=" in a:
        k, v = a.split("="); OPT[k] = int(v) if v.lstrip("-").isdigit() else v
OUTP = OPT.get("out", "chain.s")

KA = dict(q=0, k=8, v=16, shift=24, ssmk=32, ssmd=40, x=48, mem0=56, wq=64, wk=72, wv=80, wo=88, seg=96, out=104, dbg=112, ws=120)
WS_KX = 0x0000000
WS_VX = 0x1000000
WS_KM = 0x2000000
WS_VM = 0x3000000
WS_PB = 0x2C00000
WS_MB = 0x2CC0000
WS_FL = 0x2CD0000
WS_HIST = 0x2D00000
WS_STAMP = 0x2E00000
WS_XP = 0x4000000
FL_KV, FL_KM, FL_XP = WS_FL, WS_FL + 1024, WS_FL + 2048
WVSTRIDE = 28672
L_KX, L_VX, L_MEM, L_X, L_O, L_SEL, L_DUM = 114688, 131072, 147456, 155648, 159744, 161792, 162816
LDS_TOTAL = 163840
S_WS = 4
S_W = 8
S_XCC, S_WAVE, S_HEAD, S_TEAM = 20, 21, 22, 23
S_DBG = 24
S_ALL = 26
S_STEP, S_MCUR, S_MNXT, S_PCUR, S_RED, S_MQ, S_KXO, S_VXO = 40, 41, 42, 43, 44, 45, 46, 47
S_DMA = 39
S_LO8 = 48
S_LO32 = 50
S_C, S_SPIN, S_FIRST, S_PAR = 52, 53, 54, 55
S_PW = 56
S_ST = 64
S_MPREV, S_H13, S_H8, S_PPREV = 96, 97, 98, 99
S_RDY = 100
S_TAG = 99
V_L16, V_XWR, V_OWR, V_PS0, V_IDX, V_WVA = 0, 1, 2, 3, 4, 5
VT = 6
V_KX = 12
V_LD = 12
V_S = 28
V_MEM = 40
V_QK = 72
V_VA = 88
V_WVR = 96
V_WV0 = 112
V_WO = 128
VLANE = 30
VS = 32

A = Asm()
e, c, lab = A.e, A.c, A.lab
def v(i): return "v%d" % i

def srd(base_s, ptr_s, size):
    e("s_mov_b32 s%d, s%d" % (base_s, ptr_s)); e("s_mov_b32 s%d, s%d" % (base_s + 1, ptr_s + 1))
    e("s_mov_b32 s%d, 0x%x" % (base_s + 2, size)); e("s_mov_b32 s%d, 0x20000" % (base_s + 3))

TS = [int(x) for x in str(OPT.get("ts", "")).split(",") if x != ""]
def ts(i):
    if i in TS:
        k = TS.index(i)
        e("%s s[%d:%d]" % ("s_memrealtime" if OPT.get("rts", 0) else "s_memtime", 64 + 2 * k, 65 + 2 * k))
def stamp(i, lvl=1):
    ts(i)
    if OPT["stamps"] < lvl: return
    if OPT["stamps"] == 2 and lvl == 1: pass
    e("s_memtime s[82:83]"); e("s_waitcnt lgkmcnt(0)"); A.lds = []
    e("s_sub_u32 s81, s82, s80"); e("s_add_u32 s%d, s%d, s81" % (S_ST + i, S_ST + i)); e("s_mov_b32 s80, s82")

def bar_off(t): return (t & 3) * 64 + 16 + (t >> 2) * 4
WS_TRACE = 0x2F00000
def rtk(i, kreg, kval):
    if not OPT.get("trace", 0): return
    l = A.newlab("L_rtk")
    e("s_cmp_lg_u32 s%d, %d" % (kreg, kval)); e("s_cbranch_scc1 %s" % l)
    rt(i)
    lab(l)
def rt(i):
    if not OPT.get("trace", 0): return
    l = A.newlab("L_rt")
    e("s_cmp_lg_u32 s%d, 0" % S_WAVE); e("s_cbranch_scc1 %s" % l)
    e("s_memrealtime s[90:91]"); e("s_waitcnt lgkmcnt(0)")
    e("s_add_u32 s28, s93, %d" % (WS_TRACE + 4 * i))
    e("s_mov_b64 exec, 1"); e("v_mov_b32 v10, s90"); e("v_mov_b32 v11, 0"); e("buffer_store_dword v10, v11, s[4:7], s28 offen"); e("s_mov_b64 exec, s[26:27]")
    lab(l)
def prologue():
    e("s_cmp_ge_u32 s2, 256"); e("s_cbranch_scc1 L_end")
    if OPT.get("trace", 0): e("s_memrealtime s[94:95]")
    e("s_load_dwordx2 s[24:25], s[0:1], %d" % KA["dbg"])
    e("s_load_dwordx2 s[28:29], s[0:1], %d" % KA["ws"])
    e("s_load_dwordx4 s[56:59], s[0:1], %d" % KA["wq"])
    e("s_load_dwordx4 s[60:63], s[0:1], %d" % KA["wv"])
    e("s_getreg_b32 s%d, hwreg(HW_REG_XCC_ID)" % S_XCC)
    e("s_and_b32 s%d, s%d, 15" % (S_XCC, S_XCC))
    e("v_lshrrev_b32 v1, 6, v0"); e("s_nop 0"); e("v_readfirstlane_b32 s%d, v1" % S_WAVE)
    e("v_and_b32 v%d, 63, v0" % VLANE)
    e("s_mov_b64 s[26:27], exec")
    e("s_waitcnt lgkmcnt(0)")
    srd(S_WS, 28, 0x10000000)
    e("s_cmp_lg_u32 s%d, 0" % S_WAVE); e("s_cbranch_scc1 L_roles_wait")
    e("s_mov_b64 exec, 1")
    e("s_and_b32 s28, s%d, 3" % S_XCC); e("s_lshl_b32 s28, s28, 6"); e("s_lshr_b32 s29, s%d, 2" % S_XCC); e("s_lshl_b32 s29, s29, 2"); e("s_add_u32 s28, s28, s29")
    e("v_mov_b32 v3, s28"); e("v_mov_b32 v4, 1")
    e("global_atomic_add v5, v3, v4, s[24:25] sc0 sc1"); e("s_waitcnt vmcnt(0)")
    e("v_mov_b32 v3, %d" % L_DUM)
    e("ds_write_b32 v3, v5"); e("s_waitcnt lgkmcnt(0)")
    e("s_mov_b64 exec, s[26:27]")
    lab("L_roles_wait")
    e("s_barrier")
    e("v_mov_b32 v3, %d" % L_DUM); e("ds_read_b32 v4, v3"); e("s_waitcnt lgkmcnt(0)")
    e("v_readfirstlane_b32 s%d, v4" % S_HEAD); e("s_mov_b32 s%d, s%d" % (S_TEAM, S_XCC))
    e("s_barrier")
    e("s_cmp_ge_u32 s%d, 32" % S_HEAD); e("s_cbranch_scc1 L_end")
    e("s_cmp_ge_u32 s%d, 8" % S_TEAM); e("s_cbranch_scc1 L_end")
    e("s_lshl_b32 s%d, s%d, 13" % (S_H13, S_HEAD)); e("s_lshl_b32 s%d, s%d, 8" % (S_H8, S_HEAD))
    if OPT.get("trace", 0):
        l = A.newlab("L_rt")
        e("s_lshl_b32 s93, s%d, 5" % S_TEAM); e("s_add_u32 s93, s93, s%d" % S_HEAD); e("s_lshl_b32 s93, s93, 6")
        e("s_cmp_lg_u32 s%d, 0" % S_WAVE); e("s_cbranch_scc1 %s" % l)
        e("s_add_u32 s28, s93, %d" % WS_TRACE)
        e("s_mov_b64 exec, 1"); e("v_mov_b32 v10, s94"); e("v_mov_b32 v11, 0"); e("buffer_store_dword v10, v11, s[4:7], s28 offen"); e("s_mov_b64 exec, s[26:27]")
        lab(l)
    rt(1)

LW_VQ, LW_VO, LW_A0, LW_A1, LW_AO = 40, 41, 43, 44, 45
LW_WB = 53
LW_TMP = 72
def load_setup(wave_stride):
    L = VLANE; a, b_, c_, d_, f_ = VS, VS + 1, VS + 2, VS + 3, VS + 4
    e("s_mul_i32 s34, s%d, %d" % (S_WAVE, wave_stride))
    e("s_lshl_b32 s36, s%d, 20" % S_WAVE)
    e("v_lshrrev_b32 v%d, 2, v%d" % (a, L)); e("v_lshlrev_b32 v%d, 13, v%d" % (b_, a))
    e("v_lshrrev_b32 v%d, 5, v%d" % (c_, L)); e("v_lshlrev_b32 v%d, 1, v%d" % (c_, c_))
    e("v_and_b32 v%d, 3, v%d" % (d_, L)); e("v_xor_b32 v%d, v%d, v%d" % (d_, d_, c_)); e("v_lshlrev_b32 v%d, 4, v%d" % (d_, d_))
    e("v_add_u32 v%d, v%d, v%d" % (b_, b_, d_))
    e("s_lshl_b32 s29, s%d, 6" % S_WAVE); e("s_add_u32 s28, s%d, s29" % S_H8)
    e("v_add_u32 v%d, s28, v%d" % (LW_VQ, b_))
    e("v_lshrrev_b32 v%d, 4, v%d" % (a, L)); e("v_lshlrev_b32 v%d, 10, v%d" % (b_, a))
    e("s_lshl_b32 s28, s%d, 8" % S_WAVE); e("v_add_u32 v%d, s28, v%d" % (b_, b_))
    e("v_and_b32 v%d, 1, v%d" % (c_, a)); e("v_lshrrev_b32 v%d, 1, v%d" % (f_, a)); e("v_lshlrev_b32 v%d, 3, v%d" % (f_, f_)); e("v_add_u32 v%d, v%d, v%d" % (c_, c_, f_))
    e("v_and_b32 v%d, 15, v%d" % (d_, L)); e("v_xor_b32 v%d, v%d, v%d" % (d_, d_, c_)); e("v_lshlrev_b32 v%d, 4, v%d" % (d_, d_))
    e("v_add_u32 v%d, v%d, v%d" % (LW_VO, b_, d_))
    e("v_lshrrev_b32 v%d, 5, v%d" % (a, L)); e("v_lshlrev_b32 v%d, 10, v%d" % (a, a))
    e("v_bfe_u32 v%d, v%d, 4, 1" % (b_, L)); e("v_lshlrev_b32 v%d, 9, v%d" % (c_, b_)); e("v_add_u32 v%d, v%d, v%d" % (a, a, c_))
    e("v_bfe_u32 v%d, v%d, 2, 2" % (c_, L)); e("v_lshlrev_b32 v%d, 6, v%d" % (c_, c_)); e("v_add_u32 v%d, v%d, v%d" % (a, a, c_))
    e("v_and_b32 v%d, 3, v%d" % (c_, L)); e("v_lshlrev_b32 v%d, 3, v%d" % (c_, c_)); e("v_add_u32 v%d, v%d, v%d" % (a, a, c_))
    e("v_add_u32 v%d, s34, v%d" % (a, a))
    e("v_lshlrev_b32 v%d, 5, v%d" % (c_, b_)); e("v_add_u32 v%d, v%d, v%d" % (LW_A0, a, c_))
    e("v_xor_b32 v%d, 32, v%d" % (c_, c_)); e("v_add_u32 v%d, v%d, v%d" % (LW_A1, a, c_))
    e("v_lshrrev_b32 v%d, 4, v%d" % (a, L)); e("v_lshlrev_b32 v%d, 10, v%d" % (a, a))
    e("v_bfe_u32 v%d, v%d, 2, 2" % (c_, L)); e("v_lshlrev_b32 v%d, 8, v%d" % (d_, c_)); e("v_add_u32 v%d, v%d, v%d" % (a, a, d_))
    e("v_and_b32 v%d, 3, v%d" % (d_, L)); e("v_lshlrev_b32 v%d, 5, v%d" % (d_, d_)); e("v_add_u32 v%d, v%d, v%d" % (a, a, d_))
    e("v_add_u32 v%d, s34, v%d" % (a, a))
    e("v_bfe_u32 v%d, v%d, 3, 1" % (b_, L)); e("v_lshlrev_b32 v%d, 7, v%d" % (b_, b_))
    e("v_bfe_u32 v%d, v%d, 2, 1" % (c_, L)); e("v_lshlrev_b32 v%d, 4, v%d" % (c_, c_))
    for G in range(2):
        for Th in range(2):
            e("v_xor_b32 v%d, %d, v%d" % (d_, G * 128, b_)); e("v_xor_b32 v%d, %d, v%d" % (f_, Th * 16, c_))
            e("v_add_u32 v%d, v%d, v%d" % (d_, d_, f_)); e("v_add_u32 v%d, v%d, v%d" % (LW_AO + 2 * G + Th, a, d_))
    e("v_lshlrev_b32 v%d, 4, v%d" % (a, L)); e("v_add_u32 v%d, s34, v%d" % (LW_WB, a))

def reg(kind, n, cnt):
    return ar(n, cnt) if kind == "a" else vr(n, cnt)

def load_units(units, NS, hooks={}):
    cur_srd = [None]
    def set_srd(which):
        if cur_srd[0] == which: return
        cur_srd[0] = which
        p = S_PW + 2 * which
        e("s_mov_b32 s8, s%d" % p); e("s_mov_b32 s9, s%d" % (p + 1)); e("s_mov_b32 s10, 0x400000"); e("s_mov_b32 s11, 0x20000")
    def issue(n):
        u = units[n]; slot = n % NS
        set_srd(u["m"])
        for i in range(4):
            e("s_add_u32 m0, s34, %d" % (slot * 4096 + i * 1024))
            if u["kind"] == "qkv":
                if u.get("perm", True):
                    e("s_xor_b32 s28, s36, %d" % (u["t"] << 19)); e("s_add_u32 s28, s28, %d" % (i * 131072))
                else:
                    e("s_mov_b32 s28, %d" % ((64 * u["t"] + 16 * i) * 8192))
                A.vmem("buffer_load_dwordx4 v%d, s[8:11], s28 offen lds" % LW_VQ, ("w", n))
            else:
                qd = 2 * u["b"] + u["hb"]
                e("s_add_u32 s28, s35, %d" % ((64 * u["t"] + 16 * qd + 4 * i) * 1024))
                A.vmem("buffer_load_dwordx4 v%d, s[8:11], s28 offen lds" % LW_VO, ("w", n))
    e("s_lshl_b32 s35, s%d, 17" % S_HEAD)
    for n in range(min(NS, len(units))): issue(n)
    for n, u in enumerate(units):
        slot = n % NS
        A.wait_vm(("w", n))
        if u["kind"] == "qkv":
            for uu in range(2):
                for b in range(2):
                    for hb in range(2):
                        if u["dest"] == "lds": d = vr(LW_TMP + uu * 8 + 4 * b + 2 * hb, 2)
                        elif u["dest"] == "flat": d = vr(u["base"] + uu * 8 + 4 * b + 2 * hb, 2)
                        else: d = reg(u["dest"], u["base"] + (uu * 8 + u["t"]) * 8 + 4 * b + 2 * hb, 2)
                        A.ds("ds_read_b64_tr_b16 %s, v%d offset:%d" % (d, LW_A0 + uu, slot * 4096 + b * 2048 + hb * 256), "tr")
            A.wait_lds_all()
            if u["dest"] == "lds":
                u["slot"] = slot
                for uu in range(2):
                    for b in range(2):
                        A.ds("ds_write_b128 v%d, %s offset:%d" % (LW_WB, vr(LW_TMP + uu * 8 + 4 * b, 4), slot * 4096 + uu * 2048 + b * 1024), "wb")
                A.wait_lds_all()
        else:
            for nt in range(8):
                d = reg(u["dest"], u["base"] + (nt * 2 + u["t"]) * 8 + 4 * u["b"] + 2 * u["hb"], 2)
                G, T = nt >> 2, nt & 3
                A.ds("ds_read_b64_tr_b16 %s, v%d offset:%d" % (d, LW_AO + 2 * G + (T >> 1), slot * 4096 + (T & 1) * 8), "tr")
            A.wait_lds_all()
        if n in hooks: hooks[n]()
        if n + NS < len(units): issue(n + NS)

def load_units_reg(units, hooks={}, maxfly=60):
    SCR = 54
    SA0, SA1, SAO = 55, 56, 57
    SAOr = [57, 58, 59, 64]
    e("s_lshl_b32 s28, s%d, 13" % S_WAVE); e("s_add_u32 s28, s28, %d" % L_KX); e("s_sub_u32 s29, s28, s34")
    e("v_add_u32 v%d, s28, v%d" % (SCR, V_L16))
    e("v_add_u32 v%d, s29, v%d" % (SA0, LW_A0)); e("v_add_u32 v%d, s29, v%d" % (SA1, LW_A1))
    for k in range(4): e("v_add_u32 v%d, s29, v%d" % (SAOr[k], LW_AO + k))
    e("s_lshl_b32 s35, s%d, 17" % S_HEAD)
    cur_srd = [None]
    def set_srd(which):
        if cur_srd[0] == which: return
        cur_srd[0] = which
        p = S_PW + 2 * which
        e("s_mov_b32 s8, s%d" % p); e("s_mov_b32 s9, s%d" % (p + 1)); e("s_mov_b32 s10, 0x400000"); e("s_mov_b32 s11, 0x20000")
    def quads(u):
        if u["kind"] == "qkv":
            if u["dest"] == "flat": return [("v", u["base"] + 4 * i) for i in range(4)]
            b0 = u["base"] + u["t"] * 8
            return [(u["dest"], b0), (u["dest"], b0 + 4), (u["dest"], b0 + 64), (u["dest"], b0 + 68)]
        return [(u["dest"], u["base"] + (nt * 2 + u["t"]) * 8 + 4 * u["b"]) for nt in range(8)]
    def nloads(u): return 8 if u["kind"] == "wo" else 4
    def issue(n):
        u = units[n]; set_srd(u["m"])
        if u["kind"] == "qkv":
            for i in range(4):
                e("s_xor_b32 s28, s36, %d" % (u["t"] << 19)); e("s_add_u32 s28, s28, %d" % (i * 131072))
                if u["dest"] == "lds":
                    e("s_add_u32 m0, s34, %d" % (u["slot"] * 4096 + i * 1024)); e("s_nop 0")
                    A.vmem("buffer_load_dwordx4 v%d, s[8:11], s28 offen lds" % LW_VQ, ("w", n))
                else:
                    k, r = quads(u)[i]
                    A.vmem("buffer_load_dwordx4 %s, v%d, s[8:11], s28 offen" % (reg(k, r, 4), LW_VQ), ("w", n))
        else:
            for hb in range(2):
                for i in range(4):
                    qd = 2 * u["b"] + hb
                    e("s_add_u32 s28, s35, %d" % ((64 * u["t"] + 16 * qd + 4 * i) * 1024))
                    k, r = quads(u)[hb * 4 + i]
                    A.vmem("buffer_load_dwordx4 %s, v%d, s[8:11], s28 offen" % (reg(k, r, 4), LW_VO), ("w", n))
    nxt = [0]; fly = [0]
    def pump():
        while nxt[0] < len(units) and fly[0] + nloads(units[nxt[0]]) <= maxfly:
            issue(nxt[0]); fly[0] += nloads(units[nxt[0]]); nxt[0] += 1
    pump()
    for n, u in enumerate(units):
        A.wait_vm(("w", n)); fly[0] -= nloads(u)
        if u["kind"] == "qkv" and u["dest"] == "lds":
            slot = u["slot"]
            for uu in range(2):
                for b in range(2):
                    for hb in range(2):
                        A.ds("ds_read_b64_tr_b16 %s, v%d offset:%d" % (vr(LW_TMP + uu * 8 + 4 * b + 2 * hb, 2), LW_A0 + uu, slot * 4096 + b * 2048 + hb * 256), "tr")
            if n in hooks: hooks[n]()
            pump()
            A.wait_lds_all()
            for uu in range(2):
                for b in range(2):
                    A.ds("ds_write_b128 v%d, %s offset:%d" % (LW_WB, vr(LW_TMP + uu * 8 + 4 * b, 4), slot * 4096 + uu * 2048 + b * 1024), "wb")
            A.wait_lds_all()
        elif u["kind"] == "qkv":
            for i, (k, r) in enumerate(quads(u)):
                A.ds("ds_write_b128 v%d, %s offset:%d" % (SCR, reg(k, r, 4), i * 1024), "sw")
            if n in hooks: hooks[n]()
            pump()
            A.wait_lds_all()
            for uu in range(2):
                for b in range(2):
                    for hb in range(2):
                        if u["dest"] == "flat": d = vr(u["base"] + uu * 8 + 4 * b + 2 * hb, 2)
                        else: d = reg(u["dest"], u["base"] + (uu * 8 + u["t"]) * 8 + 4 * b + 2 * hb, 2)
                        A.ds("ds_read_b64_tr_b16 %s, v%d offset:%d" % (d, (SA0, SA1)[uu], b * 2048 + hb * 256), "tr")
            A.wait_lds_all()
        else:
            for i, (k, r) in enumerate(quads(u)):
                A.ds("ds_write_b128 v%d, %s offset:%d" % (SCR, reg(k, r, 4), i * 1024), "sw")
            if n in hooks: hooks[n]()
            pump()
            A.wait_lds_all()
            for hb in range(2):
                for nt in range(8):
                    G, T = nt >> 2, nt & 3
                    d = reg(u["dest"], u["base"] + (nt * 2 + u["t"]) * 8 + 4 * u["b"] + 2 * hb, 2)
                    A.ds("ds_read_b64_tr_b16 %s, v%d offset:%d" % (d, SAOr[2 * G + (T >> 1)], hb * 4096 + (T & 1) * 8), "tr")
            A.wait_lds_all()

def units_qkv(m, dest, base):
    return [dict(kind="qkv", m=m, t=t, dest=dest, base=base) for t in range(8)]
def units_wo(dest, base):
    return [dict(kind="wo", m=3, t=t, b=b, hb=hb, dest=dest, base=base) for t in range(2) for b in range(2) for hb in range(2)]

def pubaddr(dst, tmp):
    e("v_lshrrev_b32 v%d, 2, v%d" % (dst, V_L16)); e("v_and_b32 v%d, 0xc0, v%d" % (dst, dst))
    e("v_lshlrev_b32 v%d, 1, v%d" % (tmp, V_L16)); e("v_and_b32 v%d, 32, v%d" % (tmp, tmp)); e("v_add_u32 v%d, v%d, v%d" % (dst, dst, tmp))
    e("v_lshrrev_b32 v%d, 3, v%d" % (tmp, V_L16)); e("v_and_b32 v%d, 28, v%d" % (tmp, tmp)); e("v_add_u32 v%d, v%d, v%d" % (dst, dst, tmp))

def chain():
    L = VLANE; a, b_, c_, d_ = VS, VS + 1, VS + 2, VS + 3
    lab("L_chain")
    e("v_lshlrev_b32 v%d, 4, v%d" % (V_L16, L))
    e("s_mul_i32 s28, s%d, %d" % (S_WAVE, WVSTRIDE)); e("v_add_u32 v%d, s28, v%d" % (V_WVA, V_L16))
    e("v_and_b32 v%d, 15, v%d" % (a, L)); e("v_lshlrev_b32 v%d, 5, v%d" % (a, a)); e("v_lshrrev_b32 v%d, 4, v%d" % (b_, L)); e("v_lshlrev_b32 v%d, 3, v%d" % (b_, b_))
    e("v_add_u32 v%d, v%d, v%d" % (a, a, b_)); e("s_lshl_b32 s28, s%d, 10" % S_WAVE); e("s_add_u32 s28, s28, %d" % L_X); e("v_add_u32 v%d, s28, v%d" % (V_XWR, a))
    e("v_lshrrev_b32 v%d, 5, v%d" % (a, L)); e("v_lshlrev_b32 v%d, 8, v%d" % (a, a))
    e("v_bfe_u32 v%d, v%d, 2, 2" % (b_, L)); e("v_lshlrev_b32 v%d, 6, v%d" % (b_, b_)); e("v_add_u32 v%d, v%d, v%d" % (a, a, b_))
    e("v_and_b32 v%d, 1, v%d" % (b_, L)); e("v_lshlrev_b32 v%d, 5, v%d" % (b_, b_)); e("v_add_u32 v%d, v%d, v%d" % (a, a, b_))
    e("v_bfe_u32 v%d, v%d, 4, 1" % (b_, L)); e("v_lshlrev_b32 v%d, 3, v%d" % (b_, b_)); e("v_add_u32 v%d, v%d, v%d" % (a, a, b_))
    e("s_lshr_b32 s28, s%d, 1" % S_WAVE); e("s_lshl_b32 s28, s28, 10"); e("s_and_b32 s29, s%d, 1" % S_WAVE); e("s_lshl_b32 s29, s29, 9")
    e("s_add_u32 s28, s28, s29"); e("s_add_u32 s28, s28, %d" % L_O); e("v_add_u32 v%d, s28, v%d" % (a, a))
    e("v_and_b32 v%d, 2, v%d" % (b_, L)); e("v_cmp_ne_u32 vcc, 0, v%d" % b_)
    e("v_lshlrev_b32 v%d, 3, v%d" % (b_, L)); e("v_add_u32 v%d, %d, v%d" % (b_, L_DUM, b_))
    e("s_nop 0")
    e("v_cndmask_b32 v%d, v%d, v%d, vcc" % (V_OWR, b_, a))
    e("v_and_b32 v%d, 8, v%d" % (b_, L)); e("v_cmp_eq_u32 s[48:49], 0, v%d" % b_)
    e("v_bfe_u32 v%d, v%d, 2, 2" % (a, L)); e("s_lshl_b32 s28, s%d, 3" % S_WAVE); e("v_add_u32 v%d, s28, v%d" % (a, a))
    e("v_add_u32 v%d, s%d, v%d" % (c_, S_HEAD, a)); e("v_and_b32 v%d, 31, v%d" % (c_, c_)); e("v_lshlrev_b32 v%d, 8, v%d" % (c_, c_))
    e("v_lshlrev_b32 v%d, 13, v%d" % (a, a)); e("v_add_u32 v%d, v%d, v%d" % (a, a, c_))
    e("v_lshrrev_b32 v%d, 4, v%d" % (b_, L)); e("v_lshlrev_b32 v%d, 6, v%d" % (b_, b_)); e("v_add_u32 v%d, v%d, v%d" % (a, a, b_))
    e("v_and_b32 v%d, 3, v%d" % (b_, L)); e("v_lshlrev_b32 v%d, 4, v%d" % (b_, b_)); e("v_add_u32 v%d, v%d, v%d" % (V_PS0, a, b_))
    e("v_and_b32 v%d, 1, v%d" % (c_, L)); e("v_cmp_eq_u32 vcc, 0, v%d" % c_)
    e("v_mov_b32 v%d, 0xEEEEEEEE" % a); e("v_mov_b32 v%d, 0x44444444" % b_); e("v_cndmask_b32 v%d, v%d, v%d, vcc" % (V_IDX, a, b_))
    cval = struct.unpack("<I", struct.pack("<f", (128 ** -0.5) * math.log2(math.e)))[0]
    e("s_mov_b32 s%d, 0x%08x" % (S_C, cval))
    e("v_and_b32 v%d, 1, v%d" % (a, L)); e("v_lshlrev_b32 v%d, 4, v%d" % (a, a)); e("v_mov_b32 v%d, 0x3f80" % b_); e("v_lshlrev_b32 v%d, v%d, v%d" % (b_, a, b_))
    e("v_bfe_u32 v%d, v%d, 1, 2" % (a, L))
    for i in range(4):
        e("v_cmp_eq_u32 vcc, %d, v%d" % (i, a)); e("s_nop 1"); e("v_cndmask_b32 v%d, 0, v%d, vcc" % (12 + i, b_))
    e("v_add_u32 v%d, %d, v%d" % (a, L_SEL, V_L16))
    pubaddr(60, c_)
    e("s_cmp_lg_u32 s%d, 0" % S_WAVE); e("s_cbranch_scc1 L_noinit")
    e("ds_write_b128 v%d, v[12:15]" % a); e("s_waitcnt lgkmcnt(0)")
    IPUB, IM0 = 60, 61
    e("s_load_dwordx2 s[30:31], s[0:1], %d" % KA["mem0"])
    e("v_lshrrev_b32 v%d, 4, v%d" % (a, L)); e("v_lshlrev_b32 v%d, 11, v%d" % (a, a))
    e("v_and_b32 v%d, 1, v%d" % (b_, L)); e("v_lshlrev_b32 v%d, 10, v%d" % (b_, b_)); e("v_add_u32 v%d, v%d, v%d" % (a, a, b_))
    e("v_bfe_u32 v%d, v%d, 1, 2" % (b_, L)); e("v_lshlrev_b32 v%d, 3, v%d" % (b_, b_)); e("v_add_u32 v%d, v%d, v%d" % (a, a, b_))
    e("v_bfe_u32 v%d, v%d, 3, 1" % (b_, L)); e("v_lshlrev_b32 v%d, 2, v%d" % (b_, b_)); e("v_add_u32 v%d, v%d, v%d" % (a, a, b_))
    e("s_lshl_b32 s29, s%d, 5" % S_HEAD); e("v_add_u32 v%d, s29, v%d" % (a, a))
    e("s_waitcnt lgkmcnt(0)")
    e("global_load_dword v%d, v%d, s[30:31]" % (IM0, a))
    for i in range(4): e("v_mov_b32 v%d, -1" % (12 + i))
    for b in range(2):
        for half in range(2):
            e("s_add_u32 s29, s%d, %d" % (S_H13, WS_PB + b * 0x40000 + half * 4096))
            for x in range(4):
                e("buffer_store_dwordx4 v[12:15], v%d, s[4:7], s29 offen offset:%d" % (V_L16, x * 1024))
    for b in (1, 2):
        e("s_add_u32 s29, s%d, %d" % (S_H8, WS_MB + b * 8192))
        e("buffer_store_dword v12, v%d, s[4:7], s29 offen" % IPUB)
    e("v_lshlrev_b32 v%d, 7, v%d" % (a, L)); e("v_mov_b32 v%d, 0" % b_)
    e("s_lshl_b32 s29, s%d, 2" % S_HEAD); e("s_add_u32 s29, s29, %d" % WS_FL)
    e("s_mov_b64 exec, 0x1ff")
    e("buffer_store_dword v%d, v%d, s[4:7], s29 offen sc0 sc1" % (b_, a))
    e("s_mov_b64 exec, s[26:27]")
    lab("L_noinit")
    def hook_mem0():
        l = A.newlab("L_hk")
        e("s_cmp_lg_u32 s%d, 0" % S_WAVE); e("s_cbranch_scc1 %s" % l)
        e("s_add_u32 s29, s%d, %d" % (S_H8, WS_MB))
        e("buffer_store_dword v%d, v%d, s[4:7], s29 offen" % (IM0, IPUB))
        e("s_mov_b64 exec, 1")
        e("v_mov_b32 v62, 24"); e("v_mov_b32 v63, 1"); e("global_atomic_add v62, v63, s[24:25] sc1")
        e("s_mov_b64 exec, s[26:27]")
        lab(l)
    def hook_arrive():
        l = A.newlab("L_hk")
        e("s_cmp_lg_u32 s%d, 0" % S_WAVE); e("s_cbranch_scc1 %s" % l)
        e("s_mov_b64 exec, 1")
        e("v_mov_b32 v62, %d" % bar_off(0)); e("v_mov_b32 v63, 1"); e("global_atomic_add v62, v63, s[24:25] sc1")
        e("s_mov_b64 exec, s[26:27]")
        lab(l)
    load_setup(WVSTRIDE)
    wvu = units_qkv(2, "lds", 0); wvu[0]["dest"] = "flat"; wvu[0]["base"] = V_WV0
    rt(2)
    if OPT.get("regload", 0):
        for t in range(1, 8): wvu[t]["slot"] = t - 1
        wo_units = [dict(kind="wo", m=3, t=t, b=b, dest="v", base=V_WO) for t in range(2) for b in range(2)]
        units = wvu[1:] + [wvu[0]] + units_qkv(0, "a", 0) + units_qkv(1, "a", 128) + wo_units
        load_units_reg(units, {0: hook_mem0, 16: hook_arrive})
    else:
        units = units_qkv(0, "a", 0) + units_qkv(1, "a", 128) + units_wo("v", V_WO) + wvu
        load_units(units, 7, {0: hook_mem0, 7: hook_arrive})
    rt(3)
    wvslot = {u["t"]: u["slot"] for u in wvu[1:]}
    e("s_cmp_lg_u32 s%d, 0" % S_WAVE); e("s_cbranch_scc1 L_tb_done")
    e("s_mov_b64 exec, 1")
    e("v_mov_b32 v%d, %d" % (a, bar_off(0))); e("s_mov_b32 s29, 0")
    lab("L_tb")
    e("global_load_dword v%d, v%d, s[24:25] sc0 sc1" % (b_, a)); e("s_waitcnt vmcnt(0)"); e("v_readfirstlane_b32 s30, v%d" % b_)
    e("s_add_u32 s29, s29, 1"); e("s_cmp_gt_u32 s29, 0x40000"); e("s_cbranch_scc1 L_tb2")
    e("s_cmp_lt_u32 s30, 32"); e("s_cbranch_scc1 L_tb")
    lab("L_tb2")
    e("s_mov_b64 exec, s[26:27]")
    lab("L_tb_done")
    e("s_mov_b32 s%d, 0" % S_STEP)
    e("s_mov_b32 s%d, %d" % (S_MCUR, WS_MB)); e("s_mov_b32 s%d, %d" % (S_MPREV, WS_MB + 2 * 8192)); e("s_mov_b32 s%d, %d" % (S_PCUR, WS_PB))
    e("s_add_u32 s%d, s%d, %d" % (S_KXO, S_H13, WS_KX)); e("s_add_u32 s%d, s%d, %d" % (S_VXO, S_H13, WS_VX))
    e("s_mov_b32 s%d, 0" % S_SPIN); e("s_mov_b32 s%d, 0" % S_PAR)
    def need_seg(target_sgpr_or_none):
        if OPT["stage"] < 2: return
        lok = A.newlab("L_rdy"); lp = A.newlab("L_rp")
        if target_sgpr_or_none is None: e("s_mov_b32 s30, 0")
        else: e("s_add_u32 s30, s%d, 1" % target_sgpr_or_none)
        e("s_cmp_lt_u32 s30, s%d" % S_RDY); e("s_cbranch_scc1 %s" % lok)
        e("s_mov_b32 s33, 0")
        lab(lp)
        e("v_lshlrev_b32 v%d, 3, v%d" % (VT, V_L16))
        e("s_lshl_b32 s29, s%d, 2" % S_HEAD); e("s_add_u32 s29, s29, %d" % FL_KV)
        e("s_mov_b64 exec, 0xff")
        e("buffer_load_dword v%d, v%d, s[4:7], s29 offen sc0 sc1" % (VT + 1, VT))
        e("s_mov_b64 exec, s[26:27]")
        e("s_waitcnt vmcnt(0)")
        e("s_mov_b32 s31, 64")
        for t in range(1, 8):
            e("v_readlane_b32 s32, v%d, %d" % (VT + 1, t)); e("s_nop 0"); e("s_mul_i32 s32, s32, 7"); e("s_add_u32 s32, s32, %d" % (t - 1)); e("s_min_u32 s31, s31, s32")
        e("s_mov_b32 s%d, s31" % S_RDY)
        e("s_add_u32 s33, s33, 1"); e("s_cmp_gt_u32 s33, 0x40000"); e("s_cbranch_scc1 %s" % lok)
        e("s_cmp_lt_u32 s30, s%d" % S_RDY); e("s_cbranch_scc0 %s" % lp)
        lab(lok)
    def dma8(so, lb, par_sgpr):
        for i in range(8):
            if i % 4 == 0:
                e("s_add_u32 s28, s%d, %d" % (so, i * 1024)); e("s_add_u32 s29, s%d, %d" % (par_sgpr, lb + i * 1024)); e("s_mov_b32 m0, s29"); e("s_nop 0")
            e("buffer_load_dwordx4 v%d, s[4:7], s28 offen offset:%d sc1 lds" % (V_L16, (i % 4) * 1024))
    e("s_mov_b32 s%d, 0" % S_RDY)
    need_seg(None)
    l0 = A.newlab("L_pf"); l1 = A.newlab("L_pf")
    e("s_cmp_eq_u32 s%d, 1" % S_WAVE); e("s_cbranch_scc0 %s" % l0); dma8(S_KXO, L_KX, S_PAR); lab(l0)
    e("s_cmp_eq_u32 s%d, 2" % S_WAVE); e("s_cbranch_scc0 %s" % l1); dma8(S_VXO, L_VX, S_PAR); lab(l1)
    e("s_waitcnt vmcnt(0)"); e("s_barrier")
    rt(4)
    if OPT["stamps"]:
        for i in range(16): e("s_mov_b32 s%d, 0" % (S_ST + i))
        e("s_memtime s[82:83]"); e("s_waitcnt lgkmcnt(0)"); e("s_mov_b32 s80, s82")
    if not OPT["final"]:
        e("s_memtime s[84:85]"); e("s_memrealtime s[88:89]"); e("s_waitcnt lgkmcnt(0)")

    T0, T1, T2, T3, T4, T5 = range(VT, VT + 6)
    lab("L_step")
    A.lds = []; A.vm = []
    QA, KA_ = V_QK, V_QK + 8
    def wvreg(t): return V_WV0 if t == 0 else (V_WVR if t % 2 == 1 else V_KX)
    def wv_issue(t):
        r = wvreg(t)
        for u in range(2):
            for b in range(2):
                A.ds("ds_read_b128 %s, v%d offset:%d" % (vr(r + 8 * u + 4 * b, 4), V_WVA, wvslot[t] * 4096 + u * 2048 + b * 1024), ("wv", t, u))
    ts(20)
    if OPT.get("steptrace", 0):
        l = A.newlab("L_stt")
        e("s_cmp_lg_u32 s%d, 2" % S_WAVE); e("s_cbranch_scc1 %s" % l)
        e("s_memrealtime s[90:91]"); e("s_waitcnt lgkmcnt(0)")
        e("s_lshl_b32 s28, s%d, 6" % S_HEAD); e("s_add_u32 s28, s28, s%d" % S_STEP); e("s_lshl_b32 s28, s28, 2"); e("s_add_u32 s28, s28, %d" % (WS_TRACE + 0x10000))
        e("s_mov_b64 exec, 1"); e("v_mov_b32 v10, s90"); e("v_mov_b32 v11, 0"); e("buffer_store_dword v10, v11, s[4:7], s28 offen"); e("s_mov_b64 exec, s[26:27]")
        lab(l)
    if OPT.get("red_sets", 1) == 2: e("s_waitcnt vmcnt(%d)" % (2 if OPT["hist"] else 1))
    for i in range(4): e("v_mov_b32 v%d, 0" % (V_S + i))
    e("s_lshl_b32 s28, s%d, 11" % S_WAVE); e("s_add_u32 s%d, s%d, s28" % (S_MQ, S_MCUR))
    e("v_add_u32 v%d, s28, v%d" % (T2, V_L16)); e("v_add_u32 v%d, %d, v%d" % (T2, L_MEM, T2))
    e("v_mfma_f32_32x32x16_bf16 %s, %s, %s, 0" % (vr(V_QK, 16), vr(V_S, 4), vr(V_S, 4)))
    for a2 in range(1, 4): e("v_xor_b32 v%d, %d, v%d" % (T2 + a2, a2 << 11, T2))
    def rd_wv(t):
        r = wvreg(t)
        return [lambda u=u, b=b: A.ds("ds_read_b128 %s, v%d offset:%d" % (vr(r + 8 * u + 4 * b, 4), V_WVA, wvslot[t] * 4096 + u * 2048 + b * 1024), ("wv", t, u)) for u in range(2) for b in range(2)]
    if OPT["stage"] >= 2:
        lsk = A.newlab("L_sk63")
        e("s_cmp_eq_u32 s%d, 63" % S_STEP); e("s_cbranch_scc1 %s" % lsk)
        need_seg(S_STEP)
        lab(lsk)
    def smf(acc, areg, breg):
        e("v_smfmac_f32_16x16x64_bf16 %s, %s, %s, v%d" % (vr(acc, 4), vr(areg, 4), breg, V_IDX))
    def areg_of(tau, own): return (own + 4 * tau) if tau < 2 else (V_MEM + 4 * tau)
    def qk_l(tau, own=V_MEM):
        areg = areg_of(tau, own)
        return [lambda acc=acc, base=base, u=u: smf(acc, areg, ar(base + (u * 8 + tau) * 8, 8)) for (acc, base, u) in ((QA, 0, 0), (KA_, 128, 0), (QA + 4, 0, 1), (KA_ + 4, 128, 1))]
    def vv_l(tau, own=V_MEM):
        areg = areg_of(tau, own)
        return [lambda u=u: smf(V_VA + 4 * u, areg, vr(wvreg(tau) + 8 * u, 8)) for u in range(2)]
    def poll_issue(base):
        for tau in range(2):
            e("buffer_load_dwordx4 %s, v%d, s[4:7], s%d offen offset:%d sc1" % (vr(base + 4 * tau, 4), V_L16, S_MQ, tau * 1024))
    def poll_check(M):
        e("v_max3_u32 v%d, v%d, v%d, v%d" % (T0, M, M + 1, M + 2)); e("v_max3_u32 v%d, v%d, v%d, v%d" % (T1, M + 3, M + 4, M + 5))
        e("v_max3_u32 v%d, v%d, v%d, v%d" % (T0, T0, M + 6, M + 7)); e("v_max_u32 v%d, v%d, v%d" % (T0, T0, T1))
        e("v_cmp_eq_u32 vcc, -1, v%d" % T0)
    SA, SB = V_MEM, V_MEM + 24
    for i in range(OPT["dly_mem"]): e("s_nop 7")
    poll_issue(SA)
    ts(21)
    e("v_mfma_f32_16x16x32_bf16 %s, %s, %s, 0" % (vr(V_VA, 4), vr(V_S, 4), vr(V_S, 4)))
    e("v_mfma_f32_16x16x32_bf16 %s, %s, %s, 0" % (vr(V_VA + 4, 4), vr(V_S, 4), vr(V_S, 4)))
    for f in rd_wv(1) + rd_wv(2): f()
    e("s_add_u32 s%d, s%d, 0x40000" % (S_KXO, S_KXO)); e("s_add_u32 s%d, s%d, 0x40000" % (S_VXO, S_VXO))
    e("s_cmp_lt_u32 s%d, 2" % S_WAVE); e("s_cselect_b32 s%d, s%d, s%d" % (S_DMA, S_KXO, S_VXO)); e("s_lshr_b32 s29, s%d, 1" % S_WAVE); e("s_lshl_b32 s29, s29, 13"); e("s_add_u32 s29, s29, %d" % L_KX)
    e("s_lshl_b32 s30, s%d, 12" % S_WAVE); e("s_and_b32 s31, s30, 4096"); e("s_add_u32 s%d, s%d, s31" % (S_DMA, S_DMA))
    e("s_xor_b32 s31, s%d, 8192" % S_PAR); e("s_add_u32 s29, s29, s31"); e("s_add_u32 s29, s29, s30")
    e("s_mov_b32 m0, s29")
    e("s_add_u32 s32, s%d, %d" % (S_PAR, L_KX)); e("s_lshl_b32 s28, s%d, 11" % S_WAVE); e("s_add_u32 s33, s28, s%d" % S_PAR); e("s_add_u32 s33, s33, %d" % L_VX)
    if OPT["stage"] >= 3:
        e("s_lshl_b32 s28, s%d, 16" % S_STEP); e("s_lshl_b32 s29, s%d, 11" % S_HEAD); e("s_add_u32 s38, s28, s29"); e("s_lshl_b32 s29, s%d, 9" % S_WAVE); e("s_add_u32 s38, s38, s29"); e("s_add_u32 s38, s38, %d" % WS_KM)
        e("s_mov_b32 s36, s37"); e("s_add_u32 s37, s38, %d" % (WS_VM - WS_KM))
    for i in range(OPT.get("gap_mem", 0)): e("s_nop 7")
    mem2 = OPT.get("mem_sets", 1) == 2
    spec = (not mem2) and OPT.get("spec", 1)
    if mem2: poll_issue(SB)
    lab("L_pmA")
    e("s_add_u32 s%d, s%d, 1" % (S_SPIN, S_SPIN))
    e("s_waitcnt vmcnt(%d)" % (2 if mem2 else 0))
    ts(22)
    if spec:
        M = SA
        q0 = qk_l(0, SA); q1 = qk_l(1, SA)
        q0[0](); e("v_max3_u32 v%d, v%d, v%d, v%d" % (T0, M, M + 1, M + 2)); e("v_max3_u32 v%d, v%d, v%d, v%d" % (T1, M + 3, M + 4, M + 5))
        q0[1](); e("ds_write_b128 v%d, %s" % (T2, vr(M, 4)))
        q0[2](); e("v_max3_u32 v%d, v%d, v%d, v%d" % (T0, T0, M + 6, M + 7)); e("v_max_u32 v%d, v%d, v%d" % (T0, T0, T1))
        q0[3](); e("ds_write_b128 v%d, %s offset:1024" % (T2, vr(M + 4, 4)))
        q1[0](); e("v_cmp_eq_u32 vcc, -1, v%d" % T0)
        q1[1](); e("v_add_u32 v%d, s32, v%d" % (T1, V_L16))
        e("s_cmp_gt_u32 s%d, 0x200000" % S_SPIN); e("s_cbranch_scc1 L_specok")
        if OPT["nowait"]: e("s_branch L_specok")
        e("s_cbranch_vccz L_specok")
        poll_issue(SA) if False else None
        e("s_waitcnt lgkmcnt(0)")
        poll_issue(SA)
        A.nop(6)
        e("v_mfma_f32_32x32x16_bf16 %s, %s, %s, 0" % (vr(V_QK, 16), vr(V_S, 4), vr(V_S, 4)))
        e("s_branch L_pmA")
        lab("L_specok")
        stamp(0)
        q1[2](); q1[3]()
    else:
        poll_check(SA)
        e("s_cmp_gt_u32 s%d, 0x200000" % S_SPIN); e("s_cbranch_scc1 L_goA")
        if OPT["nowait"]: e("s_branch L_goA")
        e("s_cbranch_vccz L_goA")
        poll_issue(SA)
        if mem2:
            e("s_waitcnt vmcnt(2)")
            poll_check(SB)
            e("s_nop 1")
            e("s_cbranch_vccz L_goB")
            poll_issue(SB)
        e("s_branch L_pmA")
    def rd_m(tau): return lambda: A.ds("ds_read_b128 %s, v%d offset:%d" % (vr(V_MEM + 4 * tau, 4), T2 + (tau >> 1), (tau & 1) * 1024), ("m", tau))
    def rd_kx(f):
        kk, kt = f >> 1, f & 1
        return lambda: A.ds("ds_read_b128 %s, v%d offset:%d" % (vr(V_MEM + 4 * f, 4), T1, (kt * 4 + kk) * 1024), ("kx", kk))
    def rd_vx(u): return lambda: A.ds("ds_read_b128 %s, v%d offset:%d" % (vr(V_KX + 4 * u, 4), T0, u * 1024), ("vx", u))
    def run(mf, fl=()):
        fl = list(fl)
        for f in mf:
            f()
            if fl: fl.pop(0)()
        for f in fl: f()
    def vv(tau, fl=()):
        vl = vv_l(tau); fl = list(fl)
        A.wait_lds(("wv", tau, 0)); vl[0]()
        if fl: fl.pop(0)()
        A.wait_lds(("wv", tau, 1)); vl[1]()
        for f in fl: f()
    lds_state = list(A.lds)
    for variant, own in ((("B", SB), ("A", SA)) if mem2 else (("A", SA),)):
        A.lds = list(lds_state)
        if not spec:
            lab("L_go" + variant)
            if variant == "A": stamp(0)
            else: ts(0)
            q0 = qk_l(0, own); q1 = qk_l(1, own)
            q0[0](); e("ds_write_b128 v%d, %s" % (T2, vr(own, 4)))
            q0[1](); e("ds_write_b128 v%d, %s offset:1024" % (T2, vr(own + 4, 4)))
            q0[2](); e("v_add_u32 v%d, s32, v%d" % (T1, V_L16))
            q0[3]()
            if mem2: e("s_waitcnt vmcnt(0)")
            for i2, f in enumerate(q1):
                f()
        if variant == "A": stamp(8, 2)
        A.wait_lds_all(); e("s_barrier")
        if variant == "A": stamp(9, 2)
        rd_m(2)(); rd_m(3)()
        run(vv_l(0, own), [rd_m(4), rd_m(5)])
        run(vv_l(1, own), [rd_m(6), rd_m(7)])
        if variant == "B": e("s_branch L_joinP0")
    lab("L_joinP0")
    e("v_add_u32 v%d, s33, v%d" % (T0, V_L16))
    if OPT["stage"] >= 3:
        lv = A.newlab("L_vm")
        e("s_cmp_eq_u32 s%d, 0" % S_STEP); e("s_cbranch_scc1 %s" % lv)
        e("v_lshrrev_b32 v%d, 2, v%d" % (T2, V_L16))
        for u in range(2):
            if not OPT.get("nokm", 0): e("buffer_store_dword v%d, v%d, s[4:7], s36 offen offset:%d sc0 sc1" % (V_S + 9 + u, T2, u * 256))
        lab(lv)
    def dma(i): return lambda: (None if OPT.get("nodma", 0) else e("buffer_load_dwordx4 v%d, s[4:7], s%d offen offset:%d sc1 lds" % (V_L16, S_DMA, i * 1024)))
    dpos = OPT.get("dmapos", 1)
    if dpos == 0:
        for i in range(4): dma(i)()
    A.wait_lds(("m", 2)); run(qk_l(2), rd_wv(3))
    A.wait_lds(("m", 3)); run(qk_l(3), [rd_kx(0), rd_kx(1)] + ([dma(0), dma(1)] if dpos == 1 else []))
    vv(2, [dma(2), dma(3)] if dpos == 1 else [])
    ts(33)
    A.wait_lds(("m", 4)); run(qk_l(4), rd_wv(4))
    ts(34)
    A.wait_lds(("m", 5)); run(qk_l(5), [rd_kx(2)])
    vv(3)
    ts(35)
    A.wait_lds(("m", 6)); run(qk_l(6), rd_wv(5))
    vv(4, [rd_kx(3)])
    ts(36)
    A.wait_lds(("m", 7)); run(qk_l(7), rd_wv(6))
    stamp(1)
    vv(5)
    e("v_lshrrev_b32 v%d, 1, v%d" % (T3, V_L16)); e("v_add_u32 v%d, %d, v%d" % (T3, L_X, T3))
    for u in range(2):
        q, k_ = QA + 4 * u, KA_ + 4 * u
        e("v_add_f32 v%d, v%d, v%d" % (k_, k_, k_ + 1)); e("v_add_f32 v%d, v%d, v%d" % (k_ + 2, k_ + 2, k_ + 3))
        e("v_add_f32 v%d, v%d, v%d" % (q, q, q + 1)); e("v_add_f32 v%d, v%d, v%d" % (q + 2, q + 2, q + 3))
        e("v_cvt_pk_bf16_f32 v%d, v%d, v%d" % (k_, k_, k_ + 2)); e("v_cvt_pk_bf16_f32 v%d, v%d, v%d" % (k_ + 1, q, q + 2))
        A.ds("ds_write_b64 v%d, %s offset:%d" % (V_XWR, vr(k_, 2), u * 512), "xw")
    for f in rd_wv(7): f()
    vv(6)
    if OPT["stage"] >= 3:
        e("v_lshrrev_b32 v%d, 2, v%d" % (T2, V_L16))
        for u in range(2):
            if not OPT.get("nokm", 0): e("buffer_store_dword v%d, v%d, s[4:7], s38 offen offset:%d sc0 sc1" % (KA_ + 4 * u, T2, u * 256))
    if OPT["stage"] >= 3:
        lfk = A.newlab("L_fkm")
        e("s_cmp_eq_u32 s%d, 1" % S_WAVE); e("s_cbranch_scc0 %s" % lfk)
        e("s_cmp_lt_u32 s%d, 2" % S_STEP); e("s_cbranch_scc1 %s" % lfk)
        e("s_sub_u32 s28, s%d, 1" % S_STEP); e("v_mov_b32 v%d, s28" % T4); e("v_mov_b32 v%d, 0" % T5); e("s_lshl_b32 s28, s%d, 2" % S_HEAD); e("s_add_u32 s28, s28, %d" % FL_KM)
        e("s_mov_b64 exec, 1"); e("buffer_store_dword v%d, v%d, s[4:7], s28 offen sc0 sc1" % (T4, T5)); e("s_mov_b64 exec, s[26:27]")
        lab(lfk)
    va = V_VA
    ZS = V_KX + 12
    stamp(10, 2)
    A.wait_lds("xw"); e("s_barrier")
    stamp(11, 2)
    for kk in range(4):
        for b in range(2):
            A.ds("ds_read_b64_tr_b16 %s, v%d offset:%d" % (vr(V_QK + 4 * kk + 2 * b, 2), T3, kk * 1024 + b * 512), ("x", kk))
    stamp(2)
    def vpk(u):
        x = va + 4 * u
        return [lambda: e("v_add_f32 v%d, v%d, v%d" % (x, x, x + 1)), lambda: e("v_add_f32 v%d, v%d, v%d" % (x + 2, x + 2, x + 3)),
                lambda: e("v_cvt_pk_bf16_f32 v%d, v%d, v%d" % (x, x, x + 2)), lambda: e("v_mov_b32 v%d, 0" % (x + 1))]
    zs = [lambda i=i: e("v_mov_b32 v%d, 0" % (ZS + i)) for i in range(4)]
    sfill = {0: [[rd_kx(4)], [rd_kx(5)], [rd_kx(6)]], 1: [[lambda: vv_l(7)[0]()], [lambda: vv_l(7)[1]()], [rd_kx(7)]],
             2: [[rd_vx(0), zs[0]], [rd_vx(1), zs[1]], [zs[2], zs[3]]], 3: [vpk(0)[:2], vpk(0)[2:], vpk(1)[:2]]}
    for kk in range(4):
        A.wait_lds(("x", kk)); A.wait_lds(("kx", kk))
        if kk == 1: A.wait_lds(("wv", 7, 1))
        X = vr(V_QK + 4 * kk, 4)
        cs = lambda r: "0" if kk == 0 else vr(r, 4)
        for idx, (dst, a_op) in enumerate(((V_S, vr(V_MEM + kk * 8, 4)), (V_S + 4, vr(V_MEM + kk * 8 + 4, 4)), (V_S + 8, X))):
            e("v_mfma_f32_16x16x32_bf16 %s, %s, %s, %s" % (vr(dst, 4), a_op, X, cs(dst)))
            for f in sfill[kk][idx]: f()
    for f in vpk(1)[2:]: f()
    e("v_add_u32 v%d, %d, v%d" % (T5, L_O, V_L16))
    A.nop(1)
    stamp(3)
    S = V_S
    e("v_max3_f32 v%d, v%d, v%d, v%d" % (T0, S, S + 1, S + 2)); e("v_max3_f32 v%d, v%d, v%d, v%d" % (T1, S + 4, S + 5, S + 6))
    e("v_max3_f32 v%d, v%d, v%d, v%d" % (T0, T0, S + 3, S + 7)); e("v_max3_f32 v%d, v%d, v%d, v%d" % (T1, T1, S + 8, S + 9))
    e("v_max_f32 v%d, v%d, v%d" % (T0, T0, T1))
    e("v_mov_b32 v%d, v%d" % (T1, T0))
    A.nop(2)
    e("v_permlane16_swap_b32 v%d, v%d" % (T0, T1)); e("v_max_f32 v%d, v%d, v%d" % (T0, T0, T1))
    e("v_mov_b32 v%d, v%d" % (T1, T0))
    e("v_mov_b32 v%d, 0" % (S + 11)); e("s_nop 0")
    e("v_permlane32_swap_b32 v%d, v%d" % (T0, T1)); e("v_max_f32 v%d, v%d, v%d" % (T0, T0, T1))
    e("v_mul_f32 v%d, s%d, v%d" % (T0, S_C, T0))
    for i in range(10): e("v_fma_f32 v%d, v%d, s%d, -v%d" % (S + i, S + i, S_C, T0))
    for i in range(8): e("v_exp_f32 v%d, v%d" % (S + i, S + i))
    e("v_exp_f32 v%d, v%d" % (S + 8, S + 8))
    e("v_add_f32 v%d, v%d, v%d" % (T2, S, S + 1)); e("v_add_f32 v%d, v%d, v%d" % (T3, S + 2, S + 3))
    e("v_exp_f32 v%d, v%d" % (S + 9, S + 9))
    e("v_cvt_pk_bf16_f32 v%d, v%d, v%d" % (S, S, S + 1)); e("v_cvt_pk_bf16_f32 v%d, v%d, v%d" % (S + 1, S + 2, S + 3))
    e("v_cvt_pk_bf16_f32 v%d, v%d, v%d" % (S + 2, S + 4, S + 5)); e("v_cvt_pk_bf16_f32 v%d, v%d, v%d" % (S + 3, S + 6, S + 7))
    e("v_add_f32 v%d, v%d, v%d" % (T2, T2, S + 4)); e("v_add_f32 v%d, v%d, v%d" % (T3, T3, S + 5))
    stamp(12, 2)
    O0, O1 = V_QK + 4, V_QK + 8
    A.wait_lds(("vx", 1))
    e("v_mfma_f32_16x16x32_bf16 %s, %s, %s, 0" % (vr(O0, 4), vr(V_KX, 4), vr(S, 4)))
    e("v_cvt_pk_bf16_f32 v%d, v%d, v%d" % (S + 10, S + 8, S + 9))
    e("v_add_f32 v%d, v%d, v%d" % (T2, T2, S + 6))
    e("v_mfma_f32_16x16x32_bf16 %s, %s, %s, 0" % (vr(O1, 4), vr(V_KX + 4, 4), vr(S, 4)))
    e("v_add_f32 v%d, v%d, v%d" % (T3, T3, S + 7)); e("v_add_f32 v%d, v%d, v%d" % (T2, T2, S + 8))
    e("v_mfma_f32_16x16x16_bf16 %s, %s, %s, %s" % (vr(O0, 4), vr(va, 2), vr(S + 10, 2), vr(O0, 4)))
    e("v_add_f32 v%d, v%d, v%d" % (T3, T3, S + 9)); e("v_add_f32 v%d, v%d, v%d" % (T2, T2, T3))
    e("v_mfma_f32_16x16x16_bf16 %s, %s, %s, %s" % (vr(O1, 4), vr(va + 4, 2), vr(S + 10, 2), vr(O1, 4)))
    ts(63)
    e("v_mov_b32 v%d, v%d" % (T3, T2)); A.nop(2); e("v_permlane16_swap_b32 v%d, v%d" % (T2, T3)); e("v_add_f32 v%d, v%d, v%d" % (T2, T2, T3))
    e("v_mov_b32 v%d, v%d" % (T3, T2)); A.nop(2); e("v_permlane32_swap_b32 v%d, v%d" % (T2, T3)); e("v_add_f32 v%d, v%d, v%d" % (T2, T2, T3))
    e("v_rcp_f32 v%d, v%d" % (T2, T2))
    e("s_nop 0")
    ts(64)
    W0 = V_QK
    for r in range(2): e("v_mul_f32 v%d, v%d, v%d" % (O0 + r, O0 + r, T2)); e("v_mul_f32 v%d, v%d, v%d" % (O1 + r, O1 + r, T2))
    e("v_cvt_pk_bf16_f32 v%d, v%d, v%d" % (W0, O0, O0 + 1)); e("v_cvt_pk_bf16_f32 v%d, v%d, v%d" % (W0 + 1, O1, O1 + 1))
    A.ds("ds_write_b64 v%d, %s" % (V_OWR, vr(W0, 2)), "ow")
    for r in range(2, 4): e("v_mul_f32 v%d, v%d, v%d" % (O0 + r, O0 + r, T2)); e("v_mul_f32 v%d, v%d, v%d" % (O1 + r, O1 + r, T2))
    e("v_cvt_pk_bf16_f32 v%d, v%d, v%d" % (W0 + 2, O0 + 2, O0 + 3)); e("v_cvt_pk_bf16_f32 v%d, v%d, v%d" % (W0 + 3, O1 + 2, O1 + 3))
    A.ds("ds_write_b64 v%d, %s offset:16" % (V_OWR, vr(W0 + 2, 2)), "ow")
    if OPT["stage"] >= 3:
        e("v_mov_b32 v%d, v%d" % (V_S + 9, va)); e("v_mov_b32 v%d, v%d" % (V_S + 10, va + 4))
    ts(65)
    e("s_cmp_eq_u32 s%d, 63" % S_STEP); e("s_cbranch_scc1 L_chain_done")
    e("v_mfma_f32_32x32x16_bf16 %s, %s, %s, 0" % (vr(V_MEM, 16), vr(ZS, 4), vr(ZS, 4)))
    e("v_mfma_f32_32x32x16_bf16 %s, %s, %s, 0" % (vr(V_MEM + 16, 16), vr(ZS, 4), vr(ZS, 4)))
    e("s_add_u32 s30, s%d, %d" % (S_PCUR, 4 * 8192))
    e("v_add_u32 v%d, %d, v%d" % (T2, L_SEL, V_L16))
    A.ds("ds_read_b128 %s, v%d" % (vr(V_KX + 8, 4), T2), "sel")
    e("s_add_u32 s%d, s%d, 8192" % (S_MNXT, S_MCUR)); e("s_cmp_eq_u32 s%d, %d" % (S_MNXT, WS_MB + 3 * 8192)); e("s_cselect_b32 s%d, %d, s%d" % (S_MNXT, WS_MB, S_MNXT))
    e("s_add_u32 s%d, s%d, s%d" % (S_RED, S_PCUR, S_H13)); e("s_add_u32 s33, s%d, 4096" % S_RED); e("s_add_u32 s31, s%d, s%d" % (S_MNXT, S_H8))
    pub = [lambda: e("v_lshrrev_b32 v%d, 2, v%d" % (T4, V_L16)), lambda: e("v_and_b32 v%d, 0xc0, v%d" % (T4, T4)),
           lambda: e("v_lshlrev_b32 v%d, 1, v%d" % (T3, V_L16)), lambda: e("v_and_b32 v%d, 32, v%d" % (T3, T3)), lambda: e("v_add_u32 v%d, v%d, v%d" % (T4, T4, T3)),
           lambda: e("v_lshrrev_b32 v%d, 3, v%d" % (T3, V_L16)), lambda: e("v_and_b32 v%d, 28, v%d" % (T3, T3)), lambda: e("v_add_u32 v%d, v%d, v%d" % (T4, T4, T3))]
    e("s_bfe_u32 s%d, s%d, 0x10001" % (S_TAG, S_STEP))
    for f in pub: f()
    l3 = A.newlab("L_w3")
    e("s_cmp_eq_u32 s%d, 3" % S_WAVE); e("s_cbranch_scc0 %s" % l3); e("s_waitcnt vmcnt(%d)" % (8 if OPT["stage"] >= 3 else 4)); lab(l3)
    stamp(13, 2)
    A.wait_lds_all(); e("s_barrier")
    for t in range(2):
        A.ds("ds_read_b128 %s, v%d offset:%d" % (vr(V_KX + 4 * t, 4), T5, t * 1024), ("o", t))
    stamp(4)
    def wo(nt, t):
        e("v_smfmac_f32_16x16x64_bf16 %s, %s, %s, v%d" % (vr(V_MEM + 4 * nt, 4), vr(V_KX + 4 * t, 4), vr(V_WO + (nt * 2 + t) * 8, 8), V_IDX))
    def fin_l(nt, dst):
        T = V_MEM + 4 * nt
        return [lambda: e("v_add_f32 v%d, v%d, v%d" % (T, T, T + 1)), lambda: e("v_add_f32 v%d, v%d, v%d" % (T + 2, T + 2, T + 3)),
                lambda: e("v_cvt_pk_bf16_f32 v%d, v%d, v%d" % (dst, T, T + 2))] + ([lambda: e("v_bfi_b32 v%d, 1, s%d, v%d" % (dst, S_TAG, dst))] if (nt % 4 == 0 or OPT.get("fulltag", 0)) else [])
    A.wait_lds(("o", 0)); A.wait_lds(("o", 1))
    q = []
    ts(60)
    for nt in range(8):
        if nt == 4: ts(61)
        for t in range(2):
            wo(nt, t)
            for _ in range(2):
                if q: q.pop(0)()
        if nt >= 2:
            q += fin_l(nt - 2, V_S + nt - 2)
            if nt - 2 == 3: q.append(lambda: e("buffer_store_dwordx4 %s, v%d, s[4:7], s%d offen" % (vr(V_S, 4), V_PS0, S_PCUR)))
    ts(62)
    while q: q.pop(0)()
    A.nop(3)
    for nt in (6, 7):
        for f in fin_l(nt, V_S + nt): f()
    e("buffer_store_dwordx4 %s, v%d, s[4:7], s30 offen" % (vr(V_S + 4, 4), V_PS0))
    stamp(5)
    e("s_cmp_eq_u32 s%d, 0" % S_WAVE); e("s_cbranch_scc1 L_reduce")
    e("s_cmp_eq_u32 s%d, 3" % S_WAVE); e("s_cbranch_scc0 L_red_done")
    e("v_mov_b32 v%d, -1" % (V_S + 8))
    e("s_add_u32 s29, s%d, s%d" % (S_MPREV, S_H8))
    e("buffer_store_dword v%d, v%d, s[4:7], s29 offen" % (V_S + 8, T4))
    e("s_branch L_red_done")
    lab("L_reduce")
    QA_ = [V_MEM + 4 * x for x in range(8)]
    QB_ = [V_WVR, V_WVR + 4, V_WVR + 8, V_WVR + 12, V_VA, V_VA + 4, V_QK + 4, V_QK + 8]
    DA, DB = V_QK, V_QK + 12
    def red_issue(Q):
        for x in range(8):
            e("buffer_load_dwordx4 %s, v%d, s[4:7], s%d offen offset:%d sc1" % (vr(Q[x], 4), V_L16, S_RED if x < 4 else 33, (x & 3) * 1024))
    def red_proc(Q, D, tag, W, stampit=False):
        op = "0x80" if tag else "0xfe"
        for x in range(8):
            e("s_waitcnt vmcnt(%d)" % (W + 7 - x))
            if stampit and x in (0, 7): ts(41 + x)
            e("v_mfma_f32_16x16x32_bf16 %s, %s, %s, %s" % (vr(D, 4), vr(Q[x], 4), vr(V_KX + 8, 4), "0" if x == 0 else vr(D, 4)))
            a_ = Q[x]
            if OPT.get("fulltag", 0):
                if x == 0:
                    e("v_bitop3_b32 v%d, v%d, v%d, v%d bitop3:%s" % (T0, a_, a_ + 1, a_ + 2, op)); e("v_bitop3_b32 v%d, v%d, v%d, v%d bitop3:%s" % (T0, T0, a_ + 3, a_ + 3, op))
                else:
                    e("v_bitop3_b32 v%d, v%d, v%d, v%d bitop3:%s" % (T0, T0, a_, a_ + 1, op)); e("v_bitop3_b32 v%d, v%d, v%d, v%d bitop3:%s" % (T0, T0, a_ + 2, a_ + 3, op))
            else:
                if x == 1: e("v_bitop3_b32 v%d, v%d, v%d, v%d bitop3:%s" % (T0, Q[0], Q[1], Q[1], op))
                elif x in (3, 5, 7): e("v_bitop3_b32 v%d, v%d, v%d, v%d bitop3:%s" % (T0, T0, Q[x - 1], Q[x], op))
        e("v_and_b32 v%d, 1, v%d" % (T0, T0))
        e("v_cmp_ne_u32 vcc, %d, v%d" % (tag, T0))
    two = OPT.get("red_sets", 1) == 2
    for i in range(OPT["dly_red"]): e("s_nop 7")
    red_issue(QA_)
    if two:
        for i in range(OPT.get("gap_red", 2)): e("s_nop 7")
        red_issue(QB_)
    ts(40)
    e("s_waitcnt lgkmcnt(0)")
    e("s_cmp_lg_u32 s%d, 0" % S_TAG); e("s_cbranch_scc1 L_prA1")
    for tag in range(2):
        lab("L_prA%d" % tag)
        e("s_add_u32 s%d, s%d, 1" % (S_SPIN, S_SPIN))
        red_proc(QA_, DA, tag, 8 if two else 0, True)
        e("s_cmp_gt_u32 s%d, 0x200000" % S_SPIN); e("s_cbranch_scc1 L_rgoA")
        if OPT["nowait"]: e("s_branch L_rgoA")
        e("s_cbranch_vccz L_rgoA")
        red_issue(QA_)
        if two:
            red_proc(QB_, DB, tag, 8)
            e("s_nop 1")
            e("s_cbranch_vccz L_rgoB")
            red_issue(QB_)
        e("s_branch L_prA%d" % tag)
    if two:
        lab("L_rgoB")
        A.nop(4)
        e("v_cndmask_b32 v%d, v%d, v%d, s[48:49]" % (T0, DB + 2, DB)); e("v_cndmask_b32 v%d, v%d, v%d, s[48:49]" % (T1, DB + 3, DB + 1))
        e("s_branch L_rpub")
    lab("L_rgoA")
    A.nop(3)
    e("v_cndmask_b32 v%d, v%d, v%d, s[48:49]" % (T0, DA + 2, DA)); e("v_cndmask_b32 v%d, v%d, v%d, s[48:49]" % (T1, DA + 3, DA + 1))
    lab("L_rpub")
    ts(50)
    e("v_cvt_pk_bf16_f32 v%d, v%d, v%d" % (T0, T0, T1))
    e("buffer_store_dword v%d, v%d, s[4:7], s31 offen" % (T0, T4))
    if OPT["hist"]:
        e("s_add_u32 s30, s%d, 1" % S_STEP); e("s_lshl_b32 s30, s30, 13"); e("s_add_u32 s30, s30, s%d" % S_H8); e("s_add_u32 s30, s30, %d" % WS_HIST)
        e("buffer_store_dword v%d, v%d, s[4:7], s30 offen" % (T0, T4))
    lab("L_red_done")
    stamp(6)
    e("s_barrier")
    e("s_mov_b32 s%d, s%d" % (S_MPREV, S_MCUR))
    e("s_mov_b32 s%d, s%d" % (S_MCUR, S_MNXT)); e("s_xor_b32 s%d, s%d, 0x40000" % (S_PCUR, S_PCUR))
    e("s_xor_b32 s%d, s%d, 8192" % (S_PAR, S_PAR))
    e("s_add_u32 s%d, s%d, 1" % (S_STEP, S_STEP))
    stamp(7)
    e("s_cmp_lt_u32 s%d, %d" % (S_STEP, OPT["nsteps"])); e("s_cbranch_scc1 L_step")
    lab("L_chain_done")
    rt(5)
    if OPT["stage"] >= 3:
        e("v_lshrrev_b32 v6, 2, v%d" % V_L16)
        for u in range(2):
            e("buffer_store_dword v%d, v6, s[4:7], s37 offen offset:%d sc0 sc1" % (V_S + 9 + u, u * 256))
        e("s_waitcnt vmcnt(0)"); e("s_barrier")
        lfk = A.newlab("L_fkm")
        e("s_cmp_eq_u32 s%d, 1" % S_WAVE); e("s_cbranch_scc0 %s" % lfk)
        e("v_mov_b32 v6, 64"); e("v_mov_b32 v7, 0"); e("s_lshl_b32 s28, s%d, 2" % S_HEAD); e("s_add_u32 s28, s28, %d" % FL_KM)
        e("s_mov_b64 exec, 1"); e("buffer_store_dword v6, v7, s[4:7], s28 offen sc0 sc1"); e("s_mov_b64 exec, s[26:27]")
        lab(lfk)
    if not OPT["final"]:
        e("s_memtime s[86:87]"); e("s_memrealtime s[90:91]"); e("s_waitcnt lgkmcnt(0)")
        e("s_sub_u32 s86, s86, s84"); e("s_sub_u32 s90, s90, s88")
        e("s_lshl_b32 s28, s%d, 2" % S_HEAD); e("s_add_u32 s28, s28, s%d" % S_WAVE); e("s_lshl_b32 s28, s28, 7"); e("s_add_u32 s28, s28, %d" % WS_STAMP)
        e("s_mov_b64 exec, 1"); e("v_mov_b32 v10, 0")
        vals = [86, 90, S_SPIN] + ([S_ST + i for i in range(16)] if OPT["stamps"] else []) + [64 + 2 * k for k in range(len(TS))]
        for i, r in enumerate(vals):
            e("v_mov_b32 v11, s%d" % r); e("buffer_store_dword v11, v10, s[4:7], s28 offen offset:%d" % (4 * i))
    e("s_waitcnt vmcnt(0)")
    e("s_branch L_end")

S_X = 12
S_SEG, S_K, S_NSEG, S_XB = 40, 41, 42, 43
S_RANK, S_SUB = 38, 37
def wait_dbg_counter(off_bytes_sgpr_or_int, target, lname):
    e("s_mov_b64 exec, 1")
    if isinstance(off_bytes_sgpr_or_int, int): e("v_mov_b32 v32, %d" % off_bytes_sgpr_or_int)
    else: e("v_mov_b32 v32, %s" % off_bytes_sgpr_or_int)
    e("s_mov_b32 s29, 0")
    lab(lname)
    e("global_load_dword v33, v32, s[24:25] sc0 sc1"); e("s_waitcnt vmcnt(0)"); e("v_readfirstlane_b32 s30, v33")
    e("s_add_u32 s29, s29, 1"); e("s_cmp_gt_u32 s29, 0x40000"); e("s_cbranch_scc1 %s_d" % lname)
    e("s_cmp_lt_u32 s30, %d" % target); e("s_cbranch_scc1 %s" % lname)
    lab(lname + "_d")
    e("s_mov_b64 exec, s[26:27]")

CV_HS, CV_CS = 4416, 17664
CV_XR, CV_XS = 70656, 7680
CV_YB = 101376
def conv_task():
    lskip = A.newlab("L_cv_skip")
    e("s_cmp_lt_u32 s%d, 2" % S_TEAM); e("s_cbranch_scc1 %s" % lskip)
    e("s_cmp_gt_u32 s%d, 5" % S_TEAM); e("s_cbranch_scc1 %s" % lskip)
    TASK, CH = 44, 45
    e("s_sub_u32 s%d, s%d, 2" % (TASK, S_TEAM)); e("s_lshl_b32 s%d, s%d, 5" % (TASK, TASK)); e("s_add_u32 s%d, s%d, s%d" % (TASK, TASK, S_HEAD))
    e("s_lshl_b32 s%d, s%d, 2" % (CH, TASK)); e("s_add_u32 s%d, s%d, s%d" % (CH, CH, S_WAVE))
    e("s_load_dwordx4 s[64:67], s[0:1], %d" % KA["q"])
    e("s_load_dwordx4 s[68:71], s[0:1], %d" % KA["v"])
    e("s_load_dwordx4 s[72:75], s[0:1], %d" % KA["ssmk"])
    e("s_load_dwordx2 s[76:77], s[0:1], %d" % KA["out"])
    e("s_waitcnt lgkmcnt(0)")
    e("s_lshl_b32 s28, s%d, 5" % TASK); e("s_add_u32 s70, s70, s28"); e("s_addc_u32 s71, s71, 0")
    e("s_lshl_b32 s28, s%d, 3" % TASK); e("s_add_u32 s74, s74, s28"); e("s_addc_u32 s75, s75, 0")
    e("s_load_dwordx8 s[80:87], s[70:71], 0"); e("s_load_dwordx2 s[88:89], s[74:75], 0")
    LN = 2
    e("v_lshrrev_b32 v%d, 4, v%d" % (LN, V_L16))
    srd(8, 72, 0x200000)
    e("s_mul_i32 s32, s%d, %d" % (S_WAVE, CV_CS))
    e("s_lshl_b32 s33, s%d, 12" % CH)
    for r in range(4):
        for i in range(4):
            e("s_add_u32 m0, s32, %d" % (r * CV_HS + 64 + i * 1024)); e("s_add_u32 s28, s33, %d" % (i * 1024 + 2 * r))
            e("buffer_load_dwordx4 v%d, s[8:11], s28 offen lds" % V_L16)
    for i in range(4): e("v_mov_b32 v%d, 0" % (4 + i))
    e("v_bfe_u32 v8, v%d, 2, 2" % LN); e("v_mul_u32_u24 v8, %d, v8" % CV_HS); e("v_and_b32 v9, 3, v%d" % LN); e("v_lshlrev_b32 v9, 4, v9"); e("v_add_u32 v8, v8, v9"); e("v_add_u32 v8, s32, v8")
    e("ds_write_b128 v8, v[4:7]")
    e("v_and_b32 v9, 3, v%d" % LN); e("v_lshlrev_b32 v10, 1, v9"); e("v_add_u32 v10, s33, v10")
    e("buffer_load_ushort v11, v10, s[8:11], 0 offen")
    e("v_bfe_u32 v12, v%d, 2, 2" % LN); e("v_mul_u32_u24 v13, %d, v12" % (CV_HS - 2)); e("v_lshlrev_b32 v14, 1, v9"); e("v_add_u32 v13, v13, v14"); e("v_add_u32 v13, 64, v13"); e("v_add_u32 v13, s32, v13")
    e("v_cmp_lt_u32 vcc, v9, v12"); e("v_cmp_gt_u32 s[30:31], 16, v%d" % LN); e("s_nop 1"); e("s_and_b64 s[30:31], s[30:31], vcc")
    e("s_mul_i32 s28, s%d, %d" % (S_WAVE, CV_XS)); e("s_add_u32 s28, s28, %d" % CV_XR); e("v_add_u32 v8, s28, v%d" % V_L16)
    e("ds_write_b128 v8, v[4:7]"); e("ds_write_b128 v8, v[4:7] offset:1024")
    e("v_cmp_gt_u32 vcc, 32, v%d" % LN); e("s_nop 1"); e("s_mov_b64 exec, vcc"); e("ds_write_b128 v8, v[4:7] offset:2048"); e("s_mov_b64 exec, s[26:27]")
    e("s_waitcnt vmcnt(0)")
    e("s_mov_b64 exec, s[30:31]"); e("ds_write_b16 v13, v11"); e("s_mov_b64 exec, s[26:27]")
    srd(8, 66, 0x200000)
    srd(12, 68, 0x200000)
    TH = 3
    e("s_lshl_b32 s28, s%d, 6" % S_WAVE); e("v_add_u32 v%d, s28, v%d" % (TH, LN))
    e("v_lshlrev_b32 v4, 13, v%d" % TH); e("s_lshl_b32 s28, s%d, 3" % TASK); e("v_add_u32 v4, s28, v4")
    KR, VR = 16, 40
    for j in range(11):
        e("v_add_u32 v5, %d, v4" % ((j - 3) * 1024 & 0xffffffff))
        e("buffer_load_dwordx2 %s, v5, s[8:11], 0 offen" % vr(KR + 2 * j, 2))
    for j in range(8):
        e("v_add_u32 v5, %d, v4" % (j * 1024))
        e("buffer_load_dwordx2 %s, v5, s[12:15], 0 offen" % vr(VR + 2 * j, 2))
    e("s_waitcnt lgkmcnt(0)")
    SK = {}
    for cch in range(4):
        for j in range(4):
            src = 80 + 2 * cch + (j >> 1)
            dst = 96 + cch * 4 + j
            if j & 1: e("s_and_b32 s28, s%d, 0xffff0000" % src)
            else: e("s_lshl_b32 s28, s%d, 16" % src)
            e("v_mov_b32 v%d, s28" % dst)
            SK[(cch, j)] = dst
    for cch in range(4):
        src = 88 + (cch >> 1)
        if cch & 1: e("s_and_b32 s28, s%d, 0xffff0000" % src)
        else: e("s_lshl_b32 s28, s%d, 16" % src)
        e("v_mov_b32 v%d, s28" % (112 + cch))
    e("s_waitcnt vmcnt(0)")
    KV = 116
    XP = 56
    for cch in range(4):
        d, hi = cch >> 1, cch & 1
        U = 72
        for j in range(11):
            if hi: e("v_and_b32 v%d, 0xffff0000, v%d" % (U + j, KR + 2 * j + d))
            else: e("v_lshlrev_b32 v%d, 16, v%d" % (U + j, KR + 2 * j + d))
        for t in range(8):
            e("v_mul_f32 v%d, v%d, v%d" % (84 + t, U + t, SK[(cch, 3)]))
            for j in (2, 1, 0):
                e("v_fmac_f32 v%d, v%d, v%d" % (84 + t, U + t + 3 - j, SK[(cch, j)]))
            if hi: e("v_and_b32 v92, 0xffff0000, v%d" % (VR + 2 * t + d))
            else: e("v_lshlrev_b32 v92, 16, v%d" % (VR + 2 * t + d))
            e("v_mul_f32 v%d, v%d, v92" % (84 + t, 84 + t))
        for p in range(4):
            e("v_cvt_pk_bf16_f32 v%d, v%d, v%d" % (XP + 4 * cch + p, 84 + 7 - 2 * p, 84 + 6 - 2 * p))
    e("v_lshrrev_b32 v4, 2, v%d" % TH); e("v_mul_u32_u24 v4, 80, v4"); e("v_and_b32 v5, 3, v%d" % TH); e("v_lshlrev_b32 v5, 4, v5"); e("v_add_u32 v4, v4, v5")
    e("v_add_u32 v4, %d, v4" % (CV_XR + 32 * 80))
    e("s_waitcnt lgkmcnt(0)"); e("s_barrier")
    for cch in range(4):
        e("ds_write_b128 v4, %s offset:%d" % (vr(XP + 4 * cch, 4), cch * CV_XS))
    srd(8, 64, 0x200000)
    e("v_lshlrev_b32 v4, 13, v%d" % TH); e("s_lshl_b32 s28, s%d, 3" % TASK); e("v_add_u32 v4, s28, v4")
    QR = 16
    for j in range(8):
        e("v_add_u32 v5, %d, v4" % (j * 1024))
        e("buffer_load_dwordx2 %s, v5, s[8:11], 0 offen" % vr(QR + 2 * j, 2))
    e("s_waitcnt lgkmcnt(0)"); e("s_barrier")
    e("v_and_b32 v6, 31, v%d" % LN); e("v_lshrrev_b32 v7, 5, v%d" % LN)
    e("v_add_u32 v8, 1, v6"); e("v_and_b32 v8, 3, v8"); e("v_mul_u32_u24 v8, %d, v8" % CV_HS)
    e("v_lshlrev_b32 v9, 3, v7"); e("v_sub_u32 v9, v6, v9"); e("v_add_u32 v9, 25, v9"); e("v_lshrrev_b32 v9, 2, v9"); e("v_lshlrev_b32 v9, 3, v9")
    e("v_add_u32 v8, v8, v9"); e("v_add_u32 v8, s32, v8"); e("v_subrev_u32 v8, 32, v8")
    e("v_mul_u32_u24 v9, 80, v6"); e("v_lshlrev_b32 v10, 4, v7"); e("v_add_u32 v9, v9, v10")
    e("s_mul_i32 s28, s%d, %d" % (S_WAVE, CV_XS)); e("s_add_u32 s28, s28, %d" % (CV_XR - 31 * 80)); e("v_add_u32 v9, s28, v9")
    Y0, Y1 = 128, 144
    FA, FB = 72, 88
    steps = []
    for dl in range(64):
        for kk in range(2):
            steps.append((dl, kk))
    A.lds = []
    def issue(n):
        dl, kk = steps[n]; u = 2 * dl - kk
        ra = FA + (n % 4) * 4
        A.ds("ds_read_b64 %s, v8 offset:%d" % (vr(ra, 2), (u + 1) * 32), ("cv", n))
        A.ds("ds_read_b64 %s, v8 offset:%d" % (vr(ra + 2, 2), (u + 1) * 32 + 8), ("cv", n))
        rb = 88 + (n % 3) * 8
        A.ds("ds_read_b128 %s, v9 offset:%d" % (vr(rb, 4), (63 - dl) * 80 + kk * 32 + 2560), ("cv", n))
        if dl <= 31:
            A.ds("ds_read_b128 %s, v9 offset:%d" % (vr(rb + 4, 4), (63 - dl) * 80 + kk * 32), ("cv", n))
    issue(0); issue(1)
    first = [True, True]
    for n in range(len(steps)):
        dl, kk = steps[n]
        A.wait_lds(("cv", n))
        ra = FA + (n % 4) * 4; rb = 88 + (n % 3) * 8
        e("v_mfma_f32_32x32x16_bf16 %s, %s, %s, %s" % (ar(Y1, 16), vr(ra, 4), vr(rb, 4), "0" if n == 0 else ar(Y1, 16)))
        if dl <= 31:
            e("v_mfma_f32_32x32x16_bf16 %s, %s, %s, %s" % (ar(Y0, 16), vr(ra, 4), vr(rb + 4, 4), "0" if n == 0 else ar(Y0, 16)))
        if n + 2 < len(steps): issue(n + 2)
    A.nop(16)
    e("v_lshlrev_b32 v10, 6, v6"); e("v_lshlrev_b32 v11, 3, v7"); e("v_add_u32 v10, v10, v11")
    e("s_lshl_b32 s28, s%d, 12" % S_WAVE); e("s_add_u32 s28, s28, %d" % CV_YB); e("v_add_u32 v10, s28, v10")
    for tile, Y in ((0, Y0), (1, Y1)):
        for q4 in range(4):
            for r in range(4): e("v_accvgpr_read_b32 v%d, a%d" % (72 + r, Y + 4 * q4 + r))
            e("s_nop 0")
            e("v_cvt_pk_bf16_f32 v76, v72, v73"); e("v_cvt_pk_bf16_f32 v77, v74, v75")
            e("ds_write_b64 v10, v[76:77] offset:%d" % (tile * 2048 + q4 * 16))
            e("s_nop 1")
    e("s_waitcnt lgkmcnt(0)"); e("s_barrier")
    e("v_lshlrev_b32 v4, 4, v%d" % TH); e("v_add_u32 v4, %d, v4" % CV_YB)
    YR = 72
    for cch in range(4):
        e("ds_read_b128 %s, v4 offset:%d" % (vr(YR + 4 * cch, 4), cch * 4096))
    e("s_waitcnt lgkmcnt(0) vmcnt(0)")
    srd(8, 76, 0x400000)
    OUTR = 40
    for t in range(8):
        for pr in range(2):
            vals = []
            for h in range(2):
                cch = 2 * pr + h
                ysrc = YR + 4 * cch + (t >> 1)
                if t & 1: e("v_and_b32 v%d, 0xffff0000, v%d" % (92 + h, ysrc))
                else: e("v_lshlrev_b32 v%d, 16, v%d" % (92 + h, ysrc))
                p = (7 - t) >> 1
                ksrc = XP + 4 * cch + p
                if (7 - t) & 1: e("v_and_b32 v94, 0xffff0000, v%d" % ksrc)
                else: e("v_lshlrev_b32 v94, 16, v%d" % ksrc)
                e("v_fmac_f32 v%d, v94, v%d" % (92 + h, 112 + cch))
                qsrc = QR + 2 * t + pr
                if h: e("v_and_b32 v94, 0xffff0000, v%d" % qsrc)
                else: e("v_lshlrev_b32 v94, 16, v%d" % qsrc)
                e("v_mul_f32 v%d, v%d, v94" % (92 + h, 92 + h))
            e("v_cvt_pk_bf16_f32 v%d, v92, v93" % (OUTR + 2 * t + pr))
    e("v_lshlrev_b32 v4, 14, v%d" % TH); e("s_lshl_b32 s28, s%d, 3" % TASK); e("v_add_u32 v4, s28, v4")
    for t in range(8):
        e("v_add_u32 v5, %d, v4" % (t * 2048))
        e("buffer_store_dwordx2 %s, v5, s[8:11], 0 offen" % vr(OUTR + 2 * t, 2))
    e("s_waitcnt vmcnt(0)"); e("s_barrier")
    e("s_load_dwordx2 s[30:31], s[0:1], %d" % KA["x"]); e("s_waitcnt lgkmcnt(0)")
    srd(S_X, 30, 0x200000)
    lab(lskip)

XL_T0, XL_QB, XL_KMI, XL_OB, XL_SEL = 0, 65536, 73728, 77824, 86016
S_OUT = 16
S_QT, S_EH, S_XPB, S_PAR2 = 44, 45, 46, 47
def xt_dma_g(seg_sgpr, buf_sgpr):
    e("s_lshr_b32 s28, s%d, 1" % S_WAVE); e("s_lshl_b32 s29, s%d, 15" % seg_sgpr); e("s_lshl_b32 s30, s28, 14"); e("s_add_u32 s29, s29, s30")
    e("s_and_b32 s30, s%d, 1" % S_WAVE); e("s_lshl_b32 s31, s30, 9"); e("s_add_u32 s29, s29, s31")
    e("s_lshl_b32 s31, s%d, 13" % S_WAVE); e("s_add_u32 s31, s31, s%d" % buf_sgpr)
    for i in range(8):
        e("s_add_u32 m0, s31, %d" % (i * 1024)); e("s_add_u32 s30, s29, %d" % (i * 64))
        e("buffer_load_dwordx4 v1, s[12:15], s30 offen lds")

def xphase2():
    L = VLANE
    e("s_mov_b32 s%d, s%d" % (S_HEAD, S_RANK))
    e("s_lshl_b32 s%d, s%d, 13" % (S_H13, S_HEAD)); e("s_lshl_b32 s%d, s%d, 8" % (S_H8, S_HEAD))
    e("s_cmp_eq_u32 s%d, 1" % S_TEAM); e("s_cselect_b32 s%d, 10, 9" % S_NSEG)
    e("s_barrier")
    e("v_lshrrev_b32 v%d, 4, v%d" % (L, V_L16))
    load_setup(32768)
    uq = units_qkv(0, "a", 0)
    for u in uq: u["perm"] = False
    load_units(uq + units_wo("v", V_WO), 8)
    e("s_barrier")
    rt(5)
    if OPT.get("conv", 0): conv_task()
    rt(6)
    KXF, VXF, QF, S, KMF, VMF, OO = 12, 44, 60, 76, 88, 104, 112
    T0, T1, T2, T3, T4, T5 = 6, 7, 8, 9, 10, 11
    V_THR, V_XPS, V_XD = 3, 4, 1
    e("v_lshrrev_b32 v%d, 4, v%d" % (L, V_L16))
    e("s_load_dwordx2 s[30:31], s[0:1], %d" % KA["out"])
    e("s_and_b32 s%d, s%d, 1" % (S_QT, S_WAVE)); e("s_lshr_b32 s%d, s%d, 1" % (S_EH, S_WAVE))
    e("v_lshrrev_b32 v1, 2, v%d" % L); e("v_lshrrev_b32 v2, 4, v%d" % L); e("v_xor_b32 v2, v2, v%d" % L); e("v_and_b32 v2, 3, v2"); e("v_lshlrev_b32 v2, 4, v2")
    e("v_lshlrev_b32 v1, 10, v1"); e("v_add_u32 v1, v1, v2")
    e("v_and_b32 v5, 15, v%d" % L); e("v_lshrrev_b32 v2, 2, v5"); e("v_lshrrev_b32 v34, 4, v%d" % L); e("v_xor_b32 v2, v2, v34"); e("v_and_b32 v2, 3, v2")
    e("v_lshlrev_b32 v5, 2, v5"); e("v_add_u32 v5, v5, v2"); e("v_lshlrev_b32 v5, 4, v5")
    e("v_and_b32 v%d, 15, v%d" % (V_THR, L)); e("v_lshrrev_b32 v2, 4, v%d" % L); e("v_lshlrev_b32 v2, 2, v2"); e("v_sub_u32 v%d, v%d, v2" % (V_THR, V_THR))
    e("s_lshl_b32 s28, s%d, 4" % S_QT); e("v_add_u32 v%d, s28, v%d" % (V_THR, V_THR))
    e("v_bfe_u32 v%d, v%d, 2, 2" % (V_XPS, L)); e("v_lshlrev_b32 v%d, 13, v%d" % (V_XPS, V_XPS))
    e("v_lshrrev_b32 v2, 4, v%d" % L); e("v_lshlrev_b32 v2, 6, v2"); e("v_add_u32 v%d, v%d, v2" % (V_XPS, V_XPS))
    e("v_and_b32 v2, 3, v%d" % L); e("v_lshlrev_b32 v2, 4, v2"); e("v_add_u32 v%d, v%d, v2" % (V_XPS, V_XPS)); e("v_add_u32 v%d, s%d, v%d" % (V_XPS, S_H8, V_XPS))
    e("v_and_b32 v6, 1, v%d" % L); e("v_lshlrev_b32 v6, 4, v6"); e("v_mov_b32 v7, 0x3f80"); e("v_lshlrev_b32 v7, v6, v7")
    e("v_bfe_u32 v6, v%d, 1, 2" % L)
    for i in range(4):
        e("v_cmp_eq_u32 vcc, %d, v6" % i); e("s_nop 1"); e("v_cndmask_b32 v%d, 0, v7, vcc" % (12 + i))
    e("v_add_u32 v6, %d, v%d" % (XL_SEL, V_L16)); e("ds_write_b128 v6, v[12:15]")
    e("s_waitcnt lgkmcnt(0)")
    srd(S_OUT, 30, 0x400000)
    cval = struct.unpack("<I", struct.pack("<f", (128 ** -0.5) * math.log2(math.e)))[0]
    e("s_mov_b32 s%d, 0x%08x" % (S_C, cval))
    e("s_lshl_b32 s%d, s%d, 21" % (S_XPB, S_TEAM)); e("s_add_u32 s%d, s%d, %d" % (S_XPB, S_XPB, WS_XP))
    e("s_sub_u32 s%d, s%d, 1" % (S_SEG, S_TEAM)); e("s_mov_b32 s%d, 0" % S_K); e("s_mov_b32 s%d, 0" % S_XB); e("s_mov_b32 s%d, 0" % S_PAR2)
    xt_dma_g(S_SEG, S_XB)
    e("s_and_b32 s33, s%d, 3" % S_TEAM); e("s_lshl_b32 s33, s33, 6"); e("s_lshr_b32 s29, s%d, 2" % S_TEAM); e("s_lshl_b32 s29, s29, 2"); e("s_add_u32 s33, s33, s29"); e("s_add_u32 s33, s33, 16")
    wait_dbg_counter("s33", 32, "L_x2_init")
    lab("L_x2")
    A.lds = []; A.vm = []
    lkv = A.newlab("L_x2kv")
    e("s_cmp_lg_u32 s%d, 0" % S_WAVE); e("s_cbranch_scc1 %s_s" % lkv)
    e("s_mov_b64 exec, 1"); e("v_mov_b32 v6, 0"); e("s_lshl_b32 s28, s%d, 7" % S_TEAM); e("s_lshl_b32 s29, s%d, 2" % S_HEAD); e("s_add_u32 s28, s28, s29"); e("s_add_u32 s28, s28, %d" % FL_KV); e("s_mov_b32 s29, 0")
    lab(lkv)
    e("buffer_load_dword v7, v6, s[4:7], s28 offen sc0 sc1"); e("s_waitcnt vmcnt(0)"); e("v_readfirstlane_b32 s30, v7")
    e("s_add_u32 s29, s29, 1"); e("s_cmp_gt_u32 s29, 0x80000"); e("s_cbranch_scc1 %s_d" % lkv)
    e("s_cmp_gt_u32 s30, s%d" % S_K); e("s_cbranch_scc1 %s_d" % lkv)
    e("s_sleep 8"); e("s_branch %s" % lkv)
    lab(lkv + "_d")
    e("s_mov_b64 exec, s[26:27]")
    lab(lkv + "_s")
    e("s_waitcnt vmcnt(0)"); e("s_barrier")
    e("s_lshl_b32 s28, s%d, 18" % S_SEG); e("s_add_u32 s28, s28, s%d" % S_H13)
    e("s_add_u32 s29, s28, %d" % WS_KX); e("s_add_u32 s30, s29, 4096")
    for kt in range(2):
        for kk in range(4):
            A.vmem("buffer_load_dwordx4 %s, v%d, s[4:7], s%d offen offset:%d sc1" % (vr(KXF + (kt * 4 + kk) * 4, 4), V_L16, 29 + kt, kk * 1024), "kx")
    e("s_lshl_b32 s29, s%d, 12" % S_EH); e("s_add_u32 s29, s29, s28"); e("s_add_u32 s29, s29, %d" % WS_VX)
    for i in range(4):
        A.vmem("buffer_load_dwordx4 %s, v%d, s[4:7], s29 offen offset:%d sc1" % (vr(VXF + 4 * i, 4), V_L16, i * 1024), "vx")
    ln = A.newlab("L_x2n")
    e("s_add_u32 s32, s%d, 1" % S_K); e("s_cmp_ge_u32 s32, s%d" % S_NSEG); e("s_cbranch_scc1 %s" % ln)
    e("s_add_u32 s33, s%d, 7" % S_SEG); e("s_xor_b32 s36, s%d, 32768" % S_XB)
    xt_dma_g(33, 36)
    lab(ln)
    XF = KMF
    e("v_add_u32 v2, s%d, v5" % S_XB)
    def rdx(kk):
        for tt in range(2):
            A.ds("ds_read_b128 %s, v2 offset:%d" % (vr(XF + (kk % 2) * 8 + tt * 4, 4), (tt * 16 + kk) * 1024), ("x", kk))
    rdx(0); rdx(1)
    for kk in range(16):
        A.wait_lds(("x", kk))
        t, b = kk >> 1, kk & 1
        for u in range(2):
            for tt in range(2):
                xf = vr(XF + (kk % 2) * 8 + tt * 4, 4)
                cq = "0" if kk == 0 else vr(QF + (u * 2 + tt) * 4, 4)
                e("v_mfma_f32_16x16x32_bf16 %s, %s, %s, %s" % (vr(QF + (u * 2 + tt) * 4, 4), ar((u * 8 + t) * 8 + 4 * b, 4), xf, cq))
        if kk + 2 < 16: rdx(kk + 2)
    A.nop(8)
    for tt in range(2):
        for u in range(2):
            a0 = QF + (u * 2 + tt) * 4
            e("v_cvt_pk_bf16_f32 v%d, v%d, v%d" % (OO + tt * 4 + 2 * u, a0, a0 + 1)); e("v_cvt_pk_bf16_f32 v%d, v%d, v%d" % (OO + tt * 4 + 2 * u + 1, a0 + 2, a0 + 3))
    e("s_lshl_b32 s28, s%d, 10" % S_WAVE); e("s_add_u32 s28, s28, %d" % XL_QB); e("v_add_u32 v2, s28, v%d" % V_L16)
    for tt in range(2):
        A.ds("ds_write_b128 v2, %s offset:%d" % (vr(OO + tt * 4, 4), tt * 4096), "qw")
    A.wait_lds_all(); e("s_barrier")
    e("s_lshl_b32 s28, s%d, 12" % S_QT); e("s_add_u32 s28, s28, %d" % XL_QB); e("v_add_u32 v2, s28, v%d" % V_L16)
    for kk in range(4):
        A.ds("ds_read_b128 %s, v2 offset:%d" % (vr(QF + 4 * kk, 4), kk * 1024), ("q", kk))
    e("s_waitcnt vmcnt(12)")
    l12 = A.newlab("L_x2w")
    e("s_cmp_lt_u32 s32, s%d" % S_NSEG); e("s_cbranch_scc1 %s" % l12); e("s_waitcnt vmcnt(4)"); lab(l12)
    for kk in range(4):
        A.wait_lds(("q", kk))
        for kt in range(2):
            cs = "0" if kk == 0 else vr(S + 4 * kt, 4)
            e("v_mfma_f32_16x16x32_bf16 %s, %s, %s, %s" % (vr(S + 4 * kt, 4), vr(KXF + (kt * 4 + kk) * 4, 4), vr(QF + 4 * kk, 4), cs))
    lw = A.newlab("L_x2km")
    e("s_cmp_lg_u32 s%d, 0" % S_WAVE); e("s_cbranch_scc1 %s_s" % lw)
    e("s_mov_b64 exec, 1"); e("v_mov_b32 v%d, 0" % T0); e("s_lshl_b32 s28, s%d, 2" % S_HEAD); e("s_add_u32 s28, s28, %d" % FL_KM); e("s_mov_b32 s29, 0")
    lab(lw)
    e("buffer_load_dword v%d, v%d, s[4:7], s28 offen sc0 sc1" % (T1, T0)); e("s_waitcnt vmcnt(0)"); e("v_readfirstlane_b32 s30, v%d" % T1)
    e("s_add_u32 s29, s29, 1"); e("s_cmp_gt_u32 s29, 0x80000"); e("s_cbranch_scc1 %s_d" % lw)
    e("s_cmp_gt_u32 s30, s%d" % S_SEG); e("s_cbranch_scc1 %s_d" % lw)
    e("s_sleep %d" % OPT.get("slp", 8)); e("s_branch %s" % lw)
    lab(lw + "_d")
    e("s_mov_b64 exec, s[26:27]")
    lab(lw + "_s")
    e("s_waitcnt vmcnt(0)"); e("s_barrier")
    e("s_lshl_b32 s28, s%d, 16" % S_SEG); e("s_lshl_b32 s29, s%d, 11" % S_HEAD); e("s_add_u32 s28, s28, s29")
    e("s_lshl_b32 s29, s%d, 9" % S_WAVE); e("s_add_u32 s29, s29, s28"); e("s_add_u32 s29, s29, %d" % WS_KM)
    e("v_lshrrev_b32 v%d, 2, v%d" % (T0, V_L16))
    for u in range(2):
        e("buffer_load_dword v%d, v%d, s[4:7], s29 offen offset:%d sc1" % (T2 + u, T0, u * 256))
    e("s_lshl_b32 s29, s%d, 10" % S_EH); e("s_add_u32 s29, s29, s28"); e("s_add_u32 s29, s29, %d" % WS_VM)
    for i in range(4):
        e("buffer_load_dword v%d, v%d, s[4:7], s29 offen offset:%d sc1" % (VMF + 2 * i, T0, i * 256))
        e("v_mov_b32 v%d, 0" % (VMF + 2 * i + 1))
    e("v_and_b32 v%d, 0xf0, v%d" % (T4, V_L16)); e("v_lshlrev_b32 v%d, 1, v%d" % (T4, T4)); e("v_lshrrev_b32 v%d, 8, v%d" % (T1, V_L16)); e("v_lshlrev_b32 v%d, 3, v%d" % (T1, T1))
    e("v_add_u32 v%d, v%d, v%d" % (T4, T4, T1)); e("s_lshl_b32 s29, s%d, 10" % S_WAVE); e("s_add_u32 s29, s29, %d" % XL_KMI); e("v_add_u32 v%d, s29, v%d" % (T4, T4))
    e("s_waitcnt vmcnt(0)")
    for u in range(2):
        e("ds_write_b32 v%d, v%d offset:%d" % (T4, T2 + u, u * 512))
    e("s_waitcnt lgkmcnt(0)"); e("s_barrier")
    e("v_lshrrev_b32 v%d, 1, v%d" % (T0, V_L16))
    e("v_add_u32 v%d, %d, v%d" % (T0, XL_KMI, T0))
    for kk in range(4):
        for b in range(2):
            A.ds("ds_read_b64_tr_b16 %s, v%d offset:%d" % (vr(KMF + 4 * kk + 2 * b, 2), T0, kk * 1024 + b * 512), ("km", kk))
    for kk in range(4):
        A.wait_lds(("km", kk))
        e("v_mfma_f32_16x16x32_bf16 %s, %s, %s, %s" % (vr(S + 8, 4), vr(KMF + 4 * kk, 4), vr(QF + 4 * kk, 4), "0" if kk == 0 else vr(S + 8, 4)))
    e("v_mov_b32 v%d, 0xff800000" % T5)
    for kt in range(2):
        for r in range(4):
            e("v_cmp_gt_i32 vcc, %d, v%d" % (16 * kt + r, V_THR)); e("s_nop 1"); e("v_cndmask_b32 v%d, v%d, v%d, vcc" % (S + 4 * kt + r, S + 4 * kt + r, T5))
    A.nop(2)
    e("v_max3_f32 v%d, v%d, v%d, v%d" % (T0, S, S + 1, S + 2)); e("v_max3_f32 v%d, v%d, v%d, v%d" % (T1, S + 4, S + 5, S + 6))
    e("v_max3_f32 v%d, v%d, v%d, v%d" % (T0, T0, S + 3, S + 7)); e("v_max3_f32 v%d, v%d, v%d, v%d" % (T1, T1, S + 8, S + 9))
    e("v_max_f32 v%d, v%d, v%d" % (T0, T0, T1))
    e("v_mov_b32 v%d, v%d" % (T1, T0)); A.nop(2); e("v_permlane16_swap_b32 v%d, v%d" % (T0, T1)); e("v_max_f32 v%d, v%d, v%d" % (T0, T0, T1))
    e("v_mov_b32 v%d, v%d" % (T1, T0)); A.nop(2); e("v_permlane32_swap_b32 v%d, v%d" % (T0, T1)); e("v_max_f32 v%d, v%d, v%d" % (T0, T0, T1))
    e("v_mul_f32 v%d, s%d, v%d" % (T0, S_C, T0))
    for i in range(10): e("v_fma_f32 v%d, v%d, s%d, -v%d" % (S + i, S + i, S_C, T0))
    for i in range(10): e("v_exp_f32 v%d, v%d" % (S + i, S + i))
    e("s_nop 0")
    e("v_add_f32 v%d, v%d, v%d" % (T2, S, S + 1)); e("v_add_f32 v%d, v%d, v%d" % (T3, S + 2, S + 3))
    for i in range(4, 10, 2):
        e("v_add_f32 v%d, v%d, v%d" % (T2, T2, S + i)); e("v_add_f32 v%d, v%d, v%d" % (T3, T3, S + i + 1))
    e("v_add_f32 v%d, v%d, v%d" % (T2, T2, T3))
    for i in range(4): e("v_cvt_pk_bf16_f32 v%d, v%d, v%d" % (S + i, S + 2 * i, S + 2 * i + 1))
    e("v_cvt_pk_bf16_f32 v%d, v%d, v%d" % (S + 10, S + 8, S + 9)); e("v_mov_b32 v%d, 0" % (S + 11))
    e("v_mov_b32 v%d, v%d" % (T3, T2)); A.nop(2); e("v_permlane16_swap_b32 v%d, v%d" % (T2, T3)); e("v_add_f32 v%d, v%d, v%d" % (T2, T2, T3))
    e("v_mov_b32 v%d, v%d" % (T3, T2)); A.nop(2); e("v_permlane32_swap_b32 v%d, v%d" % (T2, T3)); e("v_add_f32 v%d, v%d, v%d" % (T2, T2, T3))
    e("v_rcp_f32 v%d, v%d" % (T2, T2))
    for i in range(4):
        e("v_mfma_f32_16x16x32_bf16 %s, %s, %s, 0" % (vr(OO + 4 * i, 4), vr(VXF + 4 * i, 4), vr(S, 4)))
    for i in range(4):
        e("v_mfma_f32_16x16x16_bf16 %s, %s, %s, %s" % (vr(OO + 4 * i, 4), vr(VMF + 2 * i, 2), vr(S + 10, 2), vr(OO + 4 * i, 4)))
    A.nop(8)
    for i in range(16): e("v_mul_f32 v%d, v%d, v%d" % (OO + i, OO + i, T2))
    for j in range(2):
        for tsub in range(2):
            a0 = OO + (2 * j + tsub) * 4
            e("v_cvt_pk_bf16_f32 v%d, v%d, v%d" % (QF + 4 * j + 2 * tsub, a0, a0 + 1)); e("v_cvt_pk_bf16_f32 v%d, v%d, v%d" % (QF + 4 * j + 2 * tsub + 1, a0 + 2, a0 + 3))
    e("s_lshl_b32 s28, s%d, 12" % S_QT); e("s_lshl_b32 s29, s%d, 11" % S_EH); e("s_add_u32 s28, s28, s29"); e("s_add_u32 s28, s28, %d" % XL_OB); e("v_add_u32 v2, s28, v%d" % V_L16)
    for j in range(2):
        A.ds("ds_write_b128 v2, %s offset:%d" % (vr(QF + 4 * j, 4), j * 1024), "ow")
    A.wait_lds_all(); e("s_barrier")
    e("v_add_u32 v2, %d, v%d" % (XL_OB, V_L16))
    ACC, AF, PKR = 12, 44, 60
    e("s_add_u32 s33, s%d, s%d" % (S_XPB, S_PAR2))
    for qt in range(2):
        for kk in range(4):
            A.ds("ds_read_b128 %s, v2 offset:%d" % (vr(AF + 4 * kk, 4), qt * 4096 + kk * 1024), ("o", kk))
        for kk in range(4):
            A.wait_lds(("o", kk))
            t, b = kk >> 1, kk & 1
            for nt in range(8):
                e("v_mfma_f32_16x16x32_bf16 %s, %s, %s, %s" % (vr(ACC + 4 * nt, 4), vr(AF + 4 * kk, 4), vr(V_WO + (nt * 2 + t) * 8 + 4 * b, 4), "0" if kk == 0 else vr(ACC + 4 * nt, 4)))
        A.nop(8)
        for p in range(4):
            for tsub in range(2):
                a0 = ACC + 4 * (2 * p + tsub)
                e("v_cvt_pk_bf16_f32 v%d, v%d, v%d" % (PKR + 4 * p + 2 * tsub, a0, a0 + 1)); e("v_cvt_pk_bf16_f32 v%d, v%d, v%d" % (PKR + 4 * p + 2 * tsub + 1, a0 + 2, a0 + 3))
            e("s_lshl_b32 s28, s%d, 17" % S_WAVE); e("s_add_u32 s28, s28, s33"); e("s_add_u32 s28, s28, %d" % ((qt * 16 + p) * 4 * 8192))
            e("buffer_store_dwordx4 %s, v%d, s[4:7], s28 offen" % (vr(PKR + 4 * p, 4), V_XPS))
        A.nop(2)
    e("s_waitcnt vmcnt(0)"); e("s_barrier")
    lf = A.newlab("L_x2f")
    e("s_cmp_lg_u32 s%d, 0" % S_WAVE); e("s_cbranch_scc1 %s" % lf)
    e("s_add_u32 s28, s%d, 1" % S_K); e("v_mov_b32 v%d, s28" % T0); e("v_mov_b32 v%d, 0" % T1)
    e("s_lshl_b32 s28, s%d, 7" % S_TEAM); e("s_lshl_b32 s29, s%d, 2" % S_HEAD); e("s_add_u32 s28, s28, s29"); e("s_add_u32 s28, s28, %d" % FL_XP)
    e("s_mov_b64 exec, 1"); e("buffer_store_dword v%d, v%d, s[4:7], s28 offen" % (T0, T1)); e("s_mov_b64 exec, s[26:27]")
    lab(lf)
    lw = A.newlab("L_x2r")
    e("v_lshrrev_b32 v%d, 2, v%d" % (T0, V_L16)); e("v_and_b32 v%d, 127, v%d" % (T0, T0))
    e("s_lshl_b32 s28, s%d, 7" % S_TEAM); e("s_add_u32 s28, s28, %d" % FL_XP); e("s_mov_b32 s29, 0")
    e("v_add_u32 v%d, %d, v%d" % (T3, XL_SEL, V_L16)); e("ds_read_b128 v[44:47], v%d" % T3)
    lab(lw)
    e("buffer_load_dword v%d, v%d, s[4:7], s28 offen sc1" % (T1, T0)); e("s_waitcnt vmcnt(0)")
    e("v_cmp_ge_u32 vcc, s%d, v%d" % (S_K, T1))
    e("s_add_u32 s29, s29, 1"); e("s_cmp_gt_u32 s29, 0x80000"); e("s_cbranch_scc1 %s_d" % lw)
    e("s_cbranch_vccnz %s" % lw)
    lab(lw + "_d")
    e("s_lshl_b32 s28, s%d, 2" % S_HEAD); e("s_add_u32 s28, s28, s%d" % S_WAVE); e("s_lshl_b32 s28, s28, 13"); e("s_add_u32 s28, s28, s33"); e("s_add_u32 s29, s28, 4096")
    for x in range(8):
        e("buffer_load_dwordx4 %s, v%d, s[4:7], s%d offen offset:%d sc1" % (vr(12 + 4 * x, 4), V_L16, 28 if x < 4 else 29, (x & 3) * 1024))
    e("s_waitcnt lgkmcnt(0)")
    for x in range(8):
        e("s_waitcnt vmcnt(%d)" % (7 - x))
        e("v_mfma_f32_16x16x32_bf16 v[48:51], %s, v[44:47], %s" % (vr(12 + 4 * x, 4), "0" if x == 0 else "v[48:51]"))
    e("v_lshrrev_b32 v%d, 8, v%d" % (T0, V_L16)); e("v_lshlrev_b32 v%d, 2, v%d" % (T0, T0))
    e("v_bfe_u32 v%d, v%d, 4, 2" % (T1, V_L16)); e("v_add_u32 v%d, v%d, v%d" % (T0, T0, T1)); e("v_lshlrev_b32 v%d, 11, v%d" % (T0, T0))
    e("v_bfe_u32 v%d, v%d, 6, 1" % (T1, V_L16)); e("v_lshlrev_b32 v%d, 3, v%d" % (T1, T1)); e("v_add_u32 v%d, v%d, v%d" % (T0, T0, T1))
    e("s_lshr_b32 s28, s%d, 4" % S_HEAD); e("s_lshl_b32 s28, s28, 4"); e("s_lshl_b32 s29, s%d, 5" % S_SEG); e("s_add_u32 s28, s28, s29"); e("s_lshl_b32 s28, s28, 11")
    e("s_bfe_u32 s29, s%d, 0x20002" % S_HEAD); e("s_lshl_b32 s29, s29, 8"); e("s_add_u32 s28, s28, s29")
    e("s_bfe_u32 s29, s%d, 0x10001" % S_HEAD); e("s_lshl_b32 s29, s29, 7"); e("s_add_u32 s28, s28, s29")
    e("s_and_b32 s29, s%d, 1" % S_HEAD); e("s_lshl_b32 s29, s29, 4"); e("s_add_u32 s28, s28, s29")
    e("s_lshl_b32 s29, s%d, 5" % S_WAVE); e("s_add_u32 s28, s28, s29"); e("s_add_u32 s28, s28, 1024")
    A.nop(4)
    e("v_cvt_pk_bf16_f32 v48, v48, v49"); e("v_cvt_pk_bf16_f32 v49, v50, v51")
    e("v_and_b32 v%d, 128, v%d" % (T1, V_L16)); e("v_cmp_eq_u32 vcc, 0, v%d" % T1)
    e("s_nop 1")
    e("s_mov_b64 exec, vcc")
    e("buffer_store_dwordx2 v[48:49], v%d, s[16:19], s28 offen" % T0)
    e("s_mov_b64 exec, s[26:27]")
    e("s_add_u32 s%d, s%d, 7" % (S_SEG, S_SEG)); e("s_xor_b32 s%d, s%d, 32768" % (S_XB, S_XB)); e("s_xor_b32 s%d, s%d, 0x100000" % (S_PAR2, S_PAR2))
    e("s_add_u32 s%d, s%d, 1" % (S_K, S_K))
    e("s_cmp_lt_u32 s%d, s%d" % (S_K, S_NSEG)); e("s_cbranch_scc1 L_x2")
    e("s_waitcnt vmcnt(0)")
    rt(7)
    e("s_branch L_end")

def xteam():
    L = VLANE
    lab("L_xteam")
    e("v_lshlrev_b32 v%d, 4, v%d" % (V_L16, L))
    e("s_load_dwordx2 s[30:31], s[0:1], %d" % KA["x"])
    e("v_lshrrev_b32 v1, 2, v%d" % L); e("v_lshrrev_b32 v2, 4, v%d" % L); e("v_xor_b32 v2, v2, v%d" % L); e("v_and_b32 v2, 3, v2"); e("v_lshlrev_b32 v2, 4, v2")
    e("v_lshlrev_b32 v1, 10, v1"); e("v_add_u32 v1, v1, v2")
    e("v_and_b32 v5, 15, v%d" % L); e("v_lshrrev_b32 v2, 2, v5"); e("v_lshrrev_b32 v34, 4, v%d" % L); e("v_xor_b32 v2, v2, v34"); e("v_and_b32 v2, 3, v2")
    e("v_lshlrev_b32 v5, 2, v5"); e("v_add_u32 v5, v5, v2"); e("v_lshlrev_b32 v5, 4, v5")
    e("s_waitcnt lgkmcnt(0)")
    srd(S_X, 30, 0x200000)
    if OPT["stage"] >= 3:
        lx = A.newlab("L_xi")
        e("s_cmp_lg_u32 s%d, 1" % S_WAVE); e("s_cbranch_scc1 %s" % lx)
        e("s_mov_b64 exec, 1")
        e("v_mov_b32 v32, 0"); e("s_lshl_b32 s28, s%d, 7" % S_TEAM); e("s_lshl_b32 s29, s%d, 2" % S_HEAD); e("s_add_u32 s28, s28, s29"); e("s_add_u32 s28, s28, %d" % FL_XP)
        e("buffer_store_dword v32, v32, s[4:7], s28 offen"); e("s_waitcnt vmcnt(0)")
        e("s_and_b32 s28, s%d, 3" % S_TEAM); e("s_lshl_b32 s28, s28, 6"); e("s_lshr_b32 s29, s%d, 2" % S_TEAM); e("s_lshl_b32 s29, s29, 2"); e("s_add_u32 s28, s28, s29"); e("s_add_u32 s28, s28, 16")
        e("v_mov_b32 v32, s28"); e("v_mov_b32 v33, 1")
        e("global_atomic_add v32, v33, s[24:25] sc1")
        e("s_mov_b64 exec, s[26:27]")
        lab(lx)
    e("s_mov_b32 s%d, s%d" % (S_RANK, S_HEAD))
    e("s_sub_u32 s28, s%d, 1" % S_TEAM); e("s_lshl_b32 s28, s28, 5"); e("s_add_u32 s28, s28, s%d" % S_HEAD)
    e("s_mul_i32 s29, s28, 9363"); e("s_lshr_b32 s%d, s29, 16" % S_HEAD); e("s_mul_i32 s29, s%d, 7" % S_HEAD); e("s_sub_u32 s%d, s28, s29" % S_SUB)
    e("s_lshl_b32 s%d, s%d, 13" % (S_H13, S_HEAD)); e("s_lshl_b32 s%d, s%d, 8" % (S_H8, S_HEAD))
    e("s_cmp_eq_u32 s%d, 0" % S_SUB); e("s_cselect_b32 s%d, 10, 9" % S_NSEG)
    load_setup(32768)
    uk = units_qkv(1, "a", 128); uv = units_qkv(2, "v", 128)
    for u in uk + uv: u["perm"] = False
    rt(2)
    load_units(uk + uv, 8)
    e("s_barrier")
    rt(3)
    def xt_dma(seg_sgpr, buf_sgpr):
        e("s_lshr_b32 s28, s%d, 1" % S_WAVE); e("s_lshl_b32 s29, s%d, 15" % seg_sgpr); e("s_lshl_b32 s30, s28, 14"); e("s_add_u32 s29, s29, s30")
        e("s_and_b32 s30, s%d, 1" % S_WAVE); e("s_lshl_b32 s31, s30, 9"); e("s_add_u32 s29, s29, s31")
        e("s_lshl_b32 s31, s%d, 13" % S_WAVE); e("s_add_u32 s31, s31, s%d" % buf_sgpr)
        for i in range(8):
            e("s_add_u32 m0, s31, %d" % (i * 1024)); e("s_add_u32 s30, s29, %d" % (i * 64))
            e("buffer_load_dwordx4 v1, s[12:15], s30 offen lds")
    e("s_mov_b32 s%d, s%d" % (S_SEG, S_SUB)); e("s_mov_b32 s%d, 0" % S_K); e("s_mov_b32 s%d, 0" % S_XB)
    xt_dma(S_SEG, S_XB)
    if OPT["stage"] >= 2:
        wait_dbg_counter(24, 32, "L_x1_init")
    AK, AV, XF, PK = 40, 56, 72, 88
    lab("L_x1")
    rtk(8, S_K, 4)
    e("s_waitcnt vmcnt(4)")
    l0 = A.newlab("L_x1a")
    e("s_cmp_lg_u32 s%d, 0" % S_K); e("s_cbranch_scc1 %s" % l0); e("s_waitcnt vmcnt(0)"); lab(l0)
    e("s_barrier")
    rtk(9, S_K, 4)
    lf = A.newlab("L_x1f")
    e("s_cmp_lt_u32 s%d, 2" % S_K); e("s_cbranch_scc1 %s" % lf)
    e("s_cmp_lg_u32 s%d, 0" % S_WAVE); e("s_cbranch_scc1 %s" % lf)
    e("s_sub_u32 s28, s%d, 1" % S_K); e("v_mov_b32 v32, s28"); e("v_mov_b32 v33, 0")
    e("s_lshl_b32 s28, s%d, 7" % S_SUB); e("s_lshl_b32 s29, s%d, 2" % S_HEAD); e("s_add_u32 s28, s28, s29"); e("s_add_u32 s28, s28, %d" % (FL_KV + 128))
    e("s_mov_b64 exec, 1"); e("buffer_store_dword v32, v33, s[4:7], s28 offen sc0 sc1"); e("s_mov_b64 exec, s[26:27]")
    lab(lf)
    ln = A.newlab("L_x1n")
    e("s_add_u32 s32, s%d, 1" % S_K); e("s_cmp_ge_u32 s32, s%d" % S_NSEG); e("s_cbranch_scc1 %s" % ln)
    e("s_add_u32 s33, s%d, 7" % S_SEG); e("s_xor_b32 s36, s%d, 32768" % S_XB)
    xt_dma(33, 36)
    lab(ln)
    rtk(10, S_K, 4)
    e("v_add_u32 v2, s%d, v5" % S_XB)
    A.lds = []
    def rdx(kk):
        for tt in range(2):
            A.ds("ds_read_b128 %s, v2 offset:%d" % (vr(XF + (kk % 2) * 8 + tt * 4, 4), (tt * 16 + kk) * 1024), ("x", kk))
    rdx(0); rdx(1)
    for kk in range(16):
        A.wait_lds(("x", kk))
        t, b = kk >> 1, kk & 1
        for u in range(2):
            for tt in range(2):
                xf = vr(XF + (kk % 2) * 8 + tt * 4, 4)
                ck = "0" if kk == 0 else vr(AK + (u * 2 + tt) * 4, 4)
                cv = "0" if kk == 0 else vr(AV + (u * 2 + tt) * 4, 4)
                e("v_mfma_f32_16x16x32_bf16 %s, %s, %s, %s" % (vr(AK + (u * 2 + tt) * 4, 4), ar(128 + (u * 8 + t) * 8 + 4 * b, 4), xf, ck))
                e("v_mfma_f32_16x16x32_bf16 %s, %s, %s, %s" % (vr(AV + (u * 2 + tt) * 4, 4), xf, vr(128 + (u * 8 + t) * 8 + 4 * b, 4), cv))
        if kk + 2 < 16: rdx(kk + 2)
    rtk(11, S_K, 4)
    A.nop(8)
    for tt in range(2):
        for u in range(2):
            a0 = AK + (u * 2 + tt) * 4
            e("v_cvt_pk_bf16_f32 v%d, v%d, v%d" % (PK + tt * 4 + 2 * u, a0, a0 + 1)); e("v_cvt_pk_bf16_f32 v%d, v%d, v%d" % (PK + tt * 4 + 2 * u + 1, a0 + 2, a0 + 3))
    for u in range(2):
        for tt in range(2):
            a0 = AV + (u * 2 + tt) * 4
            e("v_cvt_pk_bf16_f32 v%d, v%d, v%d" % (PK + 8 + u * 4 + 2 * tt, a0, a0 + 1)); e("v_cvt_pk_bf16_f32 v%d, v%d, v%d" % (PK + 8 + u * 4 + 2 * tt + 1, a0 + 2, a0 + 3))
    e("s_lshl_b32 s28, s%d, 18" % S_SEG); e("s_add_u32 s28, s28, s%d" % S_H13)
    e("s_lshl_b32 s29, s%d, 10" % S_WAVE); e("s_add_u32 s29, s29, s28"); e("s_add_u32 s30, s29, %d" % (WS_KX + 4096)); e("s_add_u32 s29, s29, %d" % WS_KX)
    e("buffer_store_dwordx4 %s, v%d, s[4:7], s29 offen sc0 sc1" % (vr(PK, 4), V_L16))
    e("buffer_store_dwordx4 %s, v%d, s[4:7], s30 offen sc0 sc1" % (vr(PK + 4, 4), V_L16))
    e("s_lshl_b32 s29, s%d, 11" % S_WAVE); e("s_add_u32 s29, s29, s28"); e("s_add_u32 s29, s29, %d" % WS_VX)
    e("buffer_store_dwordx4 %s, v%d, s[4:7], s29 offen sc0 sc1" % (vr(PK + 8, 4), V_L16))
    e("buffer_store_dwordx4 %s, v%d, s[4:7], s29 offen offset:1024 sc0 sc1" % (vr(PK + 12, 4), V_L16))
    rtk(12, S_K, 4)
    e("s_add_u32 s%d, s%d, 7" % (S_SEG, S_SEG)); e("s_xor_b32 s%d, s%d, 32768" % (S_XB, S_XB)); e("s_add_u32 s%d, s%d, 1" % (S_K, S_K))
    e("s_cmp_lt_u32 s%d, s%d" % (S_K, S_NSEG)); e("s_cbranch_scc1 L_x1")
    e("s_waitcnt vmcnt(0)"); e("s_barrier")
    rt(4)
    lf = A.newlab("L_x1g")
    e("s_cmp_lg_u32 s%d, 0" % S_WAVE); e("s_cbranch_scc1 %s" % lf)
    e("v_mov_b32 v32, s%d" % S_NSEG); e("v_mov_b32 v33, 0")
    e("s_lshl_b32 s28, s%d, 7" % S_SUB); e("s_lshl_b32 s29, s%d, 2" % S_HEAD); e("s_add_u32 s28, s28, s29"); e("s_add_u32 s28, s28, %d" % (FL_KV + 128))
    e("s_mov_b64 exec, 1"); e("buffer_store_dword v32, v33, s[4:7], s28 offen sc0 sc1"); e("s_mov_b64 exec, s[26:27]")
    lab(lf)
    e("s_waitcnt vmcnt(0)")
    if OPT["stage"] < 3:
        e("s_branch L_end"); return
    xphase2()

hdr = []
if OPT["final"]:
    hdr.append("; Fused kernel: branch A (short conv + long causal conv as Toeplitz MFMA) and branch B (memory-recurrent attention).")
    hdr.append("; One persistent workgroup per CU. Workgroups form teams by the XCD they actually run on (HW_REG_XCC_ID):")
hdr.append("; @launch grid=(256,1,1) block=(256,1,1) lds=%d" % LDS_TOTAL)
hdr.append('.amdgcn_target "amdgcn-amd-amdhsa--gfx950"')
hdr.append(".text\n.globl %s\n.p2align 8\n.type %s,@function\n%s:" % (KNAME, KNAME, KNAME))
prologue()
e("s_cmp_eq_u32 s%d, 0" % S_TEAM); e("s_cbranch_scc1 L_chain")
if OPT["stage"] >= 2: e("s_branch L_xteam")
else: e("s_branch L_end")
chain()
if OPT["stage"] >= 2: xteam()
lab("L_end")
e("s_endpgm")
tail = '''.section .rodata,"a"
.p2align 6
.amdhsa_kernel %s
  .amdhsa_next_free_vgpr 512
  .amdhsa_next_free_sgpr 102
  .amdhsa_accum_offset 256
  .amdhsa_group_segment_fixed_size 0
  .amdhsa_kernarg_size 128
  .amdhsa_user_sgpr_count 2
  .amdhsa_user_sgpr_kernarg_segment_ptr 1
  .amdhsa_system_sgpr_workgroup_id_x 1
.end_amdhsa_kernel
''' % KNAME
open(OUTP, "w").write("\n".join(hdr) + "\n" + A.text() + tail)
print("wrote", OUTP, len(A.L), "lines")
```

```python
import sys, os, struct, math
sys.path.insert(0, os.path.dirname(os.path.abspath(__file__)))
from asmlib import *

KNAME = "concat_heads__ssm_conv_h3__memory_aug_recurrent_mem_tr__prompt_kernel"
OPT = dict(final=0, nowait=0, stage=1, hist=0, stamps=0, nsteps=64, dly_red=10, dly_mem=1, slp=32)
for a in sys.argv[1:]:
    if "=" in a:
        k, v = a.split("="); OPT[k] = int(v) if v.lstrip("-").isdigit() else v
OUTP = OPT.get("out", "chain.s")

KA = dict(q=0, k=8, v=16, shift=24, ssmk=32, ssmd=40, x=48, mem0=56, wq=64, wk=72, wv=80, wo=88, seg=96, out=104, dbg=112, ws=120)
WS_KX = 0x0000000
WS_VX = 0x1000000
WS_KM = 0x2000000
WS_VM = 0x3000000
WS_PB = 0x2C00000
WS_MB = 0x2CC0000
WS_FL = 0x2CD0000
WS_HIST = 0x2D00000
WS_STAMP = 0x2E00000
WS_XP = 0x4000000
FL_KV, FL_KM, FL_XP = WS_FL, WS_FL + 1024, WS_FL + 2048
WVSTRIDE = 28672
L_KX, L_VX, L_MEM, L_X, L_O, L_SEL, L_DUM = 114688, 131072, 147456, 155648, 159744, 161792, 162816
LDS_TOTAL = 163840
S_WS = 4
S_W = 8
S_XCC, S_WAVE, S_HEAD, S_TEAM = 20, 21, 22, 23
S_DBG = 24
S_ALL = 26
S_STEP, S_MCUR, S_MNXT, S_PCUR, S_RED, S_MQ, S_KXO, S_VXO = 40, 41, 42, 43, 44, 45, 46, 47
S_DMA = 39
S_LO8 = 48
S_LO32 = 50
S_C, S_SPIN, S_FIRST, S_PAR = 52, 53, 54, 55
S_PW = 56
S_ST = 64
S_MPREV, S_H13, S_H8, S_PPREV = 96, 97, 98, 99
S_RDY = 100
S_TAG = 99
V_L16, V_XWR, V_OWR, V_PS0, V_IDX, V_WVA = 0, 1, 2, 3, 4, 5
VT = 6
V_KX = 12
V_LD = 12
V_S = 28
V_MEM = 40
V_QK = 72
V_VA = 88
V_WVR = 96
V_WV0 = 112
V_WO = 128
VLANE = 30
VS = 32

A = Asm()
e, c, lab = A.e, A.c, A.lab
def v(i): return "v%d" % i

def srd(base_s, ptr_s, size):
    e("s_mov_b32 s%d, s%d" % (base_s, ptr_s)); e("s_mov_b32 s%d, s%d" % (base_s + 1, ptr_s + 1))
    e("s_mov_b32 s%d, 0x%x" % (base_s + 2, size)); e("s_mov_b32 s%d, 0x20000" % (base_s + 3))

TS = [int(x) for x in str(OPT.get("ts", "")).split(",") if x != ""]
def ts(i):
    if i in TS:
        k = TS.index(i)
        e("%s s[%d:%d]" % ("s_memrealtime" if OPT.get("rts", 0) else "s_memtime", 64 + 2 * k, 65 + 2 * k))
def stamp(i, lvl=1):
    ts(i)
    if OPT["stamps"] < lvl: return
    if OPT["stamps"] == 2 and lvl == 1: pass
    e("s_memtime s[82:83]"); e("s_waitcnt lgkmcnt(0)"); A.lds = []
    e("s_sub_u32 s81, s82, s80"); e("s_add_u32 s%d, s%d, s81" % (S_ST + i, S_ST + i)); e("s_mov_b32 s80, s82")

def bar_off(t): return (t & 3) * 64 + 16 + (t >> 2) * 4
WS_TRACE = 0x2F00000
def rtk(i, kreg, kval):
    if not OPT.get("trace", 0): return
    l = A.newlab("L_rtk")
    e("s_cmp_lg_u32 s%d, %d" % (kreg, kval)); e("s_cbranch_scc1 %s" % l)
    rt(i)
    lab(l)
def rt(i):
    if not OPT.get("trace", 0): return
    l = A.newlab("L_rt")
    e("s_cmp_lg_u32 s%d, 0" % S_WAVE); e("s_cbranch_scc1 %s" % l)
    e("s_memrealtime s[90:91]"); e("s_waitcnt lgkmcnt(0)")
    e("s_add_u32 s28, s93, %d" % (WS_TRACE + 4 * i))
    e("s_mov_b64 exec, 1"); e("v_mov_b32 v10, s90"); e("v_mov_b32 v11, 0"); e("buffer_store_dword v10, v11, s[4:7], s28 offen"); e("s_mov_b64 exec, s[26:27]")
    lab(l)
def prologue():
    e("s_cmp_ge_u32 s2, 256"); e("s_cbranch_scc1 L_end")
    if OPT.get("trace", 0): e("s_memrealtime s[94:95]")
    e("s_load_dwordx2 s[24:25], s[0:1], %d" % KA["dbg"])
    e("s_load_dwordx2 s[28:29], s[0:1], %d" % KA["ws"])
    e("s_load_dwordx4 s[56:59], s[0:1], %d" % KA["wq"])
    e("s_load_dwordx4 s[60:63], s[0:1], %d" % KA["wv"])
    e("s_getreg_b32 s%d, hwreg(HW_REG_XCC_ID)" % S_XCC)
    e("s_and_b32 s%d, s%d, 15" % (S_XCC, S_XCC))
    e("v_lshrrev_b32 v1, 6, v0"); e("s_nop 0"); e("v_readfirstlane_b32 s%d, v1" % S_WAVE)
    e("v_and_b32 v%d, 63, v0" % VLANE)
    e("s_mov_b64 s[26:27], exec")
    e("s_waitcnt lgkmcnt(0)")
    srd(S_WS, 28, 0x10000000)
    e("s_cmp_lg_u32 s%d, 0" % S_WAVE); e("s_cbranch_scc1 L_roles_wait")
    e("s_mov_b64 exec, 1")
    e("s_and_b32 s28, s%d, 3" % S_XCC); e("s_lshl_b32 s28, s28, 6"); e("s_lshr_b32 s29, s%d, 2" % S_XCC); e("s_lshl_b32 s29, s29, 2"); e("s_add_u32 s28, s28, s29")
    e("v_mov_b32 v3, s28"); e("v_mov_b32 v4, 1")
    e("global_atomic_add v5, v3, v4, s[24:25] sc0 sc1"); e("s_waitcnt vmcnt(0)")
    e("v_mov_b32 v3, %d" % L_DUM)
    e("ds_write_b32 v3, v5"); e("s_waitcnt lgkmcnt(0)")
    e("s_mov_b64 exec, s[26:27]")
    lab("L_roles_wait")
    e("s_barrier")
    e("v_mov_b32 v3, %d" % L_DUM); e("ds_read_b32 v4, v3"); e("s_waitcnt lgkmcnt(0)")
    e("v_readfirstlane_b32 s%d, v4" % S_HEAD); e("s_mov_b32 s%d, s%d" % (S_TEAM, S_XCC))
    e("s_barrier")
    e("s_cmp_ge_u32 s%d, 32" % S_HEAD); e("s_cbranch_scc1 L_end")
    e("s_cmp_ge_u32 s%d, 8" % S_TEAM); e("s_cbranch_scc1 L_end")
    e("s_lshl_b32 s%d, s%d, 13" % (S_H13, S_HEAD)); e("s_lshl_b32 s%d, s%d, 8" % (S_H8, S_HEAD))
    if OPT.get("trace", 0):
        l = A.newlab("L_rt")
        e("s_lshl_b32 s93, s%d, 5" % S_TEAM); e("s_add_u32 s93, s93, s%d" % S_HEAD); e("s_lshl_b32 s93, s93, 6")
        e("s_cmp_lg_u32 s%d, 0" % S_WAVE); e("s_cbranch_scc1 %s" % l)
        e("s_add_u32 s28, s93, %d" % WS_TRACE)
        e("s_mov_b64 exec, 1"); e("v_mov_b32 v10, s94"); e("v_mov_b32 v11, 0"); e("buffer_store_dword v10, v11, s[4:7], s28 offen"); e("s_mov_b64 exec, s[26:27]")
        lab(l)
    rt(1)

LW_VQ, LW_VO, LW_A0, LW_A1, LW_AO = 40, 41, 43, 44, 45
LW_WB = 53
LW_TMP = 72
def load_setup(wave_stride):
    L = VLANE; a, b_, c_, d_, f_ = VS, VS + 1, VS + 2, VS + 3, VS + 4
    e("s_mul_i32 s34, s%d, %d" % (S_WAVE, wave_stride))
    e("s_lshl_b32 s36, s%d, 20" % S_WAVE)
    e("v_lshrrev_b32 v%d, 2, v%d" % (a, L)); e("v_lshlrev_b32 v%d, 13, v%d" % (b_, a))
    e("v_lshrrev_b32 v%d, 5, v%d" % (c_, L)); e("v_lshlrev_b32 v%d, 1, v%d" % (c_, c_))
    e("v_and_b32 v%d, 3, v%d" % (d_, L)); e("v_xor_b32 v%d, v%d, v%d" % (d_, d_, c_)); e("v_lshlrev_b32 v%d, 4, v%d" % (d_, d_))
    e("v_add_u32 v%d, v%d, v%d" % (b_, b_, d_))
    e("s_lshl_b32 s29, s%d, 6" % S_WAVE); e("s_add_u32 s28, s%d, s29" % S_H8)
    e("v_add_u32 v%d, s28, v%d" % (LW_VQ, b_))
    e("v_lshrrev_b32 v%d, 4, v%d" % (a, L)); e("v_lshlrev_b32 v%d, 10, v%d" % (b_, a))
    e("s_lshl_b32 s28, s%d, 8" % S_WAVE); e("v_add_u32 v%d, s28, v%d" % (b_, b_))
    e("v_and_b32 v%d, 1, v%d" % (c_, a)); e("v_lshrrev_b32 v%d, 1, v%d" % (f_, a)); e("v_lshlrev_b32 v%d, 3, v%d" % (f_, f_)); e("v_add_u32 v%d, v%d, v%d" % (c_, c_, f_))
    e("v_and_b32 v%d, 15, v%d" % (d_, L)); e("v_xor_b32 v%d, v%d, v%d" % (d_, d_, c_)); e("v_lshlrev_b32 v%d, 4, v%d" % (d_, d_))
    e("v_add_u32 v%d, v%d, v%d" % (LW_VO, b_, d_))
    e("v_lshrrev_b32 v%d, 5, v%d" % (a, L)); e("v_lshlrev_b32 v%d, 10, v%d" % (a, a))
    e("v_bfe_u32 v%d, v%d, 4, 1" % (b_, L)); e("v_lshlrev_b32 v%d, 9, v%d" % (c_, b_)); e("v_add_u32 v%d, v%d, v%d" % (a, a, c_))
    e("v_bfe_u32 v%d, v%d, 2, 2" % (c_, L)); e("v_lshlrev_b32 v%d, 6, v%d" % (c_, c_)); e("v_add_u32 v%d, v%d, v%d" % (a, a, c_))
    e("v_and_b32 v%d, 3, v%d" % (c_, L)); e("v_lshlrev_b32 v%d, 3, v%d" % (c_, c_)); e("v_add_u32 v%d, v%d, v%d" % (a, a, c_))
    e("v_add_u32 v%d, s34, v%d" % (a, a))
    e("v_lshlrev_b32 v%d, 5, v%d" % (c_, b_)); e("v_add_u32 v%d, v%d, v%d" % (LW_A0, a, c_))
    e("v_xor_b32 v%d, 32, v%d" % (c_, c_)); e("v_add_u32 v%d, v%d, v%d" % (LW_A1, a, c_))
    e("v_lshrrev_b32 v%d, 4, v%d" % (a, L)); e("v_lshlrev_b32 v%d, 10, v%d" % (a, a))
    e("v_bfe_u32 v%d, v%d, 2, 2" % (c_, L)); e("v_lshlrev_b32 v%d, 8, v%d" % (d_, c_)); e("v_add_u32 v%d, v%d, v%d" % (a, a, d_))
    e("v_and_b32 v%d, 3, v%d" % (d_, L)); e("v_lshlrev_b32 v%d, 5, v%d" % (d_, d_)); e("v_add_u32 v%d, v%d, v%d" % (a, a, d_))
    e("v_add_u32 v%d, s34, v%d" % (a, a))
    e("v_bfe_u32 v%d, v%d, 3, 1" % (b_, L)); e("v_lshlrev_b32 v%d, 7, v%d" % (b_, b_))
    e("v_bfe_u32 v%d, v%d, 2, 1" % (c_, L)); e("v_lshlrev_b32 v%d, 4, v%d" % (c_, c_))
    for G in range(2):
        for Th in range(2):
            e("v_xor_b32 v%d, %d, v%d" % (d_, G * 128, b_)); e("v_xor_b32 v%d, %d, v%d" % (f_, Th * 16, c_))
            e("v_add_u32 v%d, v%d, v%d" % (d_, d_, f_)); e("v_add_u32 v%d, v%d, v%d" % (LW_AO + 2 * G + Th, a, d_))
    e("v_lshlrev_b32 v%d, 4, v%d" % (a, L)); e("v_add_u32 v%d, s34, v%d" % (LW_WB, a))

def reg(kind, n, cnt):
    return ar(n, cnt) if kind == "a" else vr(n, cnt)

def load_units(units, NS, hooks={}):
    cur_srd = [None]
    def set_srd(which):
        if cur_srd[0] == which: return
        cur_srd[0] = which
        p = S_PW + 2 * which
        e("s_mov_b32 s8, s%d" % p); e("s_mov_b32 s9, s%d" % (p + 1)); e("s_mov_b32 s10, 0x400000"); e("s_mov_b32 s11, 0x20000")
    def issue(n):
        u = units[n]; slot = n % NS
        set_srd(u["m"])
        for i in range(4):
            e("s_add_u32 m0, s34, %d" % (slot * 4096 + i * 1024))
            if u["kind"] == "qkv":
                if u.get("perm", True):
                    e("s_xor_b32 s28, s36, %d" % (u["t"] << 19)); e("s_add_u32 s28, s28, %d" % (i * 131072))
                else:
                    e("s_mov_b32 s28, %d" % ((64 * u["t"] + 16 * i) * 8192))
                A.vmem("buffer_load_dwordx4 v%d, s[8:11], s28 offen lds" % LW_VQ, ("w", n))
            else:
                qd = 2 * u["b"] + u["hb"]
                e("s_add_u32 s28, s35, %d" % ((64 * u["t"] + 16 * qd + 4 * i) * 1024))
                A.vmem("buffer_load_dwordx4 v%d, s[8:11], s28 offen lds" % LW_VO, ("w", n))
    e("s_lshl_b32 s35, s%d, 17" % S_HEAD)
    for n in range(min(NS, len(units))): issue(n)
    for n, u in enumerate(units):
        slot = n % NS
        A.wait_vm(("w", n))
        if u["kind"] == "qkv":
            for uu in range(2):
                for b in range(2):
                    for hb in range(2):
                        if u["dest"] == "lds": d = vr(LW_TMP + uu * 8 + 4 * b + 2 * hb, 2)
                        elif u["dest"] == "flat": d = vr(u["base"] + uu * 8 + 4 * b + 2 * hb, 2)
                        else: d = reg(u["dest"], u["base"] + (uu * 8 + u["t"]) * 8 + 4 * b + 2 * hb, 2)
                        A.ds("ds_read_b64_tr_b16 %s, v%d offset:%d" % (d, LW_A0 + uu, slot * 4096 + b * 2048 + hb * 256), "tr")
            A.wait_lds_all()
            if u["dest"] == "lds":
                u["slot"] = slot
                for uu in range(2):
                    for b in range(2):
                        A.ds("ds_write_b128 v%d, %s offset:%d" % (LW_WB, vr(LW_TMP + uu * 8 + 4 * b, 4), slot * 4096 + uu * 2048 + b * 1024), "wb")
                A.wait_lds_all()
        else:
            for nt in range(8):
                d = reg(u["dest"], u["base"] + (nt * 2 + u["t"]) * 8 + 4 * u["b"] + 2 * u["hb"], 2)
                G, T = nt >> 2, nt & 3
                A.ds("ds_read_b64_tr_b16 %s, v%d offset:%d" % (d, LW_AO + 2 * G + (T >> 1), slot * 4096 + (T & 1) * 8), "tr")
            A.wait_lds_all()
        if n in hooks: hooks[n]()
        if n + NS < len(units): issue(n + NS)

def load_units_reg(units, hooks={}, maxfly=60):
    SCR = 54
    SA0, SA1, SAO = 55, 56, 57
    SAOr = [57, 58, 59, 64]
    e("s_lshl_b32 s28, s%d, 13" % S_WAVE); e("s_add_u32 s28, s28, %d" % L_KX); e("s_sub_u32 s29, s28, s34")
    e("v_add_u32 v%d, s28, v%d" % (SCR, V_L16))
    e("v_add_u32 v%d, s29, v%d" % (SA0, LW_A0)); e("v_add_u32 v%d, s29, v%d" % (SA1, LW_A1))
    for k in range(4): e("v_add_u32 v%d, s29, v%d" % (SAOr[k], LW_AO + k))
    e("s_lshl_b32 s35, s%d, 17" % S_HEAD)
    cur_srd = [None]
    def set_srd(which):
        if cur_srd[0] == which: return
        cur_srd[0] = which
        p = S_PW + 2 * which
        e("s_mov_b32 s8, s%d" % p); e("s_mov_b32 s9, s%d" % (p + 1)); e("s_mov_b32 s10, 0x400000"); e("s_mov_b32 s11, 0x20000")
    def quads(u):
        if u["kind"] == "qkv":
            if u["dest"] == "flat": return [("v", u["base"] + 4 * i) for i in range(4)]
            b0 = u["base"] + u["t"] * 8
            return [(u["dest"], b0), (u["dest"], b0 + 4), (u["dest"], b0 + 64), (u["dest"], b0 + 68)]
        return [(u["dest"], u["base"] + (nt * 2 + u["t"]) * 8 + 4 * u["b"]) for nt in range(8)]
    def nloads(u): return 8 if u["kind"] == "wo" else 4
    def issue(n):
        u = units[n]; set_srd(u["m"])
        if u["kind"] == "qkv":
            for i in range(4):
                e("s_xor_b32 s28, s36, %d" % (u["t"] << 19)); e("s_add_u32 s28, s28, %d" % (i * 131072))
                if u["dest"] == "lds":
                    e("s_add_u32 m0, s34, %d" % (u["slot"] * 4096 + i * 1024)); e("s_nop 0")
                    A.vmem("buffer_load_dwordx4 v%d, s[8:11], s28 offen lds" % LW_VQ, ("w", n))
                else:
                    k, r = quads(u)[i]
                    A.vmem("buffer_load_dwordx4 %s, v%d, s[8:11], s28 offen" % (reg(k, r, 4), LW_VQ), ("w", n))
        else:
            for hb in range(2):
                for i in range(4):
                    qd = 2 * u["b"] + hb
                    e("s_add_u32 s28, s35, %d" % ((64 * u["t"] + 16 * qd + 4 * i) * 1024))
                    k, r = quads(u)[hb * 4 + i]
                    A.vmem("buffer_load_dwordx4 %s, v%d, s[8:11], s28 offen" % (reg(k, r, 4), LW_VO), ("w", n))
    nxt = [0]; fly = [0]
    def pump():
        while nxt[0] < len(units) and fly[0] + nloads(units[nxt[0]]) <= maxfly:
            issue(nxt[0]); fly[0] += nloads(units[nxt[0]]); nxt[0] += 1
    pump()
    for n, u in enumerate(units):
        A.wait_vm(("w", n)); fly[0] -= nloads(u)
        if u["kind"] == "qkv" and u["dest"] == "lds":
            slot = u["slot"]
            for uu in range(2):
                for b in range(2):
                    for hb in range(2):
                        A.ds("ds_read_b64_tr_b16 %s, v%d offset:%d" % (vr(LW_TMP + uu * 8 + 4 * b + 2 * hb, 2), LW_A0 + uu, slot * 4096 + b * 2048 + hb * 256), "tr")
            if n in hooks: hooks[n]()
            pump()
            A.wait_lds_all()
            for uu in range(2):
                for b in range(2):
                    A.ds("ds_write_b128 v%d, %s offset:%d" % (LW_WB, vr(LW_TMP + uu * 8 + 4 * b, 4), slot * 4096 + uu * 2048 + b * 1024), "wb")
            A.wait_lds_all()
        elif u["kind"] == "qkv":
            for i, (k, r) in enumerate(quads(u)):
                A.ds("ds_write_b128 v%d, %s offset:%d" % (SCR, reg(k, r, 4), i * 1024), "sw")
            if n in hooks: hooks[n]()
            pump()
            A.wait_lds_all()
            for uu in range(2):
                for b in range(2):
                    for hb in range(2):
                        if u["dest"] == "flat": d = vr(u["base"] + uu * 8 + 4 * b + 2 * hb, 2)
                        else: d = reg(u["dest"], u["base"] + (uu * 8 + u["t"]) * 8 + 4 * b + 2 * hb, 2)
                        A.ds("ds_read_b64_tr_b16 %s, v%d offset:%d" % (d, (SA0, SA1)[uu], b * 2048 + hb * 256), "tr")
            A.wait_lds_all()
        else:
            for i, (k, r) in enumerate(quads(u)):
                A.ds("ds_write_b128 v%d, %s offset:%d" % (SCR, reg(k, r, 4), i * 1024), "sw")
            if n in hooks: hooks[n]()
            pump()
            A.wait_lds_all()
            for hb in range(2):
                for nt in range(8):
                    G, T = nt >> 2, nt & 3
                    d = reg(u["dest"], u["base"] + (nt * 2 + u["t"]) * 8 + 4 * u["b"] + 2 * hb, 2)
                    A.ds("ds_read_b64_tr_b16 %s, v%d offset:%d" % (d, SAOr[2 * G + (T >> 1)], hb * 4096 + (T & 1) * 8), "tr")
            A.wait_lds_all()

def units_qkv(m, dest, base):
    return [dict(kind="qkv", m=m, t=t, dest=dest, base=base) for t in range(8)]
def units_wo(dest, base):
    return [dict(kind="wo", m=3, t=t, b=b, hb=hb, dest=dest, base=base) for t in range(2) for b in range(2) for hb in range(2)]

def pubaddr(dst, tmp):
    e("v_lshrrev_b32 v%d, 2, v%d" % (dst, V_L16)); e("v_and_b32 v%d, 0xc0, v%d" % (dst, dst))
    e("v_lshlrev_b32 v%d, 1, v%d" % (tmp, V_L16)); e("v_and_b32 v%d, 32, v%d" % (tmp, tmp)); e("v_add_u32 v%d, v%d, v%d" % (dst, dst, tmp))
    e("v_lshrrev_b32 v%d, 3, v%d" % (tmp, V_L16)); e("v_and_b32 v%d, 28, v%d" % (tmp, tmp)); e("v_add_u32 v%d, v%d, v%d" % (dst, dst, tmp))

def chain():
    L = VLANE; a, b_, c_, d_ = VS, VS + 1, VS + 2, VS + 3
    lab("L_chain")
    e("v_lshlrev_b32 v%d, 4, v%d" % (V_L16, L))
    e("s_mul_i32 s28, s%d, %d" % (S_WAVE, WVSTRIDE)); e("v_add_u32 v%d, s28, v%d" % (V_WVA, V_L16))
    e("v_and_b32 v%d, 15, v%d" % (a, L)); e("v_lshlrev_b32 v%d, 5, v%d" % (a, a)); e("v_lshrrev_b32 v%d, 4, v%d" % (b_, L)); e("v_lshlrev_b32 v%d, 3, v%d" % (b_, b_))
    e("v_add_u32 v%d, v%d, v%d" % (a, a, b_)); e("s_lshl_b32 s28, s%d, 10" % S_WAVE); e("s_add_u32 s28, s28, %d" % L_X); e("v_add_u32 v%d, s28, v%d" % (V_XWR, a))
    e("v_lshrrev_b32 v%d, 5, v%d" % (a, L)); e("v_lshlrev_b32 v%d, 8, v%d" % (a, a))
    e("v_bfe_u32 v%d, v%d, 2, 2" % (b_, L)); e("v_lshlrev_b32 v%d, 6, v%d" % (b_, b_)); e("v_add_u32 v%d, v%d, v%d" % (a, a, b_))
    e("v_and_b32 v%d, 1, v%d" % (b_, L)); e("v_lshlrev_b32 v%d, 5, v%d" % (b_, b_)); e("v_add_u32 v%d, v%d, v%d" % (a, a, b_))
    e("v_bfe_u32 v%d, v%d, 4, 1" % (b_, L)); e("v_lshlrev_b32 v%d, 3, v%d" % (b_, b_)); e("v_add_u32 v%d, v%d, v%d" % (a, a, b_))
    e("s_lshr_b32 s28, s%d, 1" % S_WAVE); e("s_lshl_b32 s28, s28, 10"); e("s_and_b32 s29, s%d, 1" % S_WAVE); e("s_lshl_b32 s29, s29, 9")
    e("s_add_u32 s28, s28, s29"); e("s_add_u32 s28, s28, %d" % L_O); e("v_add_u32 v%d, s28, v%d" % (a, a))
    e("v_and_b32 v%d, 2, v%d" % (b_, L)); e("v_cmp_ne_u32 vcc, 0, v%d" % b_)
    e("v_lshlrev_b32 v%d, 3, v%d" % (b_, L)); e("v_add_u32 v%d, %d, v%d" % (b_, L_DUM, b_))
    e("s_nop 0")
    e("v_cndmask_b32 v%d, v%d, v%d, vcc" % (V_OWR, b_, a))
    e("v_and_b32 v%d, 8, v%d" % (b_, L)); e("v_cmp_eq_u32 s[48:49], 0, v%d" % b_)
    e("v_bfe_u32 v%d, v%d, 2, 2" % (a, L)); e("s_lshl_b32 s28, s%d, 3" % S_WAVE); e("v_add_u32 v%d, s28, v%d" % (a, a))
    e("v_add_u32 v%d, s%d, v%d" % (c_, S_HEAD, a)); e("v_and_b32 v%d, 31, v%d" % (c_, c_)); e("v_lshlrev_b32 v%d, 8, v%d" % (c_, c_))
    e("v_lshlrev_b32 v%d, 13, v%d" % (a, a)); e("v_add_u32 v%d, v%d, v%d" % (a, a, c_))
    e("v_lshrrev_b32 v%d, 4, v%d" % (b_, L)); e("v_lshlrev_b32 v%d, 6, v%d" % (b_, b_)); e("v_add_u32 v%d, v%d, v%d" % (a, a, b_))
    e("v_and_b32 v%d, 3, v%d" % (b_, L)); e("v_lshlrev_b32 v%d, 4, v%d" % (b_, b_)); e("v_add_u32 v%d, v%d, v%d" % (V_PS0, a, b_))
    e("v_and_b32 v%d, 1, v%d" % (c_, L)); e("v_cmp_eq_u32 vcc, 0, v%d" % c_)
    e("v_mov_b32 v%d, 0xEEEEEEEE" % a); e("v_mov_b32 v%d, 0x44444444" % b_); e("v_cndmask_b32 v%d, v%d, v%d, vcc" % (V_IDX, a, b_))
    cval = struct.unpack("<I", struct.pack("<f", (128 ** -0.5) * math.log2(math.e)))[0]
    e("s_mov_b32 s%d, 0x%08x" % (S_C, cval))
    e("v_and_b32 v%d, 1, v%d" % (a, L)); e("v_lshlrev_b32 v%d, 4, v%d" % (a, a)); e("v_mov_b32 v%d, 0x3f80" % b_); e("v_lshlrev_b32 v%d, v%d, v%d" % (b_, a, b_))
    e("v_bfe_u32 v%d, v%d, 1, 2" % (a, L))
    for i in range(4):
        e("v_cmp_eq_u32 vcc, %d, v%d" % (i, a)); e("s_nop 1"); e("v_cndmask_b32 v%d, 0, v%d, vcc" % (12 + i, b_))
    e("v_add_u32 v%d, %d, v%d" % (a, L_SEL, V_L16))
    pubaddr(60, c_)
    e("s_cmp_lg_u32 s%d, 0" % S_WAVE); e("s_cbranch_scc1 L_noinit")
    e("ds_write_b128 v%d, v[12:15]" % a); e("s_waitcnt lgkmcnt(0)")
    IPUB, IM0 = 60, 61
    e("s_load_dwordx2 s[30:31], s[0:1], %d" % KA["mem0"])
    e("v_lshrrev_b32 v%d, 4, v%d" % (a, L)); e("v_lshlrev_b32 v%d, 11, v%d" % (a, a))
    e("v_and_b32 v%d, 1, v%d" % (b_, L)); e("v_lshlrev_b32 v%d, 10, v%d" % (b_, b_)); e("v_add_u32 v%d, v%d, v%d" % (a, a, b_))
    e("v_bfe_u32 v%d, v%d, 1, 2" % (b_, L)); e("v_lshlrev_b32 v%d, 3, v%d" % (b_, b_)); e("v_add_u32 v%d, v%d, v%d" % (a, a, b_))
    e("v_bfe_u32 v%d, v%d, 3, 1" % (b_, L)); e("v_lshlrev_b32 v%d, 2, v%d" % (b_, b_)); e("v_add_u32 v%d, v%d, v%d" % (a, a, b_))
    e("s_lshl_b32 s29, s%d, 5" % S_HEAD); e("v_add_u32 v%d, s29, v%d" % (a, a))
    e("s_waitcnt lgkmcnt(0)")
    e("global_load_dword v%d, v%d, s[30:31]" % (IM0, a))
    for i in range(4): e("v_mov_b32 v%d, -1" % (12 + i))
    for b in range(2):
        for half in range(2):
            e("s_add_u32 s29, s%d, %d" % (S_H13, WS_PB + b * 0x40000 + half * 4096))
            for x in range(4):
                e("buffer_store_dwordx4 v[12:15], v%d, s[4:7], s29 offen offset:%d" % (V_L16, x * 1024))
    for b in (1, 2):
        e("s_add_u32 s29, s%d, %d" % (S_H8, WS_MB + b * 8192))
        e("buffer_store_dword v12, v%d, s[4:7], s29 offen" % IPUB)
    e("v_lshlrev_b32 v%d, 7, v%d" % (a, L)); e("v_mov_b32 v%d, 0" % b_)
    e("s_lshl_b32 s29, s%d, 2" % S_HEAD); e("s_add_u32 s29, s29, %d" % WS_FL)
    e("s_mov_b64 exec, 0x1ff")
    e("buffer_store_dword v%d, v%d, s[4:7], s29 offen sc0 sc1" % (b_, a))
    e("s_mov_b64 exec, s[26:27]")
    lab("L_noinit")
    def hook_mem0():
        l = A.newlab("L_hk")
        e("s_cmp_lg_u32 s%d, 0" % S_WAVE); e("s_cbranch_scc1 %s" % l)
        e("s_add_u32 s29, s%d, %d" % (S_H8, WS_MB))
        e("buffer_store_dword v%d, v%d, s[4:7], s29 offen" % (IM0, IPUB))
        e("s_mov_b64 exec, 1")
        e("v_mov_b32 v62, 24"); e("v_mov_b32 v63, 1"); e("global_atomic_add v62, v63, s[24:25] sc1")
        e("s_mov_b64 exec, s[26:27]")
        lab(l)
    def hook_arrive():
        l = A.newlab("L_hk")
        e("s_cmp_lg_u32 s%d, 0" % S_WAVE); e("s_cbranch_scc1 %s" % l)
        e("s_mov_b64 exec, 1")
        e("v_mov_b32 v62, %d" % bar_off(0)); e("v_mov_b32 v63, 1"); e("global_atomic_add v62, v63, s[24:25] sc1")
        e("s_mov_b64 exec, s[26:27]")
        lab(l)
    load_setup(WVSTRIDE)
    wvu = units_qkv(2, "lds", 0); wvu[0]["dest"] = "flat"; wvu[0]["base"] = V_WV0
    rt(2)
    if OPT.get("regload", 0):
        for t in range(1, 8): wvu[t]["slot"] = t - 1
        wo_units = [dict(kind="wo", m=3, t=t, b=b, dest="v", base=V_WO) for t in range(2) for b in range(2)]
        units = wvu[1:] + [wvu[0]] + units_qkv(0, "a", 0) + units_qkv(1, "a", 128) + wo_units
        load_units_reg(units, {0: hook_mem0, OPT.get('harr', 16): hook_arrive}, maxfly=OPT.get('maxfly', 40))
    else:
        units = units_qkv(0, "a", 0) + units_qkv(1, "a", 128) + units_wo("v", V_WO) + wvu
        load_units(units, 7, {0: hook_mem0, 7: hook_arrive})
    rt(3)
    wvslot = {u["t"]: u["slot"] for u in wvu[1:]}
    e("s_cmp_lg_u32 s%d, 0" % S_WAVE); e("s_cbranch_scc1 L_tb_done")
    e("s_mov_b64 exec, 1")
    e("v_mov_b32 v%d, %d" % (a, bar_off(0))); e("s_mov_b32 s29, 0")
    lab("L_tb")
    e("global_load_dword v%d, v%d, s[24:25] sc0 sc1" % (b_, a)); e("s_waitcnt vmcnt(0)"); e("v_readfirstlane_b32 s30, v%d" % b_)
    e("s_add_u32 s29, s29, 1"); e("s_cmp_gt_u32 s29, 0x40000"); e("s_cbranch_scc1 L_tb2")
    e("s_cmp_lt_u32 s30, 32"); e("s_cbranch_scc1 L_tb")
    lab("L_tb2")
    e("s_mov_b64 exec, s[26:27]")
    lab("L_tb_done")
    e("s_mov_b32 s%d, 0" % S_STEP)
    e("s_mov_b32 s%d, %d" % (S_MCUR, WS_MB)); e("s_mov_b32 s%d, %d" % (S_MPREV, WS_MB + 2 * 8192)); e("s_mov_b32 s%d, %d" % (S_PCUR, WS_PB))
    e("s_add_u32 s%d, s%d, %d" % (S_KXO, S_H13, WS_KX)); e("s_add_u32 s%d, s%d, %d" % (S_VXO, S_H13, WS_VX))
    e("s_mov_b32 s%d, 0" % S_SPIN); e("s_mov_b32 s%d, 0" % S_PAR); e("s_mov_b32 s37, %d" % (WS_HIST + 0x90000)); e("s_mov_b32 s38, %d" % (WS_HIST + 0x91000))
    def need_seg(target_sgpr_or_none):
        if OPT["stage"] < 2: return
        lok = A.newlab("L_rdy"); lp = A.newlab("L_rp")
        if target_sgpr_or_none is None: e("s_mov_b32 s30, %d" % (1 if OPT.get("l2warm", 0) else 0))
        else:
            e("s_add_u32 s30, s%d, %d" % (target_sgpr_or_none, 2 if OPT.get("l2warm", 0) else 1)); e("s_min_u32 s30, s30, 63")
        e("s_cmp_lt_u32 s30, s%d" % S_RDY); e("s_cbranch_scc1 %s" % lok)
        e("s_mov_b32 s33, 0")
        lab(lp)
        e("v_lshlrev_b32 v%d, 3, v%d" % (VT, V_L16))
        e("s_lshl_b32 s29, s%d, 2" % S_HEAD); e("s_add_u32 s29, s29, %d" % FL_KV)
        e("s_mov_b64 exec, 0xff")
        e("buffer_load_dword v%d, v%d, s[4:7], s29 offen sc0 sc1" % (VT + 1, VT))
        e("s_mov_b64 exec, s[26:27]")
        e("s_waitcnt vmcnt(0)")
        e("s_mov_b32 s31, 64")
        for t in range(1, 8):
            e("v_readlane_b32 s32, v%d, %d" % (VT + 1, t)); e("s_nop 0"); e("s_mul_i32 s32, s32, 7"); e("s_add_u32 s32, s32, %d" % (t - 1)); e("s_min_u32 s31, s31, s32")
        e("s_mov_b32 s%d, s31" % S_RDY)
        e("s_add_u32 s33, s33, 1"); e("s_cmp_gt_u32 s33, 0x40000"); e("s_cbranch_scc1 %s" % lok)
        e("s_cmp_lt_u32 s30, s%d" % S_RDY); e("s_cbranch_scc0 %s" % lp)
        lab(lok)
    def dma8(so, lb, par_sgpr):
        for i in range(8):
            if i % 4 == 0:
                e("s_add_u32 s28, s%d, %d" % (so, i * 1024)); e("s_add_u32 s29, s%d, %d" % (par_sgpr, lb + i * 1024)); e("s_mov_b32 m0, s29"); e("s_nop 0")
            e("buffer_load_dwordx4 v%d, s[4:7], s28 offen offset:%d sc1 lds" % (V_L16, (i % 4) * 1024))
    e("s_mov_b32 s%d, 0" % S_RDY)
    need_seg(None)
    l0 = A.newlab("L_pf"); l1 = A.newlab("L_pf")
    e("s_cmp_eq_u32 s%d, 1" % S_WAVE); e("s_cbranch_scc0 %s" % l0); dma8(S_KXO, L_KX, S_PAR); lab(l0)
    e("s_cmp_eq_u32 s%d, 2" % S_WAVE); e("s_cbranch_scc0 %s" % l1); dma8(S_VXO, L_VX, S_PAR); lab(l1)
    e("s_waitcnt vmcnt(0)"); e("s_barrier")
    rt(4)
    if OPT["stamps"]:
        for i in range(16): e("s_mov_b32 s%d, 0" % (S_ST + i))
        e("s_memtime s[82:83]"); e("s_waitcnt lgkmcnt(0)"); e("s_mov_b32 s80, s82")
    if not OPT["final"]:
        e("s_memtime s[84:85]"); e("s_memrealtime s[88:89]"); e("s_waitcnt lgkmcnt(0)")

    T0, T1, T2, T3, T4, T5 = range(VT, VT + 6)
    lab("L_step")
    A.lds = []; A.vm = []
    QA, KA_ = V_QK, V_QK + 8
    def wvreg(t): return V_WV0 if t == 0 else (V_WVR if t % 2 == 1 else V_KX)
    def wv_issue(t):
        r = wvreg(t)
        for u in range(2):
            for b in range(2):
                A.ds("ds_read_b128 %s, v%d offset:%d" % (vr(r + 8 * u + 4 * b, 4), V_WVA, wvslot[t] * 4096 + u * 2048 + b * 1024), ("wv", t, u))
    ts(20)
    if OPT.get("steptrace", 0):
        l = A.newlab("L_stt")
        e("s_cmp_lg_u32 s%d, 2" % S_WAVE); e("s_cbranch_scc1 %s" % l)
        e("s_memrealtime s[90:91]"); e("s_waitcnt lgkmcnt(0)")
        e("s_lshl_b32 s28, s%d, 6" % S_HEAD); e("s_add_u32 s28, s28, s%d" % S_STEP); e("s_lshl_b32 s28, s28, 2"); e("s_add_u32 s28, s28, %d" % (WS_TRACE + 0x10000))
        e("s_mov_b64 exec, 1"); e("v_mov_b32 v10, s90"); e("v_mov_b32 v11, 0"); e("buffer_store_dword v10, v11, s[4:7], s28 offen"); e("s_mov_b64 exec, s[26:27]")
        lab(l)
    if OPT.get("red_sets", 1) == 2: e("s_waitcnt vmcnt(%d)" % (2 if OPT["hist"] else 1))
    for i in range(4): e("v_mov_b32 v%d, 0" % (V_S + i))
    e("s_lshl_b32 s28, s%d, 11" % S_WAVE); e("s_add_u32 s%d, s%d, s28" % (S_MQ, S_MCUR))
    e("v_add_u32 v%d, s28, v%d" % (T2, V_L16)); e("v_add_u32 v%d, %d, v%d" % (T2, L_MEM, T2))
    e("v_mfma_f32_32x32x16_bf16 %s, %s, %s, 0" % (vr(V_QK, 16), vr(V_S, 4), vr(V_S, 4)))
    for a2 in range(1, 4): e("v_xor_b32 v%d, %d, v%d" % (T2 + a2, a2 << 11, T2))
    def rd_wv(t):
        r = wvreg(t)
        return [lambda u=u, b=b: A.ds("ds_read_b128 %s, v%d offset:%d" % (vr(r + 8 * u + 4 * b, 4), V_WVA, wvslot[t] * 4096 + u * 2048 + b * 1024), ("wv", t, u)) for u in range(2) for b in range(2)]
    if OPT["stage"] >= 2:
        lsk = A.newlab("L_sk63")
        e("s_cmp_eq_u32 s%d, 63" % S_STEP); e("s_cbranch_scc1 %s" % lsk)
        need_seg(S_STEP)
        lab(lsk)
    def smf(acc, areg, breg):
        e("v_smfmac_f32_16x16x64_bf16 %s, %s, %s, v%d" % (vr(acc, 4), vr(areg, 4), breg, V_IDX))
    def areg_of(tau, own): return (own + 4 * tau) if tau < 2 else (V_MEM + 4 * tau)
    def qk_l(tau, own=V_MEM):
        areg = areg_of(tau, own)
        return [lambda acc=acc, base=base, u=u: smf(acc, areg, ar(base + (u * 8 + tau) * 8, 8)) for (acc, base, u) in ((QA, 0, 0), (KA_, 128, 0), (QA + 4, 0, 1), (KA_ + 4, 128, 1))]
    def vv_l(tau, own=V_MEM):
        areg = areg_of(tau, own)
        return [lambda u=u: smf(V_VA + 4 * u, areg, vr(wvreg(tau) + 8 * u, 8)) for u in range(2)]
    def poll_issue(base):
        for tau in range(2):
            e("buffer_load_dwordx4 %s, v%d, s[4:7], s%d offen offset:%d sc1" % (vr(base + 4 * tau, 4), V_L16, S_MQ, tau * 1024))
    def poll_check(M):
        e("v_max3_u32 v%d, v%d, v%d, v%d" % (T0, M, M + 1, M + 2)); e("v_max3_u32 v%d, v%d, v%d, v%d" % (T1, M + 3, M + 4, M + 5))
        e("v_max3_u32 v%d, v%d, v%d, v%d" % (T0, T0, M + 6, M + 7)); e("v_max_u32 v%d, v%d, v%d" % (T0, T0, T1))
        e("v_cmp_eq_u32 vcc, -1, v%d" % T0)
    SA, SB = V_MEM, V_MEM + 24
    for i in range(OPT["dly_mem"]): e("s_nop 7")
    poll_issue(SA)
    ts(21)
    e("v_mfma_f32_16x16x32_bf16 %s, %s, %s, 0" % (vr(V_VA, 4), vr(V_S, 4), vr(V_S, 4)))
    e("v_mfma_f32_16x16x32_bf16 %s, %s, %s, 0" % (vr(V_VA + 4, 4), vr(V_S, 4), vr(V_S, 4)))
    for f in rd_wv(1) + rd_wv(2): f()
    e("s_add_u32 s%d, s%d, 0x40000" % (S_KXO, S_KXO)); e("s_add_u32 s%d, s%d, 0x40000" % (S_VXO, S_VXO))
    e("s_cmp_lt_u32 s%d, 2" % S_WAVE); e("s_cselect_b32 s%d, s%d, s%d" % (S_DMA, S_KXO, S_VXO)); e("s_lshr_b32 s29, s%d, 1" % S_WAVE); e("s_lshl_b32 s29, s29, 13"); e("s_add_u32 s29, s29, %d" % L_KX)
    e("s_lshl_b32 s30, s%d, 12" % S_WAVE); e("s_and_b32 s31, s30, 4096"); e("s_add_u32 s%d, s%d, s31" % (S_DMA, S_DMA))
    e("s_xor_b32 s31, s%d, 8192" % S_PAR); e("s_add_u32 s29, s29, s31"); e("s_add_u32 s29, s29, s30")
    e("s_mov_b32 m0, s29")
    e("s_add_u32 s32, s%d, %d" % (S_PAR, L_KX)); e("s_lshl_b32 s28, s%d, 11" % S_WAVE); e("s_add_u32 s33, s28, s%d" % S_PAR); e("s_add_u32 s33, s33, %d" % L_VX)
    if OPT["stage"] >= 3:
        e("s_max_u32 s34, s%d, 1" % S_STEP); e("s_sub_u32 s34, s34, 1"); e("s_lshl_b32 s101, s%d, 2" % S_HEAD); e("s_add_u32 s101, s101, %d" % FL_KM)
        e("s_mov_b32 s35, s38")
        e("s_lshl_b32 s28, s%d, 16" % S_STEP); e("s_lshl_b32 s29, s%d, 11" % S_HEAD); e("s_add_u32 s38, s28, s29"); e("s_lshl_b32 s29, s%d, 9" % S_WAVE); e("s_add_u32 s38, s38, s29"); e("s_add_u32 s38, s38, %d" % WS_KM)
        e("s_mov_b32 s36, s37"); e("s_add_u32 s37, s38, %d" % (WS_VM - WS_KM))
    for i in range(OPT.get("gap_mem", 0)): e("s_nop 7")
    mem2 = OPT.get("mem_sets", 1) == 2
    spec = (not mem2) and OPT.get("spec", 1)
    if mem2: poll_issue(SB)
    lab("L_pmA")
    e("s_add_u32 s%d, s%d, 1" % (S_SPIN, S_SPIN))
    e("s_waitcnt vmcnt(%d)" % (2 if mem2 else 0))
    ts(22)
    if spec:
        M = SA
        q0 = qk_l(0, SA); q1 = qk_l(1, SA)
        q0[0](); e("v_max3_u32 v%d, v%d, v%d, v%d" % (T0, M, M + 1, M + 2)); e("v_max3_u32 v%d, v%d, v%d, v%d" % (T1, M + 3, M + 4, M + 5))
        q0[1](); e("ds_write_b128 v%d, %s" % (T2, vr(M, 4)))
        q0[2](); e("v_max3_u32 v%d, v%d, v%d, v%d" % (T0, T0, M + 6, M + 7)); e("v_max_u32 v%d, v%d, v%d" % (T0, T0, T1))
        q0[3](); e("ds_write_b128 v%d, %s offset:1024" % (T2, vr(M + 4, 4)))
        q1[0](); e("v_cmp_eq_u32 vcc, -1, v%d" % T0)
        q1[1](); e("v_add_u32 v%d, s32, v%d" % (T1, V_L16))
        e("s_cmp_gt_u32 s%d, 0x200000" % S_SPIN); e("s_cbranch_scc1 L_specok")
        if OPT["nowait"]: e("s_branch L_specok")
        e("s_cbranch_vccz L_specok")
        poll_issue(SA) if False else None
        e("s_waitcnt lgkmcnt(0)")
        poll_issue(SA)
        A.nop(6)
        e("v_mfma_f32_32x32x16_bf16 %s, %s, %s, 0" % (vr(V_QK, 16), vr(V_S, 4), vr(V_S, 4)))
        e("s_branch L_pmA")
        lab("L_specok")
        stamp(0)
        q1[2](); q1[3]()
    else:
        poll_check(SA)
        e("s_cmp_gt_u32 s%d, 0x200000" % S_SPIN); e("s_cbranch_scc1 L_goA")
        if OPT["nowait"]: e("s_branch L_goA")
        e("s_cbranch_vccz L_goA")
        poll_issue(SA)
        if mem2:
            e("s_waitcnt vmcnt(2)")
            poll_check(SB)
            e("s_nop 1")
            e("s_cbranch_vccz L_goB")
            poll_issue(SB)
        e("s_branch L_pmA")
    def rd_m(tau): return lambda: A.ds("ds_read_b128 %s, v%d offset:%d" % (vr(V_MEM + 4 * tau, 4), T2 + (tau >> 1), (tau & 1) * 1024), ("m", tau))
    def rd_kx(f):
        kk, kt = f >> 1, f & 1
        return lambda: A.ds("ds_read_b128 %s, v%d offset:%d" % (vr(V_MEM + 4 * f, 4), T1, (kt * 4 + kk) * 1024), ("kx", kk))
    def rd_vx(u): return lambda: A.ds("ds_read_b128 %s, v%d offset:%d" % (vr(V_KX + 4 * u, 4), T0, u * 1024), ("vx", u))
    def run(mf, fl=()):
        fl = list(fl)
        for f in mf:
            f()
            if fl: fl.pop(0)()
        for f in fl: f()
    def vv(tau, fl=()):
        vl = vv_l(tau); fl = list(fl)
        A.wait_lds(("wv", tau, 0)); vl[0]()
        if fl: fl.pop(0)()
        A.wait_lds(("wv", tau, 1)); vl[1]()
        for f in fl: f()
    lds_state = list(A.lds)
    for variant, own in ((("B", SB), ("A", SA)) if mem2 else (("A", SA),)):
        A.lds = list(lds_state)
        if not spec:
            lab("L_go" + variant)
            if variant == "A": stamp(0)
            else: ts(0)
            q0 = qk_l(0, own); q1 = qk_l(1, own)
            q0[0](); e("ds_write_b128 v%d, %s" % (T2, vr(own, 4)))
            q0[1](); e("ds_write_b128 v%d, %s offset:1024" % (T2, vr(own + 4, 4)))
            q0[2](); e("v_add_u32 v%d, s32, v%d" % (T1, V_L16))
            q0[3]()
            if mem2: e("s_waitcnt vmcnt(0)")
            for i2, f in enumerate(q1):
                f()
        if variant == "A": stamp(8, 2)
        A.wait_lds_all(); e("s_barrier")
        if variant == "A": stamp(9, 2)
        rd_m(2)(); rd_m(3)()
        run(vv_l(0, own), [rd_m(4), rd_m(5)])
        run(vv_l(1, own), [rd_m(6), rd_m(7)])
        if variant == "B": e("s_branch L_joinP0")
    lab("L_joinP0")
    e("v_add_u32 v%d, s33, v%d" % (T0, V_L16))
    KH = V_S + 4
    def kmrd(u):
        def f():
            if OPT["stage"] >= 3: A.ds("ds_read_b32 v%d, v%d offset:%d" % (KH + u, V_XWR, u * 512), ("kh", u))
        return f
    def kmst(u):
        def f():
            if OPT["stage"] >= 3 and not OPT.get("nokm", 0):
                A.wait_lds(("kh", u))
                e("buffer_store_dword v%d, v%d, s[4:7], s35 offen offset:%d sc0 sc1" % (KH + u, T2, u * 256))
        return f
    def vmst(u):
        def f():
            if OPT["stage"] >= 3 and not OPT.get("nokm", 0):
                if u == 0: e("v_lshrrev_b32 v%d, 2, v%d" % (T2, V_L16))
                e("buffer_store_dword v%d, v%d, s[4:7], s36 offen offset:%d sc0 sc1" % (V_S + 9 + u, T2, u * 256))
        return f
    def dma(i): return lambda: (None if OPT.get("nodma", 0) else e("buffer_load_dwordx4 v%d, s[4:7], s%d offen offset:%d sc1 lds" % (V_L16, S_DMA, i * 1024)))
    dpos = OPT.get("dmapos", 1)
    if dpos == 0:
        for i in range(4): dma(i)()
    A.wait_lds(("m", 2)); run(qk_l(2), rd_wv(3))
    A.wait_lds(("m", 3)); run(qk_l(3), [rd_kx(0), rd_kx(1)] + ([dma(0), dma(1)] if dpos == 1 else []))
    vv(2, ([dma(2), dma(3)] if dpos == 1 else []) + [kmrd(0), kmrd(1), vmst(0), vmst(1)])
    ts(33)
    def warm():
        if OPT.get("l2warm", 0) and not OPT.get("nodma", 0):
            e("v_lshlrev_b32 v%d, 2, v%d" % (T5, V_L16)); e("s_mov_b32 m0, %d" % L_DUM); e("s_add_u32 s28, s%d, 0x40000" % S_DMA)
            e("buffer_load_dword v%d, s[4:7], s28 offen lds" % T5)
    warm()
    if OPT["stage"] >= 3:
        lfk = A.newlab("L_fkm")
        e("s_cmp_eq_u32 s%d, 1" % S_WAVE); e("s_cbranch_scc0 %s" % lfk)
        e("v_mov_b32 v%d, s34" % T4); e("s_mov_b64 exec, 1"); e("buffer_store_dword v%d, v%d, s[4:7], s101 offen sc0 sc1" % (T4, V_L16)); e("s_mov_b64 exec, s[26:27]")
        lab(lfk)
    A.wait_lds(("m", 4)); run(qk_l(4), rd_wv(4))
    ts(34)
    A.wait_lds(("m", 5)); run(qk_l(5), [rd_kx(2), kmst(0), kmst(1)])
    vv(3)
    ts(35)
    A.wait_lds(("m", 6)); run(qk_l(6), rd_wv(5))
    vv(4, [rd_kx(3)])
    ts(36)
    A.wait_lds(("m", 7)); run(qk_l(7), rd_wv(6))
    stamp(1)
    vv(5)
    ts(70)
    e("v_lshrrev_b32 v%d, 1, v%d" % (T3, V_L16)); e("v_add_u32 v%d, %d, v%d" % (T3, L_X, T3))
    for u in range(2):
        q, k_ = QA + 4 * u, KA_ + 4 * u
        e("v_add_f32 v%d, v%d, v%d" % (k_, k_, k_ + 1)); e("v_add_f32 v%d, v%d, v%d" % (k_ + 2, k_ + 2, k_ + 3))
        e("v_add_f32 v%d, v%d, v%d" % (q, q, q + 1)); e("v_add_f32 v%d, v%d, v%d" % (q + 2, q + 2, q + 3))
        e("v_cvt_pk_bf16_f32 v%d, v%d, v%d" % (k_, k_, k_ + 2)); e("v_cvt_pk_bf16_f32 v%d, v%d, v%d" % (k_ + 1, q, q + 2))
        A.ds("ds_write_b64 v%d, %s offset:%d" % (V_XWR, vr(k_, 2), u * 512), "xw")
    ts(71)
    for f in rd_wv(7): f()
    ts(72)
    vv(6)
    ts(73)
    if OPT["stage"] >= 3:
        pass
    va = V_VA
    ZS = V_KX + 12
    stamp(10, 2)
    A.wait_lds("xw"); e("s_barrier")
    stamp(11, 2)
    for kk in range(4):
        for b in range(2):
            A.ds("ds_read_b64_tr_b16 %s, v%d offset:%d" % (vr(V_QK + 4 * kk + 2 * b, 2), T3, kk * 1024 + b * 512), ("x", kk))
    stamp(2)
    def vpk(u):
        x = va + 4 * u
        return [lambda: e("v_add_f32 v%d, v%d, v%d" % (x, x, x + 1)), lambda: e("v_add_f32 v%d, v%d, v%d" % (x + 2, x + 2, x + 3)),
                lambda: e("v_cvt_pk_bf16_f32 v%d, v%d, v%d" % (x, x, x + 2)), lambda: e("v_mov_b32 v%d, 0" % (x + 1))]
    zs = [lambda i=i: e("v_mov_b32 v%d, 0" % (ZS + i)) for i in range(4)]
    sfill = {0: [[rd_kx(4)], [rd_kx(5)], [rd_kx(6)]], 1: [[lambda: vv_l(7)[0]()], [lambda: vv_l(7)[1]()], [rd_kx(7)]],
             2: [[rd_vx(0), zs[0]], [rd_vx(1), zs[1]], [zs[2], zs[3]]], 3: [vpk(0)[:2], vpk(0)[2:], vpk(1)[:2]]}
    for kk in range(4):
        A.wait_lds(("x", kk)); A.wait_lds(("kx", kk))
        if kk == 1: A.wait_lds(("wv", 7, 1))
        X = vr(V_QK + 4 * kk, 4)
        cs = lambda r: "0" if kk == 0 else vr(r, 4)
        for idx, (dst, a_op) in enumerate(((V_S, vr(V_MEM + kk * 8, 4)), (V_S + 4, vr(V_MEM + kk * 8 + 4, 4)), (V_S + 8, X))):
            e("v_mfma_f32_16x16x32_bf16 %s, %s, %s, %s" % (vr(dst, 4), a_op, X, cs(dst)))
            for f in sfill[kk][idx]: f()
    for f in vpk(1)[2:]: f()
    e("v_add_u32 v%d, %d, v%d" % (T5, L_O, V_L16))
    A.nop(1)
    stamp(3)
    S = V_S
    e("v_max3_f32 v%d, v%d, v%d, v%d" % (T0, S, S + 1, S + 2)); e("v_max3_f32 v%d, v%d, v%d, v%d" % (T1, S + 4, S + 5, S + 6))
    e("v_max3_f32 v%d, v%d, v%d, v%d" % (T0, T0, S + 3, S + 7)); e("v_max3_f32 v%d, v%d, v%d, v%d" % (T1, T1, S + 8, S + 9))
    e("v_max_f32 v%d, v%d, v%d" % (T0, T0, T1))
    e("v_mov_b32 v%d, v%d" % (T1, T0))
    A.nop(2)
    e("v_permlane16_swap_b32 v%d, v%d" % (T0, T1)); e("v_max_f32 v%d, v%d, v%d" % (T0, T0, T1))
    e("v_mov_b32 v%d, v%d" % (T1, T0))
    e("v_mov_b32 v%d, 0" % (S + 11)); e("s_nop 0")
    e("v_permlane32_swap_b32 v%d, v%d" % (T0, T1)); e("v_max_f32 v%d, v%d, v%d" % (T0, T0, T1))
    e("v_mul_f32 v%d, s%d, v%d" % (T0, S_C, T0))
    for i in range(10): e("v_fma_f32 v%d, v%d, s%d, -v%d" % (S + i, S + i, S_C, T0))
    for i in range(8): e("v_exp_f32 v%d, v%d" % (S + i, S + i))
    e("v_exp_f32 v%d, v%d" % (S + 8, S + 8))
    e("v_add_f32 v%d, v%d, v%d" % (T2, S, S + 1)); e("v_add_f32 v%d, v%d, v%d" % (T3, S + 2, S + 3))
    e("v_exp_f32 v%d, v%d" % (S + 9, S + 9))
    e("v_cvt_pk_bf16_f32 v%d, v%d, v%d" % (S, S, S + 1)); e("v_cvt_pk_bf16_f32 v%d, v%d, v%d" % (S + 1, S + 2, S + 3))
    e("v_cvt_pk_bf16_f32 v%d, v%d, v%d" % (S + 2, S + 4, S + 5)); e("v_cvt_pk_bf16_f32 v%d, v%d, v%d" % (S + 3, S + 6, S + 7))
    e("v_add_f32 v%d, v%d, v%d" % (T2, T2, S + 4)); e("v_add_f32 v%d, v%d, v%d" % (T3, T3, S + 5))
    stamp(12, 2)
    O0, O1 = V_QK + 4, V_QK + 8
    A.wait_lds(("vx", 1))
    e("v_mfma_f32_16x16x32_bf16 %s, %s, %s, 0" % (vr(O0, 4), vr(V_KX, 4), vr(S, 4)))
    e("v_cvt_pk_bf16_f32 v%d, v%d, v%d" % (S + 10, S + 8, S + 9))
    e("v_add_f32 v%d, v%d, v%d" % (T2, T2, S + 6))
    e("v_mfma_f32_16x16x32_bf16 %s, %s, %s, 0" % (vr(O1, 4), vr(V_KX + 4, 4), vr(S, 4)))
    e("v_add_f32 v%d, v%d, v%d" % (T3, T3, S + 7)); e("v_add_f32 v%d, v%d, v%d" % (T2, T2, S + 8))
    e("v_mfma_f32_16x16x16_bf16 %s, %s, %s, %s" % (vr(O0, 4), vr(va, 2), vr(S + 10, 2), vr(O0, 4)))
    e("v_add_f32 v%d, v%d, v%d" % (T3, T3, S + 9)); e("v_add_f32 v%d, v%d, v%d" % (T2, T2, T3))
    e("v_mfma_f32_16x16x16_bf16 %s, %s, %s, %s" % (vr(O1, 4), vr(va + 4, 2), vr(S + 10, 2), vr(O1, 4)))
    ts(63)
    e("v_mov_b32 v%d, v%d" % (T3, T2)); A.nop(2); e("v_permlane16_swap_b32 v%d, v%d" % (T2, T3)); e("v_add_f32 v%d, v%d, v%d" % (T2, T2, T3))
    e("v_mov_b32 v%d, v%d" % (T3, T2)); A.nop(2); e("v_permlane32_swap_b32 v%d, v%d" % (T2, T3)); e("v_add_f32 v%d, v%d, v%d" % (T2, T2, T3))
    e("v_rcp_f32 v%d, v%d" % (T2, T2))
    e("s_nop 0")
    ts(64)
    W0 = V_QK
    for r in range(2): e("v_mul_f32 v%d, v%d, v%d" % (O0 + r, O0 + r, T2)); e("v_mul_f32 v%d, v%d, v%d" % (O1 + r, O1 + r, T2))
    e("v_cvt_pk_bf16_f32 v%d, v%d, v%d" % (W0, O0, O0 + 1)); e("v_cvt_pk_bf16_f32 v%d, v%d, v%d" % (W0 + 1, O1, O1 + 1))
    A.ds("ds_write_b64 v%d, %s" % (V_OWR, vr(W0, 2)), "ow")
    for r in range(2, 4): e("v_mul_f32 v%d, v%d, v%d" % (O0 + r, O0 + r, T2)); e("v_mul_f32 v%d, v%d, v%d" % (O1 + r, O1 + r, T2))
    e("v_cvt_pk_bf16_f32 v%d, v%d, v%d" % (W0 + 2, O0 + 2, O0 + 3)); e("v_cvt_pk_bf16_f32 v%d, v%d, v%d" % (W0 + 3, O1 + 2, O1 + 3))
    A.ds("ds_write_b64 v%d, %s offset:16" % (V_OWR, vr(W0 + 2, 2)), "ow")
    if OPT["stage"] >= 3:
        e("v_mov_b32 v%d, v%d" % (V_S + 9, va)); e("v_mov_b32 v%d, v%d" % (V_S + 10, va + 4))
    ts(65)
    e("s_cmp_eq_u32 s%d, 63" % S_STEP); e("s_cbranch_scc1 L_chain_done")
    e("v_mfma_f32_32x32x16_bf16 %s, %s, %s, 0" % (vr(V_MEM, 16), vr(ZS, 4), vr(ZS, 4)))
    e("v_mfma_f32_32x32x16_bf16 %s, %s, %s, 0" % (vr(V_MEM + 16, 16), vr(ZS, 4), vr(ZS, 4)))
    e("v_add_u32 v%d, %d, v%d" % (T2, L_SEL, V_L16))
    A.ds("ds_read_b128 %s, v%d" % (vr(V_KX + 8, 4), T2), "sel")
    l3 = A.newlab("L_w3")
    e("s_cmp_eq_u32 s%d, 3" % S_WAVE); e("s_cbranch_scc0 %s" % l3); e("s_waitcnt vmcnt(%d)" % (8 if OPT["stage"] >= 3 else 4)); lab(l3)
    stamp(13, 2)
    A.wait_lds_all(); e("s_barrier")
    for t in range(2):
        A.ds("ds_read_b128 %s, v%d offset:%d" % (vr(V_KX + 4 * t, 4), T5, t * 1024), ("o", t))
    stamp(4)
    def wo(nt, t):
        e("v_smfmac_f32_16x16x64_bf16 %s, %s, %s, v%d" % (vr(V_MEM + 4 * nt, 4), vr(V_KX + 4 * t, 4), vr(V_WO + (nt * 2 + t) * 8, 8), V_IDX))
    def fin_l(nt, dst):
        T = V_MEM + 4 * nt
        return [lambda: e("v_add_f32 v%d, v%d, v%d" % (T, T, T + 1)), lambda: e("v_add_f32 v%d, v%d, v%d" % (T + 2, T + 2, T + 3)),
                lambda: e("v_cvt_pk_bf16_f32 v%d, v%d, v%d" % (dst, T, T + 2))] + ([lambda: e("v_bfi_b32 v%d, 1, s%d, v%d" % (dst, S_TAG, dst))] if (nt % 4 == 0 or OPT.get("fulltag", 0)) else [])
    A.wait_lds(("o", 0)); A.wait_lds(("o", 1))
    pub = [lambda: e("s_add_u32 s30, s%d, %d" % (S_PCUR, 4 * 8192)), lambda: e("s_bfe_u32 s%d, s%d, 0x10001" % (S_TAG, S_STEP)),
           lambda: e("v_lshrrev_b32 v%d, 2, v%d" % (T4, V_L16)), lambda: e("v_and_b32 v%d, 0xc0, v%d" % (T4, T4)),
           lambda: e("v_lshlrev_b32 v%d, 1, v%d" % (T3, V_L16)), lambda: e("v_and_b32 v%d, 32, v%d" % (T3, T3)), lambda: e("v_add_u32 v%d, v%d, v%d" % (T4, T4, T3)),
           lambda: e("v_lshrrev_b32 v%d, 3, v%d" % (T3, V_L16)), lambda: e("v_and_b32 v%d, 28, v%d" % (T3, T3)), lambda: e("v_add_u32 v%d, v%d, v%d" % (T4, T4, T3))]
    late = [lambda: e("s_add_u32 s%d, s%d, 8192" % (S_MNXT, S_MCUR)), lambda: e("s_cmp_eq_u32 s%d, %d" % (S_MNXT, WS_MB + 3 * 8192)), lambda: e("s_cselect_b32 s%d, %d, s%d" % (S_MNXT, WS_MB, S_MNXT)),
            lambda: e("s_add_u32 s%d, s%d, s%d" % (S_RED, S_PCUR, S_H13)), lambda: e("s_add_u32 s33, s%d, 4096" % S_RED), lambda: e("s_add_u32 s31, s%d, s%d" % (S_MNXT, S_H8))]
    q = pub[:]
    ts(60)
    for nt in range(8):
        if nt == 4: ts(61)
        for t in range(2):
            wo(nt, t)
            for _ in range(2):
                if q: q.pop(0)()
        if nt >= 2:
            q += fin_l(nt - 2, V_S + nt - 2)
            if nt - 2 == 3: q.append(lambda: e("buffer_store_dwordx4 %s, v%d, s[4:7], s%d offen" % (vr(V_S, 4), V_PS0, S_PCUR)))
    ts(62)
    while q: q.pop(0)()
    for f in late[:3]: f()
    for nt in (6, 7):
        for f in fin_l(nt, V_S + nt): f()
    e("buffer_store_dwordx4 %s, v%d, s[4:7], s30 offen" % (vr(V_S + 4, 4), V_PS0))
    for f in late[3:]: f()
    stamp(5)
    e("s_cmp_eq_u32 s%d, 0" % S_WAVE); e("s_cbranch_scc1 L_reduce")
    e("s_cmp_eq_u32 s%d, 3" % S_WAVE); e("s_cbranch_scc0 L_red_done")
    e("v_mov_b32 v%d, -1" % (V_S + 8))
    e("s_add_u32 s29, s%d, s%d" % (S_MPREV, S_H8))
    e("buffer_store_dword v%d, v%d, s[4:7], s29 offen" % (V_S + 8, T4))
    e("s_branch L_red_done")
    lab("L_reduce")
    QA_ = [V_MEM + 4 * x for x in range(8)]
    QB_ = [V_WVR, V_WVR + 4, V_WVR + 8, V_WVR + 12, V_VA, V_VA + 4, V_QK + 4, V_QK + 8]
    DA, DB = V_QK, V_QK + 12
    def red_issue(Q):
        for x in range(8):
            e("buffer_load_dwordx4 %s, v%d, s[4:7], s%d offen offset:%d sc1" % (vr(Q[x], 4), V_L16, S_RED if x < 4 else 33, (x & 3) * 1024))
    def red_proc(Q, D, tag, W, stampit=False):
        op = "0x80" if tag else "0xfe"
        for x in range(8):
            e("s_waitcnt vmcnt(%d)" % (W + 7 - x))
            if stampit and x in (0, 7): ts(41 + x)
            e("v_mfma_f32_16x16x32_bf16 %s, %s, %s, %s" % (vr(D, 4), vr(Q[x], 4), vr(V_KX + 8, 4), "0" if x == 0 else vr(D, 4)))
            a_ = Q[x]
            if OPT.get("fulltag", 0):
                if x == 0:
                    e("v_bitop3_b32 v%d, v%d, v%d, v%d bitop3:%s" % (T0, a_, a_ + 1, a_ + 2, op)); e("v_bitop3_b32 v%d, v%d, v%d, v%d bitop3:%s" % (T0, T0, a_ + 3, a_ + 3, op))
                else:
                    e("v_bitop3_b32 v%d, v%d, v%d, v%d bitop3:%s" % (T0, T0, a_, a_ + 1, op)); e("v_bitop3_b32 v%d, v%d, v%d, v%d bitop3:%s" % (T0, T0, a_ + 2, a_ + 3, op))
            else:
                if x == 1: e("v_bitop3_b32 v%d, v%d, v%d, v%d bitop3:%s" % (T0, Q[0], Q[1], Q[1], op))
                elif x in (3, 5, 7): e("v_bitop3_b32 v%d, v%d, v%d, v%d bitop3:%s" % (T0, T0, Q[x - 1], Q[x], op))
        e("v_and_b32 v%d, 1, v%d" % (T0, T0))
        e("v_cmp_ne_u32 vcc, %d, v%d" % (tag, T0))
    two = OPT.get("red_sets", 1) == 2
    for i in range(OPT["dly_red"]): e("s_nop 7")
    red_issue(QA_)
    if two:
        for i in range(OPT.get("gap_red", 2)): e("s_nop 7")
        red_issue(QB_)
    ts(40)
    e("s_waitcnt lgkmcnt(0)")
    e("s_cmp_lg_u32 s%d, 0" % S_TAG); e("s_cbranch_scc1 L_prA1")
    for tag in range(2):
        lab("L_prA%d" % tag)
        e("s_add_u32 s%d, s%d, 1" % (S_SPIN, S_SPIN))
        red_proc(QA_, DA, tag, 8 if two else 0, True)
        e("s_cmp_gt_u32 s%d, 0x200000" % S_SPIN); e("s_cbranch_scc1 L_rgoA")
        if OPT["nowait"]: e("s_branch L_rgoA")
        e("s_cbranch_vccz L_rgoA")
        red_issue(QA_)
        if two:
            red_proc(QB_, DB, tag, 8)
            e("s_nop 1")
            e("s_cbranch_vccz L_rgoB")
            red_issue(QB_)
        e("s_branch L_prA%d" % tag)
    if two:
        lab("L_rgoB")
        A.nop(4)
        e("v_cndmask_b32 v%d, v%d, v%d, s[48:49]" % (T0, DB + 2, DB)); e("v_cndmask_b32 v%d, v%d, v%d, s[48:49]" % (T1, DB + 3, DB + 1))
        e("s_branch L_rpub")
    lab("L_rgoA")
    A.nop(3)
    e("v_cndmask_b32 v%d, v%d, v%d, s[48:49]" % (T0, DA + 2, DA)); e("v_cndmask_b32 v%d, v%d, v%d, s[48:49]" % (T1, DA + 3, DA + 1))
    lab("L_rpub")
    ts(50)
    e("v_cvt_pk_bf16_f32 v%d, v%d, v%d" % (T0, T0, T1))
    e("buffer_store_dword v%d, v%d, s[4:7], s31 offen" % (T0, T4))
    if OPT["hist"]:
        e("s_add_u32 s30, s%d, 1" % S_STEP); e("s_lshl_b32 s30, s30, 13"); e("s_add_u32 s30, s30, s%d" % S_H8); e("s_add_u32 s30, s30, %d" % WS_HIST)
        e("buffer_store_dword v%d, v%d, s[4:7], s30 offen" % (T0, T4))
    lab("L_red_done")
    stamp(6)
    e("s_barrier")
    e("s_mov_b32 s%d, s%d" % (S_MPREV, S_MCUR))
    e("s_mov_b32 s%d, s%d" % (S_MCUR, S_MNXT)); e("s_xor_b32 s%d, s%d, 0x40000" % (S_PCUR, S_PCUR))
    e("s_xor_b32 s%d, s%d, 8192" % (S_PAR, S_PAR))
    e("s_add_u32 s%d, s%d, 1" % (S_STEP, S_STEP))
    stamp(7)
    e("s_cmp_lt_u32 s%d, %d" % (S_STEP, OPT["nsteps"])); e("s_cbranch_scc1 L_step")
    lab("L_chain_done")
    rt(5)
    if OPT["stage"] >= 3:
        e("v_lshrrev_b32 v6, 2, v%d" % V_L16)
        for u in range(2): e("ds_read_b32 v%d, v%d offset:%d" % (8 + u, V_XWR, u * 512))
        for u in range(2):
            e("buffer_store_dword v%d, v6, s[4:7], s37 offen offset:%d sc0 sc1" % (V_S + 9 + u, u * 256))
        e("s_waitcnt lgkmcnt(0)")
        for u in range(2):
            e("buffer_store_dword v%d, v6, s[4:7], s38 offen offset:%d sc0 sc1" % (8 + u, u * 256))
        e("s_waitcnt vmcnt(0)"); e("s_barrier")
        lfk = A.newlab("L_fkm")
        e("s_cmp_eq_u32 s%d, 1" % S_WAVE); e("s_cbranch_scc0 %s" % lfk)
        e("v_mov_b32 v6, 64"); e("v_mov_b32 v7, 0"); e("s_lshl_b32 s28, s%d, 2" % S_HEAD); e("s_add_u32 s28, s28, %d" % FL_KM)
        e("s_mov_b64 exec, 1"); e("buffer_store_dword v6, v7, s[4:7], s28 offen sc0 sc1"); e("s_mov_b64 exec, s[26:27]")
        lab(lfk)
    if not OPT["final"]:
        e("s_memtime s[86:87]"); e("s_memrealtime s[90:91]"); e("s_waitcnt lgkmcnt(0)")
        e("s_sub_u32 s86, s86, s84"); e("s_sub_u32 s90, s90, s88")
        e("s_lshl_b32 s28, s%d, 2" % S_HEAD); e("s_add_u32 s28, s28, s%d" % S_WAVE); e("s_lshl_b32 s28, s28, 7"); e("s_add_u32 s28, s28, %d" % WS_STAMP)
        e("s_mov_b64 exec, 1"); e("v_mov_b32 v10, 0")
        vals = [86, 90, S_SPIN] + ([S_ST + i for i in range(16)] if OPT["stamps"] else []) + [64 + 2 * k for k in range(len(TS))]
        for i, r in enumerate(vals):
            e("v_mov_b32 v11, s%d" % r); e("buffer_store_dword v11, v10, s[4:7], s28 offen offset:%d" % (4 * i))
    e("s_waitcnt vmcnt(0)")
    e("s_branch L_end")

S_X = 12
S_SEG, S_K, S_NSEG, S_XB = 40, 41, 42, 43
S_RANK, S_SUB = 38, 37
def wait_dbg_counter(off_bytes_sgpr_or_int, target, lname):
    e("s_mov_b64 exec, 1")
    if isinstance(off_bytes_sgpr_or_int, int): e("v_mov_b32 v32, %d" % off_bytes_sgpr_or_int)
    else: e("v_mov_b32 v32, %s" % off_bytes_sgpr_or_int)
    e("s_mov_b32 s29, 0")
    lab(lname)
    e("global_load_dword v33, v32, s[24:25] sc0 sc1"); e("s_waitcnt vmcnt(0)"); e("v_readfirstlane_b32 s30, v33")
    e("s_add_u32 s29, s29, 1"); e("s_cmp_gt_u32 s29, 0x40000"); e("s_cbranch_scc1 %s_d" % lname)
    e("s_cmp_lt_u32 s30, %d" % target); e("s_cbranch_scc1 %s" % lname)
    lab(lname + "_d")
    e("s_mov_b64 exec, s[26:27]")

CV_HS, CV_CS = 4416, 17664
CV_XR, CV_XS = 70656, 7680
CV_YB = 101376
def conv_task():
    lskip = A.newlab("L_cv_skip")
    e("s_cmp_lt_u32 s%d, 2" % S_TEAM); e("s_cbranch_scc1 %s" % lskip)
    e("s_cmp_gt_u32 s%d, 5" % S_TEAM); e("s_cbranch_scc1 %s" % lskip)
    TASK, CH = 44, 45
    e("s_sub_u32 s%d, s%d, 2" % (TASK, S_TEAM)); e("s_lshl_b32 s%d, s%d, 5" % (TASK, TASK)); e("s_add_u32 s%d, s%d, s%d" % (TASK, TASK, S_HEAD))
    e("s_lshl_b32 s%d, s%d, 2" % (CH, TASK)); e("s_add_u32 s%d, s%d, s%d" % (CH, CH, S_WAVE))
    e("s_load_dwordx4 s[64:67], s[0:1], %d" % KA["q"])
    e("s_load_dwordx4 s[68:71], s[0:1], %d" % KA["v"])
    e("s_load_dwordx4 s[72:75], s[0:1], %d" % KA["ssmk"])
    e("s_load_dwordx2 s[76:77], s[0:1], %d" % KA["out"])
    e("s_waitcnt lgkmcnt(0)")
    e("s_lshl_b32 s28, s%d, 5" % TASK); e("s_add_u32 s70, s70, s28"); e("s_addc_u32 s71, s71, 0")
    e("s_lshl_b32 s28, s%d, 3" % TASK); e("s_add_u32 s74, s74, s28"); e("s_addc_u32 s75, s75, 0")
    e("s_load_dwordx8 s[80:87], s[70:71], 0"); e("s_load_dwordx2 s[88:89], s[74:75], 0")
    LN = 2
    e("v_lshrrev_b32 v%d, 4, v%d" % (LN, V_L16))
    srd(8, 72, 0x200000)
    e("s_mul_i32 s32, s%d, %d" % (S_WAVE, CV_CS))
    e("s_lshl_b32 s33, s%d, 12" % CH)
    for r in range(4):
        for i in range(4):
            e("s_add_u32 m0, s32, %d" % (r * CV_HS + 64 + i * 1024)); e("s_add_u32 s28, s33, %d" % (i * 1024 + 2 * r))
            e("buffer_load_dwordx4 v%d, s[8:11], s28 offen lds" % V_L16)
    for i in range(4): e("v_mov_b32 v%d, 0" % (4 + i))
    e("v_bfe_u32 v8, v%d, 2, 2" % LN); e("v_mul_u32_u24 v8, %d, v8" % CV_HS); e("v_and_b32 v9, 3, v%d" % LN); e("v_lshlrev_b32 v9, 4, v9"); e("v_add_u32 v8, v8, v9"); e("v_add_u32 v8, s32, v8")
    e("ds_write_b128 v8, v[4:7]")
    e("v_and_b32 v9, 3, v%d" % LN); e("v_lshlrev_b32 v10, 1, v9"); e("v_add_u32 v10, s33, v10")
    e("buffer_load_ushort v11, v10, s[8:11], 0 offen")
    e("v_bfe_u32 v12, v%d, 2, 2" % LN); e("v_mul_u32_u24 v13, %d, v12" % (CV_HS - 2)); e("v_lshlrev_b32 v14, 1, v9"); e("v_add_u32 v13, v13, v14"); e("v_add_u32 v13, 64, v13"); e("v_add_u32 v13, s32, v13")
    e("v_cmp_lt_u32 vcc, v9, v12"); e("v_cmp_gt_u32 s[30:31], 16, v%d" % LN); e("s_nop 1"); e("s_and_b64 s[30:31], s[30:31], vcc")
    e("s_mul_i32 s28, s%d, %d" % (S_WAVE, CV_XS)); e("s_add_u32 s28, s28, %d" % CV_XR); e("v_add_u32 v8, s28, v%d" % V_L16)
    e("ds_write_b128 v8, v[4:7]"); e("ds_write_b128 v8, v[4:7] offset:1024")
    e("v_cmp_gt_u32 vcc, 32, v%d" % LN); e("s_nop 1"); e("s_mov_b64 exec, vcc"); e("ds_write_b128 v8, v[4:7] offset:2048"); e("s_mov_b64 exec, s[26:27]")
    e("s_waitcnt vmcnt(0)")
    e("s_mov_b64 exec, s[30:31]"); e("ds_write_b16 v13, v11"); e("s_mov_b64 exec, s[26:27]")
    srd(8, 66, 0x200000)
    srd(12, 68, 0x200000)
    TH = 3
    e("s_lshl_b32 s28, s%d, 6" % S_WAVE); e("v_add_u32 v%d, s28, v%d" % (TH, LN))
    e("v_lshlrev_b32 v4, 13, v%d" % TH); e("s_lshl_b32 s28, s%d, 3" % TASK); e("v_add_u32 v4, s28, v4")
    KR, VR = 16, 40
    for j in range(11):
        e("v_add_u32 v5, %d, v4" % ((j - 3) * 1024 & 0xffffffff))
        e("buffer_load_dwordx2 %s, v5, s[8:11], 0 offen" % vr(KR + 2 * j, 2))
    for j in range(8):
        e("v_add_u32 v5, %d, v4" % (j * 1024))
        e("buffer_load_dwordx2 %s, v5, s[12:15], 0 offen" % vr(VR + 2 * j, 2))
    e("s_waitcnt lgkmcnt(0)")
    SK = {}
    for cch in range(4):
        for j in range(4):
            src = 80 + 2 * cch + (j >> 1)
            dst = 96 + cch * 4 + j
            if j & 1: e("s_and_b32 s28, s%d, 0xffff0000" % src)
            else: e("s_lshl_b32 s28, s%d, 16" % src)
            e("v_mov_b32 v%d, s28" % dst)
            SK[(cch, j)] = dst
    for cch in range(4):
        src = 88 + (cch >> 1)
        if cch & 1: e("s_and_b32 s28, s%d, 0xffff0000" % src)
        else: e("s_lshl_b32 s28, s%d, 16" % src)
        e("v_mov_b32 v%d, s28" % (112 + cch))
    e("s_waitcnt vmcnt(0)")
    KV = 116
    XP = 56
    for cch in range(4):
        d, hi = cch >> 1, cch & 1
        U = 72
        for j in range(11):
            if hi: e("v_and_b32 v%d, 0xffff0000, v%d" % (U + j, KR + 2 * j + d))
            else: e("v_lshlrev_b32 v%d, 16, v%d" % (U + j, KR + 2 * j + d))
        for t in range(8):
            e("v_mul_f32 v%d, v%d, v%d" % (84 + t, U + t, SK[(cch, 3)]))
            for j in (2, 1, 0):
                e("v_fmac_f32 v%d, v%d, v%d" % (84 + t, U + t + 3 - j, SK[(cch, j)]))
            if hi: e("v_and_b32 v92, 0xffff0000, v%d" % (VR + 2 * t + d))
            else: e("v_lshlrev_b32 v92, 16, v%d" % (VR + 2 * t + d))
            e("v_mul_f32 v%d, v%d, v92" % (84 + t, 84 + t))
        for p in range(4):
            e("v_cvt_pk_bf16_f32 v%d, v%d, v%d" % (XP + 4 * cch + p, 84 + 7 - 2 * p, 84 + 6 - 2 * p))
    e("v_lshrrev_b32 v4, 2, v%d" % TH); e("v_mul_u32_u24 v4, 80, v4"); e("v_and_b32 v5, 3, v%d" % TH); e("v_lshlrev_b32 v5, 4, v5"); e("v_add_u32 v4, v4, v5")
    e("v_add_u32 v4, %d, v4" % (CV_XR + 32 * 80))
    e("s_waitcnt lgkmcnt(0)"); e("s_barrier")
    for cch in range(4):
        e("ds_write_b128 v4, %s offset:%d" % (vr(XP + 4 * cch, 4), cch * CV_XS))
    srd(8, 64, 0x200000)
    e("v_lshlrev_b32 v4, 13, v%d" % TH); e("s_lshl_b32 s28, s%d, 3" % TASK); e("v_add_u32 v4, s28, v4")
    QR = 16
    for j in range(8):
        e("v_add_u32 v5, %d, v4" % (j * 1024))
        e("buffer_load_dwordx2 %s, v5, s[8:11], 0 offen" % vr(QR + 2 * j, 2))
    e("s_waitcnt lgkmcnt(0)"); e("s_barrier")
    e("v_and_b32 v6, 31, v%d" % LN); e("v_lshrrev_b32 v7, 5, v%d" % LN)
    e("v_add_u32 v8, 1, v6"); e("v_and_b32 v8, 3, v8"); e("v_mul_u32_u24 v8, %d, v8" % CV_HS)
    e("v_lshlrev_b32 v9, 3, v7"); e("v_sub_u32 v9, v6, v9"); e("v_add_u32 v9, 25, v9"); e("v_lshrrev_b32 v9, 2, v9"); e("v_lshlrev_b32 v9, 3, v9")
    e("v_add_u32 v8, v8, v9"); e("v_add_u32 v8, s32, v8"); e("v_subrev_u32 v8, 32, v8")
    e("v_mul_u32_u24 v9, 80, v6"); e("v_lshlrev_b32 v10, 4, v7"); e("v_add_u32 v9, v9, v10")
    e("s_mul_i32 s28, s%d, %d" % (S_WAVE, CV_XS)); e("s_add_u32 s28, s28, %d" % (CV_XR - 31 * 80)); e("v_add_u32 v9, s28, v9")
    Y0, Y1 = 128, 144
    FA, FB = 72, 88
    steps = []
    for dl in range(64):
        for kk in range(2):
            steps.append((dl, kk))
    A.lds = []
    def issue(n):
        dl, kk = steps[n]; u = 2 * dl - kk
        ra = FA + (n % 4) * 4
        A.ds("ds_read_b64 %s, v8 offset:%d" % (vr(ra, 2), (u + 1) * 32), ("cv", n))
        A.ds("ds_read_b64 %s, v8 offset:%d" % (vr(ra + 2, 2), (u + 1) * 32 + 8), ("cv", n))
        rb = 88 + (n % 3) * 8
        A.ds("ds_read_b128 %s, v9 offset:%d" % (vr(rb, 4), (63 - dl) * 80 + kk * 32 + 2560), ("cv", n))
        if dl <= 31:
            A.ds("ds_read_b128 %s, v9 offset:%d" % (vr(rb + 4, 4), (63 - dl) * 80 + kk * 32), ("cv", n))
    issue(0); issue(1)
    first = [True, True]
    for n in range(len(steps)):
        dl, kk = steps[n]
        A.wait_lds(("cv", n))
        ra = FA + (n % 4) * 4; rb = 88 + (n % 3) * 8
        e("v_mfma_f32_32x32x16_bf16 %s, %s, %s, %s" % (ar(Y1, 16), vr(ra, 4), vr(rb, 4), "0" if n == 0 else ar(Y1, 16)))
        if dl <= 31:
            e("v_mfma_f32_32x32x16_bf16 %s, %s, %s, %s" % (ar(Y0, 16), vr(ra, 4), vr(rb + 4, 4), "0" if n == 0 else ar(Y0, 16)))
        if n + 2 < len(steps): issue(n + 2)
    A.nop(16)
    e("v_lshlrev_b32 v10, 6, v6"); e("v_lshlrev_b32 v11, 3, v7"); e("v_add_u32 v10, v10, v11")
    e("s_lshl_b32 s28, s%d, 12" % S_WAVE); e("s_add_u32 s28, s28, %d" % CV_YB); e("v_add_u32 v10, s28, v10")
    for tile, Y in ((0, Y0), (1, Y1)):
        for q4 in range(4):
            for r in range(4): e("v_accvgpr_read_b32 v%d, a%d" % (72 + r, Y + 4 * q4 + r))
            e("s_nop 0")
            e("v_cvt_pk_bf16_f32 v76, v72, v73"); e("v_cvt_pk_bf16_f32 v77, v74, v75")
            e("ds_write_b64 v10, v[76:77] offset:%d" % (tile * 2048 + q4 * 16))
            e("s_nop 1")
    e("s_waitcnt lgkmcnt(0)"); e("s_barrier")
    e("v_lshlrev_b32 v4, 4, v%d" % TH); e("v_add_u32 v4, %d, v4" % CV_YB)
    YR = 72
    for cch in range(4):
        e("ds_read_b128 %s, v4 offset:%d" % (vr(YR + 4 * cch, 4), cch * 4096))
    e("s_waitcnt lgkmcnt(0) vmcnt(0)")
    srd(8, 76, 0x400000)
    OUTR = 40
    for t in range(8):
        for pr in range(2):
            vals = []
            for h in range(2):
                cch = 2 * pr + h
                ysrc = YR + 4 * cch + (t >> 1)
                if t & 1: e("v_and_b32 v%d, 0xffff0000, v%d" % (92 + h, ysrc))
                else: e("v_lshlrev_b32 v%d, 16, v%d" % (92 + h, ysrc))
                p = (7 - t) >> 1
                ksrc = XP + 4 * cch + p
                if (7 - t) & 1: e("v_and_b32 v94, 0xffff0000, v%d" % ksrc)
                else: e("v_lshlrev_b32 v94, 16, v%d" % ksrc)
                e("v_fmac_f32 v%d, v94, v%d" % (92 + h, 112 + cch))
                qsrc = QR + 2 * t + pr
                if h: e("v_and_b32 v94, 0xffff0000, v%d" % qsrc)
                else: e("v_lshlrev_b32 v94, 16, v%d" % qsrc)
                e("v_mul_f32 v%d, v%d, v94" % (92 + h, 92 + h))
            e("v_cvt_pk_bf16_f32 v%d, v92, v93" % (OUTR + 2 * t + pr))
    e("v_lshlrev_b32 v4, 14, v%d" % TH); e("s_lshl_b32 s28, s%d, 3" % TASK); e("v_add_u32 v4, s28, v4")
    for t in range(8):
        e("v_add_u32 v5, %d, v4" % (t * 2048))
        e("buffer_store_dwordx2 %s, v5, s[8:11], 0 offen" % vr(OUTR + 2 * t, 2))
    e("s_waitcnt vmcnt(0)"); e("s_barrier")
    e("s_load_dwordx2 s[30:31], s[0:1], %d" % KA["x"]); e("s_waitcnt lgkmcnt(0)")
    srd(S_X, 30, 0x200000)
    lab(lskip)

XL_T0, XL_QB, XL_KMI, XL_OB, XL_SEL = 0, 65536, 73728, 77824, 86016
S_OUT = 16
S_QT, S_EH, S_XPB, S_PAR2 = 44, 45, 46, 47
def xt_dma_g(seg_sgpr, buf_sgpr):
    e("s_lshr_b32 s28, s%d, 1" % S_WAVE); e("s_lshl_b32 s29, s%d, 15" % seg_sgpr); e("s_lshl_b32 s30, s28, 14"); e("s_add_u32 s29, s29, s30")
    e("s_and_b32 s30, s%d, 1" % S_WAVE); e("s_lshl_b32 s31, s30, 9"); e("s_add_u32 s29, s29, s31")
    e("s_lshl_b32 s31, s%d, 13" % S_WAVE); e("s_add_u32 s31, s31, s%d" % buf_sgpr)
    for i in range(8):
        e("s_add_u32 m0, s31, %d" % (i * 1024)); e("s_add_u32 s30, s29, %d" % (i * 64))
        e("buffer_load_dwordx4 v1, s[12:15], s30 offen lds")

def xphase2():
    L = VLANE
    e("s_mov_b32 s%d, s%d" % (S_HEAD, S_RANK))
    e("s_lshl_b32 s%d, s%d, 13" % (S_H13, S_HEAD)); e("s_lshl_b32 s%d, s%d, 8" % (S_H8, S_HEAD))
    e("s_cmp_eq_u32 s%d, 1" % S_TEAM); e("s_cselect_b32 s%d, 10, 9" % S_NSEG)
    e("s_barrier")
    e("v_lshrrev_b32 v%d, 4, v%d" % (L, V_L16))
    load_setup(32768)
    uq = units_qkv(0, "a", 0)
    for u in uq: u["perm"] = False
    load_units(uq + units_wo("v", V_WO), 8)
    e("s_barrier")
    rt(5)
    if OPT.get("conv", 0): conv_task()
    rt(6)
    KXF, VXF, QF, S, KMF, VMF, OO = 12, 44, 60, 76, 88, 104, 112
    T0, T1, T2, T3, T4, T5 = 6, 7, 8, 9, 10, 11
    V_THR, V_XPS, V_XD = 3, 4, 1
    e("v_lshrrev_b32 v%d, 4, v%d" % (L, V_L16))
    e("s_load_dwordx2 s[30:31], s[0:1], %d" % KA["out"])
    e("s_and_b32 s%d, s%d, 1" % (S_QT, S_WAVE)); e("s_lshr_b32 s%d, s%d, 1" % (S_EH, S_WAVE))
    e("v_lshrrev_b32 v1, 2, v%d" % L); e("v_lshrrev_b32 v2, 4, v%d" % L); e("v_xor_b32 v2, v2, v%d" % L); e("v_and_b32 v2, 3, v2"); e("v_lshlrev_b32 v2, 4, v2")
    e("v_lshlrev_b32 v1, 10, v1"); e("v_add_u32 v1, v1, v2")
    e("v_and_b32 v5, 15, v%d" % L); e("v_lshrrev_b32 v2, 2, v5"); e("v_lshrrev_b32 v34, 4, v%d" % L); e("v_xor_b32 v2, v2, v34"); e("v_and_b32 v2, 3, v2")
    e("v_lshlrev_b32 v5, 2, v5"); e("v_add_u32 v5, v5, v2"); e("v_lshlrev_b32 v5, 4, v5")
    e("v_and_b32 v%d, 15, v%d" % (V_THR, L)); e("v_lshrrev_b32 v2, 4, v%d" % L); e("v_lshlrev_b32 v2, 2, v2"); e("v_sub_u32 v%d, v%d, v2" % (V_THR, V_THR))
    e("s_lshl_b32 s28, s%d, 4" % S_QT); e("v_add_u32 v%d, s28, v%d" % (V_THR, V_THR))
    e("v_bfe_u32 v%d, v%d, 2, 2" % (V_XPS, L)); e("v_lshlrev_b32 v%d, 13, v%d" % (V_XPS, V_XPS))
    e("v_lshrrev_b32 v2, 4, v%d" % L); e("v_lshlrev_b32 v2, 6, v2"); e("v_add_u32 v%d, v%d, v2" % (V_XPS, V_XPS))
    e("v_and_b32 v2, 3, v%d" % L); e("v_lshlrev_b32 v2, 4, v2"); e("v_add_u32 v%d, v%d, v2" % (V_XPS, V_XPS)); e("v_add_u32 v%d, s%d, v%d" % (V_XPS, S_H8, V_XPS))
    e("v_and_b32 v6, 1, v%d" % L); e("v_lshlrev_b32 v6, 4, v6"); e("v_mov_b32 v7, 0x3f80"); e("v_lshlrev_b32 v7, v6, v7")
    e("v_bfe_u32 v6, v%d, 1, 2" % L)
    for i in range(4):
        e("v_cmp_eq_u32 vcc, %d, v6" % i); e("s_nop 1"); e("v_cndmask_b32 v%d, 0, v7, vcc" % (12 + i))
    e("v_add_u32 v6, %d, v%d" % (XL_SEL, V_L16)); e("ds_write_b128 v6, v[12:15]")
    e("s_waitcnt lgkmcnt(0)")
    srd(S_OUT, 30, 0x400000)
    cval = struct.unpack("<I", struct.pack("<f", (128 ** -0.5) * math.log2(math.e)))[0]
    e("s_mov_b32 s%d, 0x%08x" % (S_C, cval))
    e("s_lshl_b32 s%d, s%d, 21" % (S_XPB, S_TEAM)); e("s_add_u32 s%d, s%d, %d" % (S_XPB, S_XPB, WS_XP))
    e("s_sub_u32 s%d, s%d, 1" % (S_SEG, S_TEAM)); e("s_mov_b32 s%d, 0" % S_K); e("s_mov_b32 s%d, 0" % S_XB); e("s_mov_b32 s%d, 0" % S_PAR2)
    xt_dma_g(S_SEG, S_XB)
    e("s_and_b32 s33, s%d, 3" % S_TEAM); e("s_lshl_b32 s33, s33, 6"); e("s_lshr_b32 s29, s%d, 2" % S_TEAM); e("s_lshl_b32 s29, s29, 2"); e("s_add_u32 s33, s33, s29"); e("s_add_u32 s33, s33, 16")
    wait_dbg_counter("s33", 32, "L_x2_init")
    lab("L_x2")
    A.lds = []; A.vm = []
    lkv = A.newlab("L_x2kv")
    e("s_cmp_lg_u32 s%d, 0" % S_WAVE); e("s_cbranch_scc1 %s_s" % lkv)
    e("s_mov_b64 exec, 1"); e("v_mov_b32 v6, 0"); e("s_lshl_b32 s28, s%d, 7" % S_TEAM); e("s_lshl_b32 s29, s%d, 2" % S_HEAD); e("s_add_u32 s28, s28, s29"); e("s_add_u32 s28, s28, %d" % FL_KV); e("s_mov_b32 s29, 0")
    lab(lkv)
    e("buffer_load_dword v7, v6, s[4:7], s28 offen sc0 sc1"); e("s_waitcnt vmcnt(0)"); e("v_readfirstlane_b32 s30, v7")
    e("s_add_u32 s29, s29, 1"); e("s_cmp_gt_u32 s29, 0x80000"); e("s_cbranch_scc1 %s_d" % lkv)
    e("s_cmp_gt_u32 s30, s%d" % S_K); e("s_cbranch_scc1 %s_d" % lkv)
    e("s_sleep 8"); e("s_branch %s" % lkv)
    lab(lkv + "_d")
    e("s_mov_b64 exec, s[26:27]")
    lab(lkv + "_s")
    e("s_waitcnt vmcnt(0)"); e("s_barrier")
    e("s_lshl_b32 s28, s%d, 18" % S_SEG); e("s_add_u32 s28, s28, s%d" % S_H13)
    e("s_add_u32 s29, s28, %d" % WS_KX); e("s_add_u32 s30, s29, 4096")
    for kt in range(2):
        for kk in range(4):
            A.vmem("buffer_load_dwordx4 %s, v%d, s[4:7], s%d offen offset:%d sc1" % (vr(KXF + (kt * 4 + kk) * 4, 4), V_L16, 29 + kt, kk * 1024), "kx")
    e("s_lshl_b32 s29, s%d, 12" % S_EH); e("s_add_u32 s29, s29, s28"); e("s_add_u32 s29, s29, %d" % WS_VX)
    for i in range(4):
        A.vmem("buffer_load_dwordx4 %s, v%d, s[4:7], s29 offen offset:%d sc1" % (vr(VXF + 4 * i, 4), V_L16, i * 1024), "vx")
    ln = A.newlab("L_x2n")
    e("s_add_u32 s32, s%d, 1" % S_K); e("s_cmp_ge_u32 s32, s%d" % S_NSEG); e("s_cbranch_scc1 %s" % ln)
    e("s_add_u32 s33, s%d, 7" % S_SEG); e("s_xor_b32 s36, s%d, 32768" % S_XB)
    xt_dma_g(33, 36)
    lab(ln)
    XF = KMF
    e("v_add_u32 v2, s%d, v5" % S_XB)
    def rdx(kk):
        for tt in range(2):
            A.ds("ds_read_b128 %s, v2 offset:%d" % (vr(XF + (kk % 2) * 8 + tt * 4, 4), (tt * 16 + kk) * 1024), ("x", kk))
    rdx(0); rdx(1)
    for kk in range(16):
        A.wait_lds(("x", kk))
        t, b = kk >> 1, kk & 1
        for u in range(2):
            for tt in range(2):
                xf = vr(XF + (kk % 2) * 8 + tt * 4, 4)
                cq = "0" if kk == 0 else vr(QF + (u * 2 + tt) * 4, 4)
                e("v_mfma_f32_16x16x32_bf16 %s, %s, %s, %s" % (vr(QF + (u * 2 + tt) * 4, 4), ar((u * 8 + t) * 8 + 4 * b, 4), xf, cq))
        if kk + 2 < 16: rdx(kk + 2)
    A.nop(8)
    for tt in range(2):
        for u in range(2):
            a0 = QF + (u * 2 + tt) * 4
            e("v_cvt_pk_bf16_f32 v%d, v%d, v%d" % (OO + tt * 4 + 2 * u, a0, a0 + 1)); e("v_cvt_pk_bf16_f32 v%d, v%d, v%d" % (OO + tt * 4 + 2 * u + 1, a0 + 2, a0 + 3))
    e("s_lshl_b32 s28, s%d, 10" % S_WAVE); e("s_add_u32 s28, s28, %d" % XL_QB); e("v_add_u32 v2, s28, v%d" % V_L16)
    for tt in range(2):
        A.ds("ds_write_b128 v2, %s offset:%d" % (vr(OO + tt * 4, 4), tt * 4096), "qw")
    A.wait_lds_all(); e("s_barrier")
    e("s_lshl_b32 s28, s%d, 12" % S_QT); e("s_add_u32 s28, s28, %d" % XL_QB); e("v_add_u32 v2, s28, v%d" % V_L16)
    for kk in range(4):
        A.ds("ds_read_b128 %s, v2 offset:%d" % (vr(QF + 4 * kk, 4), kk * 1024), ("q", kk))
    e("s_waitcnt vmcnt(12)")
    l12 = A.newlab("L_x2w")
    e("s_cmp_lt_u32 s32, s%d" % S_NSEG); e("s_cbranch_scc1 %s" % l12); e("s_waitcnt vmcnt(4)"); lab(l12)
    for kk in range(4):
        A.wait_lds(("q", kk))
        for kt in range(2):
            cs = "0" if kk == 0 else vr(S + 4 * kt, 4)
            e("v_mfma_f32_16x16x32_bf16 %s, %s, %s, %s" % (vr(S + 4 * kt, 4), vr(KXF + (kt * 4 + kk) * 4, 4), vr(QF + 4 * kk, 4), cs))
    lw = A.newlab("L_x2km")
    e("s_cmp_lg_u32 s%d, 0" % S_WAVE); e("s_cbranch_scc1 %s_s" % lw)
    e("s_mov_b64 exec, 1"); e("v_mov_b32 v%d, 0" % T0); e("s_lshl_b32 s28, s%d, 2" % S_HEAD); e("s_add_u32 s28, s28, %d" % FL_KM); e("s_mov_b32 s29, 0")
    lab(lw)
    e("buffer_load_dword v%d, v%d, s[4:7], s28 offen sc0 sc1" % (T1, T0)); e("s_waitcnt vmcnt(0)"); e("v_readfirstlane_b32 s30, v%d" % T1)
    e("s_add_u32 s29, s29, 1"); e("s_cmp_gt_u32 s29, 0x80000"); e("s_cbranch_scc1 %s_d" % lw)
    e("s_cmp_gt_u32 s30, s%d" % S_SEG); e("s_cbranch_scc1 %s_d" % lw)
    e("s_add_u32 s30, s30, 2"); e("s_cmp_gt_u32 s30, s%d" % S_SEG); e("s_cbranch_scc1 %s_n" % lw)
    e("s_sleep %d" % OPT.get("slp", 8)); e("s_branch %s" % lw)
    lab(lw + "_n")
    e("s_sleep 2"); e("s_branch %s" % lw)
    lab(lw + "_d")
    e("s_mov_b64 exec, s[26:27]")
    lab(lw + "_s")
    e("s_waitcnt vmcnt(0)"); e("s_barrier")
    rtk(8, S_SEG, 63)
    e("s_lshl_b32 s28, s%d, 16" % S_SEG); e("s_lshl_b32 s29, s%d, 11" % S_HEAD); e("s_add_u32 s28, s28, s29")
    e("s_lshl_b32 s29, s%d, 9" % S_WAVE); e("s_add_u32 s29, s29, s28"); e("s_add_u32 s29, s29, %d" % WS_KM)
    e("v_lshrrev_b32 v%d, 2, v%d" % (T0, V_L16))
    for u in range(2):
        e("buffer_load_dword v%d, v%d, s[4:7], s29 offen offset:%d sc1" % (T2 + u, T0, u * 256))
    e("s_lshl_b32 s29, s%d, 10" % S_EH); e("s_add_u32 s29, s29, s28"); e("s_add_u32 s29, s29, %d" % WS_VM)
    for i in range(4):
        e("buffer_load_dword v%d, v%d, s[4:7], s29 offen offset:%d sc1" % (VMF + 2 * i, T0, i * 256))
        e("v_mov_b32 v%d, 0" % (VMF + 2 * i + 1))
    e("v_and_b32 v%d, 0xf0, v%d" % (T4, V_L16)); e("v_lshlrev_b32 v%d, 1, v%d" % (T4, T4)); e("v_lshrrev_b32 v%d, 8, v%d" % (T1, V_L16)); e("v_lshlrev_b32 v%d, 3, v%d" % (T1, T1))
    e("v_add_u32 v%d, v%d, v%d" % (T4, T4, T1)); e("s_lshl_b32 s29, s%d, 10" % S_WAVE); e("s_add_u32 s29, s29, %d" % XL_KMI); e("v_add_u32 v%d, s29, v%d" % (T4, T4))
    e("s_waitcnt vmcnt(0)")
    for u in range(2):
        e("ds_write_b32 v%d, v%d offset:%d" % (T4, T2 + u, u * 512))
    e("s_waitcnt lgkmcnt(0)"); e("s_barrier")
    rtk(9, S_SEG, 63)
    e("v_lshrrev_b32 v%d, 1, v%d" % (T0, V_L16))
    e("v_add_u32 v%d, %d, v%d" % (T0, XL_KMI, T0))
    for kk in range(4):
        for b in range(2):
            A.ds("ds_read_b64_tr_b16 %s, v%d offset:%d" % (vr(KMF + 4 * kk + 2 * b, 2), T0, kk * 1024 + b * 512), ("km", kk))
    for kk in range(4):
        A.wait_lds(("km", kk))
        e("v_mfma_f32_16x16x32_bf16 %s, %s, %s, %s" % (vr(S + 8, 4), vr(KMF + 4 * kk, 4), vr(QF + 4 * kk, 4), "0" if kk == 0 else vr(S + 8, 4)))
    e("v_mov_b32 v%d, 0xff800000" % T5)
    for kt in range(2):
        for r in range(4):
            e("v_cmp_gt_i32 vcc, %d, v%d" % (16 * kt + r, V_THR)); e("s_nop 1"); e("v_cndmask_b32 v%d, v%d, v%d, vcc" % (S + 4 * kt + r, S + 4 * kt + r, T5))
    A.nop(2)
    e("v_max3_f32 v%d, v%d, v%d, v%d" % (T0, S, S + 1, S + 2)); e("v_max3_f32 v%d, v%d, v%d, v%d" % (T1, S + 4, S + 5, S + 6))
    e("v_max3_f32 v%d, v%d, v%d, v%d" % (T0, T0, S + 3, S + 7)); e("v_max3_f32 v%d, v%d, v%d, v%d" % (T1, T1, S + 8, S + 9))
    e("v_max_f32 v%d, v%d, v%d" % (T0, T0, T1))
    e("v_mov_b32 v%d, v%d" % (T1, T0)); A.nop(2); e("v_permlane16_swap_b32 v%d, v%d" % (T0, T1)); e("v_max_f32 v%d, v%d, v%d" % (T0, T0, T1))
    e("v_mov_b32 v%d, v%d" % (T1, T0)); A.nop(2); e("v_permlane32_swap_b32 v%d, v%d" % (T0, T1)); e("v_max_f32 v%d, v%d, v%d" % (T0, T0, T1))
    e("v_mul_f32 v%d, s%d, v%d" % (T0, S_C, T0))
    for i in range(10): e("v_fma_f32 v%d, v%d, s%d, -v%d" % (S + i, S + i, S_C, T0))
    for i in range(10): e("v_exp_f32 v%d, v%d" % (S + i, S + i))
    e("s_nop 0")
    e("v_add_f32 v%d, v%d, v%d" % (T2, S, S + 1)); e("v_add_f32 v%d, v%d, v%d" % (T3, S + 2, S + 3))
    for i in range(4, 10, 2):
        e("v_add_f32 v%d, v%d, v%d" % (T2, T2, S + i)); e("v_add_f32 v%d, v%d, v%d" % (T3, T3, S + i + 1))
    e("v_add_f32 v%d, v%d, v%d" % (T2, T2, T3))
    for i in range(4): e("v_cvt_pk_bf16_f32 v%d, v%d, v%d" % (S + i, S + 2 * i, S + 2 * i + 1))
    e("v_cvt_pk_bf16_f32 v%d, v%d, v%d" % (S + 10, S + 8, S + 9)); e("v_mov_b32 v%d, 0" % (S + 11))
    e("v_mov_b32 v%d, v%d" % (T3, T2)); A.nop(2); e("v_permlane16_swap_b32 v%d, v%d" % (T2, T3)); e("v_add_f32 v%d, v%d, v%d" % (T2, T2, T3))
    e("v_mov_b32 v%d, v%d" % (T3, T2)); A.nop(2); e("v_permlane32_swap_b32 v%d, v%d" % (T2, T3)); e("v_add_f32 v%d, v%d, v%d" % (T2, T2, T3))
    e("v_rcp_f32 v%d, v%d" % (T2, T2))
    for i in range(4):
        e("v_mfma_f32_16x16x32_bf16 %s, %s, %s, 0" % (vr(OO + 4 * i, 4), vr(VXF + 4 * i, 4), vr(S, 4)))
    for i in range(4):
        e("v_mfma_f32_16x16x16_bf16 %s, %s, %s, %s" % (vr(OO + 4 * i, 4), vr(VMF + 2 * i, 2), vr(S + 10, 2), vr(OO + 4 * i, 4)))
    A.nop(8)
    for i in range(16): e("v_mul_f32 v%d, v%d, v%d" % (OO + i, OO + i, T2))
    for j in range(2):
        for tsub in range(2):
            a0 = OO + (2 * j + tsub) * 4
            e("v_cvt_pk_bf16_f32 v%d, v%d, v%d" % (QF + 4 * j + 2 * tsub, a0, a0 + 1)); e("v_cvt_pk_bf16_f32 v%d, v%d, v%d" % (QF + 4 * j + 2 * tsub + 1, a0 + 2, a0 + 3))
    e("s_lshl_b32 s28, s%d, 12" % S_QT); e("s_lshl_b32 s29, s%d, 11" % S_EH); e("s_add_u32 s28, s28, s29"); e("s_add_u32 s28, s28, %d" % XL_OB); e("v_add_u32 v2, s28, v%d" % V_L16)
    for j in range(2):
        A.ds("ds_write_b128 v2, %s offset:%d" % (vr(QF + 4 * j, 4), j * 1024), "ow")
    A.wait_lds_all(); e("s_barrier")
    rtk(10, S_SEG, 63)
    e("v_add_u32 v2, %d, v%d" % (XL_OB, V_L16))
    ACC, AF, PKR = 12, 44, 60
    e("s_add_u32 s33, s%d, s%d" % (S_XPB, S_PAR2))
    for qt in range(2):
        for kk in range(4):
            A.ds("ds_read_b128 %s, v2 offset:%d" % (vr(AF + 4 * kk, 4), qt * 4096 + kk * 1024), ("o", kk))
        for kk in range(4):
            A.wait_lds(("o", kk))
            t, b = kk >> 1, kk & 1
            for nt in range(8):
                e("v_mfma_f32_16x16x32_bf16 %s, %s, %s, %s" % (vr(ACC + 4 * nt, 4), vr(AF + 4 * kk, 4), vr(V_WO + (nt * 2 + t) * 8 + 4 * b, 4), "0" if kk == 0 else vr(ACC + 4 * nt, 4)))
        A.nop(8)
        for p in range(4):
            for tsub in range(2):
                a0 = ACC + 4 * (2 * p + tsub)
                e("v_cvt_pk_bf16_f32 v%d, v%d, v%d" % (PKR + 4 * p + 2 * tsub, a0, a0 + 1)); e("v_cvt_pk_bf16_f32 v%d, v%d, v%d" % (PKR + 4 * p + 2 * tsub + 1, a0 + 2, a0 + 3))
            e("s_lshl_b32 s28, s%d, 17" % S_WAVE); e("s_add_u32 s28, s28, s33"); e("s_add_u32 s28, s28, %d" % ((qt * 16 + p) * 4 * 8192))
            e("buffer_store_dwordx4 %s, v%d, s[4:7], s28 offen" % (vr(PKR + 4 * p, 4), V_XPS))
        A.nop(2)
    e("s_waitcnt vmcnt(0)"); e("s_barrier")
    rtk(11, S_SEG, 63)
    lf = A.newlab("L_x2f")
    e("s_cmp_lg_u32 s%d, 0" % S_WAVE); e("s_cbranch_scc1 %s" % lf)
    e("s_add_u32 s28, s%d, 1" % S_K); e("v_mov_b32 v%d, s28" % T0); e("v_mov_b32 v%d, 0" % T1)
    e("s_lshl_b32 s28, s%d, 7" % S_TEAM); e("s_lshl_b32 s29, s%d, 2" % S_HEAD); e("s_add_u32 s28, s28, s29"); e("s_add_u32 s28, s28, %d" % FL_XP)
    e("s_mov_b64 exec, 1"); e("buffer_store_dword v%d, v%d, s[4:7], s28 offen" % (T0, T1)); e("s_mov_b64 exec, s[26:27]")
    lab(lf)
    lw = A.newlab("L_x2r")
    e("v_lshrrev_b32 v%d, 2, v%d" % (T0, V_L16)); e("v_and_b32 v%d, 127, v%d" % (T0, T0))
    e("s_lshl_b32 s28, s%d, 7" % S_TEAM); e("s_add_u32 s28, s28, %d" % FL_XP); e("s_mov_b32 s29, 0")
    e("v_add_u32 v%d, %d, v%d" % (T3, XL_SEL, V_L16)); e("ds_read_b128 v[44:47], v%d" % T3)
    lab(lw)
    e("buffer_load_dword v%d, v%d, s[4:7], s28 offen sc1" % (T1, T0)); e("s_waitcnt vmcnt(0)")
    e("v_cmp_ge_u32 vcc, s%d, v%d" % (S_K, T1))
    e("s_add_u32 s29, s29, 1"); e("s_cmp_gt_u32 s29, 0x80000"); e("s_cbranch_scc1 %s_d" % lw)
    e("s_cbranch_vccnz %s" % lw)
    lab(lw + "_d")
    rtk(12, S_SEG, 63)
    e("s_lshl_b32 s28, s%d, 2" % S_HEAD); e("s_add_u32 s28, s28, s%d" % S_WAVE); e("s_lshl_b32 s28, s28, 13"); e("s_add_u32 s28, s28, s33"); e("s_add_u32 s29, s28, 4096")
    for x in range(8):
        e("buffer_load_dwordx4 %s, v%d, s[4:7], s%d offen offset:%d sc1" % (vr(12 + 4 * x, 4), V_L16, 28 if x < 4 else 29, (x & 3) * 1024))
    e("s_waitcnt lgkmcnt(0)")
    for x in range(8):
        e("s_waitcnt vmcnt(%d)" % (7 - x))
        e("v_mfma_f32_16x16x32_bf16 v[48:51], %s, v[44:47], %s" % (vr(12 + 4 * x, 4), "0" if x == 0 else "v[48:51]"))
    e("v_lshrrev_b32 v%d, 8, v%d" % (T0, V_L16)); e("v_lshlrev_b32 v%d, 2, v%d" % (T0, T0))
    e("v_bfe_u32 v%d, v%d, 4, 2" % (T1, V_L16)); e("v_add_u32 v%d, v%d, v%d" % (T0, T0, T1)); e("v_lshlrev_b32 v%d, 11, v%d" % (T0, T0))
    e("v_bfe_u32 v%d, v%d, 6, 1" % (T1, V_L16)); e("v_lshlrev_b32 v%d, 3, v%d" % (T1, T1)); e("v_add_u32 v%d, v%d, v%d" % (T0, T0, T1))
    e("s_lshr_b32 s28, s%d, 4" % S_HEAD); e("s_lshl_b32 s28, s28, 4"); e("s_lshl_b32 s29, s%d, 5" % S_SEG); e("s_add_u32 s28, s28, s29"); e("s_lshl_b32 s28, s28, 11")
    e("s_bfe_u32 s29, s%d, 0x20002" % S_HEAD); e("s_lshl_b32 s29, s29, 8"); e("s_add_u32 s28, s28, s29")
    e("s_bfe_u32 s29, s%d, 0x10001" % S_HEAD); e("s_lshl_b32 s29, s29, 7"); e("s_add_u32 s28, s28, s29")
    e("s_and_b32 s29, s%d, 1" % S_HEAD); e("s_lshl_b32 s29, s29, 4"); e("s_add_u32 s28, s28, s29")
    e("s_lshl_b32 s29, s%d, 5" % S_WAVE); e("s_add_u32 s28, s28, s29"); e("s_add_u32 s28, s28, 1024")
    A.nop(4)
    e("v_cvt_pk_bf16_f32 v48, v48, v49"); e("v_cvt_pk_bf16_f32 v49, v50, v51")
    e("v_and_b32 v%d, 128, v%d" % (T1, V_L16)); e("v_cmp_eq_u32 vcc, 0, v%d" % T1)
    e("s_nop 1")
    e("s_mov_b64 exec, vcc")
    e("buffer_store_dwordx2 v[48:49], v%d, s[16:19], s28 offen" % T0)
    e("s_mov_b64 exec, s[26:27]")
    e("s_add_u32 s%d, s%d, 7" % (S_SEG, S_SEG)); e("s_xor_b32 s%d, s%d, 32768" % (S_XB, S_XB)); e("s_xor_b32 s%d, s%d, 0x100000" % (S_PAR2, S_PAR2))
    e("s_add_u32 s%d, s%d, 1" % (S_K, S_K))
    e("s_cmp_lt_u32 s%d, s%d" % (S_K, S_NSEG)); e("s_cbranch_scc1 L_x2")
    e("s_waitcnt vmcnt(0)")
    rt(7)
    e("s_branch L_end")

def xteam():
    L = VLANE
    lab("L_xteam")
    e("v_lshlrev_b32 v%d, 4, v%d" % (V_L16, L))
    e("s_load_dwordx2 s[30:31], s[0:1], %d" % KA["x"])
    e("v_lshrrev_b32 v1, 2, v%d" % L); e("v_lshrrev_b32 v2, 4, v%d" % L); e("v_xor_b32 v2, v2, v%d" % L); e("v_and_b32 v2, 3, v2"); e("v_lshlrev_b32 v2, 4, v2")
    e("v_lshlrev_b32 v1, 10, v1"); e("v_add_u32 v1, v1, v2")
    e("v_and_b32 v5, 15, v%d" % L); e("v_lshrrev_b32 v2, 2, v5"); e("v_lshrrev_b32 v34, 4, v%d" % L); e("v_xor_b32 v2, v2, v34"); e("v_and_b32 v2, 3, v2")
    e("v_lshlrev_b32 v5, 2, v5"); e("v_add_u32 v5, v5, v2"); e("v_lshlrev_b32 v5, 4, v5")
    e("s_waitcnt lgkmcnt(0)")
    srd(S_X, 30, 0x200000)
    if OPT["stage"] >= 3:
        lx = A.newlab("L_xi")
        e("s_cmp_lg_u32 s%d, 1" % S_WAVE); e("s_cbranch_scc1 %s" % lx)
        e("s_mov_b64 exec, 1")
        e("v_mov_b32 v32, 0"); e("s_lshl_b32 s28, s%d, 7" % S_TEAM); e("s_lshl_b32 s29, s%d, 2" % S_HEAD); e("s_add_u32 s28, s28, s29"); e("s_add_u32 s28, s28, %d" % FL_XP)
        e("buffer_store_dword v32, v32, s[4:7], s28 offen"); e("s_waitcnt vmcnt(0)")
        e("s_and_b32 s28, s%d, 3" % S_TEAM); e("s_lshl_b32 s28, s28, 6"); e("s_lshr_b32 s29, s%d, 2" % S_TEAM); e("s_lshl_b32 s29, s29, 2"); e("s_add_u32 s28, s28, s29"); e("s_add_u32 s28, s28, 16")
        e("v_mov_b32 v32, s28"); e("v_mov_b32 v33, 1")
        e("global_atomic_add v32, v33, s[24:25] sc1")
        e("s_mov_b64 exec, s[26:27]")
        lab(lx)
    if OPT.get("warm", 1):
        e("s_sub_u32 s28, s%d, 1" % S_TEAM); e("s_lshl_b32 s28, s28, 5"); e("s_add_u32 s28, s28, s%d" % S_HEAD); e("s_lshl_b32 s28, s28, 2"); e("s_add_u32 s28, s28, s%d" % S_WAVE)
        e("s_mul_i32 s28, s28, 5120")
        for which, base in ((0, 100), (3, 104)):
            p = S_PW + 2 * which
            e("s_mov_b32 s8, s%d" % p); e("s_mov_b32 s9, s%d" % (p + 1)); e("s_mov_b32 s10, 0x400000"); e("s_mov_b32 s11, 0x20000")
            for i in range(5):
                e("s_add_u32 s29, s28, %d" % (i * 1024))
                e("buffer_load_dwordx4 %s, v%d, s[8:11], s29 offen" % (vr(base, 4), V_L16))
    e("s_mov_b32 s%d, s%d" % (S_RANK, S_HEAD))
    e("s_sub_u32 s28, s%d, 1" % S_TEAM); e("s_lshl_b32 s28, s28, 5"); e("s_add_u32 s28, s28, s%d" % S_HEAD)
    e("s_mul_i32 s29, s28, 9363"); e("s_lshr_b32 s%d, s29, 16" % S_HEAD); e("s_mul_i32 s29, s%d, 7" % S_HEAD); e("s_sub_u32 s%d, s28, s29" % S_SUB)
    e("s_lshl_b32 s%d, s%d, 13" % (S_H13, S_HEAD)); e("s_lshl_b32 s%d, s%d, 8" % (S_H8, S_HEAD))
    e("s_cmp_eq_u32 s%d, 0" % S_SUB); e("s_cselect_b32 s%d, 10, 9" % S_NSEG)
    load_setup(32768)
    uk = units_qkv(1, "a", 128); uv = units_qkv(2, "v", 128)
    for u in uk + uv: u["perm"] = False
    rt(2)
    load_units(uk + uv, 8)
    e("s_barrier")
    rt(3)
    def xt_dma(seg_sgpr, buf_sgpr):
        e("s_lshr_b32 s28, s%d, 1" % S_WAVE); e("s_lshl_b32 s29, s%d, 15" % seg_sgpr); e("s_lshl_b32 s30, s28, 14"); e("s_add_u32 s29, s29, s30")
        e("s_and_b32 s30, s%d, 1" % S_WAVE); e("s_lshl_b32 s31, s30, 9"); e("s_add_u32 s29, s29, s31")
        e("s_lshl_b32 s31, s%d, 13" % S_WAVE); e("s_add_u32 s31, s31, s%d" % buf_sgpr)
        for i in range(8):
            e("s_add_u32 m0, s31, %d" % (i * 1024)); e("s_add_u32 s30, s29, %d" % (i * 64))
            e("buffer_load_dwordx4 v1, s[12:15], s30 offen lds")
    e("s_mov_b32 s%d, s%d" % (S_SEG, S_SUB)); e("s_mov_b32 s%d, 0" % S_K); e("s_mov_b32 s%d, 0" % S_XB)
    xt_dma(S_SEG, S_XB)
    if OPT["stage"] >= 2:
        wait_dbg_counter(24, 32, "L_x1_init")
    AK, AV, XF, PK = 40, 56, 72, 88
    lab("L_x1")
    e("s_waitcnt vmcnt(4)")
    l0 = A.newlab("L_x1a")
    e("s_cmp_lg_u32 s%d, 0" % S_K); e("s_cbranch_scc1 %s" % l0); e("s_waitcnt vmcnt(0)"); lab(l0)
    e("s_barrier")
    lf = A.newlab("L_x1f")
    e("s_cmp_lt_u32 s%d, 2" % S_K); e("s_cbranch_scc1 %s" % lf)
    e("s_cmp_lg_u32 s%d, 0" % S_WAVE); e("s_cbranch_scc1 %s" % lf)
    e("s_sub_u32 s28, s%d, 1" % S_K); e("v_mov_b32 v32, s28"); e("v_mov_b32 v33, 0")
    e("s_lshl_b32 s28, s%d, 7" % S_SUB); e("s_lshl_b32 s29, s%d, 2" % S_HEAD); e("s_add_u32 s28, s28, s29"); e("s_add_u32 s28, s28, %d" % (FL_KV + 128))
    e("s_mov_b64 exec, 1"); e("buffer_store_dword v32, v33, s[4:7], s28 offen sc0 sc1"); e("s_mov_b64 exec, s[26:27]")
    lab(lf)
    ln = A.newlab("L_x1n")
    e("s_add_u32 s32, s%d, 1" % S_K); e("s_cmp_ge_u32 s32, s%d" % S_NSEG); e("s_cbranch_scc1 %s" % ln)
    e("s_add_u32 s33, s%d, 7" % S_SEG); e("s_xor_b32 s36, s%d, 32768" % S_XB)
    xt_dma(33, 36)
    lab(ln)
    e("v_add_u32 v2, s%d, v5" % S_XB)
    A.lds = []
    def rdx(kk):
        for tt in range(2):
            A.ds("ds_read_b128 %s, v2 offset:%d" % (vr(XF + (kk % 2) * 8 + tt * 4, 4), (tt * 16 + kk) * 1024), ("x", kk))
    rdx(0); rdx(1)
    for kk in range(16):
        A.wait_lds(("x", kk))
        t, b = kk >> 1, kk & 1
        for u in range(2):
            for tt in range(2):
                xf = vr(XF + (kk % 2) * 8 + tt * 4, 4)
                ck = "0" if kk == 0 else vr(AK + (u * 2 + tt) * 4, 4)
                cv = "0" if kk == 0 else vr(AV + (u * 2 + tt) * 4, 4)
                e("v_mfma_f32_16x16x32_bf16 %s, %s, %s, %s" % (vr(AK + (u * 2 + tt) * 4, 4), ar(128 + (u * 8 + t) * 8 + 4 * b, 4), xf, ck))
                e("v_mfma_f32_16x16x32_bf16 %s, %s, %s, %s" % (vr(AV + (u * 2 + tt) * 4, 4), xf, vr(128 + (u * 8 + t) * 8 + 4 * b, 4), cv))
        if kk + 2 < 16: rdx(kk + 2)
    A.nop(8)
    for tt in range(2):
        for u in range(2):
            a0 = AK + (u * 2 + tt) * 4
            e("v_cvt_pk_bf16_f32 v%d, v%d, v%d" % (PK + tt * 4 + 2 * u, a0, a0 + 1)); e("v_cvt_pk_bf16_f32 v%d, v%d, v%d" % (PK + tt * 4 + 2 * u + 1, a0 + 2, a0 + 3))
    for u in range(2):
        for tt in range(2):
            a0 = AV + (u * 2 + tt) * 4
            e("v_cvt_pk_bf16_f32 v%d, v%d, v%d" % (PK + 8 + u * 4 + 2 * tt, a0, a0 + 1)); e("v_cvt_pk_bf16_f32 v%d, v%d, v%d" % (PK + 8 + u * 4 + 2 * tt + 1, a0 + 2, a0 + 3))
    e("s_lshl_b32 s28, s%d, 18" % S_SEG); e("s_add_u32 s28, s28, s%d" % S_H13)
    e("s_lshl_b32 s29, s%d, 10" % S_WAVE); e("s_add_u32 s29, s29, s28"); e("s_add_u32 s30, s29, %d" % (WS_KX + 4096)); e("s_add_u32 s29, s29, %d" % WS_KX)
    e("buffer_store_dwordx4 %s, v%d, s[4:7], s29 offen sc0 sc1" % (vr(PK, 4), V_L16))
    e("buffer_store_dwordx4 %s, v%d, s[4:7], s30 offen sc0 sc1" % (vr(PK + 4, 4), V_L16))
    e("s_lshl_b32 s29, s%d, 11" % S_WAVE); e("s_add_u32 s29, s29, s28"); e("s_add_u32 s29, s29, %d" % WS_VX)
    e("buffer_store_dwordx4 %s, v%d, s[4:7], s29 offen sc0 sc1" % (vr(PK + 8, 4), V_L16))
    e("buffer_store_dwordx4 %s, v%d, s[4:7], s29 offen offset:1024 sc0 sc1" % (vr(PK + 12, 4), V_L16))
    e("s_add_u32 s%d, s%d, 7" % (S_SEG, S_SEG)); e("s_xor_b32 s%d, s%d, 32768" % (S_XB, S_XB)); e("s_add_u32 s%d, s%d, 1" % (S_K, S_K))
    e("s_cmp_lt_u32 s%d, s%d" % (S_K, S_NSEG)); e("s_cbranch_scc1 L_x1")
    e("s_waitcnt vmcnt(0)"); e("s_barrier")
    rt(4)
    lf = A.newlab("L_x1g")
    e("s_cmp_lg_u32 s%d, 0" % S_WAVE); e("s_cbranch_scc1 %s" % lf)
    e("v_mov_b32 v32, s%d" % S_NSEG); e("v_mov_b32 v33, 0")
    e("s_lshl_b32 s28, s%d, 7" % S_SUB); e("s_lshl_b32 s29, s%d, 2" % S_HEAD); e("s_add_u32 s28, s28, s29"); e("s_add_u32 s28, s28, %d" % (FL_KV + 128))
    e("s_mov_b64 exec, 1"); e("buffer_store_dword v32, v33, s[4:7], s28 offen sc0 sc1"); e("s_mov_b64 exec, s[26:27]")
    lab(lf)
    e("s_waitcnt vmcnt(0)")
    if OPT["stage"] < 3:
        e("s_branch L_end"); return
    xphase2()

hdr = []
if OPT["final"]:
    hdr.append("; Fused kernel: branch A (short conv + long causal conv as Toeplitz MFMA) and branch B (memory-recurrent attention).")
    hdr.append("; One persistent workgroup per CU. Workgroups form teams by the XCD they actually run on (HW_REG_XCC_ID):")
hdr.append("; @launch grid=(256,1,1) block=(256,1,1) lds=%d" % LDS_TOTAL)
hdr.append('.amdgcn_target "amdgcn-amd-amdhsa--gfx950"')
hdr.append(".text\n.globl %s\n.p2align 8\n.type %s,@function\n%s:" % (KNAME, KNAME, KNAME))
prologue()
e("s_cmp_eq_u32 s%d, 0" % S_TEAM); e("s_cbranch_scc1 L_chain")
if OPT["stage"] >= 2: e("s_branch L_xteam")
else: e("s_branch L_end")
chain()
if OPT["stage"] >= 2: xteam()
lab("L_end")
e("s_endpgm")
tail = '''.section .rodata,"a"
.p2align 6
.amdhsa_kernel %s
  .amdhsa_next_free_vgpr 512
  .amdhsa_next_free_sgpr 102
  .amdhsa_accum_offset 256
  .amdhsa_group_segment_fixed_size 0
  .amdhsa_kernarg_size 128
  .amdhsa_user_sgpr_count 2
  .amdhsa_user_sgpr_kernarg_segment_ptr 1
  .amdhsa_system_sgpr_workgroup_id_x 1
.end_amdhsa_kernel
''' % KNAME
open(OUTP, "w").write("\n".join(hdr) + "\n" + A.text() + tail)
print("wrote", OUTP, len(A.L), "lines")
```

```python
import sys, os, struct, math
sys.path.insert(0, os.path.dirname(os.path.abspath(__file__)))
from asmlib import *

KNAME = "concat_heads__ssm_conv_h3__memory_aug_recurrent_mem_tr__prompt_kernel"
OPT = dict(final=0, nowait=0, stage=1, hist=0, stamps=0, nsteps=64, dly_red=0, dly_mem=0, slp=32)
for a in sys.argv[1:]:
    if "=" in a:
        k, v = a.split("="); OPT[k] = int(v) if v.lstrip("-").isdigit() else v
OUTP = OPT.get("out", "chain.s")

KA = dict(q=0, k=8, v=16, shift=24, ssmk=32, ssmd=40, x=48, mem0=56, wq=64, wk=72, wv=80, wo=88, seg=96, out=104, dbg=112, ws=120)
WS_KX = 0x0000000
WS_VX = 0x1000000
WS_KM = 0x2000000
WS_VM = 0x3000000
WS_PB = 0x2C00000
WS_MB = 0x2CC0000
WS_FL = 0x2CD0000
WS_HIST = 0x2D00000
WS_STAMP = 0x2E00000
WS_XP = 0x4000000
FL_KV, FL_KM, FL_XP = WS_FL, WS_FL + 1024, WS_FL + 2048
WVSTRIDE = 28672
L_KX, L_VX, L_MEM, L_X, L_O, L_SEL, L_DUM = 114688, 131072, 147456, 155648, 159744, 161792, 162816
LDS_TOTAL = 163840
S_WS = 4
S_W = 8
S_XCC, S_WAVE, S_HEAD, S_TEAM = 20, 21, 22, 23
S_DBG = 24
S_ALL = 26
S_STEP, S_MCUR, S_MNXT, S_PCUR, S_RED, S_MQ, S_KXO, S_VXO = 40, 41, 42, 43, 44, 45, 46, 47
S_DMA = 39
S_LO8 = 48
S_LO32 = 50
S_C, S_SPIN, S_FIRST, S_PAR = 52, 53, 54, 55
S_PW = 56
S_ST = 64
S_MPREV, S_H13, S_H8, S_PPREV = 96, 97, 98, 99
S_RDY = 100
S_TAG = 99
V_L16, V_XWR, V_OWR, V_PS0, V_IDX, V_WVA = 0, 1, 2, 3, 4, 5
VT = 6
V_KX = 12
V_LD = 12
V_S = 28
V_MEM = 40
V_QK = 72
V_VA = 88
V_WVR = 96
V_WV0 = 112
V_WO = 128
VLANE = 30
VS = 32

A = Asm()
e, c, lab = A.e, A.c, A.lab
def v(i): return "v%d" % i

def srd(base_s, ptr_s, size):
    e("s_mov_b32 s%d, s%d" % (base_s, ptr_s)); e("s_mov_b32 s%d, s%d" % (base_s + 1, ptr_s + 1))
    e("s_mov_b32 s%d, 0x%x" % (base_s + 2, size)); e("s_mov_b32 s%d, 0x20000" % (base_s + 3))

TS = [int(x) for x in str(OPT.get("ts", "")).split(",") if x != ""]
def ts(i):
    if i in TS:
        k = TS.index(i)
        e("%s s[%d:%d]" % ("s_memrealtime" if OPT.get("rts", 0) else "s_memtime", 64 + 2 * k, 65 + 2 * k))
def stamp(i, lvl=1):
    ts(i)
    if OPT["stamps"] < lvl: return
    if OPT["stamps"] == 2 and lvl == 1: pass
    e("s_memtime s[82:83]"); e("s_waitcnt lgkmcnt(0)"); A.lds = []
    e("s_sub_u32 s81, s82, s80"); e("s_add_u32 s%d, s%d, s81" % (S_ST + i, S_ST + i)); e("s_mov_b32 s80, s82")

def bar_off(t): return (t & 3) * 64 + 16 + (t >> 2) * 4
WS_TRACE = 0x2F00000
def rtk(i, kreg, kval):
    if not OPT.get("trace", 0): return
    l = A.newlab("L_rtk")
    e("s_cmp_lg_u32 s%d, %d" % (kreg, kval)); e("s_cbranch_scc1 %s" % l)
    rt(i)
    lab(l)
def rt(i):
    if not OPT.get("trace", 0): return
    l = A.newlab("L_rt")
    e("s_cmp_lg_u32 s%d, 0" % S_WAVE); e("s_cbranch_scc1 %s" % l)
    e("s_memrealtime s[90:91]"); e("s_waitcnt lgkmcnt(0)")
    e("s_add_u32 s28, s93, %d" % (WS_TRACE + 4 * i))
    e("s_mov_b64 exec, 1"); e("v_mov_b32 v10, s90"); e("v_mov_b32 v11, 0"); e("buffer_store_dword v10, v11, s[4:7], s28 offen"); e("s_mov_b64 exec, s[26:27]")
    lab(l)
def prologue():
    e("s_cmp_ge_u32 s2, 256"); e("s_cbranch_scc1 L_end")
    if OPT.get("trace", 0): e("s_memrealtime s[94:95]")
    e("s_load_dwordx2 s[24:25], s[0:1], %d" % KA["dbg"])
    e("s_load_dwordx2 s[28:29], s[0:1], %d" % KA["ws"])
    e("s_load_dwordx4 s[56:59], s[0:1], %d" % KA["wq"])
    e("s_load_dwordx4 s[60:63], s[0:1], %d" % KA["wv"])
    e("s_getreg_b32 s%d, hwreg(HW_REG_XCC_ID)" % S_XCC)
    e("s_and_b32 s%d, s%d, 15" % (S_XCC, S_XCC))
    e("v_lshrrev_b32 v1, 6, v0"); e("s_nop 0"); e("v_readfirstlane_b32 s%d, v1" % S_WAVE)
    e("v_and_b32 v%d, 63, v0" % VLANE)
    e("s_mov_b64 s[26:27], exec")
    e("s_waitcnt lgkmcnt(0)")
    srd(S_WS, 28, 0x10000000)
    e("s_cmp_lg_u32 s%d, 0" % S_WAVE); e("s_cbranch_scc1 L_roles_wait")
    e("s_mov_b64 exec, 1")
    e("s_and_b32 s28, s%d, 3" % S_XCC); e("s_lshl_b32 s28, s28, 6"); e("s_lshr_b32 s29, s%d, 2" % S_XCC); e("s_lshl_b32 s29, s29, 2"); e("s_add_u32 s28, s28, s29")
    e("v_mov_b32 v3, s28"); e("v_mov_b32 v4, 1")
    e("global_atomic_add v5, v3, v4, s[24:25] sc0 sc1"); e("s_waitcnt vmcnt(0)")
    e("v_mov_b32 v3, %d" % L_DUM)
    e("ds_write_b32 v3, v5"); e("s_waitcnt lgkmcnt(0)")
    e("s_mov_b64 exec, s[26:27]")
    lab("L_roles_wait")
    e("s_barrier")
    e("v_mov_b32 v3, %d" % L_DUM); e("ds_read_b32 v4, v3"); e("s_waitcnt lgkmcnt(0)")
    e("v_readfirstlane_b32 s%d, v4" % S_HEAD); e("s_mov_b32 s%d, s%d" % (S_TEAM, S_XCC))
    e("s_barrier")
    e("s_cmp_ge_u32 s%d, 32" % S_HEAD); e("s_cbranch_scc1 L_end")
    e("s_cmp_ge_u32 s%d, 8" % S_TEAM); e("s_cbranch_scc1 L_end")
    e("s_lshl_b32 s%d, s%d, 13" % (S_H13, S_HEAD)); e("s_lshl_b32 s%d, s%d, 8" % (S_H8, S_HEAD))
    if OPT.get("trace", 0):
        l = A.newlab("L_rt")
        e("s_lshl_b32 s93, s%d, 5" % S_TEAM); e("s_add_u32 s93, s93, s%d" % S_HEAD); e("s_lshl_b32 s93, s93, 6")
        e("s_cmp_lg_u32 s%d, 0" % S_WAVE); e("s_cbranch_scc1 %s" % l)
        e("s_add_u32 s28, s93, %d" % WS_TRACE)
        e("s_mov_b64 exec, 1"); e("v_mov_b32 v10, s94"); e("v_mov_b32 v11, 0"); e("buffer_store_dword v10, v11, s[4:7], s28 offen"); e("s_mov_b64 exec, s[26:27]")
        lab(l)
    rt(1)

LW_VQ, LW_VO, LW_A0, LW_A1, LW_AO = 40, 41, 43, 44, 45
LW_WB = 53
LW_TMP = 72
def load_setup(wave_stride):
    L = VLANE; a, b_, c_, d_, f_ = VS, VS + 1, VS + 2, VS + 3, VS + 4
    e("s_mul_i32 s34, s%d, %d" % (S_WAVE, wave_stride))
    e("s_lshl_b32 s36, s%d, 20" % S_WAVE)
    e("v_lshrrev_b32 v%d, 2, v%d" % (a, L)); e("v_lshlrev_b32 v%d, 13, v%d" % (b_, a))
    e("v_lshrrev_b32 v%d, 5, v%d" % (c_, L)); e("v_lshlrev_b32 v%d, 1, v%d" % (c_, c_))
    e("v_and_b32 v%d, 3, v%d" % (d_, L)); e("v_xor_b32 v%d, v%d, v%d" % (d_, d_, c_)); e("v_lshlrev_b32 v%d, 4, v%d" % (d_, d_))
    e("v_add_u32 v%d, v%d, v%d" % (b_, b_, d_))
    e("s_lshl_b32 s29, s%d, 6" % S_WAVE); e("s_add_u32 s28, s%d, s29" % S_H8)
    e("v_add_u32 v%d, s28, v%d" % (LW_VQ, b_))
    e("v_lshrrev_b32 v%d, 4, v%d" % (a, L)); e("v_lshlrev_b32 v%d, 10, v%d" % (b_, a))
    e("s_lshl_b32 s28, s%d, 8" % S_WAVE); e("v_add_u32 v%d, s28, v%d" % (b_, b_))
    e("v_and_b32 v%d, 1, v%d" % (c_, a)); e("v_lshrrev_b32 v%d, 1, v%d" % (f_, a)); e("v_lshlrev_b32 v%d, 3, v%d" % (f_, f_)); e("v_add_u32 v%d, v%d, v%d" % (c_, c_, f_))
    e("v_and_b32 v%d, 15, v%d" % (d_, L)); e("v_xor_b32 v%d, v%d, v%d" % (d_, d_, c_)); e("v_lshlrev_b32 v%d, 4, v%d" % (d_, d_))
    e("v_add_u32 v%d, v%d, v%d" % (LW_VO, b_, d_))
    e("v_lshrrev_b32 v%d, 5, v%d" % (a, L)); e("v_lshlrev_b32 v%d, 10, v%d" % (a, a))
    e("v_bfe_u32 v%d, v%d, 4, 1" % (b_, L)); e("v_lshlrev_b32 v%d, 9, v%d" % (c_, b_)); e("v_add_u32 v%d, v%d, v%d" % (a, a, c_))
    e("v_bfe_u32 v%d, v%d, 2, 2" % (c_, L)); e("v_lshlrev_b32 v%d, 6, v%d" % (c_, c_)); e("v_add_u32 v%d, v%d, v%d" % (a, a, c_))
    e("v_and_b32 v%d, 3, v%d" % (c_, L)); e("v_lshlrev_b32 v%d, 3, v%d" % (c_, c_)); e("v_add_u32 v%d, v%d, v%d" % (a, a, c_))
    e("v_add_u32 v%d, s34, v%d" % (a, a))
    e("v_lshlrev_b32 v%d, 5, v%d" % (c_, b_)); e("v_add_u32 v%d, v%d, v%d" % (LW_A0, a, c_))
    e("v_xor_b32 v%d, 32, v%d" % (c_, c_)); e("v_add_u32 v%d, v%d, v%d" % (LW_A1, a, c_))
    e("v_lshrrev_b32 v%d, 4, v%d" % (a, L)); e("v_lshlrev_b32 v%d, 10, v%d" % (a, a))
    e("v_bfe_u32 v%d, v%d, 2, 2" % (c_, L)); e("v_lshlrev_b32 v%d, 8, v%d" % (d_, c_)); e("v_add_u32 v%d, v%d, v%d" % (a, a, d_))
    e("v_and_b32 v%d, 3, v%d" % (d_, L)); e("v_lshlrev_b32 v%d, 5, v%d" % (d_, d_)); e("v_add_u32 v%d, v%d, v%d" % (a, a, d_))
    e("v_add_u32 v%d, s34, v%d" % (a, a))
    e("v_bfe_u32 v%d, v%d, 3, 1" % (b_, L)); e("v_lshlrev_b32 v%d, 7, v%d" % (b_, b_))
    e("v_bfe_u32 v%d, v%d, 2, 1" % (c_, L)); e("v_lshlrev_b32 v%d, 4, v%d" % (c_, c_))
    for G in range(2):
        for Th in range(2):
            e("v_xor_b32 v%d, %d, v%d" % (d_, G * 128, b_)); e("v_xor_b32 v%d, %d, v%d" % (f_, Th * 16, c_))
            e("v_add_u32 v%d, v%d, v%d" % (d_, d_, f_)); e("v_add_u32 v%d, v%d, v%d" % (LW_AO + 2 * G + Th, a, d_))
    e("v_lshlrev_b32 v%d, 4, v%d" % (a, L)); e("v_add_u32 v%d, s34, v%d" % (LW_WB, a))

def reg(kind, n, cnt):
    return ar(n, cnt) if kind == "a" else vr(n, cnt)

def load_units(units, NS, hooks={}):
    cur_srd = [None]
    def set_srd(which):
        if cur_srd[0] == which: return
        cur_srd[0] = which
        p = S_PW + 2 * which
        e("s_mov_b32 s8, s%d" % p); e("s_mov_b32 s9, s%d" % (p + 1)); e("s_mov_b32 s10, 0x400000"); e("s_mov_b32 s11, 0x20000")
    def issue(n):
        u = units[n]; slot = n % NS
        set_srd(u["m"])
        for i in range(4):
            e("s_add_u32 m0, s34, %d" % (slot * 4096 + i * 1024))
            if u["kind"] == "qkv":
                if u.get("perm", True):
                    e("s_xor_b32 s28, s36, %d" % (u["t"] << 19)); e("s_add_u32 s28, s28, %d" % (i * 131072))
                else:
                    e("s_mov_b32 s28, %d" % ((64 * u["t"] + 16 * i) * 8192))
                A.vmem("buffer_load_dwordx4 v%d, s[8:11], s28 offen lds" % LW_VQ, ("w", n))
            else:
                qd = 2 * u["b"] + u["hb"]
                e("s_add_u32 s28, s35, %d" % ((64 * u["t"] + 16 * qd + 4 * i) * 1024))
                A.vmem("buffer_load_dwordx4 v%d, s[8:11], s28 offen lds" % LW_VO, ("w", n))
    e("s_lshl_b32 s35, s%d, 17" % S_HEAD)
    for n in range(min(NS, len(units))): issue(n)
    if "start" in hooks: hooks["start"]()
    for n, u in enumerate(units):
        slot = n % NS
        A.wait_vm(("w", n))
        if u["kind"] == "qkv":
            for uu in range(2):
                for b in range(2):
                    for hb in range(2):
                        if u["dest"] == "lds": d = vr(LW_TMP + uu * 8 + 4 * b + 2 * hb, 2)
                        elif u["dest"] == "flat": d = vr(u["base"] + uu * 8 + 4 * b + 2 * hb, 2)
                        else: d = reg(u["dest"], u["base"] + (uu * 8 + u["t"]) * 8 + 4 * b + 2 * hb, 2)
                        A.ds("ds_read_b64_tr_b16 %s, v%d offset:%d" % (d, LW_A0 + uu, slot * 4096 + b * 2048 + hb * 256), "tr")
            A.wait_lds_all()
            if u["dest"] == "lds":
                u["slot"] = slot
                for uu in range(2):
                    for b in range(2):
                        A.ds("ds_write_b128 v%d, %s offset:%d" % (LW_WB, vr(LW_TMP + uu * 8 + 4 * b, 4), slot * 4096 + uu * 2048 + b * 1024), "wb")
                A.wait_lds_all()
        else:
            for nt in range(8):
                d = reg(u["dest"], u["base"] + (nt * 2 + u["t"]) * 8 + 4 * u["b"] + 2 * u["hb"], 2)
                G, T = nt >> 2, nt & 3
                A.ds("ds_read_b64_tr_b16 %s, v%d offset:%d" % (d, LW_AO + 2 * G + (T >> 1), slot * 4096 + (T & 1) * 8), "tr")
            A.wait_lds_all()
        if n in hooks: hooks[n]()
        if n + NS < len(units): issue(n + NS)

def load_units_reg(units, hooks={}, maxfly=60):
    SCR = 54
    SA0, SA1, SAO = 55, 56, 57
    SAOr = [57, 58, 59, 64]
    e("s_lshl_b32 s28, s%d, 13" % S_WAVE); e("s_add_u32 s28, s28, %d" % L_KX); e("s_sub_u32 s29, s28, s34")
    e("v_add_u32 v%d, s28, v%d" % (SCR, V_L16))
    e("v_add_u32 v%d, s29, v%d" % (SA0, LW_A0)); e("v_add_u32 v%d, s29, v%d" % (SA1, LW_A1))
    for k in range(4): e("v_add_u32 v%d, s29, v%d" % (SAOr[k], LW_AO + k))
    e("s_lshl_b32 s35, s%d, 17" % S_HEAD)
    cur_srd = [None]
    def set_srd(which):
        if cur_srd[0] == which: return
        cur_srd[0] = which
        p = S_PW + 2 * which
        e("s_mov_b32 s8, s%d" % p); e("s_mov_b32 s9, s%d" % (p + 1)); e("s_mov_b32 s10, 0x400000"); e("s_mov_b32 s11, 0x20000")
    def quads(u):
        if u["kind"] == "qkv":
            if u["dest"] == "flat": return [("v", u["base"] + 4 * i) for i in range(4)]
            b0 = u["base"] + u["t"] * 8
            return [(u["dest"], b0), (u["dest"], b0 + 4), (u["dest"], b0 + 64), (u["dest"], b0 + 68)]
        return [(u["dest"], u["base"] + (nt * 2 + u["t"]) * 8 + 4 * u["b"]) for nt in range(8)]
    def nloads(u): return 8 if u["kind"] == "wo" else 4
    def issue(n):
        u = units[n]; set_srd(u["m"])
        if u["kind"] == "qkv":
            for i in range(4):
                e("s_xor_b32 s28, s36, %d" % (u["t"] << 19)); e("s_add_u32 s28, s28, %d" % (i * 131072))
                if u["dest"] == "lds":
                    e("s_add_u32 m0, s34, %d" % (u["slot"] * 4096 + i * 1024)); e("s_nop 0")
                    A.vmem("buffer_load_dwordx4 v%d, s[8:11], s28 offen lds" % LW_VQ, ("w", n))
                else:
                    k, r = quads(u)[i]
                    A.vmem("buffer_load_dwordx4 %s, v%d, s[8:11], s28 offen" % (reg(k, r, 4), LW_VQ), ("w", n))
        else:
            for hb in range(2):
                for i in range(4):
                    qd = 2 * u["b"] + hb
                    e("s_add_u32 s28, s35, %d" % ((64 * u["t"] + 16 * qd + 4 * i) * 1024))
                    k, r = quads(u)[hb * 4 + i]
                    A.vmem("buffer_load_dwordx4 %s, v%d, s[8:11], s28 offen" % (reg(k, r, 4), LW_VO), ("w", n))
    nxt = [0]; fly = [0]
    def pump():
        while nxt[0] < len(units) and fly[0] + nloads(units[nxt[0]]) <= maxfly:
            issue(nxt[0]); fly[0] += nloads(units[nxt[0]]); nxt[0] += 1
    pump()
    for n, u in enumerate(units):
        A.wait_vm(("w", n)); fly[0] -= nloads(u)
        if u["kind"] == "qkv" and u["dest"] == "lds":
            slot = u["slot"]
            for uu in range(2):
                for b in range(2):
                    for hb in range(2):
                        A.ds("ds_read_b64_tr_b16 %s, v%d offset:%d" % (vr(LW_TMP + uu * 8 + 4 * b + 2 * hb, 2), LW_A0 + uu, slot * 4096 + b * 2048 + hb * 256), "tr")
            if n in hooks: hooks[n]()
            pump()
            A.wait_lds_all()
            for uu in range(2):
                for b in range(2):
                    A.ds("ds_write_b128 v%d, %s offset:%d" % (LW_WB, vr(LW_TMP + uu * 8 + 4 * b, 4), slot * 4096 + uu * 2048 + b * 1024), "wb")
            A.wait_lds_all()
        elif u["kind"] == "qkv":
            for i, (k, r) in enumerate(quads(u)):
                A.ds("ds_write_b128 v%d, %s offset:%d" % (SCR, reg(k, r, 4), i * 1024), "sw")
            if n in hooks: hooks[n]()
            pump()
            A.wait_lds_all()
            for uu in range(2):
                for b in range(2):
                    for hb in range(2):
                        if u["dest"] == "flat": d = vr(u["base"] + uu * 8 + 4 * b + 2 * hb, 2)
                        else: d = reg(u["dest"], u["base"] + (uu * 8 + u["t"]) * 8 + 4 * b + 2 * hb, 2)
                        A.ds("ds_read_b64_tr_b16 %s, v%d offset:%d" % (d, (SA0, SA1)[uu], b * 2048 + hb * 256), "tr")
            A.wait_lds_all()
        else:
            for i, (k, r) in enumerate(quads(u)):
                A.ds("ds_write_b128 v%d, %s offset:%d" % (SCR, reg(k, r, 4), i * 1024), "sw")
            if n in hooks: hooks[n]()
            pump()
            A.wait_lds_all()
            for hb in range(2):
                for nt in range(8):
                    G, T = nt >> 2, nt & 3
                    d = reg(u["dest"], u["base"] + (nt * 2 + u["t"]) * 8 + 4 * u["b"] + 2 * hb, 2)
                    A.ds("ds_read_b64_tr_b16 %s, v%d offset:%d" % (d, SAOr[2 * G + (T >> 1)], hb * 4096 + (T & 1) * 8), "tr")
            A.wait_lds_all()

def units_qkv(m, dest, base):
    return [dict(kind="qkv", m=m, t=t, dest=dest, base=base) for t in range(8)]
def units_wo(dest, base):
    return [dict(kind="wo", m=3, t=t, b=b, hb=hb, dest=dest, base=base) for t in range(2) for b in range(2) for hb in range(2)]

def pubaddr(dst, tmp):
    e("v_lshrrev_b32 v%d, 2, v%d" % (dst, V_L16)); e("v_and_b32 v%d, 0xc0, v%d" % (dst, dst))
    e("v_lshlrev_b32 v%d, 1, v%d" % (tmp, V_L16)); e("v_and_b32 v%d, 32, v%d" % (tmp, tmp)); e("v_add_u32 v%d, v%d, v%d" % (dst, dst, tmp))
    e("v_lshrrev_b32 v%d, 3, v%d" % (tmp, V_L16)); e("v_and_b32 v%d, 28, v%d" % (tmp, tmp)); e("v_add_u32 v%d, v%d, v%d" % (dst, dst, tmp))

def chain():
    L = VLANE; a, b_, c_, d_ = VS, VS + 1, VS + 2, VS + 3
    lab("L_chain")
    e("v_lshlrev_b32 v%d, 4, v%d" % (V_L16, L))
    e("s_mul_i32 s28, s%d, %d" % (S_WAVE, WVSTRIDE)); e("v_add_u32 v%d, s28, v%d" % (V_WVA, V_L16))
    e("v_and_b32 v%d, 15, v%d" % (a, L)); e("v_lshlrev_b32 v%d, 5, v%d" % (a, a)); e("v_lshrrev_b32 v%d, 4, v%d" % (b_, L)); e("v_lshlrev_b32 v%d, 3, v%d" % (b_, b_))
    e("v_add_u32 v%d, v%d, v%d" % (a, a, b_)); e("s_lshl_b32 s28, s%d, 10" % S_WAVE); e("s_add_u32 s28, s28, %d" % L_X); e("v_add_u32 v%d, s28, v%d" % (V_XWR, a))
    e("v_lshrrev_b32 v%d, 5, v%d" % (a, L)); e("v_lshlrev_b32 v%d, 8, v%d" % (a, a))
    e("v_bfe_u32 v%d, v%d, 2, 2" % (b_, L)); e("v_lshlrev_b32 v%d, 6, v%d" % (b_, b_)); e("v_add_u32 v%d, v%d, v%d" % (a, a, b_))
    e("v_and_b32 v%d, 1, v%d" % (b_, L)); e("v_lshlrev_b32 v%d, 5, v%d" % (b_, b_)); e("v_add_u32 v%d, v%d, v%d" % (a, a, b_))
    e("v_bfe_u32 v%d, v%d, 4, 1" % (b_, L)); e("v_lshlrev_b32 v%d, 3, v%d" % (b_, b_)); e("v_add_u32 v%d, v%d, v%d" % (a, a, b_))
    e("s_lshr_b32 s28, s%d, 1" % S_WAVE); e("s_lshl_b32 s28, s28, 10"); e("s_and_b32 s29, s%d, 1" % S_WAVE); e("s_lshl_b32 s29, s29, 9")
    e("s_add_u32 s28, s28, s29"); e("s_add_u32 s28, s28, %d" % L_O); e("v_add_u32 v%d, s28, v%d" % (a, a))
    e("v_and_b32 v%d, 2, v%d" % (b_, L)); e("v_cmp_ne_u32 vcc, 0, v%d" % b_)
    e("v_lshlrev_b32 v%d, 3, v%d" % (b_, L)); e("v_add_u32 v%d, %d, v%d" % (b_, L_DUM, b_))
    e("s_nop 0")
    e("v_cndmask_b32 v%d, v%d, v%d, vcc" % (V_OWR, b_, a))
    e("v_and_b32 v%d, 8, v%d" % (b_, L)); e("v_cmp_eq_u32 s[48:49], 0, v%d" % b_)
    e("v_bfe_u32 v%d, v%d, 2, 2" % (a, L)); e("s_lshl_b32 s28, s%d, 3" % S_WAVE); e("v_add_u32 v%d, s28, v%d" % (a, a))
    e("v_add_u32 v%d, s%d, v%d" % (c_, S_HEAD, a)); e("v_and_b32 v%d, 31, v%d" % (c_, c_)); e("v_lshlrev_b32 v%d, 8, v%d" % (c_, c_))
    e("v_lshlrev_b32 v%d, 13, v%d" % (a, a)); e("v_add_u32 v%d, v%d, v%d" % (a, a, c_))
    e("v_lshrrev_b32 v%d, 4, v%d" % (b_, L)); e("v_lshlrev_b32 v%d, 6, v%d" % (b_, b_)); e("v_add_u32 v%d, v%d, v%d" % (a, a, b_))
    e("v_and_b32 v%d, 3, v%d" % (b_, L)); e("v_lshlrev_b32 v%d, 4, v%d" % (b_, b_)); e("v_add_u32 v%d, v%d, v%d" % (V_PS0, a, b_))
    e("v_and_b32 v%d, 1, v%d" % (c_, L)); e("v_cmp_eq_u32 vcc, 0, v%d" % c_)
    e("v_mov_b32 v%d, 0xEEEEEEEE" % a); e("v_mov_b32 v%d, 0x44444444" % b_); e("v_cndmask_b32 v%d, v%d, v%d, vcc" % (V_IDX, a, b_))
    cval = struct.unpack("<I", struct.pack("<f", (128 ** -0.5) * math.log2(math.e)))[0]
    e("s_mov_b32 s%d, 0x%08x" % (S_C, cval))
    e("v_and_b32 v%d, 1, v%d" % (a, L)); e("v_lshlrev_b32 v%d, 4, v%d" % (a, a)); e("v_mov_b32 v%d, 0x3f80" % b_); e("v_lshlrev_b32 v%d, v%d, v%d" % (b_, a, b_))
    e("v_bfe_u32 v%d, v%d, 1, 2" % (a, L))
    for i in range(4):
        e("v_cmp_eq_u32 vcc, %d, v%d" % (i, a)); e("s_nop 1"); e("v_cndmask_b32 v%d, 0, v%d, vcc" % (12 + i, b_))
    e("v_add_u32 v%d, %d, v%d" % (a, L_SEL, V_L16))
    IPUB, IM0 = 60, 61
    e("ds_write_b128 v%d, v[12:15]" % a); e("s_waitcnt lgkmcnt(0)")
    def hook_start():
        pubaddr(60, c_)
        e("s_cmp_lg_u32 s%d, 0" % S_WAVE); e("s_cbranch_scc1 L_noinit")
        IPUB, IM0 = 60, 61
        e("s_load_dwordx2 s[30:31], s[0:1], %d" % KA["mem0"])
        e("v_lshrrev_b32 v%d, 4, v%d" % (a, L)); e("v_lshlrev_b32 v%d, 11, v%d" % (a, a))
        e("v_and_b32 v%d, 1, v%d" % (b_, L)); e("v_lshlrev_b32 v%d, 10, v%d" % (b_, b_)); e("v_add_u32 v%d, v%d, v%d" % (a, a, b_))
        e("v_bfe_u32 v%d, v%d, 1, 2" % (b_, L)); e("v_lshlrev_b32 v%d, 3, v%d" % (b_, b_)); e("v_add_u32 v%d, v%d, v%d" % (a, a, b_))
        e("v_bfe_u32 v%d, v%d, 3, 1" % (b_, L)); e("v_lshlrev_b32 v%d, 2, v%d" % (b_, b_)); e("v_add_u32 v%d, v%d, v%d" % (a, a, b_))
        e("s_lshl_b32 s29, s%d, 5" % S_HEAD); e("v_add_u32 v%d, s29, v%d" % (a, a))
        e("s_waitcnt lgkmcnt(0)")
        e("global_load_dword v%d, v%d, s[30:31]" % (IM0, a))
        for i in range(4): e("v_mov_b32 v%d, -1" % (12 + i))
        for b in range(2):
            for half in range(2):
                e("s_add_u32 s29, s%d, %d" % (S_H13, WS_PB + b * 0x40000 + half * 4096))
                for x in range(4):
                    e("buffer_store_dwordx4 v[12:15], v%d, s[4:7], s29 offen offset:%d" % (V_L16, x * 1024))
        for b in (1, 2):
            e("s_add_u32 s29, s%d, %d" % (S_H8, WS_MB + b * 8192))
            e("buffer_store_dword v12, v%d, s[4:7], s29 offen" % IPUB)
        e("v_lshlrev_b32 v%d, 7, v%d" % (a, L)); e("v_mov_b32 v%d, 0" % b_)
        e("s_lshl_b32 s29, s%d, 2" % S_HEAD); e("s_add_u32 s29, s29, %d" % WS_FL)
        e("s_mov_b64 exec, 0x1ff")
        e("buffer_store_dword v%d, v%d, s[4:7], s29 offen sc0 sc1" % (b_, a))
        e("s_mov_b64 exec, s[26:27]")
        lab("L_noinit")

    def hook_mem0():
        l = A.newlab("L_hk")
        e("s_cmp_lg_u32 s%d, 0" % S_WAVE); e("s_cbranch_scc1 %s" % l)
        e("s_add_u32 s29, s%d, %d" % (S_H8, WS_MB))
        e("buffer_store_dword v%d, v%d, s[4:7], s29 offen" % (IM0, IPUB))
        e("s_mov_b64 exec, 1")
        e("v_mov_b32 v62, 24"); e("v_mov_b32 v63, 1"); e("global_atomic_add v62, v63, s[24:25] sc1")
        e("s_mov_b64 exec, s[26:27]")
        lab(l)
    def hook_arrive():
        l = A.newlab("L_hk")
        e("s_cmp_lg_u32 s%d, 0" % S_WAVE); e("s_cbranch_scc1 %s" % l)
        e("s_mov_b64 exec, 1")
        e("v_mov_b32 v62, %d" % bar_off(0)); e("v_mov_b32 v63, 1"); e("global_atomic_add v62, v63, s[24:25] sc1")
        e("s_mov_b64 exec, s[26:27]")
        lab(l)
    load_setup(WVSTRIDE)
    wvu = units_qkv(2, "lds", 0); wvu[0]["dest"] = "flat"; wvu[0]["base"] = V_WV0
    rt(2)
    if OPT.get("regload", 0):
        for t in range(1, 8): wvu[t]["slot"] = t - 1
        wo_units = [dict(kind="wo", m=3, t=t, b=b, dest="v", base=V_WO) for t in range(2) for b in range(2)]
        units = wvu[1:] + [wvu[0]] + units_qkv(0, "a", 0) + units_qkv(1, "a", 128) + wo_units
        load_units_reg(units, {0: hook_mem0, OPT.get('harr', 16): hook_arrive}, maxfly=OPT.get('maxfly', 40))
    else:
        units = units_qkv(0, "a", 0) + units_qkv(1, "a", 128) + units_wo("v", V_WO) + wvu
        load_units(units, 7, {'start': hook_start, 7: hook_mem0, 14: hook_arrive})
    rt(3)
    wvslot = {u["t"]: u["slot"] for u in wvu[1:]}
    e("s_cmp_lg_u32 s%d, 0" % S_WAVE); e("s_cbranch_scc1 L_tb_done")
    e("s_mov_b64 exec, 1")
    e("v_mov_b32 v%d, %d" % (a, bar_off(0))); e("s_mov_b32 s29, 0")
    lab("L_tb")
    e("global_load_dword v%d, v%d, s[24:25] sc0 sc1" % (b_, a)); e("s_waitcnt vmcnt(0)"); e("v_readfirstlane_b32 s30, v%d" % b_)
    e("s_add_u32 s29, s29, 1"); e("s_cmp_gt_u32 s29, 0x40000"); e("s_cbranch_scc1 L_tb2")
    e("s_cmp_lt_u32 s30, 32"); e("s_cbranch_scc1 L_tb")
    lab("L_tb2")
    e("s_mov_b64 exec, s[26:27]")
    lab("L_tb_done")
    e("s_mov_b32 s%d, 0" % S_STEP)
    e("s_mov_b32 s%d, %d" % (S_MCUR, WS_MB)); e("s_mov_b32 s%d, %d" % (S_MPREV, WS_MB + 2 * 8192)); e("s_mov_b32 s%d, %d" % (S_PCUR, WS_PB))
    e("s_add_u32 s%d, s%d, %d" % (S_KXO, S_H13, WS_KX)); e("s_add_u32 s%d, s%d, %d" % (S_VXO, S_H13, WS_VX))
    e("s_mov_b32 s%d, 0" % S_SPIN); e("s_mov_b32 s%d, 0" % S_PAR); e("s_mov_b32 s37, %d" % (WS_HIST + 0x90000)); e("s_mov_b32 s38, %d" % (WS_HIST + 0x91000))
    def need_seg(target_sgpr_or_none):
        if OPT["stage"] < 2: return
        lok = A.newlab("L_rdy"); lp = A.newlab("L_rp")
        if target_sgpr_or_none is None: e("s_mov_b32 s14, %d" % (1 if OPT.get("l2warm", 0) else 0))
        else:
            e("s_add_u32 s14, s%d, %d" % (target_sgpr_or_none, 2 if OPT.get("l2warm", 0) else 1)); e("s_min_u32 s14, s14, 63")
        e("s_cmp_lt_u32 s14, s%d" % S_RDY); e("s_cbranch_scc1 %s" % lok)
        e("s_mov_b32 s17, 0")
        lab(lp)
        e("v_lshlrev_b32 v%d, 3, v%d" % (VT, V_L16))
        e("s_lshl_b32 s29, s%d, 2" % S_HEAD); e("s_add_u32 s29, s29, %d" % FL_KV)
        e("s_mov_b64 exec, 0xff")
        e("buffer_load_dword v%d, v%d, s[4:7], s29 offen sc0 sc1" % (VT + 1, VT))
        e("s_mov_b64 exec, s[26:27]")
        e("s_waitcnt vmcnt(0)")
        e("s_mov_b32 s15, 64")
        for t in range(1, 8):
            e("v_readlane_b32 s16, v%d, %d" % (VT + 1, t)); e("s_nop 0"); e("s_mul_i32 s16, s16, 7"); e("s_add_u32 s16, s16, %d" % (t - 1)); e("s_min_u32 s15, s15, s16")
        e("s_mov_b32 s%d, s15" % S_RDY)
        e("s_add_u32 s17, s17, 1"); e("s_cmp_gt_u32 s17, 0x40000"); e("s_cbranch_scc1 %s" % lok)
        e("s_cmp_lt_u32 s14, s%d" % S_RDY); e("s_cbranch_scc0 %s" % lp)
        lab(lok)
    def dma8(so, lb, par_sgpr):
        for i in range(8):
            if i % 4 == 0:
                e("s_add_u32 s28, s%d, %d" % (so, i * 1024)); e("s_add_u32 s29, s%d, %d" % (par_sgpr, lb + i * 1024)); e("s_mov_b32 m0, s29"); e("s_nop 0")
            e("buffer_load_dwordx4 v%d, s[4:7], s28 offen offset:%d sc1 lds" % (V_L16, (i % 4) * 1024))
    e("s_mov_b32 s%d, 0" % S_RDY)
    need_seg(None)
    l0 = A.newlab("L_pf"); l1 = A.newlab("L_pf")
    e("s_cmp_eq_u32 s%d, 1" % S_WAVE); e("s_cbranch_scc0 %s" % l0); dma8(S_KXO, L_KX, S_PAR); lab(l0)
    e("s_cmp_eq_u32 s%d, 2" % S_WAVE); e("s_cbranch_scc0 %s" % l1); dma8(S_VXO, L_VX, S_PAR); lab(l1)
    e("s_waitcnt vmcnt(0)"); e("s_barrier")
    rt(4)
    if OPT["stamps"]:
        for i in range(16): e("s_mov_b32 s%d, 0" % (S_ST + i))
        e("s_memtime s[82:83]"); e("s_waitcnt lgkmcnt(0)"); e("s_mov_b32 s80, s82")
    if not OPT["final"]:
        e("s_memtime s[84:85]"); e("s_memrealtime s[88:89]"); e("s_waitcnt lgkmcnt(0)")

    T0, T1, T2, T3, T4, T5 = range(VT, VT + 6)
    def wvreg(t): return V_WV0 if t == 0 else (V_WVR if t % 2 == 1 else V_KX)
    def rd_wv(t):
        r = wvreg(t)
        return [lambda u=u, b=b: A.ds("ds_read_b128 %s, v%d offset:%d" % (vr(r + 8 * u + 4 * b, 4), V_WVA, wvslot[t] * 4096 + u * 2048 + b * 1024), ("wv", t, u)) for u in range(2) for b in range(2)]
    def scalprep():
        e("s_add_u32 s%d, s%d, 0x40000" % (S_KXO, S_KXO)); e("s_add_u32 s%d, s%d, 0x40000" % (S_VXO, S_VXO))
        e("s_cmp_lt_u32 s%d, 2" % S_WAVE); e("s_cselect_b32 s%d, s%d, s%d" % (S_DMA, S_KXO, S_VXO)); e("s_lshr_b32 s29, s%d, 1" % S_WAVE); e("s_lshl_b32 s29, s29, 13"); e("s_add_u32 s29, s29, %d" % L_KX)
        e("s_lshl_b32 s19, s%d, 12" % S_WAVE); e("s_and_b32 s18, s19, 4096"); e("s_add_u32 s%d, s%d, s18" % (S_DMA, S_DMA))
        e("s_xor_b32 s18, s%d, 8192" % S_PAR); e("s_add_u32 s29, s29, s18"); e("s_add_u32 s29, s29, s19")
        e("s_mov_b32 m0, s29")
        e("s_add_u32 s12, s%d, %d" % (S_PAR, L_KX)); e("s_lshl_b32 s28, s%d, 11" % S_WAVE); e("s_add_u32 s13, s28, s%d" % S_PAR); e("s_add_u32 s13, s13, %d" % L_VX)
        if OPT["stage"] >= 3:
            e("s_max_u32 s34, s%d, 1" % S_STEP); e("s_sub_u32 s34, s34, 1"); e("s_lshl_b32 s101, s%d, 2" % S_HEAD); e("s_add_u32 s101, s101, %d" % FL_KM)
            e("s_mov_b32 s35, s38")
            e("s_lshl_b32 s28, s%d, 16" % S_STEP); e("s_lshl_b32 s29, s%d, 11" % S_HEAD); e("s_add_u32 s38, s28, s29"); e("s_lshl_b32 s29, s%d, 9" % S_WAVE); e("s_add_u32 s38, s38, s29"); e("s_add_u32 s38, s38, %d" % WS_KM)
            e("s_mov_b32 s36, s37"); e("s_add_u32 s37, s38, %d" % (WS_VM - WS_KM))
    def nextprep():
        ZS_ = V_KX + 12
        e("v_mfma_f32_32x32x16_bf16 %s, %s, %s, 0" % (vr(V_QK, 16), vr(ZS_, 4), vr(ZS_, 4)))
        e("v_mfma_f32_16x16x32_bf16 %s, %s, %s, 0" % (vr(V_VA, 4), vr(ZS_, 4), vr(ZS_, 4)))
        e("v_mfma_f32_16x16x32_bf16 %s, %s, %s, 0" % (vr(V_VA + 4, 4), vr(ZS_, 4), vr(ZS_, 4)))
        for f in rd_wv(1): f()
        e("s_lshl_b32 s28, s%d, 11" % S_WAVE); e("s_add_u32 s%d, s%d, s28" % (S_MQ, S_MCUR))
        if OPT["stage"] >= 2:
            lsk = A.newlab("L_sk63")
            e("s_cmp_eq_u32 s%d, 63" % S_STEP); e("s_cbranch_scc1 %s" % lsk)
            need_seg(S_STEP)
            lab(lsk)
        if not OPT.get("scal_top", 0): scalprep()
    for i in range(4): e("v_mov_b32 v%d, 0" % (V_KX + 12 + i))
    e("s_nop 1")
    A.lds = []
    nextprep()
    WV1_TAGS = list(A.lds)
    lab("L_step")
    A.lds = list(WV1_TAGS); A.vm = []
    QA, KA_ = V_QK, V_QK + 8
    ts(20)
    if OPT.get("steptrace", 0):
        l = A.newlab("L_stt")
        e("s_cmp_lg_u32 s%d, 2" % S_WAVE); e("s_cbranch_scc1 %s" % l)
        e("s_memrealtime s[90:91]"); e("s_waitcnt lgkmcnt(0)")
        e("s_lshl_b32 s28, s%d, 6" % S_HEAD); e("s_add_u32 s28, s28, s%d" % S_STEP); e("s_lshl_b32 s28, s28, 2"); e("s_add_u32 s28, s28, %d" % (WS_TRACE + 0x10000))
        e("s_mov_b64 exec, 1"); e("v_mov_b32 v10, s90"); e("v_mov_b32 v11, 0"); e("buffer_store_dword v10, v11, s[4:7], s28 offen"); e("s_mov_b64 exec, s[26:27]")
        lab(l)
    if OPT.get("red_sets", 1) == 2: e("s_waitcnt vmcnt(%d)" % (2 if OPT["hist"] else 1))
    for i in range(4): e("v_mov_b32 v%d, 0" % (V_S + i))
    e("s_lshl_b32 s28, s%d, 11" % S_WAVE)
    e("v_add_u32 v%d, s28, v%d" % (T2, V_L16)); e("v_add_u32 v%d, %d, v%d" % (T2, L_MEM, T2))
    for a2 in range(1, 4): e("v_xor_b32 v%d, %d, v%d" % (T2 + a2, a2 << 11, T2))
    def smf(acc, areg, breg):
        e("v_smfmac_f32_16x16x64_bf16 %s, %s, %s, v%d" % (vr(acc, 4), vr(areg, 4), breg, V_IDX))
    def areg_of(tau, own): return (own + 4 * tau) if tau < 2 else (V_MEM + 4 * tau)
    def qk_l(tau, own=V_MEM):
        areg = areg_of(tau, own)
        return [lambda acc=acc, base=base, u=u: smf(acc, areg, ar(base + (u * 8 + tau) * 8, 8)) for (acc, base, u) in ((QA, 0, 0), (KA_, 128, 0), (QA + 4, 0, 1), (KA_ + 4, 128, 1))]
    def vv_l(tau, own=V_MEM):
        areg = areg_of(tau, own)
        return [lambda u=u: smf(V_VA + 4 * u, areg, vr(wvreg(tau) + 8 * u, 8)) for u in range(2)]
    def poll_issue(base):
        for tau in range(2):
            e("buffer_load_dwordx4 %s, v%d, s[4:7], s%d offen offset:%d sc1" % (vr(base + 4 * tau, 4), V_L16, S_MQ, tau * 1024))
    def poll_check(M):
        e("v_max3_u32 v%d, v%d, v%d, v%d" % (T0, M, M + 1, M + 2)); e("v_max3_u32 v%d, v%d, v%d, v%d" % (T1, M + 3, M + 4, M + 5))
        e("v_max3_u32 v%d, v%d, v%d, v%d" % (T0, T0, M + 6, M + 7)); e("v_max_u32 v%d, v%d, v%d" % (T0, T0, T1))
        e("v_cmp_eq_u32 vcc, -1, v%d" % T0)
    SA, SB = V_MEM, V_MEM + 24
    if OPT.get("scal_top", 0): scalprep()
    for i in range(OPT["dly_mem"]): e("s_nop 7")
    poll_issue(SA)
    ts(21)
    for f in rd_wv(2): f()
    for i in range(OPT.get("gap_mem", 0)): e("s_nop 7")
    mem2 = OPT.get("mem_sets", 1) == 2
    spec = (not mem2) and OPT.get("spec", 1)
    if mem2: poll_issue(SB)
    lab("L_pmA")
    e("s_add_u32 s%d, s%d, 1" % (S_SPIN, S_SPIN))
    e("s_waitcnt vmcnt(%d)" % (2 if mem2 else 0))
    ts(22)
    if spec:
        M = SA
        q0 = qk_l(0, SA); q1 = qk_l(1, SA)
        q0[0](); e("v_max3_u32 v%d, v%d, v%d, v%d" % (T0, M, M + 1, M + 2)); e("v_max3_u32 v%d, v%d, v%d, v%d" % (T1, M + 3, M + 4, M + 5))
        q0[1](); e("ds_write_b128 v%d, %s" % (T2, vr(M, 4)))
        q0[2](); e("v_max3_u32 v%d, v%d, v%d, v%d" % (T0, T0, M + 6, M + 7)); e("v_max_u32 v%d, v%d, v%d" % (T0, T0, T1))
        q0[3](); e("ds_write_b128 v%d, %s offset:1024" % (T2, vr(M + 4, 4)))
        q1[0](); e("v_cmp_eq_u32 vcc, -1, v%d" % T0)
        q1[1](); e("v_add_u32 v%d, s12, v%d" % (T1, V_L16))
        e("s_cmp_gt_u32 s%d, 0x200000" % S_SPIN); e("s_cbranch_scc1 L_specok")
        if OPT["nowait"]: e("s_branch L_specok")
        e("s_cbranch_vccz L_specok")
        poll_issue(SA) if False else None
        e("s_waitcnt lgkmcnt(0)")
        poll_issue(SA)
        A.nop(6)
        e("v_mfma_f32_32x32x16_bf16 %s, %s, %s, 0" % (vr(V_QK, 16), vr(V_S, 4), vr(V_S, 4)))
        e("s_branch L_pmA")
        lab("L_specok")
        stamp(0)
        q1[2](); q1[3]()
    else:
        poll_check(SA)
        e("s_cmp_gt_u32 s%d, 0x200000" % S_SPIN); e("s_cbranch_scc1 L_goA")
        if OPT["nowait"]: e("s_branch L_goA")
        e("s_cbranch_vccz L_goA")
        poll_issue(SA)
        if mem2:
            e("s_waitcnt vmcnt(2)")
            poll_check(SB)
            e("s_nop 1")
            e("s_cbranch_vccz L_goB")
            poll_issue(SB)
        e("s_branch L_pmA")
    def rd_m(tau): return lambda: A.ds("ds_read_b128 %s, v%d offset:%d" % (vr(V_MEM + 4 * tau, 4), T2 + (tau >> 1), (tau & 1) * 1024), ("m", tau))
    def rd_kx(f):
        kk, kt = f >> 1, f & 1
        return lambda: A.ds("ds_read_b128 %s, v%d offset:%d" % (vr(V_MEM + 4 * f, 4), T1, (kt * 4 + kk) * 1024), ("kx", kk))
    def rd_vx(u): return lambda: A.ds("ds_read_b128 %s, v%d offset:%d" % (vr(V_KX + 4 * u, 4), T0, u * 1024), ("vx", u))
    def run(mf, fl=()):
        fl = list(fl)
        for f in mf:
            f()
            if fl: fl.pop(0)()
        for f in fl: f()
    def vv(tau, fl=()):
        vl = vv_l(tau); fl = list(fl)
        A.wait_lds(("wv", tau, 0)); vl[0]()
        if fl: fl.pop(0)()
        A.wait_lds(("wv", tau, 1)); vl[1]()
        for f in fl: f()
    lds_state = list(A.lds)
    for variant, own in ((("B", SB), ("A", SA)) if mem2 else (("A", SA),)):
        A.lds = list(lds_state)
        if not spec:
            lab("L_go" + variant)
            if variant == "A": stamp(0)
            else: ts(0)
            q0 = qk_l(0, own); q1 = qk_l(1, own)
            q0[0](); e("ds_write_b128 v%d, %s" % (T2, vr(own, 4)))
            q0[1](); e("ds_write_b128 v%d, %s offset:1024" % (T2, vr(own + 4, 4)))
            q0[2](); e("v_add_u32 v%d, s12, v%d" % (T1, V_L16))
            q0[3]()
            if mem2: e("s_waitcnt vmcnt(0)")
            for i2, f in enumerate(q1):
                f()
        if variant == "A": stamp(8, 2)
        A.wait_lds_all(); e("s_barrier")
        if variant == "A": stamp(9, 2)
        rd_m(2)(); rd_m(3)()
        run(vv_l(0, own), [rd_m(4), rd_m(5)])
        run(vv_l(1, own), [rd_m(6), rd_m(7)])
        if variant == "B": e("s_branch L_joinP0")
    lab("L_joinP0")
    e("v_add_u32 v%d, s13, v%d" % (T0, V_L16))
    KH = V_S + 4
    def kmrd(u):
        def f():
            if OPT["stage"] >= 3: A.ds("ds_read_b32 v%d, v%d offset:%d" % (KH + u, V_XWR, u * 512), ("kh", u))
        return f
    def kmst(u):
        def f():
            if OPT["stage"] >= 3 and not OPT.get("nokm", 0):
                A.wait_lds(("kh", u))
                e("buffer_store_dword v%d, v%d, s[4:7], s35 offen offset:%d sc0 sc1" % (KH + u, T2, u * 256))
        return f
    def vmst(u):
        def f():
            if OPT["stage"] >= 3 and not OPT.get("nokm", 0):
                if u == 0: e("v_lshrrev_b32 v%d, 2, v%d" % (T2, V_L16))
                e("buffer_store_dword v%d, v%d, s[4:7], s36 offen offset:%d sc0 sc1" % (V_S + 9 + u, T2, u * 256))
        return f
    def dma(i): return lambda: (None if OPT.get("nodma", 0) else e("buffer_load_dwordx4 v%d, s[4:7], s%d offen offset:%d sc1 lds" % (V_L16, S_DMA, i * 1024)))
    dpos = OPT.get("dmapos", 1)
    if dpos == 0:
        for i in range(4): dma(i)()
    A.wait_lds(("m", 2)); run(qk_l(2), rd_wv(3))
    A.wait_lds(("m", 3)); run(qk_l(3), [rd_kx(0), rd_kx(1)] + ([dma(0), dma(1)] if dpos == 1 else []))
    vv(2, ([dma(2), dma(3)] if dpos == 1 else []) + [kmrd(0), kmrd(1), vmst(0), vmst(1)])
    ts(33)
    def warm():
        if OPT.get("l2warm", 0) and not OPT.get("nodma", 0):
            e("v_lshlrev_b32 v%d, 2, v%d" % (T5, V_L16)); e("s_mov_b32 m0, %d" % L_DUM); e("s_add_u32 s28, s%d, 0x40000" % S_DMA)
            e("buffer_load_dword v%d, s[4:7], s28 offen lds" % T5)
    warm()
    if OPT["stage"] >= 3:
        lfk = A.newlab("L_fkm")
        e("s_cmp_eq_u32 s%d, 1" % S_WAVE); e("s_cbranch_scc0 %s" % lfk)
        e("v_mov_b32 v%d, s34" % T4); e("s_mov_b64 exec, 1"); e("buffer_store_dword v%d, v%d, s[4:7], s101 offen sc0 sc1" % (T4, V_L16)); e("s_mov_b64 exec, s[26:27]")
        lab(lfk)
    A.wait_lds(("m", 4)); run(qk_l(4), rd_wv(4))
    ts(34)
    A.wait_lds(("m", 5)); run(qk_l(5), [rd_kx(2), kmst(0), kmst(1)])
    vv(3)
    ts(35)
    A.wait_lds(("m", 6)); run(qk_l(6), rd_wv(5))
    vv(4, [rd_kx(3)])
    ts(36)
    A.wait_lds(("m", 7)); run(qk_l(7), rd_wv(6))
    stamp(1)
    vv(5)
    ts(70)
    e("v_lshrrev_b32 v%d, 1, v%d" % (T3, V_L16)); e("v_add_u32 v%d, %d, v%d" % (T3, L_X, T3))
    for u in range(2):
        q, k_ = QA + 4 * u, KA_ + 4 * u
        e("v_add_f32 v%d, v%d, v%d" % (k_, k_, k_ + 1)); e("v_add_f32 v%d, v%d, v%d" % (k_ + 2, k_ + 2, k_ + 3))
        e("v_add_f32 v%d, v%d, v%d" % (q, q, q + 1)); e("v_add_f32 v%d, v%d, v%d" % (q + 2, q + 2, q + 3))
        e("v_cvt_pk_bf16_f32 v%d, v%d, v%d" % (k_, k_, k_ + 2)); e("v_cvt_pk_bf16_f32 v%d, v%d, v%d" % (k_ + 1, q, q + 2))
        A.ds("ds_write_b64 v%d, %s offset:%d" % (V_XWR, vr(k_, 2), u * 512), "xw")
    ts(71)
    for f in rd_wv(7): f()
    ts(72)
    vv(6)
    ts(73)
    if OPT["stage"] >= 3:
        pass
    va = V_VA
    ZS = V_KX + 12
    stamp(10, 2)
    A.wait_lds("xw"); e("s_barrier")
    stamp(11, 2)
    for kk in range(4):
        for b in range(2):
            A.ds("ds_read_b64_tr_b16 %s, v%d offset:%d" % (vr(V_QK + 4 * kk + 2 * b, 2), T3, kk * 1024 + b * 512), ("x", kk))
    stamp(2)
    def vpk(u):
        x = va + 4 * u
        return [lambda: e("v_add_f32 v%d, v%d, v%d" % (x, x, x + 1)), lambda: e("v_add_f32 v%d, v%d, v%d" % (x + 2, x + 2, x + 3)),
                lambda: e("v_cvt_pk_bf16_f32 v%d, v%d, v%d" % (x, x, x + 2)), lambda: e("v_mov_b32 v%d, 0" % (x + 1))]
    zs = [lambda i=i: e("v_mov_b32 v%d, 0" % (ZS + i)) for i in range(4)]
    sfill = {0: [[rd_kx(4)], [rd_kx(5)], [rd_kx(6)]], 1: [[lambda: vv_l(7)[0]()], [lambda: vv_l(7)[1]()], [rd_kx(7)]],
             2: [[rd_vx(0), zs[0]], [rd_vx(1), zs[1]], [zs[2], zs[3]]], 3: [vpk(0)[:2], vpk(0)[2:], vpk(1)[:2]]}
    for kk in range(4):
        A.wait_lds(("x", kk)); A.wait_lds(("kx", kk))
        if kk == 1: A.wait_lds(("wv", 7, 1))
        X = vr(V_QK + 4 * kk, 4)
        cs = lambda r: "0" if kk == 0 else vr(r, 4)
        for idx, (dst, a_op) in enumerate(((V_S, vr(V_MEM + kk * 8, 4)), (V_S + 4, vr(V_MEM + kk * 8 + 4, 4)), (V_S + 8, X))):
            e("v_mfma_f32_16x16x32_bf16 %s, %s, %s, %s" % (vr(dst, 4), a_op, X, cs(dst)))
            for f in sfill[kk][idx]: f()
    for f in vpk(1)[2:]: f()
    e("v_add_u32 v%d, %d, v%d" % (T5, L_O, V_L16))
    A.nop(1)
    stamp(3)
    S = V_S
    e("v_max3_f32 v%d, v%d, v%d, v%d" % (T0, S, S + 1, S + 2)); e("v_max3_f32 v%d, v%d, v%d, v%d" % (T1, S + 4, S + 5, S + 6))
    e("v_max3_f32 v%d, v%d, v%d, v%d" % (T0, T0, S + 3, S + 7)); e("v_max3_f32 v%d, v%d, v%d, v%d" % (T1, T1, S + 8, S + 9))
    e("v_max_f32 v%d, v%d, v%d" % (T0, T0, T1))
    e("v_mov_b32 v%d, v%d" % (T1, T0))
    A.nop(2)
    e("v_permlane16_swap_b32 v%d, v%d" % (T0, T1)); e("v_max_f32 v%d, v%d, v%d" % (T0, T0, T1))
    e("v_mov_b32 v%d, v%d" % (T1, T0))
    e("v_mov_b32 v%d, 0" % (S + 11)); e("s_nop 0")
    e("v_permlane32_swap_b32 v%d, v%d" % (T0, T1)); e("v_max_f32 v%d, v%d, v%d" % (T0, T0, T1))
    e("v_mul_f32 v%d, s%d, v%d" % (T0, S_C, T0))
    for i in range(10): e("v_fma_f32 v%d, v%d, s%d, -v%d" % (S + i, S + i, S_C, T0))
    for i in range(8): e("v_exp_f32 v%d, v%d" % (S + i, S + i))
    e("v_exp_f32 v%d, v%d" % (S + 8, S + 8))
    e("v_add_f32 v%d, v%d, v%d" % (T2, S, S + 1)); e("v_add_f32 v%d, v%d, v%d" % (T3, S + 2, S + 3))
    e("v_exp_f32 v%d, v%d" % (S + 9, S + 9))
    e("v_cvt_pk_bf16_f32 v%d, v%d, v%d" % (S, S, S + 1)); e("v_cvt_pk_bf16_f32 v%d, v%d, v%d" % (S + 1, S + 2, S + 3))
    e("v_cvt_pk_bf16_f32 v%d, v%d, v%d" % (S + 2, S + 4, S + 5)); e("v_cvt_pk_bf16_f32 v%d, v%d, v%d" % (S + 3, S + 6, S + 7))
    e("v_add_f32 v%d, v%d, v%d" % (T2, T2, S + 4)); e("v_add_f32 v%d, v%d, v%d" % (T3, T3, S + 5))
    stamp(12, 2)
    O0, O1 = V_QK + 4, V_QK + 8
    A.wait_lds(("vx", 1))
    e("v_mfma_f32_16x16x32_bf16 %s, %s, %s, 0" % (vr(O0, 4), vr(V_KX, 4), vr(S, 4)))
    e("v_cvt_pk_bf16_f32 v%d, v%d, v%d" % (S + 10, S + 8, S + 9))
    e("v_add_f32 v%d, v%d, v%d" % (T2, T2, S + 6))
    e("v_mfma_f32_16x16x32_bf16 %s, %s, %s, 0" % (vr(O1, 4), vr(V_KX + 4, 4), vr(S, 4)))
    e("v_add_f32 v%d, v%d, v%d" % (T3, T3, S + 7)); e("v_add_f32 v%d, v%d, v%d" % (T2, T2, S + 8))
    e("v_mfma_f32_16x16x16_bf16 %s, %s, %s, %s" % (vr(O0, 4), vr(va, 2), vr(S + 10, 2), vr(O0, 4)))
    e("v_add_f32 v%d, v%d, v%d" % (T3, T3, S + 9)); e("v_add_f32 v%d, v%d, v%d" % (T2, T2, T3))
    e("v_mfma_f32_16x16x16_bf16 %s, %s, %s, %s" % (vr(O1, 4), vr(va + 4, 2), vr(S + 10, 2), vr(O1, 4)))
    ts(63)
    e("v_mov_b32 v%d, v%d" % (T3, T2)); A.nop(2); e("v_permlane16_swap_b32 v%d, v%d" % (T2, T3)); e("v_add_f32 v%d, v%d, v%d" % (T2, T2, T3))
    e("v_mov_b32 v%d, v%d" % (T3, T2)); A.nop(2); e("v_permlane32_swap_b32 v%d, v%d" % (T2, T3)); e("v_add_f32 v%d, v%d, v%d" % (T2, T2, T3))
    e("v_rcp_f32 v%d, v%d" % (T2, T2))
    e("s_nop 0")
    ts(64)
    W0 = V_QK
    for r in range(2): e("v_mul_f32 v%d, v%d, v%d" % (O0 + r, O0 + r, T2)); e("v_mul_f32 v%d, v%d, v%d" % (O1 + r, O1 + r, T2))
    e("v_cvt_pk_bf16_f32 v%d, v%d, v%d" % (W0, O0, O0 + 1)); e("v_cvt_pk_bf16_f32 v%d, v%d, v%d" % (W0 + 1, O1, O1 + 1))
    A.ds("ds_write_b64 v%d, %s" % (V_OWR, vr(W0, 2)), "ow")
    for r in range(2, 4): e("v_mul_f32 v%d, v%d, v%d" % (O0 + r, O0 + r, T2)); e("v_mul_f32 v%d, v%d, v%d" % (O1 + r, O1 + r, T2))
    e("v_cvt_pk_bf16_f32 v%d, v%d, v%d" % (W0 + 2, O0 + 2, O0 + 3)); e("v_cvt_pk_bf16_f32 v%d, v%d, v%d" % (W0 + 3, O1 + 2, O1 + 3))
    A.ds("ds_write_b64 v%d, %s offset:16" % (V_OWR, vr(W0 + 2, 2)), "ow")
    if OPT["stage"] >= 3:
        e("v_mov_b32 v%d, v%d" % (V_S + 9, va)); e("v_mov_b32 v%d, v%d" % (V_S + 10, va + 4))
    ts(65)
    e("s_cmp_eq_u32 s%d, 63" % S_STEP); e("s_cbranch_scc1 L_chain_done")
    e("v_mfma_f32_32x32x16_bf16 %s, %s, %s, 0" % (vr(V_MEM, 16), vr(ZS, 4), vr(ZS, 4)))
    e("v_mfma_f32_32x32x16_bf16 %s, %s, %s, 0" % (vr(V_MEM + 16, 16), vr(ZS, 4), vr(ZS, 4)))
    e("v_add_u32 v%d, %d, v%d" % (T2, L_SEL, V_L16))
    A.ds("ds_read_b128 %s, v%d" % (vr(V_KX + 8, 4), T2), "sel")
    l3 = A.newlab("L_w3")
    e("s_cmp_eq_u32 s%d, 3" % S_WAVE); e("s_cbranch_scc0 %s" % l3); e("s_waitcnt vmcnt(%d)" % (8 if OPT["stage"] >= 3 else 4)); lab(l3)
    stamp(13, 2)
    A.wait_lds_all(); e("s_barrier")
    for t in range(2):
        A.ds("ds_read_b128 %s, v%d offset:%d" % (vr(V_KX + 4 * t, 4), T5, t * 1024), ("o", t))
    stamp(4)
    def wo(nt, t):
        e("v_smfmac_f32_16x16x64_bf16 %s, %s, %s, v%d" % (vr(V_MEM + 4 * nt, 4), vr(V_KX + 4 * t, 4), vr(V_WO + (nt * 2 + t) * 8, 8), V_IDX))
    def fin_l(nt, dst):
        T = V_MEM + 4 * nt
        return [lambda: e("v_add_f32 v%d, v%d, v%d" % (T, T, T + 1)), lambda: e("v_add_f32 v%d, v%d, v%d" % (T + 2, T + 2, T + 3)),
                lambda: e("v_cvt_pk_bf16_f32 v%d, v%d, v%d" % (dst, T, T + 2))] + ([lambda: e("v_bfi_b32 v%d, 1, s%d, v%d" % (dst, S_TAG, dst))] if (nt % 4 == 0 or OPT.get("fulltag", 0)) else [])
    A.wait_lds(("o", 0)); A.wait_lds(("o", 1))
    pub = [lambda: e("s_add_u32 s30, s%d, %d" % (S_PCUR, 4 * 8192)), lambda: e("s_bfe_u32 s%d, s%d, 0x10001" % (S_TAG, S_STEP)),
           lambda: e("v_lshrrev_b32 v%d, 2, v%d" % (T4, V_L16)), lambda: e("v_and_b32 v%d, 0xc0, v%d" % (T4, T4)),
           lambda: e("v_lshlrev_b32 v%d, 1, v%d" % (T3, V_L16)), lambda: e("v_and_b32 v%d, 32, v%d" % (T3, T3)), lambda: e("v_add_u32 v%d, v%d, v%d" % (T4, T4, T3)),
           lambda: e("v_lshrrev_b32 v%d, 3, v%d" % (T3, V_L16)), lambda: e("v_and_b32 v%d, 28, v%d" % (T3, T3)), lambda: e("v_add_u32 v%d, v%d, v%d" % (T4, T4, T3))]
    late = [lambda: e("s_add_u32 s%d, s%d, 8192" % (S_MNXT, S_MCUR)), lambda: e("s_cmp_eq_u32 s%d, %d" % (S_MNXT, WS_MB + 3 * 8192)), lambda: e("s_cselect_b32 s%d, %d, s%d" % (S_MNXT, WS_MB, S_MNXT)),
            lambda: e("s_add_u32 s%d, s%d, s%d" % (S_RED, S_PCUR, S_H13)), lambda: e("s_add_u32 s33, s%d, 4096" % S_RED), lambda: e("s_add_u32 s31, s%d, s%d" % (S_MNXT, S_H8))]
    q = pub[:]
    ts(60)
    for nt in range(8):
        if nt == 4: ts(61)
        for t in range(2):
            wo(nt, t)
            for _ in range(2):
                if q: q.pop(0)()
        if nt >= 2:
            q += fin_l(nt - 2, V_S + nt - 2)
            if nt - 2 == 3: q.append(lambda: e("buffer_store_dwordx4 %s, v%d, s[4:7], s%d offen" % (vr(V_S, 4), V_PS0, S_PCUR)))
    ts(62)
    while q: q.pop(0)()
    for f in late[:3]: f()
    for nt in (6, 7):
        for f in fin_l(nt, V_S + nt): f()
    e("buffer_store_dwordx4 %s, v%d, s[4:7], s30 offen" % (vr(V_S + 4, 4), V_PS0))
    for f in late[3:]: f()
    stamp(5)
    lp = A.newlab("L_nopois")
    e("s_cmp_eq_u32 s%d, 3" % S_WAVE); e("s_cbranch_scc0 %s" % lp)
    e("v_mov_b32 v%d, -1" % (V_S + 8))
    e("s_add_u32 s29, s%d, s%d" % (S_MPREV, S_H8))
    e("buffer_store_dword v%d, v%d, s[4:7], s29 offen" % (V_S + 8, T4))
    lab(lp)
    e("s_mov_b32 s%d, s%d" % (S_MPREV, S_MCUR))
    e("s_mov_b32 s%d, s%d" % (S_MCUR, S_MNXT)); e("s_xor_b32 s%d, s%d, 0x40000" % (S_PCUR, S_PCUR))
    e("s_xor_b32 s%d, s%d, 8192" % (S_PAR, S_PAR))
    e("s_add_u32 s%d, s%d, 1" % (S_STEP, S_STEP))
    nextprep()
    e("s_cmp_eq_u32 s%d, 0" % S_WAVE); e("s_cbranch_scc0 L_red_done")
    lab("L_reduce")
    QA_ = [V_MEM + 4 * x for x in range(8)]
    QB_ = [V_WVR, V_WVR + 4, V_WVR + 8, V_WVR + 12, V_VA, V_VA + 4, V_QK + 4, V_QK + 8]
    DA, DB = V_KX + 12, V_QK + 12
    assert OPT.get('red_sets', 1) == 1
    def red_issue(Q):
        for x in range(8):
            e("buffer_load_dwordx4 %s, v%d, s[4:7], s%d offen offset:%d sc1" % (vr(Q[x], 4), V_L16, S_RED if x < 4 else 33, (x & 3) * 1024))
    def red_proc(Q, D, tag, W, stampit=False):
        op = "0x80" if tag else "0xfe"
        for x in range(8):
            e("s_waitcnt vmcnt(%d)" % (W + 7 - x))
            if stampit and x in (0, 7): ts(41 + x)
            e("v_mfma_f32_16x16x32_bf16 %s, %s, %s, %s" % (vr(D, 4), vr(Q[x], 4), vr(V_KX + 8, 4), "0" if x == 0 else vr(D, 4)))
            a_ = Q[x]
            if OPT.get("fulltag", 0):
                if x == 0:
                    e("v_bitop3_b32 v%d, v%d, v%d, v%d bitop3:%s" % (T0, a_, a_ + 1, a_ + 2, op)); e("v_bitop3_b32 v%d, v%d, v%d, v%d bitop3:%s" % (T0, T0, a_ + 3, a_ + 3, op))
                else:
                    e("v_bitop3_b32 v%d, v%d, v%d, v%d bitop3:%s" % (T0, T0, a_, a_ + 1, op)); e("v_bitop3_b32 v%d, v%d, v%d, v%d bitop3:%s" % (T0, T0, a_ + 2, a_ + 3, op))
            else:
                if x == 1: e("v_bitop3_b32 v%d, v%d, v%d, v%d bitop3:%s" % (T0, Q[0], Q[1], Q[1], op))
                elif x in (3, 5, 7): e("v_bitop3_b32 v%d, v%d, v%d, v%d bitop3:%s" % (T0, T0, Q[x - 1], Q[x], op))
        e("v_and_b32 v%d, 1, v%d" % (T0, T0))
        e("v_cmp_ne_u32 vcc, %d, v%d" % (tag, T0))
    two = OPT.get("red_sets", 1) == 2
    for i in range(OPT["dly_red"]): e("s_nop 7")
    red_issue(QA_)
    if two:
        for i in range(OPT.get("gap_red", 2)): e("s_nop 7")
        red_issue(QB_)
    ts(40)
    e("s_waitcnt lgkmcnt(0)")
    e("s_cmp_lg_u32 s%d, 0" % S_TAG); e("s_cbranch_scc1 L_prA1")
    for tag in range(2):
        lab("L_prA%d" % tag)
        e("s_add_u32 s%d, s%d, 1" % (S_SPIN, S_SPIN))
        red_proc(QA_, DA, tag, 8 if two else 0, True)
        e("s_cmp_gt_u32 s%d, 0x200000" % S_SPIN); e("s_cbranch_scc1 L_rgoA")
        if OPT["nowait"]: e("s_branch L_rgoA")
        e("s_cbranch_vccz L_rgoA")
        red_issue(QA_)
        if two:
            red_proc(QB_, DB, tag, 8)
            e("s_nop 1")
            e("s_cbranch_vccz L_rgoB")
            red_issue(QB_)
        e("s_branch L_prA%d" % tag)
    if two:
        lab("L_rgoB")
        A.nop(4)
        e("v_cndmask_b32 v%d, v%d, v%d, s[48:49]" % (T0, DB + 2, DB)); e("v_cndmask_b32 v%d, v%d, v%d, s[48:49]" % (T1, DB + 3, DB + 1))
        e("s_branch L_rpub")
    lab("L_rgoA")
    A.nop(3)
    e("v_cndmask_b32 v%d, v%d, v%d, s[48:49]" % (T0, DA + 2, DA)); e("v_cndmask_b32 v%d, v%d, v%d, s[48:49]" % (T1, DA + 3, DA + 1))
    lab("L_rpub")
    ts(50)
    e("v_cvt_pk_bf16_f32 v%d, v%d, v%d" % (T0, T0, T1))
    e("buffer_store_dword v%d, v%d, s[4:7], s31 offen" % (T0, T4))
    if OPT["hist"]:
        e("s_lshl_b32 s30, s%d, 13" % S_STEP); e("s_add_u32 s30, s30, s%d" % S_H8); e("s_add_u32 s30, s30, %d" % WS_HIST)
        e("buffer_store_dword v%d, v%d, s[4:7], s30 offen" % (T0, T4))
    lab("L_red_done")
    stamp(6)
    e("s_barrier")
    stamp(7)
    e("s_cmp_lt_u32 s%d, %d" % (S_STEP, OPT["nsteps"])); e("s_cbranch_scc1 L_step")
    lab("L_chain_done")
    rt(5)
    if OPT["stage"] >= 3:
        e("v_lshrrev_b32 v6, 2, v%d" % V_L16)
        for u in range(2): e("ds_read_b32 v%d, v%d offset:%d" % (8 + u, V_XWR, u * 512))
        for u in range(2):
            e("buffer_store_dword v%d, v6, s[4:7], s37 offen offset:%d sc0 sc1" % (V_S + 9 + u, u * 256))
        e("s_waitcnt lgkmcnt(0)")
        for u in range(2):
            e("buffer_store_dword v%d, v6, s[4:7], s38 offen offset:%d sc0 sc1" % (8 + u, u * 256))
        e("s_waitcnt vmcnt(0)"); e("s_barrier")
        lfk = A.newlab("L_fkm")
        e("s_cmp_eq_u32 s%d, 1" % S_WAVE); e("s_cbranch_scc0 %s" % lfk)
        e("v_mov_b32 v6, 64"); e("v_mov_b32 v7, 0"); e("s_lshl_b32 s28, s%d, 2" % S_HEAD); e("s_add_u32 s28, s28, %d" % FL_KM)
        e("s_mov_b64 exec, 1"); e("buffer_store_dword v6, v7, s[4:7], s28 offen sc0 sc1"); e("s_mov_b64 exec, s[26:27]")
        lab(lfk)
    if not OPT["final"]:
        e("s_memtime s[86:87]"); e("s_memrealtime s[90:91]"); e("s_waitcnt lgkmcnt(0)")
        e("s_sub_u32 s86, s86, s84"); e("s_sub_u32 s90, s90, s88")
        e("s_lshl_b32 s28, s%d, 2" % S_HEAD); e("s_add_u32 s28, s28, s%d" % S_WAVE); e("s_lshl_b32 s28, s28, 7"); e("s_add_u32 s28, s28, %d" % WS_STAMP)
        e("s_mov_b64 exec, 1"); e("v_mov_b32 v10, 0")
        vals = [86, 90, S_SPIN] + ([S_ST + i for i in range(16)] if OPT["stamps"] else []) + [64 + 2 * k for k in range(len(TS))]
        for i, r in enumerate(vals):
            e("v_mov_b32 v11, s%d" % r); e("buffer_store_dword v11, v10, s[4:7], s28 offen offset:%d" % (4 * i))
    e("s_waitcnt vmcnt(0)")
    e("s_branch L_end")

S_X = 12
S_SEG, S_K, S_NSEG, S_XB = 40, 41, 42, 43
S_RANK, S_SUB = 38, 37
def wait_dbg_counter(off_bytes_sgpr_or_int, target, lname):
    e("s_mov_b64 exec, 1")
    if isinstance(off_bytes_sgpr_or_int, int): e("v_mov_b32 v32, %d" % off_bytes_sgpr_or_int)
    else: e("v_mov_b32 v32, %s" % off_bytes_sgpr_or_int)
    e("s_mov_b32 s29, 0")
    lab(lname)
    e("global_load_dword v33, v32, s[24:25] sc0 sc1"); e("s_waitcnt vmcnt(0)"); e("v_readfirstlane_b32 s30, v33")
    e("s_add_u32 s29, s29, 1"); e("s_cmp_gt_u32 s29, 0x40000"); e("s_cbranch_scc1 %s_d" % lname)
    e("s_cmp_lt_u32 s30, %d" % target); e("s_cbranch_scc1 %s" % lname)
    lab(lname + "_d")
    e("s_mov_b64 exec, s[26:27]")

CV_HS, CV_CS = 4416, 17664
CV_XR, CV_XS = 70656, 7680
CV_YB = 101376
def conv_task():
    lskip = A.newlab("L_cv_skip")
    e("s_cmp_lt_u32 s%d, 2" % S_TEAM); e("s_cbranch_scc1 %s" % lskip)
    e("s_cmp_gt_u32 s%d, 5" % S_TEAM); e("s_cbranch_scc1 %s" % lskip)
    TASK, CH = 44, 45
    e("s_sub_u32 s%d, s%d, 2" % (TASK, S_TEAM)); e("s_lshl_b32 s%d, s%d, 5" % (TASK, TASK)); e("s_add_u32 s%d, s%d, s%d" % (TASK, TASK, S_HEAD))
    e("s_lshl_b32 s%d, s%d, 2" % (CH, TASK)); e("s_add_u32 s%d, s%d, s%d" % (CH, CH, S_WAVE))
    e("s_load_dwordx4 s[64:67], s[0:1], %d" % KA["q"])
    e("s_load_dwordx4 s[68:71], s[0:1], %d" % KA["v"])
    e("s_load_dwordx4 s[72:75], s[0:1], %d" % KA["ssmk"])
    e("s_load_dwordx2 s[76:77], s[0:1], %d" % KA["out"])
    e("s_waitcnt lgkmcnt(0)")
    e("s_lshl_b32 s28, s%d, 5" % TASK); e("s_add_u32 s70, s70, s28"); e("s_addc_u32 s71, s71, 0")
    e("s_lshl_b32 s28, s%d, 3" % TASK); e("s_add_u32 s74, s74, s28"); e("s_addc_u32 s75, s75, 0")
    e("s_load_dwordx8 s[80:87], s[70:71], 0"); e("s_load_dwordx2 s[88:89], s[74:75], 0")
    LN = 2
    e("v_lshrrev_b32 v%d, 4, v%d" % (LN, V_L16))
    srd(8, 72, 0x200000)
    e("s_mul_i32 s32, s%d, %d" % (S_WAVE, CV_CS))
    e("s_lshl_b32 s33, s%d, 12" % CH)
    for r in range(4):
        for i in range(4):
            e("s_add_u32 m0, s32, %d" % (r * CV_HS + 64 + i * 1024)); e("s_add_u32 s28, s33, %d" % (i * 1024 + 2 * r))
            e("buffer_load_dwordx4 v%d, s[8:11], s28 offen lds" % V_L16)
    for i in range(4): e("v_mov_b32 v%d, 0" % (4 + i))
    e("v_bfe_u32 v8, v%d, 2, 2" % LN); e("v_mul_u32_u24 v8, %d, v8" % CV_HS); e("v_and_b32 v9, 3, v%d" % LN); e("v_lshlrev_b32 v9, 4, v9"); e("v_add_u32 v8, v8, v9"); e("v_add_u32 v8, s32, v8")
    e("ds_write_b128 v8, v[4:7]")
    e("v_and_b32 v9, 3, v%d" % LN); e("v_lshlrev_b32 v10, 1, v9"); e("v_add_u32 v10, s33, v10")
    e("buffer_load_ushort v11, v10, s[8:11], 0 offen")
    e("v_bfe_u32 v12, v%d, 2, 2" % LN); e("v_mul_u32_u24 v13, %d, v12" % (CV_HS - 2)); e("v_lshlrev_b32 v14, 1, v9"); e("v_add_u32 v13, v13, v14"); e("v_add_u32 v13, 64, v13"); e("v_add_u32 v13, s32, v13")
    e("v_cmp_lt_u32 vcc, v9, v12"); e("v_cmp_gt_u32 s[30:31], 16, v%d" % LN); e("s_nop 1"); e("s_and_b64 s[30:31], s[30:31], vcc")
    e("s_mul_i32 s28, s%d, %d" % (S_WAVE, CV_XS)); e("s_add_u32 s28, s28, %d" % CV_XR); e("v_add_u32 v8, s28, v%d" % V_L16)
    e("ds_write_b128 v8, v[4:7]"); e("ds_write_b128 v8, v[4:7] offset:1024")
    e("v_cmp_gt_u32 vcc, 32, v%d" % LN); e("s_nop 1"); e("s_mov_b64 exec, vcc"); e("ds_write_b128 v8, v[4:7] offset:2048"); e("s_mov_b64 exec, s[26:27]")
    e("s_waitcnt vmcnt(0)")
    e("s_mov_b64 exec, s[30:31]"); e("ds_write_b16 v13, v11"); e("s_mov_b64 exec, s[26:27]")
    srd(8, 66, 0x200000)
    srd(12, 68, 0x200000)
    TH = 3
    e("s_lshl_b32 s28, s%d, 6" % S_WAVE); e("v_add_u32 v%d, s28, v%d" % (TH, LN))
    e("v_lshlrev_b32 v4, 13, v%d" % TH); e("s_lshl_b32 s28, s%d, 3" % TASK); e("v_add_u32 v4, s28, v4")
    KR, VR = 16, 40
    for j in range(11):
        e("v_add_u32 v5, %d, v4" % ((j - 3) * 1024 & 0xffffffff))
        e("buffer_load_dwordx2 %s, v5, s[8:11], 0 offen" % vr(KR + 2 * j, 2))
    for j in range(8):
        e("v_add_u32 v5, %d, v4" % (j * 1024))
        e("buffer_load_dwordx2 %s, v5, s[12:15], 0 offen" % vr(VR + 2 * j, 2))
    e("s_waitcnt lgkmcnt(0)")
    SK = {}
    for cch in range(4):
        for j in range(4):
            src = 80 + 2 * cch + (j >> 1)
            dst = 96 + cch * 4 + j
            if j & 1: e("s_and_b32 s28, s%d, 0xffff0000" % src)
            else: e("s_lshl_b32 s28, s%d, 16" % src)
            e("v_mov_b32 v%d, s28" % dst)
            SK[(cch, j)] = dst
    for cch in range(4):
        src = 88 + (cch >> 1)
        if cch & 1: e("s_and_b32 s28, s%d, 0xffff0000" % src)
        else: e("s_lshl_b32 s28, s%d, 16" % src)
        e("v_mov_b32 v%d, s28" % (112 + cch))
    e("s_waitcnt vmcnt(0)")
    KV = 116
    XP = 56
    for cch in range(4):
        d, hi = cch >> 1, cch & 1
        U = 72
        for j in range(11):
            if hi: e("v_and_b32 v%d, 0xffff0000, v%d" % (U + j, KR + 2 * j + d))
            else: e("v_lshlrev_b32 v%d, 16, v%d" % (U + j, KR + 2 * j + d))
        for t in range(8):
            e("v_mul_f32 v%d, v%d, v%d" % (84 + t, U + t, SK[(cch, 3)]))
            for j in (2, 1, 0):
                e("v_fmac_f32 v%d, v%d, v%d" % (84 + t, U + t + 3 - j, SK[(cch, j)]))
            if hi: e("v_and_b32 v92, 0xffff0000, v%d" % (VR + 2 * t + d))
            else: e("v_lshlrev_b32 v92, 16, v%d" % (VR + 2 * t + d))
            e("v_mul_f32 v%d, v%d, v92" % (84 + t, 84 + t))
        for p in range(4):
            e("v_cvt_pk_bf16_f32 v%d, v%d, v%d" % (XP + 4 * cch + p, 84 + 7 - 2 * p, 84 + 6 - 2 * p))
    e("v_lshrrev_b32 v4, 2, v%d" % TH); e("v_mul_u32_u24 v4, 80, v4"); e("v_and_b32 v5, 3, v%d" % TH); e("v_lshlrev_b32 v5, 4, v5"); e("v_add_u32 v4, v4, v5")
    e("v_add_u32 v4, %d, v4" % (CV_XR + 32 * 80))
    e("s_waitcnt lgkmcnt(0)"); e("s_barrier")
    for cch in range(4):
        e("ds_write_b128 v4, %s offset:%d" % (vr(XP + 4 * cch, 4), cch * CV_XS))
    srd(8, 64, 0x200000)
    e("v_lshlrev_b32 v4, 13, v%d" % TH); e("s_lshl_b32 s28, s%d, 3" % TASK); e("v_add_u32 v4, s28, v4")
    QR = 16
    for j in range(8):
        e("v_add_u32 v5, %d, v4" % (j * 1024))
        e("buffer_load_dwordx2 %s, v5, s[8:11], 0 offen" % vr(QR + 2 * j, 2))
    e("s_waitcnt lgkmcnt(0)"); e("s_barrier")
    e("v_and_b32 v6, 31, v%d" % LN); e("v_lshrrev_b32 v7, 5, v%d" % LN)
    e("v_add_u32 v8, 1, v6"); e("v_and_b32 v8, 3, v8"); e("v_mul_u32_u24 v8, %d, v8" % CV_HS)
    e("v_lshlrev_b32 v9, 3, v7"); e("v_sub_u32 v9, v6, v9"); e("v_add_u32 v9, 25, v9"); e("v_lshrrev_b32 v9, 2, v9"); e("v_lshlrev_b32 v9, 3, v9")
    e("v_add_u32 v8, v8, v9"); e("v_add_u32 v8, s32, v8"); e("v_subrev_u32 v8, 32, v8")
    e("v_mul_u32_u24 v9, 80, v6"); e("v_lshlrev_b32 v10, 4, v7"); e("v_add_u32 v9, v9, v10")
    e("s_mul_i32 s28, s%d, %d" % (S_WAVE, CV_XS)); e("s_add_u32 s28, s28, %d" % (CV_XR - 31 * 80)); e("v_add_u32 v9, s28, v9")
    Y0, Y1 = 128, 144
    FA, FB = 72, 88
    steps = []
    for dl in range(64):
        for kk in range(2):
            steps.append((dl, kk))
    A.lds = []
    def issue(n):
        dl, kk = steps[n]; u = 2 * dl - kk
        ra = FA + (n % 4) * 4
        A.ds("ds_read_b64 %s, v8 offset:%d" % (vr(ra, 2), (u + 1) * 32), ("cv", n))
        A.ds("ds_read_b64 %s, v8 offset:%d" % (vr(ra + 2, 2), (u + 1) * 32 + 8), ("cv", n))
        rb = 88 + (n % 3) * 8
        A.ds("ds_read_b128 %s, v9 offset:%d" % (vr(rb, 4), (63 - dl) * 80 + kk * 32 + 2560), ("cv", n))
        if dl <= 31:
            A.ds("ds_read_b128 %s, v9 offset:%d" % (vr(rb + 4, 4), (63 - dl) * 80 + kk * 32), ("cv", n))
    issue(0); issue(1)
    first = [True, True]
    for n in range(len(steps)):
        dl, kk = steps[n]
        A.wait_lds(("cv", n))
        ra = FA + (n % 4) * 4; rb = 88 + (n % 3) * 8
        e("v_mfma_f32_32x32x16_bf16 %s, %s, %s, %s" % (ar(Y1, 16), vr(ra, 4), vr(rb, 4), "0" if n == 0 else ar(Y1, 16)))
        if dl <= 31:
            e("v_mfma_f32_32x32x16_bf16 %s, %s, %s, %s" % (ar(Y0, 16), vr(ra, 4), vr(rb + 4, 4), "0" if n == 0 else ar(Y0, 16)))
        if n + 2 < len(steps): issue(n + 2)
    A.nop(16)
    e("v_lshlrev_b32 v10, 6, v6"); e("v_lshlrev_b32 v11, 3, v7"); e("v_add_u32 v10, v10, v11")
    e("s_lshl_b32 s28, s%d, 12" % S_WAVE); e("s_add_u32 s28, s28, %d" % CV_YB); e("v_add_u32 v10, s28, v10")
    for tile, Y in ((0, Y0), (1, Y1)):
        for q4 in range(4):
            for r in range(4): e("v_accvgpr_read_b32 v%d, a%d" % (72 + r, Y + 4 * q4 + r))
            e("s_nop 0")
            e("v_cvt_pk_bf16_f32 v76, v72, v73"); e("v_cvt_pk_bf16_f32 v77, v74, v75")
            e("ds_write_b64 v10, v[76:77] offset:%d" % (tile * 2048 + q4 * 16))
            e("s_nop 1")
    e("s_waitcnt lgkmcnt(0)"); e("s_barrier")
    e("v_lshlrev_b32 v4, 4, v%d" % TH); e("v_add_u32 v4, %d, v4" % CV_YB)
    YR = 72
    for cch in range(4):
        e("ds_read_b128 %s, v4 offset:%d" % (vr(YR + 4 * cch, 4), cch * 4096))
    e("s_waitcnt lgkmcnt(0) vmcnt(0)")
    srd(8, 76, 0x400000)
    OUTR = 40
    for t in range(8):
        for pr in range(2):
            vals = []
            for h in range(2):
                cch = 2 * pr + h
                ysrc = YR + 4 * cch + (t >> 1)
                if t & 1: e("v_and_b32 v%d, 0xffff0000, v%d" % (92 + h, ysrc))
                else: e("v_lshlrev_b32 v%d, 16, v%d" % (92 + h, ysrc))
                p = (7 - t) >> 1
                ksrc = XP + 4 * cch + p
                if (7 - t) & 1: e("v_and_b32 v94, 0xffff0000, v%d" % ksrc)
                else: e("v_lshlrev_b32 v94, 16, v%d" % ksrc)
                e("v_fmac_f32 v%d, v94, v%d" % (92 + h, 112 + cch))
                qsrc = QR + 2 * t + pr
                if h: e("v_and_b32 v94, 0xffff0000, v%d" % qsrc)
                else: e("v_lshlrev_b32 v94, 16, v%d" % qsrc)
                e("v_mul_f32 v%d, v%d, v94" % (92 + h, 92 + h))
            e("v_cvt_pk_bf16_f32 v%d, v92, v93" % (OUTR + 2 * t + pr))
    e("v_lshlrev_b32 v4, 14, v%d" % TH); e("s_lshl_b32 s28, s%d, 3" % TASK); e("v_add_u32 v4, s28, v4")
    for t in range(8):
        e("v_add_u32 v5, %d, v4" % (t * 2048))
        e("buffer_store_dwordx2 %s, v5, s[8:11], 0 offen" % vr(OUTR + 2 * t, 2))
    e("s_waitcnt vmcnt(0)"); e("s_barrier")
    e("s_load_dwordx2 s[30:31], s[0:1], %d" % KA["x"]); e("s_waitcnt lgkmcnt(0)")
    srd(S_X, 30, 0x200000)
    lab(lskip)

XL_T0, XL_QB, XL_KMI, XL_OB, XL_SEL = 0, 65536, 73728, 77824, 86016
S_OUT = 16
S_QT, S_EH, S_XPB, S_PAR2 = 44, 45, 46, 47
def xt_dma_g(seg_sgpr, buf_sgpr):
    e("s_lshr_b32 s28, s%d, 1" % S_WAVE); e("s_lshl_b32 s29, s%d, 15" % seg_sgpr); e("s_lshl_b32 s30, s28, 14"); e("s_add_u32 s29, s29, s30")
    e("s_and_b32 s30, s%d, 1" % S_WAVE); e("s_lshl_b32 s31, s30, 9"); e("s_add_u32 s29, s29, s31")
    e("s_lshl_b32 s31, s%d, 13" % S_WAVE); e("s_add_u32 s31, s31, s%d" % buf_sgpr)
    for i in range(8):
        e("s_add_u32 m0, s31, %d" % (i * 1024)); e("s_add_u32 s30, s29, %d" % (i * 64))
        e("buffer_load_dwordx4 v1, s[12:15], s30 offen lds")

def xphase2():
    L = VLANE
    e("s_mov_b32 s%d, s%d" % (S_HEAD, S_RANK))
    e("s_lshl_b32 s%d, s%d, 13" % (S_H13, S_HEAD)); e("s_lshl_b32 s%d, s%d, 8" % (S_H8, S_HEAD))
    e("s_cmp_eq_u32 s%d, 1" % S_TEAM); e("s_cselect_b32 s%d, 10, 9" % S_NSEG)
    e("s_barrier")
    e("v_lshrrev_b32 v%d, 4, v%d" % (L, V_L16))
    load_setup(32768)
    uq = units_qkv(0, "a", 0)
    for u in uq: u["perm"] = False
    load_units(uq + units_wo("v", V_WO), 8)
    e("s_barrier")
    rt(5)
    if OPT.get("conv", 0): conv_task()
    rt(6)
    KXF, VXF, QF, S, KMF, VMF, OO = 12, 44, 60, 76, 88, 104, 112
    T0, T1, T2, T3, T4, T5 = 6, 7, 8, 9, 10, 11
    V_THR, V_XPS, V_XD = 3, 4, 1
    e("v_lshrrev_b32 v%d, 4, v%d" % (L, V_L16))
    e("s_load_dwordx2 s[30:31], s[0:1], %d" % KA["out"])
    e("s_and_b32 s%d, s%d, 1" % (S_QT, S_WAVE)); e("s_lshr_b32 s%d, s%d, 1" % (S_EH, S_WAVE))
    e("v_lshrrev_b32 v1, 2, v%d" % L); e("v_lshrrev_b32 v2, 4, v%d" % L); e("v_xor_b32 v2, v2, v%d" % L); e("v_and_b32 v2, 3, v2"); e("v_lshlrev_b32 v2, 4, v2")
    e("v_lshlrev_b32 v1, 10, v1"); e("v_add_u32 v1, v1, v2")
    e("v_and_b32 v5, 15, v%d" % L); e("v_lshrrev_b32 v2, 2, v5"); e("v_lshrrev_b32 v34, 4, v%d" % L); e("v_xor_b32 v2, v2, v34"); e("v_and_b32 v2, 3, v2")
    e("v_lshlrev_b32 v5, 2, v5"); e("v_add_u32 v5, v5, v2"); e("v_lshlrev_b32 v5, 4, v5")
    e("v_and_b32 v%d, 15, v%d" % (V_THR, L)); e("v_lshrrev_b32 v2, 4, v%d" % L); e("v_lshlrev_b32 v2, 2, v2"); e("v_sub_u32 v%d, v%d, v2" % (V_THR, V_THR))
    e("s_lshl_b32 s28, s%d, 4" % S_QT); e("v_add_u32 v%d, s28, v%d" % (V_THR, V_THR))
    e("v_bfe_u32 v%d, v%d, 2, 2" % (V_XPS, L)); e("v_lshlrev_b32 v%d, 13, v%d" % (V_XPS, V_XPS))
    e("v_lshrrev_b32 v2, 4, v%d" % L); e("v_lshlrev_b32 v2, 6, v2"); e("v_add_u32 v%d, v%d, v2" % (V_XPS, V_XPS))
    e("v_and_b32 v2, 3, v%d" % L); e("v_lshlrev_b32 v2, 4, v2"); e("v_add_u32 v%d, v%d, v2" % (V_XPS, V_XPS)); e("v_add_u32 v%d, s%d, v%d" % (V_XPS, S_H8, V_XPS))
    e("v_and_b32 v6, 1, v%d" % L); e("v_lshlrev_b32 v6, 4, v6"); e("v_mov_b32 v7, 0x3f80"); e("v_lshlrev_b32 v7, v6, v7")
    e("v_bfe_u32 v6, v%d, 1, 2" % L)
    for i in range(4):
        e("v_cmp_eq_u32 vcc, %d, v6" % i); e("s_nop 1"); e("v_cndmask_b32 v%d, 0, v7, vcc" % (12 + i))
    e("v_add_u32 v6, %d, v%d" % (XL_SEL, V_L16)); e("ds_write_b128 v6, v[12:15]")
    e("s_waitcnt lgkmcnt(0)")
    srd(S_OUT, 30, 0x400000)
    cval = struct.unpack("<I", struct.pack("<f", (128 ** -0.5) * math.log2(math.e)))[0]
    e("s_mov_b32 s%d, 0x%08x" % (S_C, cval))
    e("s_lshl_b32 s%d, s%d, 21" % (S_XPB, S_TEAM)); e("s_add_u32 s%d, s%d, %d" % (S_XPB, S_XPB, WS_XP))
    e("s_sub_u32 s%d, s%d, 1" % (S_SEG, S_TEAM)); e("s_mov_b32 s%d, 0" % S_K); e("s_mov_b32 s%d, 0" % S_XB); e("s_mov_b32 s%d, 0" % S_PAR2)
    xt_dma_g(S_SEG, S_XB)
    e("s_and_b32 s33, s%d, 3" % S_TEAM); e("s_lshl_b32 s33, s33, 6"); e("s_lshr_b32 s29, s%d, 2" % S_TEAM); e("s_lshl_b32 s29, s29, 2"); e("s_add_u32 s33, s33, s29"); e("s_add_u32 s33, s33, 16")
    wait_dbg_counter("s33", 32, "L_x2_init")
    lab("L_x2")
    A.lds = []; A.vm = []
    lkv = A.newlab("L_x2kv")
    e("s_cmp_lg_u32 s%d, 0" % S_WAVE); e("s_cbranch_scc1 %s_s" % lkv)
    e("s_mov_b64 exec, 1"); e("v_mov_b32 v6, 0"); e("s_lshl_b32 s28, s%d, 7" % S_TEAM); e("s_lshl_b32 s29, s%d, 2" % S_HEAD); e("s_add_u32 s28, s28, s29"); e("s_add_u32 s28, s28, %d" % FL_KV); e("s_mov_b32 s29, 0")
    lab(lkv)
    e("buffer_load_dword v7, v6, s[4:7], s28 offen sc0 sc1"); e("s_waitcnt vmcnt(0)"); e("v_readfirstlane_b32 s30, v7")
    e("s_add_u32 s29, s29, 1"); e("s_cmp_gt_u32 s29, 0x80000"); e("s_cbranch_scc1 %s_d" % lkv)
    e("s_cmp_gt_u32 s30, s%d" % S_K); e("s_cbranch_scc1 %s_d" % lkv)
    e("s_sleep 8"); e("s_branch %s" % lkv)
    lab(lkv + "_d")
    e("s_mov_b64 exec, s[26:27]")
    lab(lkv + "_s")
    e("s_waitcnt vmcnt(0)"); e("s_barrier")
    e("s_lshl_b32 s28, s%d, 18" % S_SEG); e("s_add_u32 s28, s28, s%d" % S_H13)
    e("s_add_u32 s29, s28, %d" % WS_KX); e("s_add_u32 s30, s29, 4096")
    for kt in range(2):
        for kk in range(4):
            A.vmem("buffer_load_dwordx4 %s, v%d, s[4:7], s%d offen offset:%d sc1" % (vr(KXF + (kt * 4 + kk) * 4, 4), V_L16, 29 + kt, kk * 1024), "kx")
    e("s_lshl_b32 s29, s%d, 12" % S_EH); e("s_add_u32 s29, s29, s28"); e("s_add_u32 s29, s29, %d" % WS_VX)
    for i in range(4):
        A.vmem("buffer_load_dwordx4 %s, v%d, s[4:7], s29 offen offset:%d sc1" % (vr(VXF + 4 * i, 4), V_L16, i * 1024), "vx")
    ln = A.newlab("L_x2n")
    e("s_add_u32 s32, s%d, 1" % S_K); e("s_cmp_ge_u32 s32, s%d" % S_NSEG); e("s_cbranch_scc1 %s" % ln)
    e("s_add_u32 s33, s%d, 7" % S_SEG); e("s_xor_b32 s36, s%d, 32768" % S_XB)
    xt_dma_g(33, 36)
    lab(ln)
    XF = KMF
    e("v_add_u32 v2, s%d, v5" % S_XB)
    def rdx(kk):
        for tt in range(2):
            A.ds("ds_read_b128 %s, v2 offset:%d" % (vr(XF + (kk % 2) * 8 + tt * 4, 4), (tt * 16 + kk) * 1024), ("x", kk))
    rdx(0); rdx(1)
    for kk in range(16):
        A.wait_lds(("x", kk))
        t, b = kk >> 1, kk & 1
        for u in range(2):
            for tt in range(2):
                xf = vr(XF + (kk % 2) * 8 + tt * 4, 4)
                cq = "0" if kk == 0 else vr(QF + (u * 2 + tt) * 4, 4)
                e("v_mfma_f32_16x16x32_bf16 %s, %s, %s, %s" % (vr(QF + (u * 2 + tt) * 4, 4), ar((u * 8 + t) * 8 + 4 * b, 4), xf, cq))
        if kk + 2 < 16: rdx(kk + 2)
    A.nop(8)
    for tt in range(2):
        for u in range(2):
            a0 = QF + (u * 2 + tt) * 4
            e("v_cvt_pk_bf16_f32 v%d, v%d, v%d" % (OO + tt * 4 + 2 * u, a0, a0 + 1)); e("v_cvt_pk_bf16_f32 v%d, v%d, v%d" % (OO + tt * 4 + 2 * u + 1, a0 + 2, a0 + 3))
    e("s_lshl_b32 s28, s%d, 10" % S_WAVE); e("s_add_u32 s28, s28, %d" % XL_QB); e("v_add_u32 v2, s28, v%d" % V_L16)
    for tt in range(2):
        A.ds("ds_write_b128 v2, %s offset:%d" % (vr(OO + tt * 4, 4), tt * 4096), "qw")
    A.wait_lds_all(); e("s_barrier")
    e("s_lshl_b32 s28, s%d, 12" % S_QT); e("s_add_u32 s28, s28, %d" % XL_QB); e("v_add_u32 v2, s28, v%d" % V_L16)
    for kk in range(4):
        A.ds("ds_read_b128 %s, v2 offset:%d" % (vr(QF + 4 * kk, 4), kk * 1024), ("q", kk))
    e("s_waitcnt vmcnt(12)")
    l12 = A.newlab("L_x2w")
    e("s_cmp_lt_u32 s32, s%d" % S_NSEG); e("s_cbranch_scc1 %s" % l12); e("s_waitcnt vmcnt(4)"); lab(l12)
    for kk in range(4):
        A.wait_lds(("q", kk))
        for kt in range(2):
            cs = "0" if kk == 0 else vr(S + 4 * kt, 4)
            e("v_mfma_f32_16x16x32_bf16 %s, %s, %s, %s" % (vr(S + 4 * kt, 4), vr(KXF + (kt * 4 + kk) * 4, 4), vr(QF + 4 * kk, 4), cs))
    lw = A.newlab("L_x2km")
    e("s_cmp_lg_u32 s%d, 0" % S_WAVE); e("s_cbranch_scc1 %s_s" % lw)
    e("s_mov_b64 exec, 1"); e("v_mov_b32 v%d, 0" % T0); e("s_lshl_b32 s28, s%d, 2" % S_HEAD); e("s_add_u32 s28, s28, %d" % FL_KM); e("s_mov_b32 s29, 0")
    lab(lw)
    e("buffer_load_dword v%d, v%d, s[4:7], s28 offen sc0 sc1" % (T1, T0)); e("s_waitcnt vmcnt(0)"); e("v_readfirstlane_b32 s30, v%d" % T1)
    e("s_add_u32 s29, s29, 1"); e("s_cmp_gt_u32 s29, 0x80000"); e("s_cbranch_scc1 %s_d" % lw)
    e("s_cmp_gt_u32 s30, s%d" % S_SEG); e("s_cbranch_scc1 %s_d" % lw)
    e("s_add_u32 s30, s30, 2"); e("s_cmp_gt_u32 s30, s%d" % S_SEG); e("s_cbranch_scc1 %s_n" % lw)
    e("s_sleep %d" % OPT.get("slp", 8)); e("s_branch %s" % lw)
    lab(lw + "_n")
    e("s_sleep 2"); e("s_branch %s" % lw)
    lab(lw + "_d")
    e("s_mov_b64 exec, s[26:27]")
    lab(lw + "_s")
    e("s_waitcnt vmcnt(0)"); e("s_barrier")
    rtk(8, S_SEG, 63)
    e("s_lshl_b32 s28, s%d, 16" % S_SEG); e("s_lshl_b32 s29, s%d, 11" % S_HEAD); e("s_add_u32 s28, s28, s29")
    e("s_lshl_b32 s29, s%d, 9" % S_WAVE); e("s_add_u32 s29, s29, s28"); e("s_add_u32 s29, s29, %d" % WS_KM)
    e("v_lshrrev_b32 v%d, 2, v%d" % (T0, V_L16))
    for u in range(2):
        e("buffer_load_dword v%d, v%d, s[4:7], s29 offen offset:%d sc1" % (T2 + u, T0, u * 256))
    e("s_lshl_b32 s29, s%d, 10" % S_EH); e("s_add_u32 s29, s29, s28"); e("s_add_u32 s29, s29, %d" % WS_VM)
    for i in range(4):
        e("buffer_load_dword v%d, v%d, s[4:7], s29 offen offset:%d sc1" % (VMF + 2 * i, T0, i * 256))
        e("v_mov_b32 v%d, 0" % (VMF + 2 * i + 1))
    e("v_and_b32 v%d, 0xf0, v%d" % (T4, V_L16)); e("v_lshlrev_b32 v%d, 1, v%d" % (T4, T4)); e("v_lshrrev_b32 v%d, 8, v%d" % (T1, V_L16)); e("v_lshlrev_b32 v%d, 3, v%d" % (T1, T1))
    e("v_add_u32 v%d, v%d, v%d" % (T4, T4, T1)); e("s_lshl_b32 s29, s%d, 10" % S_WAVE); e("s_add_u32 s29, s29, %d" % XL_KMI); e("v_add_u32 v%d, s29, v%d" % (T4, T4))
    e("s_waitcnt vmcnt(0)")
    for u in range(2):
        e("ds_write_b32 v%d, v%d offset:%d" % (T4, T2 + u, u * 512))
    e("s_waitcnt lgkmcnt(0)"); e("s_barrier")
    rtk(9, S_SEG, 63)
    e("v_lshrrev_b32 v%d, 1, v%d" % (T0, V_L16))
    e("v_add_u32 v%d, %d, v%d" % (T0, XL_KMI, T0))
    for kk in range(4):
        for b in range(2):
            A.ds("ds_read_b64_tr_b16 %s, v%d offset:%d" % (vr(KMF + 4 * kk + 2 * b, 2), T0, kk * 1024 + b * 512), ("km", kk))
    for kk in range(4):
        A.wait_lds(("km", kk))
        e("v_mfma_f32_16x16x32_bf16 %s, %s, %s, %s" % (vr(S + 8, 4), vr(KMF + 4 * kk, 4), vr(QF + 4 * kk, 4), "0" if kk == 0 else vr(S + 8, 4)))
    e("v_mov_b32 v%d, 0xff800000" % T5)
    for kt in range(2):
        for r in range(4):
            e("v_cmp_gt_i32 vcc, %d, v%d" % (16 * kt + r, V_THR)); e("s_nop 1"); e("v_cndmask_b32 v%d, v%d, v%d, vcc" % (S + 4 * kt + r, S + 4 * kt + r, T5))
    A.nop(2)
    e("v_max3_f32 v%d, v%d, v%d, v%d" % (T0, S, S + 1, S + 2)); e("v_max3_f32 v%d, v%d, v%d, v%d" % (T1, S + 4, S + 5, S + 6))
    e("v_max3_f32 v%d, v%d, v%d, v%d" % (T0, T0, S + 3, S + 7)); e("v_max3_f32 v%d, v%d, v%d, v%d" % (T1, T1, S + 8, S + 9))
    e("v_max_f32 v%d, v%d, v%d" % (T0, T0, T1))
    e("v_mov_b32 v%d, v%d" % (T1, T0)); A.nop(2); e("v_permlane16_swap_b32 v%d, v%d" % (T0, T1)); e("v_max_f32 v%d, v%d, v%d" % (T0, T0, T1))
    e("v_mov_b32 v%d, v%d" % (T1, T0)); A.nop(2); e("v_permlane32_swap_b32 v%d, v%d" % (T0, T1)); e("v_max_f32 v%d, v%d, v%d" % (T0, T0, T1))
    e("v_mul_f32 v%d, s%d, v%d" % (T0, S_C, T0))
    for i in range(10): e("v_fma_f32 v%d, v%d, s%d, -v%d" % (S + i, S + i, S_C, T0))
    for i in range(10): e("v_exp_f32 v%d, v%d" % (S + i, S + i))
    e("s_nop 0")
    e("v_add_f32 v%d, v%d, v%d" % (T2, S, S + 1)); e("v_add_f32 v%d, v%d, v%d" % (T3, S + 2, S + 3))
    for i in range(4, 10, 2):
        e("v_add_f32 v%d, v%d, v%d" % (T2, T2, S + i)); e("v_add_f32 v%d, v%d, v%d" % (T3, T3, S + i + 1))
    e("v_add_f32 v%d, v%d, v%d" % (T2, T2, T3))
    for i in range(4): e("v_cvt_pk_bf16_f32 v%d, v%d, v%d" % (S + i, S + 2 * i, S + 2 * i + 1))
    e("v_cvt_pk_bf16_f32 v%d, v%d, v%d" % (S + 10, S + 8, S + 9)); e("v_mov_b32 v%d, 0" % (S + 11))
    e("v_mov_b32 v%d, v%d" % (T3, T2)); A.nop(2); e("v_permlane16_swap_b32 v%d, v%d" % (T2, T3)); e("v_add_f32 v%d, v%d, v%d" % (T2, T2, T3))
    e("v_mov_b32 v%d, v%d" % (T3, T2)); A.nop(2); e("v_permlane32_swap_b32 v%d, v%d" % (T2, T3)); e("v_add_f32 v%d, v%d, v%d" % (T2, T2, T3))
    e("v_rcp_f32 v%d, v%d" % (T2, T2))
    for i in range(4):
        e("v_mfma_f32_16x16x32_bf16 %s, %s, %s, 0" % (vr(OO + 4 * i, 4), vr(VXF + 4 * i, 4), vr(S, 4)))
    for i in range(4):
        e("v_mfma_f32_16x16x16_bf16 %s, %s, %s, %s" % (vr(OO + 4 * i, 4), vr(VMF + 2 * i, 2), vr(S + 10, 2), vr(OO + 4 * i, 4)))
    A.nop(8)
    for i in range(16): e("v_mul_f32 v%d, v%d, v%d" % (OO + i, OO + i, T2))
    for j in range(2):
        for tsub in range(2):
            a0 = OO + (2 * j + tsub) * 4
            e("v_cvt_pk_bf16_f32 v%d, v%d, v%d" % (QF + 4 * j + 2 * tsub, a0, a0 + 1)); e("v_cvt_pk_bf16_f32 v%d, v%d, v%d" % (QF + 4 * j + 2 * tsub + 1, a0 + 2, a0 + 3))
    e("s_lshl_b32 s28, s%d, 12" % S_QT); e("s_lshl_b32 s29, s%d, 11" % S_EH); e("s_add_u32 s28, s28, s29"); e("s_add_u32 s28, s28, %d" % XL_OB); e("v_add_u32 v2, s28, v%d" % V_L16)
    for j in range(2):
        A.ds("ds_write_b128 v2, %s offset:%d" % (vr(QF + 4 * j, 4), j * 1024), "ow")
    A.wait_lds_all(); e("s_barrier")
    rtk(10, S_SEG, 63)
    e("v_add_u32 v2, %d, v%d" % (XL_OB, V_L16))
    ACC, AF, PKR = 12, 44, 60
    e("s_add_u32 s33, s%d, s%d" % (S_XPB, S_PAR2))
    for qt in range(2):
        for kk in range(4):
            A.ds("ds_read_b128 %s, v2 offset:%d" % (vr(AF + 4 * kk, 4), qt * 4096 + kk * 1024), ("o", kk))
        for kk in range(4):
            A.wait_lds(("o", kk))
            t, b = kk >> 1, kk & 1
            for nt in range(8):
                e("v_mfma_f32_16x16x32_bf16 %s, %s, %s, %s" % (vr(ACC + 4 * nt, 4), vr(AF + 4 * kk, 4), vr(V_WO + (nt * 2 + t) * 8 + 4 * b, 4), "0" if kk == 0 else vr(ACC + 4 * nt, 4)))
        A.nop(8)
        for p in range(4):
            for tsub in range(2):
                a0 = ACC + 4 * (2 * p + tsub)
                e("v_cvt_pk_bf16_f32 v%d, v%d, v%d" % (PKR + 4 * p + 2 * tsub, a0, a0 + 1)); e("v_cvt_pk_bf16_f32 v%d, v%d, v%d" % (PKR + 4 * p + 2 * tsub + 1, a0 + 2, a0 + 3))
            e("s_lshl_b32 s28, s%d, 17" % S_WAVE); e("s_add_u32 s28, s28, s33"); e("s_add_u32 s28, s28, %d" % ((qt * 16 + p) * 4 * 8192))
            e("buffer_store_dwordx4 %s, v%d, s[4:7], s28 offen" % (vr(PKR + 4 * p, 4), V_XPS))
        A.nop(2)
    e("s_waitcnt vmcnt(0)"); e("s_barrier")
    rtk(11, S_SEG, 63)
    lf = A.newlab("L_x2f")
    e("s_cmp_lg_u32 s%d, 0" % S_WAVE); e("s_cbranch_scc1 %s" % lf)
    e("s_add_u32 s28, s%d, 1" % S_K); e("v_mov_b32 v%d, s28" % T0); e("v_mov_b32 v%d, 0" % T1)
    e("s_lshl_b32 s28, s%d, 7" % S_TEAM); e("s_lshl_b32 s29, s%d, 2" % S_HEAD); e("s_add_u32 s28, s28, s29"); e("s_add_u32 s28, s28, %d" % FL_XP)
    e("s_mov_b64 exec, 1"); e("buffer_store_dword v%d, v%d, s[4:7], s28 offen" % (T0, T1)); e("s_mov_b64 exec, s[26:27]")
    lab(lf)
    lw = A.newlab("L_x2r")
    e("v_lshrrev_b32 v%d, 2, v%d" % (T0, V_L16)); e("v_and_b32 v%d, 127, v%d" % (T0, T0))
    e("s_lshl_b32 s28, s%d, 7" % S_TEAM); e("s_add_u32 s28, s28, %d" % FL_XP); e("s_mov_b32 s29, 0")
    e("v_add_u32 v%d, %d, v%d" % (T3, XL_SEL, V_L16)); e("ds_read_b128 v[44:47], v%d" % T3)
    lab(lw)
    e("buffer_load_dword v%d, v%d, s[4:7], s28 offen sc1" % (T1, T0)); e("s_waitcnt vmcnt(0)")
    e("v_cmp_ge_u32 vcc, s%d, v%d" % (S_K, T1))
    e("s_add_u32 s29, s29, 1"); e("s_cmp_gt_u32 s29, 0x80000"); e("s_cbranch_scc1 %s_d" % lw)
    e("s_cbranch_vccnz %s" % lw)
    lab(lw + "_d")
    rtk(12, S_SEG, 63)
    e("s_lshl_b32 s28, s%d, 2" % S_HEAD); e("s_add_u32 s28, s28, s%d" % S_WAVE); e("s_lshl_b32 s28, s28, 13"); e("s_add_u32 s28, s28, s33"); e("s_add_u32 s29, s28, 4096")
    for x in range(8):
        e("buffer_load_dwordx4 %s, v%d, s[4:7], s%d offen offset:%d sc1" % (vr(12 + 4 * x, 4), V_L16, 28 if x < 4 else 29, (x & 3) * 1024))
    e("s_waitcnt lgkmcnt(0)")
    for x in range(8):
        e("s_waitcnt vmcnt(%d)" % (7 - x))
        e("v_mfma_f32_16x16x32_bf16 v[48:51], %s, v[44:47], %s" % (vr(12 + 4 * x, 4), "0" if x == 0 else "v[48:51]"))
    e("v_lshrrev_b32 v%d, 8, v%d" % (T0, V_L16)); e("v_lshlrev_b32 v%d, 2, v%d" % (T0, T0))
    e("v_bfe_u32 v%d, v%d, 4, 2" % (T1, V_L16)); e("v_add_u32 v%d, v%d, v%d" % (T0, T0, T1)); e("v_lshlrev_b32 v%d, 11, v%d" % (T0, T0))
    e("v_bfe_u32 v%d, v%d, 6, 1" % (T1, V_L16)); e("v_lshlrev_b32 v%d, 3, v%d" % (T1, T1)); e("v_add_u32 v%d, v%d, v%d" % (T0, T0, T1))
    e("s_lshr_b32 s28, s%d, 4" % S_HEAD); e("s_lshl_b32 s28, s28, 4"); e("s_lshl_b32 s29, s%d, 5" % S_SEG); e("s_add_u32 s28, s28, s29"); e("s_lshl_b32 s28, s28, 11")
    e("s_bfe_u32 s29, s%d, 0x20002" % S_HEAD); e("s_lshl_b32 s29, s29, 8"); e("s_add_u32 s28, s28, s29")
    e("s_bfe_u32 s29, s%d, 0x10001" % S_HEAD); e("s_lshl_b32 s29, s29, 7"); e("s_add_u32 s28, s28, s29")
    e("s_and_b32 s29, s%d, 1" % S_HEAD); e("s_lshl_b32 s29, s29, 4"); e("s_add_u32 s28, s28, s29")
    e("s_lshl_b32 s29, s%d, 5" % S_WAVE); e("s_add_u32 s28, s28, s29"); e("s_add_u32 s28, s28, 1024")
    A.nop(4)
    e("v_cvt_pk_bf16_f32 v48, v48, v49"); e("v_cvt_pk_bf16_f32 v49, v50, v51")
    e("v_and_b32 v%d, 128, v%d" % (T1, V_L16)); e("v_cmp_eq_u32 vcc, 0, v%d" % T1)
    e("s_nop 1")
    e("s_mov_b64 exec, vcc")
    e("buffer_store_dwordx2 v[48:49], v%d, s[16:19], s28 offen" % T0)
    e("s_mov_b64 exec, s[26:27]")
    e("s_add_u32 s%d, s%d, 7" % (S_SEG, S_SEG)); e("s_xor_b32 s%d, s%d, 32768" % (S_XB, S_XB)); e("s_xor_b32 s%d, s%d, 0x100000" % (S_PAR2, S_PAR2))
    e("s_add_u32 s%d, s%d, 1" % (S_K, S_K))
    e("s_cmp_lt_u32 s%d, s%d" % (S_K, S_NSEG)); e("s_cbranch_scc1 L_x2")
    e("s_waitcnt vmcnt(0)")
    rt(7)
    e("s_branch L_end")

def xteam():
    L = VLANE
    lab("L_xteam")
    e("v_lshlrev_b32 v%d, 4, v%d" % (V_L16, L))
    e("s_load_dwordx2 s[30:31], s[0:1], %d" % KA["x"])
    e("v_lshrrev_b32 v1, 2, v%d" % L); e("v_lshrrev_b32 v2, 4, v%d" % L); e("v_xor_b32 v2, v2, v%d" % L); e("v_and_b32 v2, 3, v2"); e("v_lshlrev_b32 v2, 4, v2")
    e("v_lshlrev_b32 v1, 10, v1"); e("v_add_u32 v1, v1, v2")
    e("v_and_b32 v5, 15, v%d" % L); e("v_lshrrev_b32 v2, 2, v5"); e("v_lshrrev_b32 v34, 4, v%d" % L); e("v_xor_b32 v2, v2, v34"); e("v_and_b32 v2, 3, v2")
    e("v_lshlrev_b32 v5, 2, v5"); e("v_add_u32 v5, v5, v2"); e("v_lshlrev_b32 v5, 4, v5")
    e("s_waitcnt lgkmcnt(0)")
    srd(S_X, 30, 0x200000)
    if OPT["stage"] >= 3:
        lx = A.newlab("L_xi")
        e("s_cmp_lg_u32 s%d, 1" % S_WAVE); e("s_cbranch_scc1 %s" % lx)
        e("s_mov_b64 exec, 1")
        e("v_mov_b32 v32, 0"); e("s_lshl_b32 s28, s%d, 7" % S_TEAM); e("s_lshl_b32 s29, s%d, 2" % S_HEAD); e("s_add_u32 s28, s28, s29"); e("s_add_u32 s28, s28, %d" % FL_XP)
        e("buffer_store_dword v32, v32, s[4:7], s28 offen"); e("s_waitcnt vmcnt(0)")
        e("s_and_b32 s28, s%d, 3" % S_TEAM); e("s_lshl_b32 s28, s28, 6"); e("s_lshr_b32 s29, s%d, 2" % S_TEAM); e("s_lshl_b32 s29, s29, 2"); e("s_add_u32 s28, s28, s29"); e("s_add_u32 s28, s28, 16")
        e("v_mov_b32 v32, s28"); e("v_mov_b32 v33, 1")
        e("global_atomic_add v32, v33, s[24:25] sc1")
        e("s_mov_b64 exec, s[26:27]")
        lab(lx)
    if OPT.get("warm", 1):
        e("s_sub_u32 s28, s%d, 1" % S_TEAM); e("s_lshl_b32 s28, s28, 5"); e("s_add_u32 s28, s28, s%d" % S_HEAD); e("s_lshl_b32 s28, s28, 2"); e("s_add_u32 s28, s28, s%d" % S_WAVE)
        e("s_mul_i32 s28, s28, 5120")
        for which, base in ((0, 100), (3, 104)):
            p = S_PW + 2 * which
            e("s_mov_b32 s8, s%d" % p); e("s_mov_b32 s9, s%d" % (p + 1)); e("s_mov_b32 s10, 0x400000"); e("s_mov_b32 s11, 0x20000")
            for i in range(5):
                e("s_add_u32 s29, s28, %d" % (i * 1024))
                e("buffer_load_dwordx4 %s, v%d, s[8:11], s29 offen" % (vr(base, 4), V_L16))
    e("s_mov_b32 s%d, s%d" % (S_RANK, S_HEAD))
    e("s_sub_u32 s28, s%d, 1" % S_TEAM); e("s_lshl_b32 s28, s28, 5"); e("s_add_u32 s28, s28, s%d" % S_HEAD)
    e("s_mul_i32 s29, s28, 9363"); e("s_lshr_b32 s%d, s29, 16" % S_HEAD); e("s_mul_i32 s29, s%d, 7" % S_HEAD); e("s_sub_u32 s%d, s28, s29" % S_SUB)
    e("s_lshl_b32 s%d, s%d, 13" % (S_H13, S_HEAD)); e("s_lshl_b32 s%d, s%d, 8" % (S_H8, S_HEAD))
    e("s_cmp_eq_u32 s%d, 0" % S_SUB); e("s_cselect_b32 s%d, 10, 9" % S_NSEG)
    load_setup(32768)
    uk = units_qkv(1, "a", 128); uv = units_qkv(2, "v", 128)
    for u in uk + uv: u["perm"] = False
    rt(2)
    load_units(uk + uv, 8)
    e("s_barrier")
    rt(3)
    def xt_dma(seg_sgpr, buf_sgpr):
        e("s_lshr_b32 s28, s%d, 1" % S_WAVE); e("s_lshl_b32 s29, s%d, 15" % seg_sgpr); e("s_lshl_b32 s30, s28, 14"); e("s_add_u32 s29, s29, s30")
        e("s_and_b32 s30, s%d, 1" % S_WAVE); e("s_lshl_b32 s31, s30, 9"); e("s_add_u32 s29, s29, s31")
        e("s_lshl_b32 s31, s%d, 13" % S_WAVE); e("s_add_u32 s31, s31, s%d" % buf_sgpr)
        for i in range(8):
            e("s_add_u32 m0, s31, %d" % (i * 1024)); e("s_add_u32 s30, s29, %d" % (i * 64))
            e("buffer_load_dwordx4 v1, s[12:15], s30 offen lds")
    e("s_mov_b32 s%d, s%d" % (S_SEG, S_SUB)); e("s_mov_b32 s%d, 0" % S_K); e("s_mov_b32 s%d, 0" % S_XB)
    xt_dma(S_SEG, S_XB)
    if OPT["stage"] >= 2:
        wait_dbg_counter(24, 32, "L_x1_init")
    AK, AV, XF, PK = 40, 56, 72, 88
    lab("L_x1")
    e("s_waitcnt vmcnt(4)")
    l0 = A.newlab("L_x1a")
    e("s_cmp_lg_u32 s%d, 0" % S_K); e("s_cbranch_scc1 %s" % l0); e("s_waitcnt vmcnt(0)"); lab(l0)
    e("s_barrier")
    lf = A.newlab("L_x1f")
    e("s_cmp_lt_u32 s%d, 2" % S_K); e("s_cbranch_scc1 %s" % lf)
    e("s_cmp_lg_u32 s%d, 0" % S_WAVE); e("s_cbranch_scc1 %s" % lf)
    e("s_sub_u32 s28, s%d, 1" % S_K); e("v_mov_b32 v32, s28"); e("v_mov_b32 v33, 0")
    e("s_lshl_b32 s28, s%d, 7" % S_SUB); e("s_lshl_b32 s29, s%d, 2" % S_HEAD); e("s_add_u32 s28, s28, s29"); e("s_add_u32 s28, s28, %d" % (FL_KV + 128))
    e("s_mov_b64 exec, 1"); e("buffer_store_dword v32, v33, s[4:7], s28 offen sc0 sc1"); e("s_mov_b64 exec, s[26:27]")
    lab(lf)
    ln = A.newlab("L_x1n")
    e("s_add_u32 s32, s%d, 1" % S_K); e("s_cmp_ge_u32 s32, s%d" % S_NSEG); e("s_cbranch_scc1 %s" % ln)
    e("s_add_u32 s33, s%d, 7" % S_SEG); e("s_xor_b32 s36, s%d, 32768" % S_XB)
    xt_dma(33, 36)
    lab(ln)
    e("v_add_u32 v2, s%d, v5" % S_XB)
    A.lds = []
    def rdx(kk):
        for tt in range(2):
            A.ds("ds_read_b128 %s, v2 offset:%d" % (vr(XF + (kk % 2) * 8 + tt * 4, 4), (tt * 16 + kk) * 1024), ("x", kk))
    rdx(0); rdx(1)
    for kk in range(16):
        A.wait_lds(("x", kk))
        t, b = kk >> 1, kk & 1
        for u in range(2):
            for tt in range(2):
                xf = vr(XF + (kk % 2) * 8 + tt * 4, 4)
                ck = "0" if kk == 0 else vr(AK + (u * 2 + tt) * 4, 4)
                cv = "0" if kk == 0 else vr(AV + (u * 2 + tt) * 4, 4)
                e("v_mfma_f32_16x16x32_bf16 %s, %s, %s, %s" % (vr(AK + (u * 2 + tt) * 4, 4), ar(128 + (u * 8 + t) * 8 + 4 * b, 4), xf, ck))
                e("v_mfma_f32_16x16x32_bf16 %s, %s, %s, %s" % (vr(AV + (u * 2 + tt) * 4, 4), xf, vr(128 + (u * 8 + t) * 8 + 4 * b, 4), cv))
        if kk + 2 < 16: rdx(kk + 2)
    A.nop(8)
    for tt in range(2):
        for u in range(2):
            a0 = AK + (u * 2 + tt) * 4
            e("v_cvt_pk_bf16_f32 v%d, v%d, v%d" % (PK + tt * 4 + 2 * u, a0, a0 + 1)); e("v_cvt_pk_bf16_f32 v%d, v%d, v%d" % (PK + tt * 4 + 2 * u + 1, a0 + 2, a0 + 3))
    for u in range(2):
        for tt in range(2):
            a0 = AV + (u * 2 + tt) * 4
            e("v_cvt_pk_bf16_f32 v%d, v%d, v%d" % (PK + 8 + u * 4 + 2 * tt, a0, a0 + 1)); e("v_cvt_pk_bf16_f32 v%d, v%d, v%d" % (PK + 8 + u * 4 + 2 * tt + 1, a0 + 2, a0 + 3))
    e("s_lshl_b32 s28, s%d, 18" % S_SEG); e("s_add_u32 s28, s28, s%d" % S_H13)
    e("s_lshl_b32 s29, s%d, 10" % S_WAVE); e("s_add_u32 s29, s29, s28"); e("s_add_u32 s30, s29, %d" % (WS_KX + 4096)); e("s_add_u32 s29, s29, %d" % WS_KX)
    e("buffer_store_dwordx4 %s, v%d, s[4:7], s29 offen sc0 sc1" % (vr(PK, 4), V_L16))
    e("buffer_store_dwordx4 %s, v%d, s[4:7], s30 offen sc0 sc1" % (vr(PK + 4, 4), V_L16))
    e("s_lshl_b32 s29, s%d, 11" % S_WAVE); e("s_add_u32 s29, s29, s28"); e("s_add_u32 s29, s29, %d" % WS_VX)
    e("buffer_store_dwordx4 %s, v%d, s[4:7], s29 offen sc0 sc1" % (vr(PK + 8, 4), V_L16))
    e("buffer_store_dwordx4 %s, v%d, s[4:7], s29 offen offset:1024 sc0 sc1" % (vr(PK + 12, 4), V_L16))
    lf0 = A.newlab("L_x1f0")
    e("s_cmp_lg_u32 s%d, 0" % S_K); e("s_cbranch_scc1 %s" % lf0)
    e("s_waitcnt vmcnt(0)"); e("s_barrier")
    e("s_cmp_lg_u32 s%d, 0" % S_WAVE); e("s_cbranch_scc1 %s" % lf0)
    e("v_mov_b32 v32, 1"); e("v_mov_b32 v33, 0")
    e("s_lshl_b32 s28, s%d, 7" % S_SUB); e("s_lshl_b32 s29, s%d, 2" % S_HEAD); e("s_add_u32 s28, s28, s29"); e("s_add_u32 s28, s28, %d" % (FL_KV + 128))
    e("s_mov_b64 exec, 1"); e("buffer_store_dword v32, v33, s[4:7], s28 offen sc0 sc1"); e("s_mov_b64 exec, s[26:27]")
    lab(lf0)
    e("s_add_u32 s%d, s%d, 7" % (S_SEG, S_SEG)); e("s_xor_b32 s%d, s%d, 32768" % (S_XB, S_XB)); e("s_add_u32 s%d, s%d, 1" % (S_K, S_K))
    e("s_cmp_lt_u32 s%d, s%d" % (S_K, S_NSEG)); e("s_cbranch_scc1 L_x1")
    e("s_waitcnt vmcnt(0)"); e("s_barrier")
    rt(4)
    lf = A.newlab("L_x1g")
    e("s_cmp_lg_u32 s%d, 0" % S_WAVE); e("s_cbranch_scc1 %s" % lf)
    e("v_mov_b32 v32, s%d" % S_NSEG); e("v_mov_b32 v33, 0")
    e("s_lshl_b32 s28, s%d, 7" % S_SUB); e("s_lshl_b32 s29, s%d, 2" % S_HEAD); e("s_add_u32 s28, s28, s29"); e("s_add_u32 s28, s28, %d" % (FL_KV + 128))
    e("s_mov_b64 exec, 1"); e("buffer_store_dword v32, v33, s[4:7], s28 offen sc0 sc1"); e("s_mov_b64 exec, s[26:27]")
    lab(lf)
    e("s_waitcnt vmcnt(0)")
    if OPT["stage"] < 3:
        e("s_branch L_end"); return
    xphase2()

hdr = []
if OPT["final"]:
    hdr.append("; Fused kernel: branch A (short conv + long causal conv as Toeplitz MFMA) and branch B (memory-recurrent attention).")
    hdr.append("; One persistent workgroup per CU. Workgroups form teams by the XCD they actually run on (HW_REG_XCC_ID):")
hdr.append("; @launch grid=(256,1,1) block=(256,1,1) lds=%d" % LDS_TOTAL)
hdr.append('.amdgcn_target "amdgcn-amd-amdhsa--gfx950"')
hdr.append(".text\n.globl %s\n.p2align 8\n.type %s,@function\n%s:" % (KNAME, KNAME, KNAME))
prologue()
e("s_cmp_eq_u32 s%d, 0" % S_TEAM); e("s_cbranch_scc1 L_chain")
if OPT["stage"] >= 2: e("s_branch L_xteam")
else: e("s_branch L_end")
chain()
if OPT["stage"] >= 2: xteam()
lab("L_end")
e("s_endpgm")
tail = '''.section .rodata,"a"
.p2align 6
.amdhsa_kernel %s
  .amdhsa_next_free_vgpr 512
  .amdhsa_next_free_sgpr 102
  .amdhsa_accum_offset 256
  .amdhsa_group_segment_fixed_size 0
  .amdhsa_kernarg_size 128
  .amdhsa_user_sgpr_count 2
  .amdhsa_user_sgpr_kernarg_segment_ptr 1
  .amdhsa_system_sgpr_workgroup_id_x 1
.end_amdhsa_kernel
''' % KNAME
open(OUTP, "w").write("\n".join(hdr) + "\n" + A.text() + tail)
print("wrote", OUTP, len(A.L), "lines")
```

```python
import sys, os, struct, math
sys.path.insert(0, os.path.dirname(os.path.abspath(__file__)))
from asmlib import *

KNAME = "concat_heads__ssm_conv_h3__memory_aug_recurrent_mem_tr__prompt_kernel"
OPT = dict(final=0, nowait=0, stage=1, hist=0, stamps=0, nsteps=64, dly_red=0, dly_mem=0, slp=32)
for a in sys.argv[1:]:
    if "=" in a:
        k, v = a.split("="); OPT[k] = int(v) if v.lstrip("-").isdigit() else v
OUTP = OPT.get("out", "chain.s")

KA = dict(q=0, k=8, v=16, shift=24, ssmk=32, ssmd=40, x=48, mem0=56, wq=64, wk=72, wv=80, wo=88, seg=96, out=104, dbg=112, ws=120)
WS_KX = 0x0000000
WS_VX = 0x1000000
WS_KM = 0x2000000
WS_VM = 0x3000000
WS_PB = 0x2C00000
WS_MB = 0x2CC0000
WS_FL = 0x2CD0000
WS_HIST = 0x2D00000
WS_STAMP = 0x2E00000
WS_XP = 0x4000000
FL_KV, FL_KM, FL_XP = WS_FL, WS_FL + 1024, WS_FL + 2048
WVSTRIDE = 28672
L_KX, L_VX, L_MEM, L_X, L_O, L_SEL, L_DUM = 114688, 131072, 147456, 155648, 159744, 161792, 162816
LDS_TOTAL = 163840
S_WS = 4
S_W = 8
S_XCC, S_WAVE, S_HEAD, S_TEAM = 20, 21, 22, 23
S_DBG = 24
S_ALL = 26
S_STEP, S_MCUR, S_MNXT, S_PCUR, S_RED, S_MQ, S_KXO, S_VXO = 40, 41, 42, 43, 44, 45, 46, 47
S_DMA = 39
S_LO8 = 48
S_LO32 = 50
S_C, S_SPIN, S_FIRST, S_PAR = 52, 53, 54, 55
S_PW = 56
S_ST = 64
S_MPREV, S_H13, S_H8, S_PPREV = 96, 97, 98, 99
S_RDY = 100
S_TAG = 99
V_L16, V_XWR, V_OWR, V_PS0, V_IDX, V_WVA = 0, 1, 2, 3, 4, 5
VT = 6
V_KX = 12
V_LD = 12
V_S = 28
V_MEM = 40
V_QK = 72
V_VA = 88
V_WVR = 96
V_WV0 = 112
V_WO = 128
VLANE = 30
VS = 32

A = Asm()
e, c, lab = A.e, A.c, A.lab
def v(i): return "v%d" % i

def srd(base_s, ptr_s, size):
    e("s_mov_b32 s%d, s%d" % (base_s, ptr_s)); e("s_mov_b32 s%d, s%d" % (base_s + 1, ptr_s + 1))
    e("s_mov_b32 s%d, 0x%x" % (base_s + 2, size)); e("s_mov_b32 s%d, 0x20000" % (base_s + 3))

TS = [int(x) for x in str(OPT.get("ts", "")).split(",") if x != ""]
def ts(i):
    if i in TS:
        k = TS.index(i)
        e("%s s[%d:%d]" % ("s_memrealtime" if OPT.get("rts", 0) else "s_memtime", 64 + 2 * k, 65 + 2 * k))
def stamp(i, lvl=1):
    ts(i)
    if OPT["stamps"] < lvl: return
    if OPT["stamps"] == 2 and lvl == 1: pass
    e("s_memtime s[82:83]"); e("s_waitcnt lgkmcnt(0)"); A.lds = []
    e("s_sub_u32 s81, s82, s80"); e("s_add_u32 s%d, s%d, s81" % (S_ST + i, S_ST + i)); e("s_mov_b32 s80, s82")

def bar_off(t): return (t & 3) * 64 + 16 + (t >> 2) * 4
WS_TRACE = 0x2F00000
def rtk(i, kreg, kval):
    if not OPT.get("trace", 0): return
    l = A.newlab("L_rtk")
    e("s_cmp_lg_u32 s%d, %d" % (kreg, kval)); e("s_cbranch_scc1 %s" % l)
    rt(i)
    lab(l)
def rt(i):
    if not OPT.get("trace", 0): return
    l = A.newlab("L_rt")
    e("s_cmp_lg_u32 s%d, 0" % S_WAVE); e("s_cbranch_scc1 %s" % l)
    e("s_memrealtime s[90:91]"); e("s_waitcnt lgkmcnt(0)")
    e("s_add_u32 s28, s93, %d" % (WS_TRACE + 4 * i))
    e("s_mov_b64 exec, 1"); e("v_mov_b32 v10, s90"); e("v_mov_b32 v11, 0"); e("buffer_store_dword v10, v11, s[4:7], s28 offen"); e("s_mov_b64 exec, s[26:27]")
    lab(l)
def prologue():
    e("s_cmp_ge_u32 s2, 256"); e("s_cbranch_scc1 L_end")
    if OPT.get("trace", 0): e("s_memrealtime s[94:95]")
    e("s_load_dwordx2 s[24:25], s[0:1], %d" % KA["dbg"])
    e("s_load_dwordx2 s[28:29], s[0:1], %d" % KA["ws"])
    e("s_load_dwordx4 s[56:59], s[0:1], %d" % KA["wq"])
    e("s_load_dwordx4 s[60:63], s[0:1], %d" % KA["wv"])
    e("s_getreg_b32 s%d, hwreg(HW_REG_XCC_ID)" % S_XCC)
    e("s_and_b32 s%d, s%d, 15" % (S_XCC, S_XCC))
    e("v_lshrrev_b32 v1, 6, v0"); e("s_nop 0"); e("v_readfirstlane_b32 s%d, v1" % S_WAVE)
    e("v_and_b32 v%d, 63, v0" % VLANE)
    e("s_mov_b64 s[26:27], exec")
    e("s_waitcnt lgkmcnt(0)")
    srd(S_WS, 28, 0x10000000)
    e("s_cmp_lg_u32 s%d, 0" % S_WAVE); e("s_cbranch_scc1 L_roles_wait")
    e("s_mov_b64 exec, 1")
    e("s_and_b32 s28, s%d, 3" % S_XCC); e("s_lshl_b32 s28, s28, 6"); e("s_lshr_b32 s29, s%d, 2" % S_XCC); e("s_lshl_b32 s29, s29, 2"); e("s_add_u32 s28, s28, s29")
    e("v_mov_b32 v3, s28"); e("v_mov_b32 v4, 1")
    e("global_atomic_add v5, v3, v4, s[24:25] sc0 sc1"); e("s_waitcnt vmcnt(0)")
    e("v_mov_b32 v3, %d" % L_DUM)
    e("ds_write_b32 v3, v5"); e("s_waitcnt lgkmcnt(0)")
    e("s_mov_b64 exec, s[26:27]")
    lab("L_roles_wait")
    e("s_barrier")
    e("v_mov_b32 v3, %d" % L_DUM); e("ds_read_b32 v4, v3"); e("s_waitcnt lgkmcnt(0)")
    e("v_readfirstlane_b32 s%d, v4" % S_HEAD); e("s_mov_b32 s%d, s%d" % (S_TEAM, S_XCC))
    e("s_barrier")
    e("s_cmp_ge_u32 s%d, 32" % S_HEAD); e("s_cbranch_scc1 L_end")
    e("s_cmp_ge_u32 s%d, 8" % S_TEAM); e("s_cbranch_scc1 L_end")
    e("s_lshl_b32 s%d, s%d, 13" % (S_H13, S_HEAD)); e("s_lshl_b32 s%d, s%d, 8" % (S_H8, S_HEAD))
    if OPT.get("trace", 0):
        l = A.newlab("L_rt")
        e("s_lshl_b32 s93, s%d, 5" % S_TEAM); e("s_add_u32 s93, s93, s%d" % S_HEAD); e("s_lshl_b32 s93, s93, 6")
        e("s_cmp_lg_u32 s%d, 0" % S_WAVE); e("s_cbranch_scc1 %s" % l)
        e("s_add_u32 s28, s93, %d" % WS_TRACE)
        e("s_mov_b64 exec, 1"); e("v_mov_b32 v10, s94"); e("v_mov_b32 v11, 0"); e("buffer_store_dword v10, v11, s[4:7], s28 offen"); e("s_mov_b64 exec, s[26:27]")
        lab(l)
    rt(1)

LW_VQ, LW_VO, LW_A0, LW_A1, LW_AO = 40, 41, 43, 44, 45
LW_WB = 53
LW_TMP = 72
def load_setup(wave_stride):
    L = VLANE; a, b_, c_, d_, f_ = VS, VS + 1, VS + 2, VS + 3, VS + 4
    e("s_mul_i32 s34, s%d, %d" % (S_WAVE, wave_stride))
    e("s_lshl_b32 s36, s%d, 20" % S_WAVE)
    e("v_lshrrev_b32 v%d, 2, v%d" % (a, L)); e("v_lshlrev_b32 v%d, 13, v%d" % (b_, a))
    e("v_lshrrev_b32 v%d, 5, v%d" % (c_, L)); e("v_lshlrev_b32 v%d, 1, v%d" % (c_, c_))
    e("v_and_b32 v%d, 3, v%d" % (d_, L)); e("v_xor_b32 v%d, v%d, v%d" % (d_, d_, c_)); e("v_lshlrev_b32 v%d, 4, v%d" % (d_, d_))
    e("v_add_u32 v%d, v%d, v%d" % (b_, b_, d_))
    e("s_lshl_b32 s29, s%d, 6" % S_WAVE); e("s_add_u32 s28, s%d, s29" % S_H8)
    e("v_add_u32 v%d, s28, v%d" % (LW_VQ, b_))
    e("v_lshrrev_b32 v%d, 4, v%d" % (a, L)); e("v_lshlrev_b32 v%d, 10, v%d" % (b_, a))
    e("s_lshl_b32 s28, s%d, 8" % S_WAVE); e("v_add_u32 v%d, s28, v%d" % (b_, b_))
    e("v_and_b32 v%d, 1, v%d" % (c_, a)); e("v_lshrrev_b32 v%d, 1, v%d" % (f_, a)); e("v_lshlrev_b32 v%d, 3, v%d" % (f_, f_)); e("v_add_u32 v%d, v%d, v%d" % (c_, c_, f_))
    e("v_and_b32 v%d, 15, v%d" % (d_, L)); e("v_xor_b32 v%d, v%d, v%d" % (d_, d_, c_)); e("v_lshlrev_b32 v%d, 4, v%d" % (d_, d_))
    e("v_add_u32 v%d, v%d, v%d" % (LW_VO, b_, d_))
    e("v_lshrrev_b32 v%d, 5, v%d" % (a, L)); e("v_lshlrev_b32 v%d, 10, v%d" % (a, a))
    e("v_bfe_u32 v%d, v%d, 4, 1" % (b_, L)); e("v_lshlrev_b32 v%d, 9, v%d" % (c_, b_)); e("v_add_u32 v%d, v%d, v%d" % (a, a, c_))
    e("v_bfe_u32 v%d, v%d, 2, 2" % (c_, L)); e("v_lshlrev_b32 v%d, 6, v%d" % (c_, c_)); e("v_add_u32 v%d, v%d, v%d" % (a, a, c_))
    e("v_and_b32 v%d, 3, v%d" % (c_, L)); e("v_lshlrev_b32 v%d, 3, v%d" % (c_, c_)); e("v_add_u32 v%d, v%d, v%d" % (a, a, c_))
    e("v_add_u32 v%d, s34, v%d" % (a, a))
    e("v_lshlrev_b32 v%d, 5, v%d" % (c_, b_)); e("v_add_u32 v%d, v%d, v%d" % (LW_A0, a, c_))
    e("v_xor_b32 v%d, 32, v%d" % (c_, c_)); e("v_add_u32 v%d, v%d, v%d" % (LW_A1, a, c_))
    e("v_lshrrev_b32 v%d, 4, v%d" % (a, L)); e("v_lshlrev_b32 v%d, 10, v%d" % (a, a))
    e("v_bfe_u32 v%d, v%d, 2, 2" % (c_, L)); e("v_lshlrev_b32 v%d, 8, v%d" % (d_, c_)); e("v_add_u32 v%d, v%d, v%d" % (a, a, d_))
    e("v_and_b32 v%d, 3, v%d" % (d_, L)); e("v_lshlrev_b32 v%d, 5, v%d" % (d_, d_)); e("v_add_u32 v%d, v%d, v%d" % (a, a, d_))
    e("v_add_u32 v%d, s34, v%d" % (a, a))
    e("v_bfe_u32 v%d, v%d, 3, 1" % (b_, L)); e("v_lshlrev_b32 v%d, 7, v%d" % (b_, b_))
    e("v_bfe_u32 v%d, v%d, 2, 1" % (c_, L)); e("v_lshlrev_b32 v%d, 4, v%d" % (c_, c_))
    for G in range(2):
        for Th in range(2):
            e("v_xor_b32 v%d, %d, v%d" % (d_, G * 128, b_)); e("v_xor_b32 v%d, %d, v%d" % (f_, Th * 16, c_))
            e("v_add_u32 v%d, v%d, v%d" % (d_, d_, f_)); e("v_add_u32 v%d, v%d, v%d" % (LW_AO + 2 * G + Th, a, d_))
    e("v_lshlrev_b32 v%d, 4, v%d" % (a, L)); e("v_add_u32 v%d, s34, v%d" % (LW_WB, a))

def reg(kind, n, cnt):
    return ar(n, cnt) if kind == "a" else vr(n, cnt)

def load_units(units, NS, hooks={}):
    cur_srd = [None]
    def set_srd(which):
        if cur_srd[0] == which: return
        cur_srd[0] = which
        p = S_PW + 2 * which
        e("s_mov_b32 s8, s%d" % p); e("s_mov_b32 s9, s%d" % (p + 1)); e("s_mov_b32 s10, 0x400000"); e("s_mov_b32 s11, 0x20000")
    def issue(n):
        u = units[n]; slot = n % NS
        set_srd(u["m"])
        for i in range(4):
            e("s_add_u32 m0, s34, %d" % (slot * 4096 + i * 1024))
            if u["kind"] == "qkv":
                if u.get("perm", True):
                    e("s_xor_b32 s28, s36, %d" % (u["t"] << 19)); e("s_add_u32 s28, s28, %d" % (i * 131072))
                else:
                    e("s_mov_b32 s28, %d" % ((64 * u["t"] + 16 * i) * 8192))
                A.vmem("buffer_load_dwordx4 v%d, s[8:11], s28 offen lds" % LW_VQ, ("w", n))
            else:
                qd = 2 * u["b"] + u["hb"]
                e("s_add_u32 s28, s35, %d" % ((64 * u["t"] + 16 * qd + 4 * i) * 1024))
                A.vmem("buffer_load_dwordx4 v%d, s[8:11], s28 offen lds" % LW_VO, ("w", n))
    e("s_lshl_b32 s35, s%d, 17" % S_HEAD)
    for n in range(min(NS, len(units))): issue(n)
    if "start" in hooks: hooks["start"]()
    for n, u in enumerate(units):
        slot = n % NS
        A.wait_vm(("w", n))
        if u["kind"] == "qkv":
            for uu in range(2):
                for b in range(2):
                    for hb in range(2):
                        if u["dest"] == "lds": d = vr(LW_TMP + uu * 8 + 4 * b + 2 * hb, 2)
                        elif u["dest"] == "flat": d = vr(u["base"] + uu * 8 + 4 * b + 2 * hb, 2)
                        else: d = reg(u["dest"], u["base"] + (uu * 8 + u["t"]) * 8 + 4 * b + 2 * hb, 2)
                        A.ds("ds_read_b64_tr_b16 %s, v%d offset:%d" % (d, LW_A0 + uu, slot * 4096 + b * 2048 + hb * 256), "tr")
            A.wait_lds_all()
            if u["dest"] == "lds":
                u["slot"] = slot
                for uu in range(2):
                    for b in range(2):
                        A.ds("ds_write_b128 v%d, %s offset:%d" % (LW_WB, vr(LW_TMP + uu * 8 + 4 * b, 4), slot * 4096 + uu * 2048 + b * 1024), "wb")
                A.wait_lds_all()
        else:
            for nt in range(8):
                d = reg(u["dest"], u["base"] + (nt * 2 + u["t"]) * 8 + 4 * u["b"] + 2 * u["hb"], 2)
                G, T = nt >> 2, nt & 3
                A.ds("ds_read_b64_tr_b16 %s, v%d offset:%d" % (d, LW_AO + 2 * G + (T >> 1), slot * 4096 + (T & 1) * 8), "tr")
            A.wait_lds_all()
        if n in hooks: hooks[n]()
        if n + NS < len(units): issue(n + NS)

def load_units_reg(units, hooks={}, maxfly=60):
    SCR = 54
    SA0, SA1, SAO = 55, 56, 57
    SAOr = [57, 58, 59, 64]
    e("s_lshl_b32 s28, s%d, 13" % S_WAVE); e("s_add_u32 s28, s28, %d" % L_KX); e("s_sub_u32 s29, s28, s34")
    e("v_add_u32 v%d, s28, v%d" % (SCR, V_L16))
    e("v_add_u32 v%d, s29, v%d" % (SA0, LW_A0)); e("v_add_u32 v%d, s29, v%d" % (SA1, LW_A1))
    for k in range(4): e("v_add_u32 v%d, s29, v%d" % (SAOr[k], LW_AO + k))
    e("s_lshl_b32 s35, s%d, 17" % S_HEAD)
    cur_srd = [None]
    def set_srd(which):
        if cur_srd[0] == which: return
        cur_srd[0] = which
        p = S_PW + 2 * which
        e("s_mov_b32 s8, s%d" % p); e("s_mov_b32 s9, s%d" % (p + 1)); e("s_mov_b32 s10, 0x400000"); e("s_mov_b32 s11, 0x20000")
    def quads(u):
        if u["kind"] == "qkv":
            if u["dest"] == "flat": return [("v", u["base"] + 4 * i) for i in range(4)]
            b0 = u["base"] + u["t"] * 8
            return [(u["dest"], b0), (u["dest"], b0 + 4), (u["dest"], b0 + 64), (u["dest"], b0 + 68)]
        return [(u["dest"], u["base"] + (nt * 2 + u["t"]) * 8 + 4 * u["b"]) for nt in range(8)]
    def nloads(u): return 8 if u["kind"] == "wo" else 4
    def issue(n):
        u = units[n]; set_srd(u["m"])
        if u["kind"] == "qkv":
            for i in range(4):
                e("s_xor_b32 s28, s36, %d" % (u["t"] << 19)); e("s_add_u32 s28, s28, %d" % (i * 131072))
                if u["dest"] == "lds":
                    e("s_add_u32 m0, s34, %d" % (u["slot"] * 4096 + i * 1024)); e("s_nop 0")
                    A.vmem("buffer_load_dwordx4 v%d, s[8:11], s28 offen lds" % LW_VQ, ("w", n))
                else:
                    k, r = quads(u)[i]
                    A.vmem("buffer_load_dwordx4 %s, v%d, s[8:11], s28 offen" % (reg(k, r, 4), LW_VQ), ("w", n))
        else:
            for hb in range(2):
                for i in range(4):
                    qd = 2 * u["b"] + hb
                    e("s_add_u32 s28, s35, %d" % ((64 * u["t"] + 16 * qd + 4 * i) * 1024))
                    k, r = quads(u)[hb * 4 + i]
                    A.vmem("buffer_load_dwordx4 %s, v%d, s[8:11], s28 offen" % (reg(k, r, 4), LW_VO), ("w", n))
    nxt = [0]; fly = [0]
    def pump():
        while nxt[0] < len(units) and fly[0] + nloads(units[nxt[0]]) <= maxfly:
            issue(nxt[0]); fly[0] += nloads(units[nxt[0]]); nxt[0] += 1
    pump()
    for n, u in enumerate(units):
        A.wait_vm(("w", n)); fly[0] -= nloads(u)
        if u["kind"] == "qkv" and u["dest"] == "lds":
            slot = u["slot"]
            for uu in range(2):
                for b in range(2):
                    for hb in range(2):
                        A.ds("ds_read_b64_tr_b16 %s, v%d offset:%d" % (vr(LW_TMP + uu * 8 + 4 * b + 2 * hb, 2), LW_A0 + uu, slot * 4096 + b * 2048 + hb * 256), "tr")
            if n in hooks: hooks[n]()
            pump()
            A.wait_lds_all()
            for uu in range(2):
                for b in range(2):
                    A.ds("ds_write_b128 v%d, %s offset:%d" % (LW_WB, vr(LW_TMP + uu * 8 + 4 * b, 4), slot * 4096 + uu * 2048 + b * 1024), "wb")
            A.wait_lds_all()
        elif u["kind"] == "qkv":
            for i, (k, r) in enumerate(quads(u)):
                A.ds("ds_write_b128 v%d, %s offset:%d" % (SCR, reg(k, r, 4), i * 1024), "sw")
            if n in hooks: hooks[n]()
            pump()
            A.wait_lds_all()
            for uu in range(2):
                for b in range(2):
                    for hb in range(2):
                        if u["dest"] == "flat": d = vr(u["base"] + uu * 8 + 4 * b + 2 * hb, 2)
                        else: d = reg(u["dest"], u["base"] + (uu * 8 + u["t"]) * 8 + 4 * b + 2 * hb, 2)
                        A.ds("ds_read_b64_tr_b16 %s, v%d offset:%d" % (d, (SA0, SA1)[uu], b * 2048 + hb * 256), "tr")
            A.wait_lds_all()
        else:
            for i, (k, r) in enumerate(quads(u)):
                A.ds("ds_write_b128 v%d, %s offset:%d" % (SCR, reg(k, r, 4), i * 1024), "sw")
            if n in hooks: hooks[n]()
            pump()
            A.wait_lds_all()
            for hb in range(2):
                for nt in range(8):
                    G, T = nt >> 2, nt & 3
                    d = reg(u["dest"], u["base"] + (nt * 2 + u["t"]) * 8 + 4 * u["b"] + 2 * hb, 2)
                    A.ds("ds_read_b64_tr_b16 %s, v%d offset:%d" % (d, SAOr[2 * G + (T >> 1)], hb * 4096 + (T & 1) * 8), "tr")
            A.wait_lds_all()

def units_qkv(m, dest, base):
    return [dict(kind="qkv", m=m, t=t, dest=dest, base=base) for t in range(8)]
def units_wo(dest, base):
    return [dict(kind="wo", m=3, t=t, b=b, hb=hb, dest=dest, base=base) for t in range(2) for b in range(2) for hb in range(2)]

def pubaddr(dst, tmp):
    e("v_lshrrev_b32 v%d, 2, v%d" % (dst, V_L16)); e("v_and_b32 v%d, 0xc0, v%d" % (dst, dst))
    e("v_lshlrev_b32 v%d, 1, v%d" % (tmp, V_L16)); e("v_and_b32 v%d, 32, v%d" % (tmp, tmp)); e("v_add_u32 v%d, v%d, v%d" % (dst, dst, tmp))
    e("v_lshrrev_b32 v%d, 3, v%d" % (tmp, V_L16)); e("v_and_b32 v%d, 28, v%d" % (tmp, tmp)); e("v_add_u32 v%d, v%d, v%d" % (dst, dst, tmp))

def chain():
    L = VLANE; a, b_, c_, d_ = VS, VS + 1, VS + 2, VS + 3
    lab("L_chain")
    e("v_lshlrev_b32 v%d, 4, v%d" % (V_L16, L))
    e("s_mul_i32 s28, s%d, %d" % (S_WAVE, WVSTRIDE)); e("v_add_u32 v%d, s28, v%d" % (V_WVA, V_L16))
    e("v_and_b32 v%d, 15, v%d" % (a, L)); e("v_lshlrev_b32 v%d, 5, v%d" % (a, a)); e("v_lshrrev_b32 v%d, 4, v%d" % (b_, L)); e("v_lshlrev_b32 v%d, 3, v%d" % (b_, b_))
    e("v_add_u32 v%d, v%d, v%d" % (a, a, b_)); e("s_lshl_b32 s28, s%d, 10" % S_WAVE); e("s_add_u32 s28, s28, %d" % L_X); e("v_add_u32 v%d, s28, v%d" % (V_XWR, a))
    e("v_lshrrev_b32 v%d, 5, v%d" % (a, L)); e("v_lshlrev_b32 v%d, 8, v%d" % (a, a))
    e("v_bfe_u32 v%d, v%d, 2, 2" % (b_, L)); e("v_lshlrev_b32 v%d, 6, v%d" % (b_, b_)); e("v_add_u32 v%d, v%d, v%d" % (a, a, b_))
    e("v_and_b32 v%d, 1, v%d" % (b_, L)); e("v_lshlrev_b32 v%d, 5, v%d" % (b_, b_)); e("v_add_u32 v%d, v%d, v%d" % (a, a, b_))
    e("v_bfe_u32 v%d, v%d, 4, 1" % (b_, L)); e("v_lshlrev_b32 v%d, 3, v%d" % (b_, b_)); e("v_add_u32 v%d, v%d, v%d" % (a, a, b_))
    e("s_lshr_b32 s28, s%d, 1" % S_WAVE); e("s_lshl_b32 s28, s28, 10"); e("s_and_b32 s29, s%d, 1" % S_WAVE); e("s_lshl_b32 s29, s29, 9")
    e("s_add_u32 s28, s28, s29"); e("s_add_u32 s28, s28, %d" % L_O); e("v_add_u32 v%d, s28, v%d" % (a, a))
    e("v_and_b32 v%d, 2, v%d" % (b_, L)); e("v_cmp_ne_u32 vcc, 0, v%d" % b_); e("s_nop 1"); e("s_mov_b64 s[50:51], vcc")
    e("v_lshlrev_b32 v%d, 3, v%d" % (b_, L)); e("v_add_u32 v%d, %d, v%d" % (b_, L_DUM, b_))
    e("s_nop 0")
    e("v_cndmask_b32 v%d, v%d, v%d, vcc" % (V_OWR, b_, a))
    e("v_and_b32 v%d, 8, v%d" % (b_, L)); e("v_cmp_eq_u32 s[48:49], 0, v%d" % b_)
    e("v_bfe_u32 v%d, v%d, 2, 2" % (a, L)); e("s_lshl_b32 s28, s%d, 3" % S_WAVE); e("v_add_u32 v%d, s28, v%d" % (a, a))
    e("v_add_u32 v%d, s%d, v%d" % (c_, S_HEAD, a)); e("v_and_b32 v%d, 31, v%d" % (c_, c_)); e("v_lshlrev_b32 v%d, 8, v%d" % (c_, c_))
    e("v_lshlrev_b32 v%d, 13, v%d" % (a, a)); e("v_add_u32 v%d, v%d, v%d" % (a, a, c_))
    e("v_lshrrev_b32 v%d, 4, v%d" % (b_, L)); e("v_lshlrev_b32 v%d, 6, v%d" % (b_, b_)); e("v_add_u32 v%d, v%d, v%d" % (a, a, b_))
    e("v_and_b32 v%d, 3, v%d" % (b_, L)); e("v_lshlrev_b32 v%d, 4, v%d" % (b_, b_)); e("v_add_u32 v%d, v%d, v%d" % (V_PS0, a, b_))
    e("v_and_b32 v%d, 1, v%d" % (c_, L)); e("v_cmp_eq_u32 vcc, 0, v%d" % c_)
    e("v_mov_b32 v%d, 0xEEEEEEEE" % a); e("v_mov_b32 v%d, 0x44444444" % b_); e("v_cndmask_b32 v%d, v%d, v%d, vcc" % (V_IDX, a, b_))
    cval = struct.unpack("<I", struct.pack("<f", (128 ** -0.5) * math.log2(math.e)))[0]
    e("s_mov_b32 s%d, 0x%08x" % (S_C, cval))
    e("v_and_b32 v%d, 1, v%d" % (a, L)); e("v_lshlrev_b32 v%d, 4, v%d" % (a, a)); e("v_mov_b32 v%d, 0x3f80" % b_); e("v_lshlrev_b32 v%d, v%d, v%d" % (b_, a, b_))
    e("v_bfe_u32 v%d, v%d, 1, 2" % (a, L))
    for i in range(4):
        e("v_cmp_eq_u32 vcc, %d, v%d" % (i, a)); e("s_nop 1"); e("v_cndmask_b32 v%d, 0, v%d, vcc" % (12 + i, b_))
    e("v_add_u32 v%d, %d, v%d" % (a, L_SEL, V_L16))
    IPUB, IM0 = 60, 61
    e("ds_write_b128 v%d, v[12:15]" % a); e("s_waitcnt lgkmcnt(0)")
    def hook_start():
        pubaddr(60, c_)
        e("s_cmp_lg_u32 s%d, 0" % S_WAVE); e("s_cbranch_scc1 L_noinit")
        IPUB, IM0 = 60, 61
        e("s_load_dwordx2 s[30:31], s[0:1], %d" % KA["mem0"])
        e("v_lshrrev_b32 v%d, 4, v%d" % (a, L)); e("v_lshlrev_b32 v%d, 11, v%d" % (a, a))
        e("v_and_b32 v%d, 1, v%d" % (b_, L)); e("v_lshlrev_b32 v%d, 10, v%d" % (b_, b_)); e("v_add_u32 v%d, v%d, v%d" % (a, a, b_))
        e("v_bfe_u32 v%d, v%d, 1, 2" % (b_, L)); e("v_lshlrev_b32 v%d, 3, v%d" % (b_, b_)); e("v_add_u32 v%d, v%d, v%d" % (a, a, b_))
        e("v_bfe_u32 v%d, v%d, 3, 1" % (b_, L)); e("v_lshlrev_b32 v%d, 2, v%d" % (b_, b_)); e("v_add_u32 v%d, v%d, v%d" % (a, a, b_))
        e("s_lshl_b32 s29, s%d, 5" % S_HEAD); e("v_add_u32 v%d, s29, v%d" % (a, a))
        e("s_waitcnt lgkmcnt(0)")
        e("global_load_dword v%d, v%d, s[30:31]" % (IM0, a))
        for i in range(4): e("v_mov_b32 v%d, -1" % (12 + i))
        for b in range(2):
            for half in range(2):
                e("s_add_u32 s29, s%d, %d" % (S_H13, WS_PB + b * 0x40000 + half * 4096))
                for x in range(4):
                    e("buffer_store_dwordx4 v[12:15], v%d, s[4:7], s29 offen offset:%d" % (V_L16, x * 1024))
        for b in (1, 2):
            e("s_add_u32 s29, s%d, %d" % (S_H8, WS_MB + b * 8192))
            e("buffer_store_dword v12, v%d, s[4:7], s29 offen" % IPUB)
        e("v_lshlrev_b32 v%d, 7, v%d" % (a, L)); e("v_mov_b32 v%d, 0" % b_)
        e("s_lshl_b32 s29, s%d, 2" % S_HEAD); e("s_add_u32 s29, s29, %d" % WS_FL)
        e("s_mov_b64 exec, 0x1ff")
        e("buffer_store_dword v%d, v%d, s[4:7], s29 offen sc0 sc1" % (b_, a))
        e("s_mov_b64 exec, s[26:27]")
        lab("L_noinit")

    def hook_mem0():
        l = A.newlab("L_hk")
        e("s_cmp_lg_u32 s%d, 0" % S_WAVE); e("s_cbranch_scc1 %s" % l)
        e("s_add_u32 s29, s%d, %d" % (S_H8, WS_MB))
        e("buffer_store_dword v%d, v%d, s[4:7], s29 offen" % (IM0, IPUB))
        e("s_mov_b64 exec, 1")
        e("v_mov_b32 v62, 24"); e("v_mov_b32 v63, 1"); e("global_atomic_add v62, v63, s[24:25] sc1")
        e("s_mov_b64 exec, s[26:27]")
        lab(l)
    def hook_arrive():
        l = A.newlab("L_hk")
        e("s_cmp_lg_u32 s%d, 0" % S_WAVE); e("s_cbranch_scc1 %s" % l)
        e("s_mov_b64 exec, 1")
        e("v_mov_b32 v62, %d" % bar_off(0)); e("v_mov_b32 v63, 1"); e("global_atomic_add v62, v63, s[24:25] sc1")
        e("s_mov_b64 exec, s[26:27]")
        lab(l)
    load_setup(WVSTRIDE)
    wvu = units_qkv(2, "lds", 0); wvu[0]["dest"] = "flat"; wvu[0]["base"] = V_WV0
    rt(2)
    if OPT.get("regload", 0):
        for t in range(1, 8): wvu[t]["slot"] = t - 1
        wo_units = [dict(kind="wo", m=3, t=t, b=b, dest="v", base=V_WO) for t in range(2) for b in range(2)]
        units = wvu[1:] + [wvu[0]] + units_qkv(0, "a", 0) + units_qkv(1, "a", 128) + wo_units
        load_units_reg(units, {0: hook_mem0, OPT.get('harr', 16): hook_arrive}, maxfly=OPT.get('maxfly', 40))
    else:
        units = units_qkv(0, "a", 0) + units_qkv(1, "a", 128) + units_wo("v", V_WO) + wvu
        load_units(units, 7, {'start': hook_start, 7: hook_mem0, 14: hook_arrive})
    rt(3)
    wvslot = {u["t"]: u["slot"] for u in wvu[1:]}
    e("s_cmp_lg_u32 s%d, 0" % S_WAVE); e("s_cbranch_scc1 L_tb_done")
    e("s_mov_b64 exec, 1")
    e("v_mov_b32 v%d, %d" % (a, bar_off(0))); e("s_mov_b32 s29, 0")
    lab("L_tb")
    e("global_load_dword v%d, v%d, s[24:25] sc0 sc1" % (b_, a)); e("s_waitcnt vmcnt(0)"); e("v_readfirstlane_b32 s30, v%d" % b_)
    e("s_add_u32 s29, s29, 1"); e("s_cmp_gt_u32 s29, 0x40000"); e("s_cbranch_scc1 L_tb2")
    e("s_cmp_lt_u32 s30, 32"); e("s_cbranch_scc1 L_tb")
    lab("L_tb2")
    e("s_mov_b64 exec, s[26:27]")
    lab("L_tb_done")
    e("s_mov_b32 s%d, 0" % S_STEP)
    e("s_mov_b32 s%d, %d" % (S_MCUR, WS_MB)); e("s_mov_b32 s%d, %d" % (S_MPREV, WS_MB + 2 * 8192)); e("s_mov_b32 s%d, %d" % (S_PCUR, WS_PB))
    e("s_add_u32 s%d, s%d, %d" % (S_KXO, S_H13, WS_KX)); e("s_add_u32 s%d, s%d, %d" % (S_VXO, S_H13, WS_VX))
    e("s_mov_b32 s%d, 0" % S_SPIN); e("s_mov_b32 s%d, 0" % S_PAR); e("s_mov_b32 s37, %d" % (WS_HIST + 0x90000)); e("s_mov_b32 s38, %d" % (WS_HIST + 0x91000))
    def need_seg(target_sgpr_or_none):
        if OPT["stage"] < 2: return
        lok = A.newlab("L_rdy"); lp = A.newlab("L_rp")
        if target_sgpr_or_none is None: e("s_mov_b32 s14, %d" % (1 if OPT.get("l2warm", 0) else 0))
        else:
            e("s_add_u32 s14, s%d, %d" % (target_sgpr_or_none, 2 if OPT.get("l2warm", 0) else 1)); e("s_min_u32 s14, s14, 63")
        e("s_cmp_lt_u32 s14, s%d" % S_RDY); e("s_cbranch_scc1 %s" % lok)
        e("s_mov_b32 s17, 0")
        lab(lp)
        e("v_lshlrev_b32 v%d, 3, v%d" % (VT, V_L16))
        e("s_lshl_b32 s29, s%d, 2" % S_HEAD); e("s_add_u32 s29, s29, %d" % FL_KV)
        e("s_mov_b64 exec, 0xff")
        e("buffer_load_dword v%d, v%d, s[4:7], s29 offen sc0 sc1" % (VT + 1, VT))
        e("s_mov_b64 exec, s[26:27]")
        e("s_waitcnt vmcnt(0)")
        e("s_mov_b32 s15, 64")
        for t in range(1, 8):
            e("v_readlane_b32 s16, v%d, %d" % (VT + 1, t)); e("s_nop 0"); e("s_mul_i32 s16, s16, 7"); e("s_add_u32 s16, s16, %d" % (t - 1)); e("s_min_u32 s15, s15, s16")
        e("s_mov_b32 s%d, s15" % S_RDY)
        e("s_add_u32 s17, s17, 1"); e("s_cmp_gt_u32 s17, 0x40000"); e("s_cbranch_scc1 %s" % lok)
        e("s_cmp_lt_u32 s14, s%d" % S_RDY); e("s_cbranch_scc0 %s" % lp)
        lab(lok)
    def dma8(so, lb, par_sgpr):
        for i in range(8):
            if i % 4 == 0:
                e("s_add_u32 s28, s%d, %d" % (so, i * 1024)); e("s_add_u32 s29, s%d, %d" % (par_sgpr, lb + i * 1024)); e("s_mov_b32 m0, s29"); e("s_nop 0")
            e("buffer_load_dwordx4 v%d, s[4:7], s28 offen offset:%d sc1 lds" % (V_L16, (i % 4) * 1024))
    e("s_mov_b32 s%d, 0" % S_RDY)
    need_seg(None)
    l0 = A.newlab("L_pf"); l1 = A.newlab("L_pf")
    e("s_cmp_eq_u32 s%d, 1" % S_WAVE); e("s_cbranch_scc0 %s" % l0); dma8(S_KXO, L_KX, S_PAR); lab(l0)
    e("s_cmp_eq_u32 s%d, 2" % S_WAVE); e("s_cbranch_scc0 %s" % l1); dma8(S_VXO, L_VX, S_PAR); lab(l1)
    e("s_waitcnt vmcnt(0)"); e("s_barrier")
    rt(4)
    if OPT["stamps"]:
        for i in range(16): e("s_mov_b32 s%d, 0" % (S_ST + i))
        e("s_memtime s[82:83]"); e("s_waitcnt lgkmcnt(0)"); e("s_mov_b32 s80, s82")
    if not OPT["final"]:
        e("s_memtime s[84:85]"); e("s_memrealtime s[88:89]"); e("s_waitcnt lgkmcnt(0)")

    T0, T1, T2, T3, T4, T5 = range(VT, VT + 6)
    def wvreg(t): return V_WV0 if t == 0 else (V_WVR if t % 2 == 1 else V_KX)
    def rd_wv(t):
        r = wvreg(t)
        return [lambda u=u, b=b: A.ds("ds_read_b128 %s, v%d offset:%d" % (vr(r + 8 * u + 4 * b, 4), V_WVA, wvslot[t] * 4096 + u * 2048 + b * 1024), ("wv", t, u)) for u in range(2) for b in range(2)]
    def scalprep():
        e("s_add_u32 s%d, s%d, 0x40000" % (S_KXO, S_KXO)); e("s_add_u32 s%d, s%d, 0x40000" % (S_VXO, S_VXO))
        e("s_cmp_lt_u32 s%d, 2" % S_WAVE); e("s_cselect_b32 s%d, s%d, s%d" % (S_DMA, S_KXO, S_VXO)); e("s_lshr_b32 s29, s%d, 1" % S_WAVE); e("s_lshl_b32 s29, s29, 13"); e("s_add_u32 s29, s29, %d" % L_KX)
        e("s_lshl_b32 s19, s%d, 12" % S_WAVE); e("s_and_b32 s18, s19, 4096"); e("s_add_u32 s%d, s%d, s18" % (S_DMA, S_DMA))
        e("s_xor_b32 s18, s%d, 8192" % S_PAR); e("s_add_u32 s29, s29, s18"); e("s_add_u32 s29, s29, s19")
        e("s_mov_b32 m0, s29")
        e("s_add_u32 s12, s%d, %d" % (S_PAR, L_KX)); e("s_lshl_b32 s28, s%d, 11" % S_WAVE); e("s_add_u32 s13, s28, s%d" % S_PAR); e("s_add_u32 s13, s13, %d" % L_VX)
        if OPT["stage"] >= 3:
            e("s_max_u32 s34, s%d, 1" % S_STEP); e("s_sub_u32 s34, s34, 1"); e("s_lshl_b32 s101, s%d, 2" % S_HEAD); e("s_add_u32 s101, s101, %d" % FL_KM)
            e("s_mov_b32 s35, s38")
            e("s_lshl_b32 s28, s%d, 16" % S_STEP); e("s_lshl_b32 s29, s%d, 11" % S_HEAD); e("s_add_u32 s38, s28, s29"); e("s_lshl_b32 s29, s%d, 9" % S_WAVE); e("s_add_u32 s38, s38, s29"); e("s_add_u32 s38, s38, %d" % WS_KM)
            e("s_mov_b32 s36, s37"); e("s_add_u32 s37, s38, %d" % (WS_VM - WS_KM))
    def nextprep():
        ZS_ = V_KX + 12
        e("v_mfma_f32_32x32x16_bf16 %s, %s, %s, 0" % (vr(V_QK, 16), vr(ZS_, 4), vr(ZS_, 4)))
        e("v_mfma_f32_16x16x32_bf16 %s, %s, %s, 0" % (vr(V_VA, 4), vr(ZS_, 4), vr(ZS_, 4)))
        e("v_mfma_f32_16x16x32_bf16 %s, %s, %s, 0" % (vr(V_VA + 4, 4), vr(ZS_, 4), vr(ZS_, 4)))
        for f in rd_wv(1): f()
        e("s_lshl_b32 s28, s%d, 11" % S_WAVE); e("s_add_u32 s%d, s%d, s28" % (S_MQ, S_MCUR))
        if OPT["stage"] >= 2:
            lsk = A.newlab("L_sk63")
            e("s_cmp_eq_u32 s%d, 63" % S_STEP); e("s_cbranch_scc1 %s" % lsk)
            need_seg(S_STEP)
            lab(lsk)
        if not OPT.get("scal_top", 0): scalprep()
    for i in range(4): e("v_mov_b32 v%d, 0" % (V_KX + 12 + i))
    e("s_nop 1")
    A.lds = []
    nextprep()
    WV1_TAGS = list(A.lds)
    lab("L_step")
    A.lds = list(WV1_TAGS); A.vm = []
    QA, KA_ = V_QK, V_QK + 8
    ts(20)
    if OPT.get("steptrace", 0):
        l = A.newlab("L_stt")
        e("s_cmp_lg_u32 s%d, 2" % S_WAVE); e("s_cbranch_scc1 %s" % l)
        e("s_memrealtime s[90:91]"); e("s_waitcnt lgkmcnt(0)")
        e("s_lshl_b32 s28, s%d, 6" % S_HEAD); e("s_add_u32 s28, s28, s%d" % S_STEP); e("s_lshl_b32 s28, s28, 2"); e("s_add_u32 s28, s28, %d" % (WS_TRACE + 0x10000))
        e("s_mov_b64 exec, 1"); e("v_mov_b32 v10, s90"); e("v_mov_b32 v11, 0"); e("buffer_store_dword v10, v11, s[4:7], s28 offen"); e("s_mov_b64 exec, s[26:27]")
        lab(l)
    if OPT.get("red_sets", 1) == 2: e("s_waitcnt vmcnt(%d)" % (2 if OPT["hist"] else 1))
    for i in range(4): e("v_mov_b32 v%d, 0" % (V_S + i))
    e("s_lshl_b32 s28, s%d, 11" % S_WAVE)
    e("v_add_u32 v%d, s28, v%d" % (T2, V_L16)); e("v_add_u32 v%d, %d, v%d" % (T2, L_MEM, T2))
    for a2 in range(1, 4): e("v_xor_b32 v%d, %d, v%d" % (T2 + a2, a2 << 11, T2))
    def smf(acc, areg, breg):
        e("v_smfmac_f32_16x16x64_bf16 %s, %s, %s, v%d" % (vr(acc, 4), vr(areg, 4), breg, V_IDX))
    def areg_of(tau, own): return (own + 4 * tau) if tau < 2 else (V_MEM + 4 * tau)
    def qk_l(tau, own=V_MEM):
        areg = areg_of(tau, own)
        return [lambda acc=acc, base=base, u=u: smf(acc, areg, ar(base + (u * 8 + tau) * 8, 8)) for (acc, base, u) in ((QA, 0, 0), (KA_, 128, 0), (QA + 4, 0, 1), (KA_ + 4, 128, 1))]
    def vv_l(tau, own=V_MEM):
        areg = areg_of(tau, own)
        return [lambda u=u: smf(V_VA + 4 * u, areg, vr(wvreg(tau) + 8 * u, 8)) for u in range(2)]
    def poll_issue(base):
        for tau in range(2):
            e("buffer_load_dwordx4 %s, v%d, s[4:7], s%d offen offset:%d sc1" % (vr(base + 4 * tau, 4), V_L16, S_MQ, tau * 1024))
    def poll_check(M):
        e("v_max3_u32 v%d, v%d, v%d, v%d" % (T0, M, M + 1, M + 2)); e("v_max3_u32 v%d, v%d, v%d, v%d" % (T1, M + 3, M + 4, M + 5))
        e("v_max3_u32 v%d, v%d, v%d, v%d" % (T0, T0, M + 6, M + 7)); e("v_max_u32 v%d, v%d, v%d" % (T0, T0, T1))
        e("v_cmp_eq_u32 vcc, -1, v%d" % T0)
    SA, SB = V_MEM, V_MEM + 24
    if OPT.get("scal_top", 0): scalprep()
    for i in range(OPT["dly_mem"]): e("s_nop 7")
    poll_issue(SA)
    ts(21)
    for f in rd_wv(2): f()
    for i in range(OPT.get("gap_mem", 0)): e("s_nop 7")
    mem2 = OPT.get("mem_sets", 1) == 2
    spec = (not mem2) and OPT.get("spec", 1)
    if mem2: poll_issue(SB)
    lab("L_pmA")
    e("s_add_u32 s%d, s%d, 1" % (S_SPIN, S_SPIN))
    e("s_waitcnt vmcnt(%d)" % (2 if mem2 else 0))
    ts(22)
    if spec:
        M = SA
        q0 = qk_l(0, SA); q1 = qk_l(1, SA)
        q0[0](); e("v_max3_u32 v%d, v%d, v%d, v%d" % (T0, M, M + 1, M + 2)); e("v_max3_u32 v%d, v%d, v%d, v%d" % (T1, M + 3, M + 4, M + 5))
        q0[1](); e("ds_write_b128 v%d, %s" % (T2, vr(M, 4)))
        q0[2](); e("v_max3_u32 v%d, v%d, v%d, v%d" % (T0, T0, M + 6, M + 7)); e("v_max_u32 v%d, v%d, v%d" % (T0, T0, T1))
        q0[3](); e("ds_write_b128 v%d, %s offset:1024" % (T2, vr(M + 4, 4)))
        q1[0](); e("v_cmp_eq_u32 vcc, -1, v%d" % T0)
        q1[1](); e("v_add_u32 v%d, s12, v%d" % (T1, V_L16))
        e("s_cmp_gt_u32 s%d, 0x200000" % S_SPIN); e("s_cbranch_scc1 L_specok")
        if OPT["nowait"]: e("s_branch L_specok")
        e("s_cbranch_vccz L_specok")
        poll_issue(SA) if False else None
        e("s_waitcnt lgkmcnt(0)")
        poll_issue(SA)
        A.nop(6)
        e("v_mfma_f32_32x32x16_bf16 %s, %s, %s, 0" % (vr(V_QK, 16), vr(V_S, 4), vr(V_S, 4)))
        e("s_branch L_pmA")
        lab("L_specok")
        stamp(0)
        q1[2](); q1[3]()
    else:
        poll_check(SA)
        e("s_cmp_gt_u32 s%d, 0x200000" % S_SPIN); e("s_cbranch_scc1 L_goA")
        if OPT["nowait"]: e("s_branch L_goA")
        e("s_cbranch_vccz L_goA")
        poll_issue(SA)
        if mem2:
            e("s_waitcnt vmcnt(2)")
            poll_check(SB)
            e("s_nop 1")
            e("s_cbranch_vccz L_goB")
            poll_issue(SB)
        e("s_branch L_pmA")
    def rd_m(tau): return lambda: A.ds("ds_read_b128 %s, v%d offset:%d" % (vr(V_MEM + 4 * tau, 4), T2 + (tau >> 1), (tau & 1) * 1024), ("m", tau))
    def rd_kx(f):
        kk, kt = f >> 1, f & 1
        return lambda: A.ds("ds_read_b128 %s, v%d offset:%d" % (vr(V_MEM + 4 * f, 4), T1, (kt * 4 + kk) * 1024), ("kx", kk))
    def rd_vx(u): return lambda: A.ds("ds_read_b128 %s, v%d offset:%d" % (vr(V_KX + 4 * u, 4), T0, u * 1024), ("vx", u))
    def run(mf, fl=()):
        fl = list(fl)
        for f in mf:
            f()
            if fl: fl.pop(0)()
        for f in fl: f()
    def vv(tau, fl=()):
        vl = vv_l(tau); fl = list(fl)
        A.wait_lds(("wv", tau, 0)); vl[0]()
        if fl: fl.pop(0)()
        A.wait_lds(("wv", tau, 1)); vl[1]()
        for f in fl: f()
    lds_state = list(A.lds)
    for variant, own in ((("B", SB), ("A", SA)) if mem2 else (("A", SA),)):
        A.lds = list(lds_state)
        if not spec:
            lab("L_go" + variant)
            if variant == "A": stamp(0)
            else: ts(0)
            q0 = qk_l(0, own); q1 = qk_l(1, own)
            q0[0](); e("ds_write_b128 v%d, %s" % (T2, vr(own, 4)))
            q0[1](); e("ds_write_b128 v%d, %s offset:1024" % (T2, vr(own + 4, 4)))
            q0[2](); e("v_add_u32 v%d, s12, v%d" % (T1, V_L16))
            q0[3]()
            if mem2: e("s_waitcnt vmcnt(0)")
            for i2, f in enumerate(q1):
                f()
        if variant == "A": stamp(8, 2)
        A.wait_lds_all(); e("s_barrier")
        if variant == "A": stamp(9, 2)
        rd_m(2)(); rd_m(3)()
        run(vv_l(0, own), [rd_m(4), rd_m(5)])
        run(vv_l(1, own), [rd_m(6), rd_m(7)])
        if variant == "B": e("s_branch L_joinP0")
    lab("L_joinP0")
    e("v_add_u32 v%d, s13, v%d" % (T0, V_L16))
    KH = V_S + 4
    def kmrd(u):
        def f():
            if OPT["stage"] >= 3: A.ds("ds_read_b32 v%d, v%d offset:%d" % (KH + u, V_XWR, u * 512), ("kh", u))
        return f
    def kmst(u):
        def f():
            if OPT["stage"] >= 3 and not OPT.get("nokm", 0):
                A.wait_lds(("kh", u))
                e("buffer_store_dword v%d, v%d, s[4:7], s35 offen offset:%d sc0 sc1" % (KH + u, T2, u * 256))
        return f
    def vmst(u):
        def f():
            if OPT["stage"] >= 3 and not OPT.get("nokm", 0):
                if u == 0: e("v_lshrrev_b32 v%d, 2, v%d" % (T2, V_L16))
                e("buffer_store_dword v%d, v%d, s[4:7], s36 offen offset:%d sc0 sc1" % (V_S + 9 + u, T2, u * 256))
        return f
    def dma(i): return lambda: (None if OPT.get("nodma", 0) else e("buffer_load_dwordx4 v%d, s[4:7], s%d offen offset:%d sc1 lds" % (V_L16, S_DMA, i * 1024)))
    dpos = OPT.get("dmapos", 1)
    if dpos == 0:
        for i in range(4): dma(i)()
    if OPT.get("spread", 1):
        A.wait_lds(("m", 2)); run(qk_l(2), rd_wv(3))
        A.wait_lds(("m", 3)); run(qk_l(3), [rd_kx(0), rd_kx(1), dma(0)])
        vv(2, [dma(1)])
        ts(33)
        A.wait_lds(("m", 4)); run(qk_l(4), rd_wv(4))
        ts(34)
        A.wait_lds(("m", 5)); run(qk_l(5), [rd_kx(2), dma(2), kmrd(0), kmrd(1)])
        vv(3, [dma(3)])
        if OPT["stage"] >= 3:
            lfk = A.newlab("L_fkm")
            e("s_cmp_eq_u32 s%d, 1" % S_WAVE); e("s_cbranch_scc0 %s" % lfk)
            e("v_mov_b32 v%d, s34" % T4); e("s_mov_b64 exec, 1"); e("buffer_store_dword v%d, v%d, s[4:7], s101 offen sc0 sc1" % (T4, V_L16)); e("s_mov_b64 exec, s[26:27]")
            lab(lfk)
        ts(35)
        A.wait_lds(("m", 6)); run(qk_l(6), rd_wv(5))
        vv(4, [rd_kx(3), vmst(0)])
        ts(36)
        A.wait_lds(("m", 7)); run(qk_l(7), rd_wv(6))
        vv5fill = [vmst(1), kmst(0), kmst(1)]
    else:
        A.wait_lds(("m", 2)); run(qk_l(2), rd_wv(3))
        A.wait_lds(("m", 3)); run(qk_l(3), [rd_kx(0), rd_kx(1)] + ([dma(0), dma(1)] if dpos == 1 else []))
        vv(2, ([dma(2), dma(3)] if dpos == 1 else []) + [kmrd(0), kmrd(1), vmst(0), vmst(1)])
        ts(33)
        def warm():
            if OPT.get("l2warm", 0) and not OPT.get("nodma", 0):
                e("v_lshlrev_b32 v%d, 2, v%d" % (T5, V_L16)); e("s_mov_b32 m0, %d" % L_DUM); e("s_add_u32 s28, s%d, 0x40000" % S_DMA)
                e("buffer_load_dword v%d, s[4:7], s28 offen lds" % T5)
        warm()
        if OPT["stage"] >= 3:
            lfk = A.newlab("L_fkm")
            e("s_cmp_eq_u32 s%d, 1" % S_WAVE); e("s_cbranch_scc0 %s" % lfk)
            e("v_mov_b32 v%d, s34" % T4); e("s_mov_b64 exec, 1"); e("buffer_store_dword v%d, v%d, s[4:7], s101 offen sc0 sc1" % (T4, V_L16)); e("s_mov_b64 exec, s[26:27]")
            lab(lfk)
        A.wait_lds(("m", 4)); run(qk_l(4), rd_wv(4))
        ts(34)
        A.wait_lds(("m", 5)); run(qk_l(5), [rd_kx(2), kmst(0), kmst(1)])
        vv(3)
        ts(35)
        A.wait_lds(("m", 6)); run(qk_l(6), rd_wv(5))
        vv(4, [rd_kx(3)])
        ts(36)
        A.wait_lds(("m", 7)); run(qk_l(7), rd_wv(6))
    stamp(1)
    vv(5, vv5fill if OPT.get("spread", 1) else [])
    ts(70)
    e("v_lshrrev_b32 v%d, 1, v%d" % (T3, V_L16)); e("v_add_u32 v%d, %d, v%d" % (T3, L_X, T3))
    for u in range(2):
        q, k_ = QA + 4 * u, KA_ + 4 * u
        e("v_add_f32 v%d, v%d, v%d" % (k_, k_, k_ + 1)); e("v_add_f32 v%d, v%d, v%d" % (k_ + 2, k_ + 2, k_ + 3))
        e("v_add_f32 v%d, v%d, v%d" % (q, q, q + 1)); e("v_add_f32 v%d, v%d, v%d" % (q + 2, q + 2, q + 3))
        e("v_cvt_pk_bf16_f32 v%d, v%d, v%d" % (k_, k_, k_ + 2)); e("v_cvt_pk_bf16_f32 v%d, v%d, v%d" % (k_ + 1, q, q + 2))
        A.ds("ds_write_b64 v%d, %s offset:%d" % (V_XWR, vr(k_, 2), u * 512), "xw")
    ts(71)
    for f in rd_wv(7): f()
    ts(72)
    vv(6)
    ts(73)
    if OPT["stage"] >= 3 and OPT["nsteps"] == 64 and OPT["final"]:
        e("s_cmp_eq_u32 s%d, 63" % S_STEP); e("s_cbranch_scc1 L_tail63")
    if OPT["stage"] >= 3:
        pass
    va = V_VA
    ZS = V_KX + 12
    stamp(10, 2)
    A.wait_lds("xw"); e("s_barrier")
    stamp(11, 2)
    for kk in range(4):
        for b in range(2):
            A.ds("ds_read_b64_tr_b16 %s, v%d offset:%d" % (vr(V_QK + 4 * kk + 2 * b, 2), T3, kk * 1024 + b * 512), ("x", kk))
    stamp(2)
    def vpk(u):
        x = va + 4 * u
        return [lambda: e("v_add_f32 v%d, v%d, v%d" % (x, x, x + 1)), lambda: e("v_add_f32 v%d, v%d, v%d" % (x + 2, x + 2, x + 3)),
                lambda: e("v_cvt_pk_bf16_f32 v%d, v%d, v%d" % (x, x, x + 2)), lambda: e("v_mov_b32 v%d, 0" % (x + 1))]
    zs = [lambda i=i: e("v_mov_b32 v%d, 0" % (ZS + i)) for i in range(4)]
    sfill = {0: [[rd_kx(4)], [rd_kx(5)], [rd_kx(6)]], 1: [[lambda: vv_l(7)[0]()], [lambda: vv_l(7)[1]()], [rd_kx(7)]],
             2: [[rd_vx(0), zs[0]], [rd_vx(1), zs[1]], [zs[2], zs[3]]], 3: [vpk(0)[:2], vpk(0)[2:], vpk(1)[:2]]}
    for kk in range(4):
        A.wait_lds(("x", kk)); A.wait_lds(("kx", kk))
        if kk == 1: A.wait_lds(("wv", 7, 1))
        X = vr(V_QK + 4 * kk, 4)
        cs = lambda r: "0" if kk == 0 else vr(r, 4)
        for idx, (dst, a_op) in enumerate(((V_S, vr(V_MEM + kk * 8, 4)), (V_S + 4, vr(V_MEM + kk * 8 + 4, 4)), (V_S + 8, X))):
            e("v_mfma_f32_16x16x32_bf16 %s, %s, %s, %s" % (vr(dst, 4), a_op, X, cs(dst)))
            for f in sfill[kk][idx]: f()
    for f in vpk(1)[2:]: f()
    e("v_add_u32 v%d, %d, v%d" % (T5, L_O, V_L16))
    A.nop(1)
    stamp(3)
    S = V_S
    e("v_max3_f32 v%d, v%d, v%d, v%d" % (T0, S, S + 1, S + 2)); e("v_max3_f32 v%d, v%d, v%d, v%d" % (T1, S + 4, S + 5, S + 6))
    e("v_max3_f32 v%d, v%d, v%d, v%d" % (T0, T0, S + 3, S + 7)); e("v_max3_f32 v%d, v%d, v%d, v%d" % (T1, T1, S + 8, S + 9))
    e("v_max_f32 v%d, v%d, v%d" % (T0, T0, T1))
    e("v_mov_b32 v%d, v%d" % (T1, T0))
    A.nop(2)
    e("v_permlane16_swap_b32 v%d, v%d" % (T0, T1)); e("v_max_f32 v%d, v%d, v%d" % (T0, T0, T1))
    e("v_mov_b32 v%d, v%d" % (T1, T0))
    e("v_mov_b32 v%d, 0" % (S + 11)); e("s_nop 0")
    e("v_permlane32_swap_b32 v%d, v%d" % (T0, T1)); e("v_max_f32 v%d, v%d, v%d" % (T0, T0, T1))
    e("v_mul_f32 v%d, s%d, v%d" % (T0, S_C, T0))
    if OPT.get("pk", 0):
        for i in range(0, 10, 2): e("v_pk_fma_f32 %s, %s, s[%d:%d], %s op_sel_hi:[1,0,0] neg_lo:[0,0,1] neg_hi:[0,0,1]" % (vr(S + i, 2), vr(S + i, 2), S_C, S_C + 1, vr(T0, 2)))
    else:
        for i in range(10): e("v_fma_f32 v%d, v%d, s%d, -v%d" % (S + i, S + i, S_C, T0))
    for i in range(8): e("v_exp_f32 v%d, v%d" % (S + i, S + i))
    e("v_exp_f32 v%d, v%d" % (S + 8, S + 8))
    e("v_add_f32 v%d, v%d, v%d" % (T2, S, S + 1)); e("v_add_f32 v%d, v%d, v%d" % (T3, S + 2, S + 3))
    e("v_exp_f32 v%d, v%d" % (S + 9, S + 9))
    e("v_cvt_pk_bf16_f32 v%d, v%d, v%d" % (S, S, S + 1)); e("v_cvt_pk_bf16_f32 v%d, v%d, v%d" % (S + 1, S + 2, S + 3))
    e("v_cvt_pk_bf16_f32 v%d, v%d, v%d" % (S + 2, S + 4, S + 5)); e("v_cvt_pk_bf16_f32 v%d, v%d, v%d" % (S + 3, S + 6, S + 7))
    e("v_add_f32 v%d, v%d, v%d" % (T2, T2, S + 4)); e("v_add_f32 v%d, v%d, v%d" % (T3, T3, S + 5))
    stamp(12, 2)
    O0, O1 = V_QK + 4, V_QK + 8
    A.wait_lds(("vx", 1))
    e("v_mfma_f32_16x16x32_bf16 %s, %s, %s, 0" % (vr(O0, 4), vr(V_KX, 4), vr(S, 4)))
    e("v_cvt_pk_bf16_f32 v%d, v%d, v%d" % (S + 10, S + 8, S + 9))
    e("v_add_f32 v%d, v%d, v%d" % (T2, T2, S + 6))
    e("v_mfma_f32_16x16x32_bf16 %s, %s, %s, 0" % (vr(O1, 4), vr(V_KX + 4, 4), vr(S, 4)))
    e("v_add_f32 v%d, v%d, v%d" % (T3, T3, S + 7)); e("v_add_f32 v%d, v%d, v%d" % (T2, T2, S + 8))
    e("v_mfma_f32_16x16x16_bf16 %s, %s, %s, %s" % (vr(O0, 4), vr(va, 2), vr(S + 10, 2), vr(O0, 4)))
    e("v_add_f32 v%d, v%d, v%d" % (T3, T3, S + 9)); e("v_add_f32 v%d, v%d, v%d" % (T2, T2, T3))
    e("v_mfma_f32_16x16x16_bf16 %s, %s, %s, %s" % (vr(O1, 4), vr(va + 4, 2), vr(S + 10, 2), vr(O1, 4)))
    ts(63)
    e("v_mov_b32 v%d, v%d" % (T3, T2)); A.nop(2); e("v_permlane16_swap_b32 v%d, v%d" % (T2, T3)); e("v_add_f32 v%d, v%d, v%d" % (T2, T2, T3))
    e("v_mov_b32 v%d, v%d" % (T3, T2)); A.nop(2); e("v_permlane32_swap_b32 v%d, v%d" % (T2, T3)); e("v_add_f32 v%d, v%d, v%d" % (T2, T2, T3))
    e("v_rcp_f32 v%d, v%d" % (T2, T2))
    e("s_nop 0")
    ts(64)
    W0 = V_QK
    for r in range(2): e("v_mul_f32 v%d, v%d, v%d" % (O0 + r, O0 + r, T2)); e("v_mul_f32 v%d, v%d, v%d" % (O1 + r, O1 + r, T2))
    e("v_cvt_pk_bf16_f32 v%d, v%d, v%d" % (W0, O0, O0 + 1)); e("v_cvt_pk_bf16_f32 v%d, v%d, v%d" % (W0 + 1, O1, O1 + 1))
    if OPT.get("omask", 0): e("s_mov_b64 exec, s[50:51]")
    A.ds("ds_write_b64 v%d, %s" % (V_OWR, vr(W0, 2)), "ow")
    if OPT.get("omask", 0): e("s_mov_b64 exec, s[26:27]")
    for r in range(2, 4): e("v_mul_f32 v%d, v%d, v%d" % (O0 + r, O0 + r, T2)); e("v_mul_f32 v%d, v%d, v%d" % (O1 + r, O1 + r, T2))
    e("v_cvt_pk_bf16_f32 v%d, v%d, v%d" % (W0 + 2, O0 + 2, O0 + 3)); e("v_cvt_pk_bf16_f32 v%d, v%d, v%d" % (W0 + 3, O1 + 2, O1 + 3))
    if OPT.get("omask", 0): e("s_mov_b64 exec, s[50:51]")
    A.ds("ds_write_b64 v%d, %s offset:16" % (V_OWR, vr(W0 + 2, 2)), "ow")
    if OPT.get("omask", 0): e("s_mov_b64 exec, s[26:27]")
    if OPT["stage"] >= 3:
        e("v_mov_b32 v%d, v%d" % (V_S + 9, va)); e("v_mov_b32 v%d, v%d" % (V_S + 10, va + 4))
    ts(65)
    e("s_cmp_eq_u32 s%d, 63" % S_STEP); e("s_cbranch_scc1 L_chain_done")
    e("v_mfma_f32_32x32x16_bf16 %s, %s, %s, 0" % (vr(V_MEM, 16), vr(ZS, 4), vr(ZS, 4)))
    e("v_mfma_f32_32x32x16_bf16 %s, %s, %s, 0" % (vr(V_MEM + 16, 16), vr(ZS, 4), vr(ZS, 4)))
    e("v_add_u32 v%d, %d, v%d" % (T2, L_SEL, V_L16))
    A.ds("ds_read_b128 %s, v%d" % (vr(V_KX + 8, 4), T2), "sel")
    l3 = A.newlab("L_w3")
    e("s_cmp_eq_u32 s%d, 3" % S_WAVE); e("s_cbranch_scc0 %s" % l3); e("s_waitcnt vmcnt(%d)" % (8 if OPT["stage"] >= 3 else 4)); lab(l3)
    stamp(13, 2)
    A.wait_lds_all(); e("s_barrier")
    for t in range(2):
        A.ds("ds_read_b128 %s, v%d offset:%d" % (vr(V_KX + 4 * t, 4), T5, t * 1024), ("o", t))
    stamp(4)
    def wo(nt, t):
        e("v_smfmac_f32_16x16x64_bf16 %s, %s, %s, v%d" % (vr(V_MEM + 4 * nt, 4), vr(V_KX + 4 * t, 4), vr(V_WO + (nt * 2 + t) * 8, 8), V_IDX))
    def fin_l(nt, dst):
        T = V_MEM + 4 * nt
        return [lambda: e("v_add_f32 v%d, v%d, v%d" % (T, T, T + 1)), lambda: e("v_add_f32 v%d, v%d, v%d" % (T + 2, T + 2, T + 3)),
                lambda: e("v_cvt_pk_bf16_f32 v%d, v%d, v%d" % (dst, T, T + 2))] + ([lambda: e("v_bfi_b32 v%d, 1, s%d, v%d" % (dst, S_TAG, dst))] if (nt % 4 == 0 or OPT.get("fulltag", 0)) else [])
    A.wait_lds(("o", 0)); A.wait_lds(("o", 1))
    pub = [lambda: e("s_add_u32 s30, s%d, %d" % (S_PCUR, 4 * 8192)), lambda: e("s_bfe_u32 s%d, s%d, 0x10001" % (S_TAG, S_STEP)),
           lambda: e("v_lshrrev_b32 v%d, 2, v%d" % (T4, V_L16)), lambda: e("v_and_b32 v%d, 0xc0, v%d" % (T4, T4)),
           lambda: e("v_lshlrev_b32 v%d, 1, v%d" % (T3, V_L16)), lambda: e("v_and_b32 v%d, 32, v%d" % (T3, T3)), lambda: e("v_add_u32 v%d, v%d, v%d" % (T4, T4, T3)),
           lambda: e("v_lshrrev_b32 v%d, 3, v%d" % (T3, V_L16)), lambda: e("v_and_b32 v%d, 28, v%d" % (T3, T3)), lambda: e("v_add_u32 v%d, v%d, v%d" % (T4, T4, T3))]
    late = [lambda: e("s_add_u32 s%d, s%d, 8192" % (S_MNXT, S_MCUR)), lambda: e("s_cmp_eq_u32 s%d, %d" % (S_MNXT, WS_MB + 3 * 8192)), lambda: e("s_cselect_b32 s%d, %d, s%d" % (S_MNXT, WS_MB, S_MNXT)),
            lambda: e("s_add_u32 s%d, s%d, s%d" % (S_RED, S_PCUR, S_H13)), lambda: e("s_add_u32 s33, s%d, 4096" % S_RED), lambda: e("s_add_u32 s31, s%d, s%d" % (S_MNXT, S_H8))]
    q = pub[:]
    ts(60)
    for nt in range(8):
        if nt == 4: ts(61)
        for t in range(2):
            wo(nt, t)
            for _ in range(2):
                if q: q.pop(0)()
        if nt >= 2:
            q += fin_l(nt - 2, V_S + nt - 2)
            if nt - 2 == 3: q.append(lambda: e("buffer_store_dwordx4 %s, v%d, s[4:7], s%d offen" % (vr(V_S, 4), V_PS0, S_PCUR)))
    ts(62)
    while q: q.pop(0)()
    for f in late[:3]: f()
    for nt in (6, 7):
        for f in fin_l(nt, V_S + nt): f()
    e("buffer_store_dwordx4 %s, v%d, s[4:7], s30 offen" % (vr(V_S + 4, 4), V_PS0))
    for f in late[3:]: f()
    stamp(5)
    lp = A.newlab("L_nopois")
    e("s_cmp_eq_u32 s%d, 3" % S_WAVE); e("s_cbranch_scc0 %s" % lp)
    e("v_mov_b32 v%d, -1" % (V_S + 8))
    e("s_add_u32 s29, s%d, s%d" % (S_MPREV, S_H8))
    e("buffer_store_dword v%d, v%d, s[4:7], s29 offen" % (V_S + 8, T4))
    lab(lp)
    e("s_mov_b32 s%d, s%d" % (S_MPREV, S_MCUR))
    e("s_mov_b32 s%d, s%d" % (S_MCUR, S_MNXT)); e("s_xor_b32 s%d, s%d, 0x40000" % (S_PCUR, S_PCUR))
    e("s_xor_b32 s%d, s%d, 8192" % (S_PAR, S_PAR))
    e("s_add_u32 s%d, s%d, 1" % (S_STEP, S_STEP))
    nextprep()
    e("s_cmp_eq_u32 s%d, 0" % S_WAVE); e("s_cbranch_scc0 L_red_done")
    lab("L_reduce")
    QA_ = [V_MEM + 4 * x for x in range(8)]
    QB_ = [V_WVR, V_WVR + 4, V_WVR + 8, V_WVR + 12, V_VA, V_VA + 4, V_QK + 4, V_QK + 8]
    DA, DB = V_KX + 12, V_QK + 12
    assert OPT.get('red_sets', 1) == 1
    def red_issue(Q):
        for x in range(8):
            e("buffer_load_dwordx4 %s, v%d, s[4:7], s%d offen offset:%d sc1" % (vr(Q[x], 4), V_L16, S_RED if x < 4 else 33, (x & 3) * 1024))
    def red_proc(Q, D, tag, W, stampit=False):
        op = "0x80" if tag else "0xfe"
        for x in range(8):
            e("s_waitcnt vmcnt(%d)" % (W + 7 - x))
            if stampit and x in (0, 7): ts(41 + x)
            e("v_mfma_f32_16x16x32_bf16 %s, %s, %s, %s" % (vr(D, 4), vr(Q[x], 4), vr(V_KX + 8, 4), "0" if x == 0 else vr(D, 4)))
            a_ = Q[x]
            if OPT.get("fulltag", 0):
                if x == 0:
                    e("v_bitop3_b32 v%d, v%d, v%d, v%d bitop3:%s" % (T0, a_, a_ + 1, a_ + 2, op)); e("v_bitop3_b32 v%d, v%d, v%d, v%d bitop3:%s" % (T0, T0, a_ + 3, a_ + 3, op))
                else:
                    e("v_bitop3_b32 v%d, v%d, v%d, v%d bitop3:%s" % (T0, T0, a_, a_ + 1, op)); e("v_bitop3_b32 v%d, v%d, v%d, v%d bitop3:%s" % (T0, T0, a_ + 2, a_ + 3, op))
            else:
                if x == 1: e("v_bitop3_b32 v%d, v%d, v%d, v%d bitop3:%s" % (T0, Q[0], Q[1], Q[1], op))
                elif x in (3, 5, 7): e("v_bitop3_b32 v%d, v%d, v%d, v%d bitop3:%s" % (T0, T0, Q[x - 1], Q[x], op))
        e("v_and_b32 v%d, 1, v%d" % (T0, T0))
        e("v_cmp_ne_u32 vcc, %d, v%d" % (tag, T0))
    two = OPT.get("red_sets", 1) == 2
    for i in range(OPT["dly_red"]): e("s_nop 7")
    red_issue(QA_)
    if two:
        for i in range(OPT.get("gap_red", 2)): e("s_nop 7")
        red_issue(QB_)
    ts(40)
    e("s_waitcnt lgkmcnt(0)")
    e("s_cmp_lg_u32 s%d, 0" % S_TAG); e("s_cbranch_scc1 L_prA1")
    for tag in range(2):
        lab("L_prA%d" % tag)
        e("s_add_u32 s%d, s%d, 1" % (S_SPIN, S_SPIN))
        red_proc(QA_, DA, tag, 8 if two else 0, True)
        e("s_cmp_gt_u32 s%d, 0x200000" % S_SPIN); e("s_cbranch_scc1 L_rgoA")
        if OPT["nowait"]: e("s_branch L_rgoA")
        e("s_cbranch_vccz L_rgoA")
        red_issue(QA_)
        if two:
            red_proc(QB_, DB, tag, 8)
            e("s_nop 1")
            e("s_cbranch_vccz L_rgoB")
            red_issue(QB_)
        e("s_branch L_prA%d" % tag)
    if two:
        lab("L_rgoB")
        A.nop(4)
        e("v_cndmask_b32 v%d, v%d, v%d, s[48:49]" % (T0, DB + 2, DB)); e("v_cndmask_b32 v%d, v%d, v%d, s[48:49]" % (T1, DB + 3, DB + 1))
        e("s_branch L_rpub")
    lab("L_rgoA")
    A.nop(3)
    e("v_cndmask_b32 v%d, v%d, v%d, s[48:49]" % (T0, DA + 2, DA)); e("v_cndmask_b32 v%d, v%d, v%d, s[48:49]" % (T1, DA + 3, DA + 1))
    lab("L_rpub")
    ts(50)
    e("v_cvt_pk_bf16_f32 v%d, v%d, v%d" % (T0, T0, T1))
    e("buffer_store_dword v%d, v%d, s[4:7], s31 offen" % (T0, T4))
    if OPT["hist"]:
        e("s_lshl_b32 s30, s%d, 13" % S_STEP); e("s_add_u32 s30, s30, s%d" % S_H8); e("s_add_u32 s30, s30, %d" % WS_HIST)
        e("buffer_store_dword v%d, v%d, s[4:7], s30 offen" % (T0, T4))
    lab("L_red_done")
    stamp(6)
    e("s_barrier")
    stamp(7)
    e("s_cmp_lt_u32 s%d, %d" % (S_STEP, OPT["nsteps"])); e("s_cbranch_scc1 L_step")
    if OPT["stage"] >= 3 and OPT["nsteps"] == 64 and OPT["final"]:
        e("s_branch L_chain_done")
        lab("L_tail63")
        e("s_waitcnt lgkmcnt(0)")
        for u in range(2): smf(V_VA + 4 * u, V_MEM + 28, vr(wvreg(7) + 8 * u, 8))
        e("v_lshrrev_b32 v6, 2, v%d" % V_L16)
        for u in range(2):
            e("buffer_store_dword v%d, v6, s[4:7], s38 offen offset:%d sc0 sc1" % (KA_ + 4 * u, u * 256))
        A.nop(8)
        for u in range(2):
            x = V_VA + 4 * u
            e("v_add_f32 v%d, v%d, v%d" % (x, x, x + 1)); e("v_add_f32 v%d, v%d, v%d" % (x + 2, x + 2, x + 3))
            e("v_cvt_pk_bf16_f32 v%d, v%d, v%d" % (x, x, x + 2))
            e("buffer_store_dword v%d, v6, s[4:7], s37 offen offset:%d sc0 sc1" % (x, u * 256))
        e("s_waitcnt vmcnt(0)"); e("s_barrier")
        lfk = A.newlab("L_fkm")
        e("s_cmp_eq_u32 s%d, 1" % S_WAVE); e("s_cbranch_scc0 L_end")
        e("v_mov_b32 v6, 64"); e("v_mov_b32 v7, 0")
        e("s_mov_b64 exec, 1"); e("buffer_store_dword v6, v7, s[4:7], s101 offen sc0 sc1"); e("s_mov_b64 exec, s[26:27]")
        e("s_waitcnt vmcnt(0)")
        e("s_branch L_end")
    lab("L_chain_done")
    rt(5)
    if OPT["stage"] >= 3:
        e("v_lshrrev_b32 v6, 2, v%d" % V_L16)
        for u in range(2): e("ds_read_b32 v%d, v%d offset:%d" % (8 + u, V_XWR, u * 512))
        for u in range(2):
            e("buffer_store_dword v%d, v6, s[4:7], s37 offen offset:%d sc0 sc1" % (V_S + 9 + u, u * 256))
        e("s_waitcnt lgkmcnt(0)")
        for u in range(2):
            e("buffer_store_dword v%d, v6, s[4:7], s38 offen offset:%d sc0 sc1" % (8 + u, u * 256))
        e("s_waitcnt vmcnt(0)"); e("s_barrier")
        lfk = A.newlab("L_fkm")
        e("s_cmp_eq_u32 s%d, 1" % S_WAVE); e("s_cbranch_scc0 %s" % lfk)
        e("v_mov_b32 v6, 64"); e("v_mov_b32 v7, 0"); e("s_lshl_b32 s28, s%d, 2" % S_HEAD); e("s_add_u32 s28, s28, %d" % FL_KM)
        e("s_mov_b64 exec, 1"); e("buffer_store_dword v6, v7, s[4:7], s28 offen sc0 sc1"); e("s_mov_b64 exec, s[26:27]")
        lab(lfk)
    if not OPT["final"]:
        e("s_memtime s[86:87]"); e("s_memrealtime s[90:91]"); e("s_waitcnt lgkmcnt(0)")
        e("s_sub_u32 s86, s86, s84"); e("s_sub_u32 s90, s90, s88")
        e("s_lshl_b32 s28, s%d, 2" % S_HEAD); e("s_add_u32 s28, s28, s%d" % S_WAVE); e("s_lshl_b32 s28, s28, 7"); e("s_add_u32 s28, s28, %d" % WS_STAMP)
        e("s_mov_b64 exec, 1"); e("v_mov_b32 v10, 0")
        vals = [86, 90, S_SPIN] + ([S_ST + i for i in range(16)] if OPT["stamps"] else []) + [64 + 2 * k for k in range(len(TS))]
        for i, r in enumerate(vals):
            e("v_mov_b32 v11, s%d" % r); e("buffer_store_dword v11, v10, s[4:7], s28 offen offset:%d" % (4 * i))
    e("s_waitcnt vmcnt(0)")
    e("s_branch L_end")

S_X = 12
S_SEG, S_K, S_NSEG, S_XB = 40, 41, 42, 43
S_RANK, S_SUB = 38, 37
def wait_dbg_counter(off_bytes_sgpr_or_int, target, lname):
    e("s_mov_b64 exec, 1")
    if isinstance(off_bytes_sgpr_or_int, int): e("v_mov_b32 v32, %d" % off_bytes_sgpr_or_int)
    else: e("v_mov_b32 v32, %s" % off_bytes_sgpr_or_int)
    e("s_mov_b32 s29, 0")
    lab(lname)
    e("global_load_dword v33, v32, s[24:25] sc0 sc1"); e("s_waitcnt vmcnt(0)"); e("v_readfirstlane_b32 s30, v33")
    e("s_add_u32 s29, s29, 1"); e("s_cmp_gt_u32 s29, 0x40000"); e("s_cbranch_scc1 %s_d" % lname)
    e("s_cmp_lt_u32 s30, %d" % target); e("s_cbranch_scc1 %s" % lname)
    lab(lname + "_d")
    e("s_mov_b64 exec, s[26:27]")

CV_HS, CV_CS = 4416, 17664
CV_XR, CV_XS = 70656, 7680
CV_YB = 101376
def conv_task():
    lskip = A.newlab("L_cv_skip")
    e("s_cmp_lt_u32 s%d, 2" % S_TEAM); e("s_cbranch_scc1 %s" % lskip)
    e("s_cmp_gt_u32 s%d, 5" % S_TEAM); e("s_cbranch_scc1 %s" % lskip)
    TASK, CH = 44, 45
    e("s_sub_u32 s%d, s%d, 2" % (TASK, S_TEAM)); e("s_lshl_b32 s%d, s%d, 5" % (TASK, TASK)); e("s_add_u32 s%d, s%d, s%d" % (TASK, TASK, S_HEAD))
    e("s_lshl_b32 s%d, s%d, 2" % (CH, TASK)); e("s_add_u32 s%d, s%d, s%d" % (CH, CH, S_WAVE))
    e("s_load_dwordx4 s[64:67], s[0:1], %d" % KA["q"])
    e("s_load_dwordx4 s[68:71], s[0:1], %d" % KA["v"])
    e("s_load_dwordx4 s[72:75], s[0:1], %d" % KA["ssmk"])
    e("s_load_dwordx2 s[76:77], s[0:1], %d" % KA["out"])
    e("s_waitcnt lgkmcnt(0)")
    e("s_lshl_b32 s28, s%d, 5" % TASK); e("s_add_u32 s70, s70, s28"); e("s_addc_u32 s71, s71, 0")
    e("s_lshl_b32 s28, s%d, 3" % TASK); e("s_add_u32 s74, s74, s28"); e("s_addc_u32 s75, s75, 0")
    e("s_load_dwordx8 s[80:87], s[70:71], 0"); e("s_load_dwordx2 s[88:89], s[74:75], 0")
    LN = 2
    e("v_lshrrev_b32 v%d, 4, v%d" % (LN, V_L16))
    srd(8, 72, 0x200000)
    e("s_mul_i32 s32, s%d, %d" % (S_WAVE, CV_CS))
    e("s_lshl_b32 s33, s%d, 12" % CH)
    for r in range(4):
        for i in range(4):
            e("s_add_u32 m0, s32, %d" % (r * CV_HS + 64 + i * 1024)); e("s_add_u32 s28, s33, %d" % (i * 1024 + 2 * r))
            e("buffer_load_dwordx4 v%d, s[8:11], s28 offen lds" % V_L16)
    for i in range(4): e("v_mov_b32 v%d, 0" % (4 + i))
    e("v_bfe_u32 v8, v%d, 2, 2" % LN); e("v_mul_u32_u24 v8, %d, v8" % CV_HS); e("v_and_b32 v9, 3, v%d" % LN); e("v_lshlrev_b32 v9, 4, v9"); e("v_add_u32 v8, v8, v9"); e("v_add_u32 v8, s32, v8")
    e("ds_write_b128 v8, v[4:7]")
    e("v_and_b32 v9, 3, v%d" % LN); e("v_lshlrev_b32 v10, 1, v9"); e("v_add_u32 v10, s33, v10")
    e("buffer_load_ushort v11, v10, s[8:11], 0 offen")
    e("v_bfe_u32 v12, v%d, 2, 2" % LN); e("v_mul_u32_u24 v13, %d, v12" % (CV_HS - 2)); e("v_lshlrev_b32 v14, 1, v9"); e("v_add_u32 v13, v13, v14"); e("v_add_u32 v13, 64, v13"); e("v_add_u32 v13, s32, v13")
    e("v_cmp_lt_u32 vcc, v9, v12"); e("v_cmp_gt_u32 s[30:31], 16, v%d" % LN); e("s_nop 1"); e("s_and_b64 s[30:31], s[30:31], vcc")
    e("s_mul_i32 s28, s%d, %d" % (S_WAVE, CV_XS)); e("s_add_u32 s28, s28, %d" % CV_XR); e("v_add_u32 v8, s28, v%d" % V_L16)
    e("ds_write_b128 v8, v[4:7]"); e("ds_write_b128 v8, v[4:7] offset:1024")
    e("v_cmp_gt_u32 vcc, 32, v%d" % LN); e("s_nop 1"); e("s_mov_b64 exec, vcc"); e("ds_write_b128 v8, v[4:7] offset:2048"); e("s_mov_b64 exec, s[26:27]")
    e("s_waitcnt vmcnt(0)")
    e("s_mov_b64 exec, s[30:31]"); e("ds_write_b16 v13, v11"); e("s_mov_b64 exec, s[26:27]")
    srd(8, 66, 0x200000)
    srd(12, 68, 0x200000)
    TH = 3
    e("s_lshl_b32 s28, s%d, 6" % S_WAVE); e("v_add_u32 v%d, s28, v%d" % (TH, LN))
    e("v_lshlrev_b32 v4, 13, v%d" % TH); e("s_lshl_b32 s28, s%d, 3" % TASK); e("v_add_u32 v4, s28, v4")
    KR, VR = 16, 40
    for j in range(11):
        e("v_add_u32 v5, %d, v4" % ((j - 3) * 1024 & 0xffffffff))
        e("buffer_load_dwordx2 %s, v5, s[8:11], 0 offen" % vr(KR + 2 * j, 2))
    for j in range(8):
        e("v_add_u32 v5, %d, v4" % (j * 1024))
        e("buffer_load_dwordx2 %s, v5, s[12:15], 0 offen" % vr(VR + 2 * j, 2))
    e("s_waitcnt lgkmcnt(0)")
    SK = {}
    for cch in range(4):
        for j in range(4):
            src = 80 + 2 * cch + (j >> 1)
            dst = 96 + cch * 4 + j
            if j & 1: e("s_and_b32 s28, s%d, 0xffff0000" % src)
            else: e("s_lshl_b32 s28, s%d, 16" % src)
            e("v_mov_b32 v%d, s28" % dst)
            SK[(cch, j)] = dst
    for cch in range(4):
        src = 88 + (cch >> 1)
        if cch & 1: e("s_and_b32 s28, s%d, 0xffff0000" % src)
        else: e("s_lshl_b32 s28, s%d, 16" % src)
        e("v_mov_b32 v%d, s28" % (112 + cch))
    e("s_waitcnt vmcnt(0)")
    KV = 116
    XP = 56
    for cch in range(4):
        d, hi = cch >> 1, cch & 1
        U = 72
        for j in range(11):
            if hi: e("v_and_b32 v%d, 0xffff0000, v%d" % (U + j, KR + 2 * j + d))
            else: e("v_lshlrev_b32 v%d, 16, v%d" % (U + j, KR + 2 * j + d))
        for t in range(8):
            e("v_mul_f32 v%d, v%d, v%d" % (84 + t, U + t, SK[(cch, 3)]))
            for j in (2, 1, 0):
                e("v_fmac_f32 v%d, v%d, v%d" % (84 + t, U + t + 3 - j, SK[(cch, j)]))
            if hi: e("v_and_b32 v92, 0xffff0000, v%d" % (VR + 2 * t + d))
            else: e("v_lshlrev_b32 v92, 16, v%d" % (VR + 2 * t + d))
            e("v_mul_f32 v%d, v%d, v92" % (84 + t, 84 + t))
        for p in range(4):
            e("v_cvt_pk_bf16_f32 v%d, v%d, v%d" % (XP + 4 * cch + p, 84 + 7 - 2 * p, 84 + 6 - 2 * p))
    e("v_lshrrev_b32 v4, 2, v%d" % TH); e("v_mul_u32_u24 v4, 80, v4"); e("v_and_b32 v5, 3, v%d" % TH); e("v_lshlrev_b32 v5, 4, v5"); e("v_add_u32 v4, v4, v5")
    e("v_add_u32 v4, %d, v4" % (CV_XR + 32 * 80))
    e("s_waitcnt lgkmcnt(0)"); e("s_barrier")
    for cch in range(4):
        e("ds_write_b128 v4, %s offset:%d" % (vr(XP + 4 * cch, 4), cch * CV_XS))
    srd(8, 64, 0x200000)
    e("v_lshlrev_b32 v4, 13, v%d" % TH); e("s_lshl_b32 s28, s%d, 3" % TASK); e("v_add_u32 v4, s28, v4")
    QR = 16
    for j in range(8):
        e("v_add_u32 v5, %d, v4" % (j * 1024))
        e("buffer_load_dwordx2 %s, v5, s[8:11], 0 offen" % vr(QR + 2 * j, 2))
    e("s_waitcnt lgkmcnt(0)"); e("s_barrier")
    e("v_and_b32 v6, 31, v%d" % LN); e("v_lshrrev_b32 v7, 5, v%d" % LN)
    e("v_add_u32 v8, 1, v6"); e("v_and_b32 v8, 3, v8"); e("v_mul_u32_u24 v8, %d, v8" % CV_HS)
    e("v_lshlrev_b32 v9, 3, v7"); e("v_sub_u32 v9, v6, v9"); e("v_add_u32 v9, 25, v9"); e("v_lshrrev_b32 v9, 2, v9"); e("v_lshlrev_b32 v9, 3, v9")
    e("v_add_u32 v8, v8, v9"); e("v_add_u32 v8, s32, v8"); e("v_subrev_u32 v8, 32, v8")
    e("v_mul_u32_u24 v9, 80, v6"); e("v_lshlrev_b32 v10, 4, v7"); e("v_add_u32 v9, v9, v10")
    e("s_mul_i32 s28, s%d, %d" % (S_WAVE, CV_XS)); e("s_add_u32 s28, s28, %d" % (CV_XR - 31 * 80)); e("v_add_u32 v9, s28, v9")
    Y0, Y1 = 128, 144
    FA, FB = 72, 88
    steps = []
    for dl in range(64):
        for kk in range(2):
            steps.append((dl, kk))
    A.lds = []
    def issue(n):
        dl, kk = steps[n]; u = 2 * dl - kk
        ra = FA + (n % 4) * 4
        A.ds("ds_read_b64 %s, v8 offset:%d" % (vr(ra, 2), (u + 1) * 32), ("cv", n))
        A.ds("ds_read_b64 %s, v8 offset:%d" % (vr(ra + 2, 2), (u + 1) * 32 + 8), ("cv", n))
        rb = 88 + (n % 3) * 8
        A.ds("ds_read_b128 %s, v9 offset:%d" % (vr(rb, 4), (63 - dl) * 80 + kk * 32 + 2560), ("cv", n))
        if dl <= 31:
            A.ds("ds_read_b128 %s, v9 offset:%d" % (vr(rb + 4, 4), (63 - dl) * 80 + kk * 32), ("cv", n))
    issue(0); issue(1)
    first = [True, True]
    for n in range(len(steps)):
        dl, kk = steps[n]
        A.wait_lds(("cv", n))
        ra = FA + (n % 4) * 4; rb = 88 + (n % 3) * 8
        e("v_mfma_f32_32x32x16_bf16 %s, %s, %s, %s" % (ar(Y1, 16), vr(ra, 4), vr(rb, 4), "0" if n == 0 else ar(Y1, 16)))
        if dl <= 31:
            e("v_mfma_f32_32x32x16_bf16 %s, %s, %s, %s" % (ar(Y0, 16), vr(ra, 4), vr(rb + 4, 4), "0" if n == 0 else ar(Y0, 16)))
        if n + 2 < len(steps): issue(n + 2)
    A.nop(16)
    e("v_lshlrev_b32 v10, 6, v6"); e("v_lshlrev_b32 v11, 3, v7"); e("v_add_u32 v10, v10, v11")
    e("s_lshl_b32 s28, s%d, 12" % S_WAVE); e("s_add_u32 s28, s28, %d" % CV_YB); e("v_add_u32 v10, s28, v10")
    for tile, Y in ((0, Y0), (1, Y1)):
        for q4 in range(4):
            for r in range(4): e("v_accvgpr_read_b32 v%d, a%d" % (72 + r, Y + 4 * q4 + r))
            e("s_nop 0")
            e("v_cvt_pk_bf16_f32 v76, v72, v73"); e("v_cvt_pk_bf16_f32 v77, v74, v75")
            e("ds_write_b64 v10, v[76:77] offset:%d" % (tile * 2048 + q4 * 16))
            e("s_nop 1")
    e("s_waitcnt lgkmcnt(0)"); e("s_barrier")
    e("v_lshlrev_b32 v4, 4, v%d" % TH); e("v_add_u32 v4, %d, v4" % CV_YB)
    YR = 72
    for cch in range(4):
        e("ds_read_b128 %s, v4 offset:%d" % (vr(YR + 4 * cch, 4), cch * 4096))
    e("s_waitcnt lgkmcnt(0) vmcnt(0)")
    srd(8, 76, 0x400000)
    OUTR = 40
    for t in range(8):
        for pr in range(2):
            vals = []
            for h in range(2):
                cch = 2 * pr + h
                ysrc = YR + 4 * cch + (t >> 1)
                if t & 1: e("v_and_b32 v%d, 0xffff0000, v%d" % (92 + h, ysrc))
                else: e("v_lshlrev_b32 v%d, 16, v%d" % (92 + h, ysrc))
                p = (7 - t) >> 1
                ksrc = XP + 4 * cch + p
                if (7 - t) & 1: e("v_and_b32 v94, 0xffff0000, v%d" % ksrc)
                else: e("v_lshlrev_b32 v94, 16, v%d" % ksrc)
                e("v_fmac_f32 v%d, v94, v%d" % (92 + h, 112 + cch))
                qsrc = QR + 2 * t + pr
                if h: e("v_and_b32 v94, 0xffff0000, v%d" % qsrc)
                else: e("v_lshlrev_b32 v94, 16, v%d" % qsrc)
                e("v_mul_f32 v%d, v%d, v94" % (92 + h, 92 + h))
            e("v_cvt_pk_bf16_f32 v%d, v92, v93" % (OUTR + 2 * t + pr))
    e("v_lshlrev_b32 v4, 14, v%d" % TH); e("s_lshl_b32 s28, s%d, 3" % TASK); e("v_add_u32 v4, s28, v4")
    for t in range(8):
        e("v_add_u32 v5, %d, v4" % (t * 2048))
        e("buffer_store_dwordx2 %s, v5, s[8:11], 0 offen" % vr(OUTR + 2 * t, 2))
    e("s_waitcnt vmcnt(0)"); e("s_barrier")
    e("s_load_dwordx2 s[30:31], s[0:1], %d" % KA["x"]); e("s_waitcnt lgkmcnt(0)")
    srd(S_X, 30, 0x200000)
    lab(lskip)

XL_T0, XL_QB, XL_KMI, XL_OB, XL_SEL = 0, 65536, 73728, 77824, 86016
S_OUT = 16
S_QT, S_EH, S_XPB, S_PAR2 = 44, 45, 46, 47
def xt_dma_g(seg_sgpr, buf_sgpr):
    e("s_lshr_b32 s28, s%d, 1" % S_WAVE); e("s_lshl_b32 s29, s%d, 15" % seg_sgpr); e("s_lshl_b32 s30, s28, 14"); e("s_add_u32 s29, s29, s30")
    e("s_and_b32 s30, s%d, 1" % S_WAVE); e("s_lshl_b32 s31, s30, 9"); e("s_add_u32 s29, s29, s31")
    e("s_lshl_b32 s31, s%d, 13" % S_WAVE); e("s_add_u32 s31, s31, s%d" % buf_sgpr)
    for i in range(8):
        e("s_add_u32 m0, s31, %d" % (i * 1024)); e("s_add_u32 s30, s29, %d" % (i * 64))
        e("buffer_load_dwordx4 v1, s[12:15], s30 offen lds")

def xphase2():
    L = VLANE
    e("s_mov_b32 s%d, s%d" % (S_HEAD, S_RANK))
    e("s_lshl_b32 s%d, s%d, 13" % (S_H13, S_HEAD)); e("s_lshl_b32 s%d, s%d, 8" % (S_H8, S_HEAD))
    e("s_cmp_eq_u32 s%d, 1" % S_TEAM); e("s_cselect_b32 s%d, 10, 9" % S_NSEG)
    e("s_barrier")
    e("v_lshrrev_b32 v%d, 4, v%d" % (L, V_L16))
    load_setup(32768)
    uq = units_qkv(0, "a", 0)
    for u in uq: u["perm"] = False
    load_units(uq + units_wo("v", V_WO), 8)
    e("s_barrier")
    rt(5)
    if OPT.get("conv", 0): conv_task()
    rt(6)
    KXF, VXF, QF, S, KMF, VMF, OO = 12, 44, 60, 76, 88, 104, 112
    T0, T1, T2, T3, T4, T5 = 6, 7, 8, 9, 10, 11
    V_THR, V_XPS, V_XD = 3, 4, 1
    e("v_lshrrev_b32 v%d, 4, v%d" % (L, V_L16))
    e("s_load_dwordx2 s[30:31], s[0:1], %d" % KA["out"])
    e("s_and_b32 s%d, s%d, 1" % (S_QT, S_WAVE)); e("s_lshr_b32 s%d, s%d, 1" % (S_EH, S_WAVE))
    e("v_lshrrev_b32 v1, 2, v%d" % L); e("v_lshrrev_b32 v2, 4, v%d" % L); e("v_xor_b32 v2, v2, v%d" % L); e("v_and_b32 v2, 3, v2"); e("v_lshlrev_b32 v2, 4, v2")
    e("v_lshlrev_b32 v1, 10, v1"); e("v_add_u32 v1, v1, v2")
    e("v_and_b32 v5, 15, v%d" % L); e("v_lshrrev_b32 v2, 2, v5"); e("v_lshrrev_b32 v34, 4, v%d" % L); e("v_xor_b32 v2, v2, v34"); e("v_and_b32 v2, 3, v2")
    e("v_lshlrev_b32 v5, 2, v5"); e("v_add_u32 v5, v5, v2"); e("v_lshlrev_b32 v5, 4, v5")
    e("v_and_b32 v%d, 15, v%d" % (V_THR, L)); e("v_lshrrev_b32 v2, 4, v%d" % L); e("v_lshlrev_b32 v2, 2, v2"); e("v_sub_u32 v%d, v%d, v2" % (V_THR, V_THR))
    e("s_lshl_b32 s28, s%d, 4" % S_QT); e("v_add_u32 v%d, s28, v%d" % (V_THR, V_THR))
    e("v_bfe_u32 v%d, v%d, 2, 2" % (V_XPS, L)); e("v_lshlrev_b32 v%d, 13, v%d" % (V_XPS, V_XPS))
    e("v_lshrrev_b32 v2, 4, v%d" % L); e("v_lshlrev_b32 v2, 6, v2"); e("v_add_u32 v%d, v%d, v2" % (V_XPS, V_XPS))
    e("v_and_b32 v2, 3, v%d" % L); e("v_lshlrev_b32 v2, 4, v2"); e("v_add_u32 v%d, v%d, v2" % (V_XPS, V_XPS)); e("v_add_u32 v%d, s%d, v%d" % (V_XPS, S_H8, V_XPS))
    e("v_and_b32 v6, 1, v%d" % L); e("v_lshlrev_b32 v6, 4, v6"); e("v_mov_b32 v7, 0x3f80"); e("v_lshlrev_b32 v7, v6, v7")
    e("v_bfe_u32 v6, v%d, 1, 2" % L)
    for i in range(4):
        e("v_cmp_eq_u32 vcc, %d, v6" % i); e("s_nop 1"); e("v_cndmask_b32 v%d, 0, v7, vcc" % (12 + i))
    e("v_add_u32 v6, %d, v%d" % (XL_SEL, V_L16)); e("ds_write_b128 v6, v[12:15]")
    e("s_waitcnt lgkmcnt(0)")
    srd(S_OUT, 30, 0x400000)
    cval = struct.unpack("<I", struct.pack("<f", (128 ** -0.5) * math.log2(math.e)))[0]
    e("s_mov_b32 s%d, 0x%08x" % (S_C, cval))
    e("s_lshl_b32 s%d, s%d, 21" % (S_XPB, S_TEAM)); e("s_add_u32 s%d, s%d, %d" % (S_XPB, S_XPB, WS_XP))
    e("s_sub_u32 s%d, s%d, 1" % (S_SEG, S_TEAM)); e("s_mov_b32 s%d, 0" % S_K); e("s_mov_b32 s%d, 0" % S_XB); e("s_mov_b32 s%d, 0" % S_PAR2)
    xt_dma_g(S_SEG, S_XB)
    e("s_and_b32 s33, s%d, 3" % S_TEAM); e("s_lshl_b32 s33, s33, 6"); e("s_lshr_b32 s29, s%d, 2" % S_TEAM); e("s_lshl_b32 s29, s29, 2"); e("s_add_u32 s33, s33, s29"); e("s_add_u32 s33, s33, 16")
    wait_dbg_counter("s33", 32, "L_x2_init")
    lab("L_x2")
    A.lds = []; A.vm = []
    lkv = A.newlab("L_x2kv")
    e("s_cmp_lg_u32 s%d, 0" % S_WAVE); e("s_cbranch_scc1 %s_s" % lkv)
    e("s_mov_b64 exec, 1"); e("v_mov_b32 v6, 0"); e("s_lshl_b32 s28, s%d, 7" % S_TEAM); e("s_lshl_b32 s29, s%d, 2" % S_HEAD); e("s_add_u32 s28, s28, s29"); e("s_add_u32 s28, s28, %d" % FL_KV); e("s_mov_b32 s29, 0")
    lab(lkv)
    e("buffer_load_dword v7, v6, s[4:7], s28 offen sc0 sc1"); e("s_waitcnt vmcnt(0)"); e("v_readfirstlane_b32 s30, v7")
    e("s_add_u32 s29, s29, 1"); e("s_cmp_gt_u32 s29, 0x80000"); e("s_cbranch_scc1 %s_d" % lkv)
    e("s_cmp_gt_u32 s30, s%d" % S_K); e("s_cbranch_scc1 %s_d" % lkv)
    e("s_sleep 8"); e("s_branch %s" % lkv)
    lab(lkv + "_d")
    e("s_mov_b64 exec, s[26:27]")
    lab(lkv + "_s")
    e("s_waitcnt vmcnt(0)"); e("s_barrier")
    e("s_lshl_b32 s28, s%d, 18" % S_SEG); e("s_add_u32 s28, s28, s%d" % S_H13)
    e("s_add_u32 s29, s28, %d" % WS_KX); e("s_add_u32 s30, s29, 4096")
    for kt in range(2):
        for kk in range(4):
            A.vmem("buffer_load_dwordx4 %s, v%d, s[4:7], s%d offen offset:%d sc1" % (vr(KXF + (kt * 4 + kk) * 4, 4), V_L16, 29 + kt, kk * 1024), "kx")
    e("s_lshl_b32 s29, s%d, 12" % S_EH); e("s_add_u32 s29, s29, s28"); e("s_add_u32 s29, s29, %d" % WS_VX)
    for i in range(4):
        A.vmem("buffer_load_dwordx4 %s, v%d, s[4:7], s29 offen offset:%d sc1" % (vr(VXF + 4 * i, 4), V_L16, i * 1024), "vx")
    ln = A.newlab("L_x2n")
    e("s_add_u32 s32, s%d, 1" % S_K); e("s_cmp_ge_u32 s32, s%d" % S_NSEG); e("s_cbranch_scc1 %s" % ln)
    e("s_add_u32 s33, s%d, 7" % S_SEG); e("s_xor_b32 s36, s%d, 32768" % S_XB)
    xt_dma_g(33, 36)
    lab(ln)
    XF = KMF
    e("v_add_u32 v2, s%d, v5" % S_XB)
    def rdx(kk):
        for tt in range(2):
            A.ds("ds_read_b128 %s, v2 offset:%d" % (vr(XF + (kk % 2) * 8 + tt * 4, 4), (tt * 16 + kk) * 1024), ("x", kk))
    rdx(0); rdx(1)
    for kk in range(16):
        A.wait_lds(("x", kk))
        t, b = kk >> 1, kk & 1
        for u in range(2):
            for tt in range(2):
                xf = vr(XF + (kk % 2) * 8 + tt * 4, 4)
                cq = "0" if kk == 0 else vr(QF + (u * 2 + tt) * 4, 4)
                e("v_mfma_f32_16x16x32_bf16 %s, %s, %s, %s" % (vr(QF + (u * 2 + tt) * 4, 4), ar((u * 8 + t) * 8 + 4 * b, 4), xf, cq))
        if kk + 2 < 16: rdx(kk + 2)
    A.nop(8)
    for tt in range(2):
        for u in range(2):
            a0 = QF + (u * 2 + tt) * 4
            e("v_cvt_pk_bf16_f32 v%d, v%d, v%d" % (OO + tt * 4 + 2 * u, a0, a0 + 1)); e("v_cvt_pk_bf16_f32 v%d, v%d, v%d" % (OO + tt * 4 + 2 * u + 1, a0 + 2, a0 + 3))
    e("s_lshl_b32 s28, s%d, 10" % S_WAVE); e("s_add_u32 s28, s28, %d" % XL_QB); e("v_add_u32 v2, s28, v%d" % V_L16)
    for tt in range(2):
        A.ds("ds_write_b128 v2, %s offset:%d" % (vr(OO + tt * 4, 4), tt * 4096), "qw")
    A.wait_lds_all(); e("s_barrier")
    e("s_lshl_b32 s28, s%d, 12" % S_QT); e("s_add_u32 s28, s28, %d" % XL_QB); e("v_add_u32 v2, s28, v%d" % V_L16)
    for kk in range(4):
        A.ds("ds_read_b128 %s, v2 offset:%d" % (vr(QF + 4 * kk, 4), kk * 1024), ("q", kk))
    e("s_waitcnt vmcnt(12)")
    l12 = A.newlab("L_x2w")
    e("s_cmp_lt_u32 s32, s%d" % S_NSEG); e("s_cbranch_scc1 %s" % l12); e("s_waitcnt vmcnt(4)"); lab(l12)
    for kk in range(4):
        A.wait_lds(("q", kk))
        for kt in range(2):
            cs = "0" if kk == 0 else vr(S + 4 * kt, 4)
            e("v_mfma_f32_16x16x32_bf16 %s, %s, %s, %s" % (vr(S + 4 * kt, 4), vr(KXF + (kt * 4 + kk) * 4, 4), vr(QF + 4 * kk, 4), cs))
    lw = A.newlab("L_x2km")
    e("s_cmp_lg_u32 s%d, 0" % S_WAVE); e("s_cbranch_scc1 %s_s" % lw)
    e("s_mov_b64 exec, 1"); e("v_mov_b32 v%d, 0" % T0); e("s_lshl_b32 s28, s%d, 2" % S_HEAD); e("s_add_u32 s28, s28, %d" % FL_KM); e("s_mov_b32 s29, 0")
    lab(lw)
    e("buffer_load_dword v%d, v%d, s[4:7], s28 offen sc0 sc1" % (T1, T0)); e("s_waitcnt vmcnt(0)"); e("v_readfirstlane_b32 s30, v%d" % T1)
    e("s_add_u32 s29, s29, 1"); e("s_cmp_gt_u32 s29, 0x80000"); e("s_cbranch_scc1 %s_d" % lw)
    e("s_cmp_gt_u32 s30, s%d" % S_SEG); e("s_cbranch_scc1 %s_d" % lw)
    e("s_add_u32 s30, s30, 2"); e("s_cmp_gt_u32 s30, s%d" % S_SEG); e("s_cbranch_scc1 %s_n" % lw)
    e("s_sleep %d" % OPT.get("slp", 8)); e("s_branch %s" % lw)
    lab(lw + "_n")
    e("s_sleep 2"); e("s_branch %s" % lw)
    lab(lw + "_d")
    e("s_mov_b64 exec, s[26:27]")
    lab(lw + "_s")
    e("s_waitcnt vmcnt(0)"); e("s_barrier")
    rtk(8, S_SEG, 63)
    e("s_lshl_b32 s28, s%d, 16" % S_SEG); e("s_lshl_b32 s29, s%d, 11" % S_HEAD); e("s_add_u32 s28, s28, s29")
    e("s_lshl_b32 s29, s%d, 9" % S_WAVE); e("s_add_u32 s29, s29, s28"); e("s_add_u32 s29, s29, %d" % WS_KM)
    e("v_lshrrev_b32 v%d, 2, v%d" % (T0, V_L16))
    for u in range(2):
        e("buffer_load_dword v%d, v%d, s[4:7], s29 offen offset:%d sc1" % (T2 + u, T0, u * 256))
    e("s_lshl_b32 s29, s%d, 10" % S_EH); e("s_add_u32 s29, s29, s28"); e("s_add_u32 s29, s29, %d" % WS_VM)
    for i in range(4):
        e("buffer_load_dword v%d, v%d, s[4:7], s29 offen offset:%d sc1" % (VMF + 2 * i, T0, i * 256))
        e("v_mov_b32 v%d, 0" % (VMF + 2 * i + 1))
    e("v_and_b32 v%d, 0xf0, v%d" % (T4, V_L16)); e("v_lshlrev_b32 v%d, 1, v%d" % (T4, T4)); e("v_lshrrev_b32 v%d, 8, v%d" % (T1, V_L16)); e("v_lshlrev_b32 v%d, 3, v%d" % (T1, T1))
    e("v_add_u32 v%d, v%d, v%d" % (T4, T4, T1)); e("s_lshl_b32 s29, s%d, 10" % S_WAVE); e("s_add_u32 s29, s29, %d" % XL_KMI); e("v_add_u32 v%d, s29, v%d" % (T4, T4))
    e("s_waitcnt vmcnt(0)")
    for u in range(2):
        e("ds_write_b32 v%d, v%d offset:%d" % (T4, T2 + u, u * 512))
    e("s_waitcnt lgkmcnt(0)"); e("s_barrier")
    rtk(9, S_SEG, 63)
    e("v_lshrrev_b32 v%d, 1, v%d" % (T0, V_L16))
    e("v_add_u32 v%d, %d, v%d" % (T0, XL_KMI, T0))
    for kk in range(4):
        for b in range(2):
            A.ds("ds_read_b64_tr_b16 %s, v%d offset:%d" % (vr(KMF + 4 * kk + 2 * b, 2), T0, kk * 1024 + b * 512), ("km", kk))
    for kk in range(4):
        A.wait_lds(("km", kk))
        e("v_mfma_f32_16x16x32_bf16 %s, %s, %s, %s" % (vr(S + 8, 4), vr(KMF + 4 * kk, 4), vr(QF + 4 * kk, 4), "0" if kk == 0 else vr(S + 8, 4)))
    e("v_mov_b32 v%d, 0xff800000" % T5)
    for kt in range(2):
        for r in range(4):
            e("v_cmp_gt_i32 vcc, %d, v%d" % (16 * kt + r, V_THR)); e("s_nop 1"); e("v_cndmask_b32 v%d, v%d, v%d, vcc" % (S + 4 * kt + r, S + 4 * kt + r, T5))
    A.nop(2)
    e("v_max3_f32 v%d, v%d, v%d, v%d" % (T0, S, S + 1, S + 2)); e("v_max3_f32 v%d, v%d, v%d, v%d" % (T1, S + 4, S + 5, S + 6))
    e("v_max3_f32 v%d, v%d, v%d, v%d" % (T0, T0, S + 3, S + 7)); e("v_max3_f32 v%d, v%d, v%d, v%d" % (T1, T1, S + 8, S + 9))
    e("v_max_f32 v%d, v%d, v%d" % (T0, T0, T1))
    e("v_mov_b32 v%d, v%d" % (T1, T0)); A.nop(2); e("v_permlane16_swap_b32 v%d, v%d" % (T0, T1)); e("v_max_f32 v%d, v%d, v%d" % (T0, T0, T1))
    e("v_mov_b32 v%d, v%d" % (T1, T0)); A.nop(2); e("v_permlane32_swap_b32 v%d, v%d" % (T0, T1)); e("v_max_f32 v%d, v%d, v%d" % (T0, T0, T1))
    e("v_mul_f32 v%d, s%d, v%d" % (T0, S_C, T0))
    for i in range(10): e("v_fma_f32 v%d, v%d, s%d, -v%d" % (S + i, S + i, S_C, T0))
    for i in range(10): e("v_exp_f32 v%d, v%d" % (S + i, S + i))
    e("s_nop 0")
    e("v_add_f32 v%d, v%d, v%d" % (T2, S, S + 1)); e("v_add_f32 v%d, v%d, v%d" % (T3, S + 2, S + 3))
    for i in range(4, 10, 2):
        e("v_add_f32 v%d, v%d, v%d" % (T2, T2, S + i)); e("v_add_f32 v%d, v%d, v%d" % (T3, T3, S + i + 1))
    e("v_add_f32 v%d, v%d, v%d" % (T2, T2, T3))
    for i in range(4): e("v_cvt_pk_bf16_f32 v%d, v%d, v%d" % (S + i, S + 2 * i, S + 2 * i + 1))
    e("v_cvt_pk_bf16_f32 v%d, v%d, v%d" % (S + 10, S + 8, S + 9)); e("v_mov_b32 v%d, 0" % (S + 11))
    e("v_mov_b32 v%d, v%d" % (T3, T2)); A.nop(2); e("v_permlane16_swap_b32 v%d, v%d" % (T2, T3)); e("v_add_f32 v%d, v%d, v%d" % (T2, T2, T3))
    e("v_mov_b32 v%d, v%d" % (T3, T2)); A.nop(2); e("v_permlane32_swap_b32 v%d, v%d" % (T2, T3)); e("v_add_f32 v%d, v%d, v%d" % (T2, T2, T3))
    e("v_rcp_f32 v%d, v%d" % (T2, T2))
    for i in range(4):
        e("v_mfma_f32_16x16x32_bf16 %s, %s, %s, 0" % (vr(OO + 4 * i, 4), vr(VXF + 4 * i, 4), vr(S, 4)))
    for i in range(4):
        e("v_mfma_f32_16x16x16_bf16 %s, %s, %s, %s" % (vr(OO + 4 * i, 4), vr(VMF + 2 * i, 2), vr(S + 10, 2), vr(OO + 4 * i, 4)))
    A.nop(8)
    for i in range(16): e("v_mul_f32 v%d, v%d, v%d" % (OO + i, OO + i, T2))
    for j in range(2):
        for tsub in range(2):
            a0 = OO + (2 * j + tsub) * 4
            e("v_cvt_pk_bf16_f32 v%d, v%d, v%d" % (QF + 4 * j + 2 * tsub, a0, a0 + 1)); e("v_cvt_pk_bf16_f32 v%d, v%d, v%d" % (QF + 4 * j + 2 * tsub + 1, a0 + 2, a0 + 3))
    e("s_lshl_b32 s28, s%d, 12" % S_QT); e("s_lshl_b32 s29, s%d, 11" % S_EH); e("s_add_u32 s28, s28, s29"); e("s_add_u32 s28, s28, %d" % XL_OB); e("v_add_u32 v2, s28, v%d" % V_L16)
    for j in range(2):
        A.ds("ds_write_b128 v2, %s offset:%d" % (vr(QF + 4 * j, 4), j * 1024), "ow")
    A.wait_lds_all(); e("s_barrier")
    rtk(10, S_SEG, 63)
    e("v_add_u32 v2, %d, v%d" % (XL_OB, V_L16))
    ACC, AF, PKR = 12, 44, 60
    e("s_add_u32 s33, s%d, s%d" % (S_XPB, S_PAR2))
    for qt in range(2):
        for kk in range(4):
            A.ds("ds_read_b128 %s, v2 offset:%d" % (vr(AF + 4 * kk, 4), qt * 4096 + kk * 1024), ("o", kk))
        for kk in range(4):
            A.wait_lds(("o", kk))
            t, b = kk >> 1, kk & 1
            for nt in range(8):
                e("v_mfma_f32_16x16x32_bf16 %s, %s, %s, %s" % (vr(ACC + 4 * nt, 4), vr(AF + 4 * kk, 4), vr(V_WO + (nt * 2 + t) * 8 + 4 * b, 4), "0" if kk == 0 else vr(ACC + 4 * nt, 4)))
        A.nop(8)
        for p in range(4):
            for tsub in range(2):
                a0 = ACC + 4 * (2 * p + tsub)
                e("v_cvt_pk_bf16_f32 v%d, v%d, v%d" % (PKR + 4 * p + 2 * tsub, a0, a0 + 1)); e("v_cvt_pk_bf16_f32 v%d, v%d, v%d" % (PKR + 4 * p + 2 * tsub + 1, a0 + 2, a0 + 3))
            e("s_lshl_b32 s28, s%d, 17" % S_WAVE); e("s_add_u32 s28, s28, s33"); e("s_add_u32 s28, s28, %d" % ((qt * 16 + p) * 4 * 8192))
            e("buffer_store_dwordx4 %s, v%d, s[4:7], s28 offen" % (vr(PKR + 4 * p, 4), V_XPS))
        A.nop(2)
    e("s_waitcnt vmcnt(0)"); e("s_barrier")
    rtk(11, S_SEG, 63)
    lf = A.newlab("L_x2f")
    e("s_cmp_lg_u32 s%d, 0" % S_WAVE); e("s_cbranch_scc1 %s" % lf)
    e("s_add_u32 s28, s%d, 1" % S_K); e("v_mov_b32 v%d, s28" % T0); e("v_mov_b32 v%d, 0" % T1)
    e("s_lshl_b32 s28, s%d, 7" % S_TEAM); e("s_lshl_b32 s29, s%d, 2" % S_HEAD); e("s_add_u32 s28, s28, s29"); e("s_add_u32 s28, s28, %d" % FL_XP)
    e("s_mov_b64 exec, 1"); e("buffer_store_dword v%d, v%d, s[4:7], s28 offen" % (T0, T1)); e("s_mov_b64 exec, s[26:27]")
    lab(lf)
    lw = A.newlab("L_x2r")
    e("v_lshrrev_b32 v%d, 2, v%d" % (T0, V_L16)); e("v_and_b32 v%d, 127, v%d" % (T0, T0))
    e("s_lshl_b32 s28, s%d, 7" % S_TEAM); e("s_add_u32 s28, s28, %d" % FL_XP); e("s_mov_b32 s29, 0")
    e("v_add_u32 v%d, %d, v%d" % (T3, XL_SEL, V_L16)); e("ds_read_b128 v[44:47], v%d" % T3)
    lab(lw)
    e("buffer_load_dword v%d, v%d, s[4:7], s28 offen sc1" % (T1, T0)); e("s_waitcnt vmcnt(0)")
    e("v_cmp_ge_u32 vcc, s%d, v%d" % (S_K, T1))
    e("s_add_u32 s29, s29, 1"); e("s_cmp_gt_u32 s29, 0x80000"); e("s_cbranch_scc1 %s_d" % lw)
    e("s_cbranch_vccnz %s" % lw)
    lab(lw + "_d")
    rtk(12, S_SEG, 63)
    e("s_lshl_b32 s28, s%d, 2" % S_HEAD); e("s_add_u32 s28, s28, s%d" % S_WAVE); e("s_lshl_b32 s28, s28, 13"); e("s_add_u32 s28, s28, s33"); e("s_add_u32 s29, s28, 4096")
    for x in range(8):
        e("buffer_load_dwordx4 %s, v%d, s[4:7], s%d offen offset:%d sc1" % (vr(12 + 4 * x, 4), V_L16, 28 if x < 4 else 29, (x & 3) * 1024))
    e("s_waitcnt lgkmcnt(0)")
    for x in range(8):
        e("s_waitcnt vmcnt(%d)" % (7 - x))
        e("v_mfma_f32_16x16x32_bf16 v[48:51], %s, v[44:47], %s" % (vr(12 + 4 * x, 4), "0" if x == 0 else "v[48:51]"))
    e("v_lshrrev_b32 v%d, 8, v%d" % (T0, V_L16)); e("v_lshlrev_b32 v%d, 2, v%d" % (T0, T0))
    e("v_bfe_u32 v%d, v%d, 4, 2" % (T1, V_L16)); e("v_add_u32 v%d, v%d, v%d" % (T0, T0, T1)); e("v_lshlrev_b32 v%d, 11, v%d" % (T0, T0))
    e("v_bfe_u32 v%d, v%d, 6, 1" % (T1, V_L16)); e("v_lshlrev_b32 v%d, 3, v%d" % (T1, T1)); e("v_add_u32 v%d, v%d, v%d" % (T0, T0, T1))
    e("s_lshr_b32 s28, s%d, 4" % S_HEAD); e("s_lshl_b32 s28, s28, 4"); e("s_lshl_b32 s29, s%d, 5" % S_SEG); e("s_add_u32 s28, s28, s29"); e("s_lshl_b32 s28, s28, 11")
    e("s_bfe_u32 s29, s%d, 0x20002" % S_HEAD); e("s_lshl_b32 s29, s29, 8"); e("s_add_u32 s28, s28, s29")
    e("s_bfe_u32 s29, s%d, 0x10001" % S_HEAD); e("s_lshl_b32 s29, s29, 7"); e("s_add_u32 s28, s28, s29")
    e("s_and_b32 s29, s%d, 1" % S_HEAD); e("s_lshl_b32 s29, s29, 4"); e("s_add_u32 s28, s28, s29")
    e("s_lshl_b32 s29, s%d, 5" % S_WAVE); e("s_add_u32 s28, s28, s29"); e("s_add_u32 s28, s28, 1024")
    A.nop(4)
    e("v_cvt_pk_bf16_f32 v48, v48, v49"); e("v_cvt_pk_bf16_f32 v49, v50, v51")
    e("v_and_b32 v%d, 128, v%d" % (T1, V_L16)); e("v_cmp_eq_u32 vcc, 0, v%d" % T1)
    e("s_nop 1")
    e("s_mov_b64 exec, vcc")
    e("buffer_store_dwordx2 v[48:49], v%d, s[16:19], s28 offen" % T0)
    e("s_mov_b64 exec, s[26:27]")
    e("s_add_u32 s%d, s%d, 7" % (S_SEG, S_SEG)); e("s_xor_b32 s%d, s%d, 32768" % (S_XB, S_XB)); e("s_xor_b32 s%d, s%d, 0x100000" % (S_PAR2, S_PAR2))
    e("s_add_u32 s%d, s%d, 1" % (S_K, S_K))
    e("s_cmp_lt_u32 s%d, s%d" % (S_K, S_NSEG)); e("s_cbranch_scc1 L_x2")
    e("s_waitcnt vmcnt(0)")
    rt(7)
    e("s_branch L_end")

def xteam():
    L = VLANE
    lab("L_xteam")
    e("v_lshlrev_b32 v%d, 4, v%d" % (V_L16, L))
    e("s_load_dwordx2 s[30:31], s[0:1], %d" % KA["x"])
    e("v_lshrrev_b32 v1, 2, v%d" % L); e("v_lshrrev_b32 v2, 4, v%d" % L); e("v_xor_b32 v2, v2, v%d" % L); e("v_and_b32 v2, 3, v2"); e("v_lshlrev_b32 v2, 4, v2")
    e("v_lshlrev_b32 v1, 10, v1"); e("v_add_u32 v1, v1, v2")
    e("v_and_b32 v5, 15, v%d" % L); e("v_lshrrev_b32 v2, 2, v5"); e("v_lshrrev_b32 v34, 4, v%d" % L); e("v_xor_b32 v2, v2, v34"); e("v_and_b32 v2, 3, v2")
    e("v_lshlrev_b32 v5, 2, v5"); e("v_add_u32 v5, v5, v2"); e("v_lshlrev_b32 v5, 4, v5")
    e("s_waitcnt lgkmcnt(0)")
    srd(S_X, 30, 0x200000)
    if OPT["stage"] >= 3:
        lx = A.newlab("L_xi")
        e("s_cmp_lg_u32 s%d, 1" % S_WAVE); e("s_cbranch_scc1 %s" % lx)
        e("s_mov_b64 exec, 1")
        e("v_mov_b32 v32, 0"); e("s_lshl_b32 s28, s%d, 7" % S_TEAM); e("s_lshl_b32 s29, s%d, 2" % S_HEAD); e("s_add_u32 s28, s28, s29"); e("s_add_u32 s28, s28, %d" % FL_XP)
        e("buffer_store_dword v32, v32, s[4:7], s28 offen"); e("s_waitcnt vmcnt(0)")
        e("s_and_b32 s28, s%d, 3" % S_TEAM); e("s_lshl_b32 s28, s28, 6"); e("s_lshr_b32 s29, s%d, 2" % S_TEAM); e("s_lshl_b32 s29, s29, 2"); e("s_add_u32 s28, s28, s29"); e("s_add_u32 s28, s28, 16")
        e("v_mov_b32 v32, s28"); e("v_mov_b32 v33, 1")
        e("global_atomic_add v32, v33, s[24:25] sc1")
        e("s_mov_b64 exec, s[26:27]")
        lab(lx)
    if OPT.get("warm", 1):
        e("s_sub_u32 s28, s%d, 1" % S_TEAM); e("s_lshl_b32 s28, s28, 5"); e("s_add_u32 s28, s28, s%d" % S_HEAD); e("s_lshl_b32 s28, s28, 2"); e("s_add_u32 s28, s28, s%d" % S_WAVE)
        e("s_mul_i32 s28, s28, 5120")
        for which, base in ((0, 100), (3, 104)):
            p = S_PW + 2 * which
            e("s_mov_b32 s8, s%d" % p); e("s_mov_b32 s9, s%d" % (p + 1)); e("s_mov_b32 s10, 0x400000"); e("s_mov_b32 s11, 0x20000")
            for i in range(5):
                e("s_add_u32 s29, s28, %d" % (i * 1024))
                e("buffer_load_dwordx4 %s, v%d, s[8:11], s29 offen" % (vr(base, 4), V_L16))
    e("s_mov_b32 s%d, s%d" % (S_RANK, S_HEAD))
    e("s_sub_u32 s28, s%d, 1" % S_TEAM); e("s_lshl_b32 s28, s28, 5"); e("s_add_u32 s28, s28, s%d" % S_HEAD)
    e("s_mul_i32 s29, s28, 9363"); e("s_lshr_b32 s%d, s29, 16" % S_HEAD); e("s_mul_i32 s29, s%d, 7" % S_HEAD); e("s_sub_u32 s%d, s28, s29" % S_SUB)
    e("s_lshl_b32 s%d, s%d, 13" % (S_H13, S_HEAD)); e("s_lshl_b32 s%d, s%d, 8" % (S_H8, S_HEAD))
    e("s_cmp_eq_u32 s%d, 0" % S_SUB); e("s_cselect_b32 s%d, 10, 9" % S_NSEG)
    load_setup(32768)
    uk = units_qkv(1, "a", 128); uv = units_qkv(2, "v", 128)
    for u in uk + uv: u["perm"] = False
    rt(2)
    load_units(uk + uv, 8)
    e("s_barrier")
    rt(3)
    def xt_dma(seg_sgpr, buf_sgpr):
        e("s_lshr_b32 s28, s%d, 1" % S_WAVE); e("s_lshl_b32 s29, s%d, 15" % seg_sgpr); e("s_lshl_b32 s30, s28, 14"); e("s_add_u32 s29, s29, s30")
        e("s_and_b32 s30, s%d, 1" % S_WAVE); e("s_lshl_b32 s31, s30, 9"); e("s_add_u32 s29, s29, s31")
        e("s_lshl_b32 s31, s%d, 13" % S_WAVE); e("s_add_u32 s31, s31, s%d" % buf_sgpr)
        for i in range(8):
            e("s_add_u32 m0, s31, %d" % (i * 1024)); e("s_add_u32 s30, s29, %d" % (i * 64))
            e("buffer_load_dwordx4 v1, s[12:15], s30 offen lds")
    e("s_mov_b32 s%d, s%d" % (S_SEG, S_SUB)); e("s_mov_b32 s%d, 0" % S_K); e("s_mov_b32 s%d, 0" % S_XB)
    xt_dma(S_SEG, S_XB)
    if OPT["stage"] >= 2:
        wait_dbg_counter(24, 32, "L_x1_init")
    AK, AV, XF, PK = 40, 56, 72, 88
    lab("L_x1")
    e("s_waitcnt vmcnt(4)")
    l0 = A.newlab("L_x1a")
    e("s_cmp_lg_u32 s%d, 0" % S_K); e("s_cbranch_scc1 %s" % l0); e("s_waitcnt vmcnt(0)"); lab(l0)
    e("s_barrier")
    lf = A.newlab("L_x1f")
    e("s_cmp_lt_u32 s%d, 2" % S_K); e("s_cbranch_scc1 %s" % lf)
    e("s_cmp_lg_u32 s%d, 0" % S_WAVE); e("s_cbranch_scc1 %s" % lf)
    e("s_sub_u32 s28, s%d, 1" % S_K); e("v_mov_b32 v32, s28"); e("v_mov_b32 v33, 0")
    e("s_lshl_b32 s28, s%d, 7" % S_SUB); e("s_lshl_b32 s29, s%d, 2" % S_HEAD); e("s_add_u32 s28, s28, s29"); e("s_add_u32 s28, s28, %d" % (FL_KV + 128))
    e("s_mov_b64 exec, 1"); e("buffer_store_dword v32, v33, s[4:7], s28 offen sc0 sc1"); e("s_mov_b64 exec, s[26:27]")
    lab(lf)
    ln = A.newlab("L_x1n")
    e("s_add_u32 s32, s%d, 1" % S_K); e("s_cmp_ge_u32 s32, s%d" % S_NSEG); e("s_cbranch_scc1 %s" % ln)
    e("s_add_u32 s33, s%d, 7" % S_SEG); e("s_xor_b32 s36, s%d, 32768" % S_XB)
    xt_dma(33, 36)
    lab(ln)
    e("v_add_u32 v2, s%d, v5" % S_XB)
    A.lds = []
    def rdx(kk):
        for tt in range(2):
            A.ds("ds_read_b128 %s, v2 offset:%d" % (vr(XF + (kk % 2) * 8 + tt * 4, 4), (tt * 16 + kk) * 1024), ("x", kk))
    rdx(0); rdx(1)
    for kk in range(16):
        A.wait_lds(("x", kk))
        t, b = kk >> 1, kk & 1
        for u in range(2):
            for tt in range(2):
                xf = vr(XF + (kk % 2) * 8 + tt * 4, 4)
                ck = "0" if kk == 0 else vr(AK + (u * 2 + tt) * 4, 4)
                cv = "0" if kk == 0 else vr(AV + (u * 2 + tt) * 4, 4)
                e("v_mfma_f32_16x16x32_bf16 %s, %s, %s, %s" % (vr(AK + (u * 2 + tt) * 4, 4), ar(128 + (u * 8 + t) * 8 + 4 * b, 4), xf, ck))
                e("v_mfma_f32_16x16x32_bf16 %s, %s, %s, %s" % (vr(AV + (u * 2 + tt) * 4, 4), xf, vr(128 + (u * 8 + t) * 8 + 4 * b, 4), cv))
        if kk + 2 < 16: rdx(kk + 2)
    A.nop(8)
    for tt in range(2):
        for u in range(2):
            a0 = AK + (u * 2 + tt) * 4
            e("v_cvt_pk_bf16_f32 v%d, v%d, v%d" % (PK + tt * 4 + 2 * u, a0, a0 + 1)); e("v_cvt_pk_bf16_f32 v%d, v%d, v%d" % (PK + tt * 4 + 2 * u + 1, a0 + 2, a0 + 3))
    for u in range(2):
        for tt in range(2):
            a0 = AV + (u * 2 + tt) * 4
            e("v_cvt_pk_bf16_f32 v%d, v%d, v%d" % (PK + 8 + u * 4 + 2 * tt, a0, a0 + 1)); e("v_cvt_pk_bf16_f32 v%d, v%d, v%d" % (PK + 8 + u * 4 + 2 * tt + 1, a0 + 2, a0 + 3))
    e("s_lshl_b32 s28, s%d, 18" % S_SEG); e("s_add_u32 s28, s28, s%d" % S_H13)
    e("s_lshl_b32 s29, s%d, 10" % S_WAVE); e("s_add_u32 s29, s29, s28"); e("s_add_u32 s30, s29, %d" % (WS_KX + 4096)); e("s_add_u32 s29, s29, %d" % WS_KX)
    e("buffer_store_dwordx4 %s, v%d, s[4:7], s29 offen sc0 sc1" % (vr(PK, 4), V_L16))
    e("buffer_store_dwordx4 %s, v%d, s[4:7], s30 offen sc0 sc1" % (vr(PK + 4, 4), V_L16))
    e("s_lshl_b32 s29, s%d, 11" % S_WAVE); e("s_add_u32 s29, s29, s28"); e("s_add_u32 s29, s29, %d" % WS_VX)
    e("buffer_store_dwordx4 %s, v%d, s[4:7], s29 offen sc0 sc1" % (vr(PK + 8, 4), V_L16))
    e("buffer_store_dwordx4 %s, v%d, s[4:7], s29 offen offset:1024 sc0 sc1" % (vr(PK + 12, 4), V_L16))
    lf0 = A.newlab("L_x1f0")
    e("s_cmp_lg_u32 s%d, 0" % S_K); e("s_cbranch_scc1 %s" % lf0)
    e("s_waitcnt vmcnt(0)"); e("s_barrier")
    e("s_cmp_lg_u32 s%d, 0" % S_WAVE); e("s_cbranch_scc1 %s" % lf0)
    e("v_mov_b32 v32, 1"); e("v_mov_b32 v33, 0")
    e("s_lshl_b32 s28, s%d, 7" % S_SUB); e("s_lshl_b32 s29, s%d, 2" % S_HEAD); e("s_add_u32 s28, s28, s29"); e("s_add_u32 s28, s28, %d" % (FL_KV + 128))
    e("s_mov_b64 exec, 1"); e("buffer_store_dword v32, v33, s[4:7], s28 offen sc0 sc1"); e("s_mov_b64 exec, s[26:27]")
    lab(lf0)
    e("s_add_u32 s%d, s%d, 7" % (S_SEG, S_SEG)); e("s_xor_b32 s%d, s%d, 32768" % (S_XB, S_XB)); e("s_add_u32 s%d, s%d, 1" % (S_K, S_K))
    e("s_cmp_lt_u32 s%d, s%d" % (S_K, S_NSEG)); e("s_cbranch_scc1 L_x1")
    e("s_waitcnt vmcnt(0)"); e("s_barrier")
    rt(4)
    lf = A.newlab("L_x1g")
    e("s_cmp_lg_u32 s%d, 0" % S_WAVE); e("s_cbranch_scc1 %s" % lf)
    e("v_mov_b32 v32, s%d" % S_NSEG); e("v_mov_b32 v33, 0")
    e("s_lshl_b32 s28, s%d, 7" % S_SUB); e("s_lshl_b32 s29, s%d, 2" % S_HEAD); e("s_add_u32 s28, s28, s29"); e("s_add_u32 s28, s28, %d" % (FL_KV + 128))
    e("s_mov_b64 exec, 1"); e("buffer_store_dword v32, v33, s[4:7], s28 offen sc0 sc1"); e("s_mov_b64 exec, s[26:27]")
    lab(lf)
    e("s_waitcnt vmcnt(0)")
    if OPT["stage"] < 3:
        e("s_branch L_end"); return
    xphase2()

hdr = []
if OPT["final"]:
    hdr.append("; Fused kernel: branch A (short conv + long causal conv as Toeplitz MFMA) and branch B (memory-recurrent attention).")
    hdr.append("; One persistent workgroup per CU. Workgroups form teams by the XCD they actually run on (HW_REG_XCC_ID):")
hdr.append("; @launch grid=(256,1,1) block=(256,1,1) lds=%d" % LDS_TOTAL)
hdr.append('.amdgcn_target "amdgcn-amd-amdhsa--gfx950"')
hdr.append(".text\n.globl %s\n.p2align 8\n.type %s,@function\n%s:" % (KNAME, KNAME, KNAME))
prologue()
e("s_cmp_eq_u32 s%d, 0" % S_TEAM); e("s_cbranch_scc1 L_chain")
if OPT["stage"] >= 2: e("s_branch L_xteam")
else: e("s_branch L_end")
chain()
if OPT["stage"] >= 2: xteam()
lab("L_end")
e("s_endpgm")
tail = '''.section .rodata,"a"
.p2align 6
.amdhsa_kernel %s
  .amdhsa_next_free_vgpr 512
  .amdhsa_next_free_sgpr 102
  .amdhsa_accum_offset 256
  .amdhsa_group_segment_fixed_size 0
  .amdhsa_kernarg_size 128
  .amdhsa_user_sgpr_count 2
  .amdhsa_user_sgpr_kernarg_segment_ptr 1
  .amdhsa_system_sgpr_workgroup_id_x 1
.end_amdhsa_kernel
''' % KNAME
open(OUTP, "w").write("\n".join(hdr) + "\n" + A.text() + tail)
print("wrote", OUTP, len(A.L), "lines")
```

```python
import sys, os, struct, math
sys.path.insert(0, os.path.dirname(os.path.abspath(__file__)))
from asmlib import *

KNAME = "concat_heads__ssm_conv_h3__memory_aug_recurrent_mem_tr__prompt_kernel"
OPT = dict(final=0, nowait=0, stage=1, hist=0, stamps=0, nsteps=64, dly_red=0, dly_mem=0, slp=32)
for a in sys.argv[1:]:
    if "=" in a:
        k, v = a.split("="); OPT[k] = int(v) if v.lstrip("-").isdigit() else v
OUTP = OPT.get("out", "chain.s")

KA = dict(q=0, k=8, v=16, shift=24, ssmk=32, ssmd=40, x=48, mem0=56, wq=64, wk=72, wv=80, wo=88, seg=96, out=104, dbg=112, ws=120)
WS_KX = 0x0000000
WS_VX = 0x1000000
WS_KM = 0x2000000
WS_VM = 0x3000000
WS_PB = 0x2C00000
WS_MB = 0x2CC0000
WS_FL = 0x2CD0000
WS_HIST = 0x2D00000
WS_STAMP = 0x2E00000
WS_XP = 0x4000000
FL_KV, FL_KM, FL_XP = WS_FL, WS_FL + 1024, WS_FL + 2048
WVSTRIDE = 28672
L_KX, L_VX, L_MEM, L_X, L_O, L_SEL, L_DUM = 114688, 131072, 147456, 155648, 159744, 161792, 162816
LDS_TOTAL = 163840
S_WS = 4
S_W = 8
S_XCC, S_WAVE, S_HEAD, S_TEAM = 20, 21, 22, 23
S_DBG = 24
S_ALL = 26
S_STEP, S_MCUR, S_MNXT, S_PCUR, S_RED, S_MQ, S_KXO, S_VXO = 40, 41, 42, 43, 44, 45, 46, 47
S_DMA = 39
S_LO8 = 48
S_LO32 = 50
S_C, S_SPIN, S_FIRST, S_PAR = 52, 53, 54, 55
S_PW = 56
S_ST = 64
S_MPREV, S_H13, S_H8, S_PPREV = 96, 97, 98, 99
S_RDY = 100
S_TAG = 99
V_L16, V_XWR, V_OWR, V_PS0, V_IDX, V_WVA = 0, 1, 2, 3, 4, 5
VT = 6
V_KX = 12
V_LD = 12
V_S = 28
V_MEM = 40
V_QK = 72
V_VA = 88
V_WVR = 96
V_WV0 = 112
V_WO = 128
VLANE = 30
VS = 32

A = Asm()
PSTF = str(OPT.get('pst', '')).replace('_', ' ')
PUBF = str(OPT.get('pub', '')).replace('_', ' ')
e, c, lab = A.e, A.c, A.lab
def v(i): return "v%d" % i

def srd(base_s, ptr_s, size):
    e("s_mov_b32 s%d, s%d" % (base_s, ptr_s)); e("s_mov_b32 s%d, s%d" % (base_s + 1, ptr_s + 1))
    e("s_mov_b32 s%d, 0x%x" % (base_s + 2, size)); e("s_mov_b32 s%d, 0x20000" % (base_s + 3))

TS = [int(x) for x in str(OPT.get("ts", "")).split(",") if x != ""]
def ts(i):
    if i in TS:
        k = TS.index(i)
        e("%s s[%d:%d]" % ("s_memrealtime" if OPT.get("rts", 0) else "s_memtime", 64 + 2 * k, 65 + 2 * k))
def stamp(i, lvl=1):
    ts(i)
    if OPT["stamps"] < lvl: return
    if OPT["stamps"] == 2 and lvl == 1: pass
    e("s_memtime s[82:83]"); e("s_waitcnt lgkmcnt(0)"); A.lds = []
    e("s_sub_u32 s81, s82, s80"); e("s_add_u32 s%d, s%d, s81" % (S_ST + i, S_ST + i)); e("s_mov_b32 s80, s82")

def bar_off(t): return (t & 3) * 64 + 16 + (t >> 2) * 4
WS_TRACE = 0x2F00000
def rtk(i, kreg, kval):
    if not OPT.get("trace", 0): return
    l = A.newlab("L_rtk")
    e("s_cmp_lg_u32 s%d, %d" % (kreg, kval)); e("s_cbranch_scc1 %s" % l)
    rt(i)
    lab(l)
def rt(i):
    if not OPT.get("trace", 0): return
    l = A.newlab("L_rt")
    e("s_cmp_lg_u32 s%d, 0" % S_WAVE); e("s_cbranch_scc1 %s" % l)
    e("s_memrealtime s[90:91]"); e("s_waitcnt lgkmcnt(0)")
    e("s_add_u32 s28, s93, %d" % (WS_TRACE + 4 * i))
    e("s_mov_b64 exec, 1"); e("v_mov_b32 v10, s90"); e("v_mov_b32 v11, 0"); e("buffer_store_dword v10, v11, s[4:7], s28 offen"); e("s_mov_b64 exec, s[26:27]")
    lab(l)
def prologue():
    e("s_cmp_ge_u32 s2, 256"); e("s_cbranch_scc1 L_end")
    if OPT.get("trace", 0): e("s_memrealtime s[94:95]")
    e("s_load_dwordx2 s[24:25], s[0:1], %d" % KA["dbg"])
    e("s_load_dwordx2 s[28:29], s[0:1], %d" % KA["ws"])
    e("s_load_dwordx4 s[56:59], s[0:1], %d" % KA["wq"])
    e("s_load_dwordx4 s[60:63], s[0:1], %d" % KA["wv"])
    e("s_getreg_b32 s%d, hwreg(HW_REG_XCC_ID)" % S_XCC)
    e("s_and_b32 s%d, s%d, 15" % (S_XCC, S_XCC))
    e("v_lshrrev_b32 v1, 6, v0"); e("s_nop 0"); e("v_readfirstlane_b32 s%d, v1" % S_WAVE)
    e("v_and_b32 v%d, 63, v0" % VLANE)
    e("s_mov_b64 s[26:27], exec")
    e("s_waitcnt lgkmcnt(0)")
    srd(S_WS, 28, 0x10000000)
    e("s_cmp_lg_u32 s%d, 0" % S_WAVE); e("s_cbranch_scc1 L_roles_wait")
    e("s_mov_b64 exec, 1")
    e("s_and_b32 s28, s%d, 3" % S_XCC); e("s_lshl_b32 s28, s28, 6"); e("s_lshr_b32 s29, s%d, 2" % S_XCC); e("s_lshl_b32 s29, s29, 2"); e("s_add_u32 s28, s28, s29")
    e("v_mov_b32 v3, s28"); e("v_mov_b32 v4, 1")
    e("global_atomic_add v5, v3, v4, s[24:25] sc0 sc1"); e("s_waitcnt vmcnt(0)")
    e("v_mov_b32 v3, %d" % L_DUM)
    e("ds_write_b32 v3, v5"); e("s_waitcnt lgkmcnt(0)")
    e("s_mov_b64 exec, s[26:27]")
    lab("L_roles_wait")
    e("s_barrier")
    e("v_mov_b32 v3, %d" % L_DUM); e("ds_read_b32 v4, v3"); e("s_waitcnt lgkmcnt(0)")
    e("v_readfirstlane_b32 s%d, v4" % S_HEAD); e("s_mov_b32 s%d, s%d" % (S_TEAM, S_XCC))
    e("s_barrier")
    e("s_cmp_ge_u32 s%d, 32" % S_HEAD); e("s_cbranch_scc1 L_end")
    e("s_cmp_ge_u32 s%d, 8" % S_TEAM); e("s_cbranch_scc1 L_end")
    e("s_lshl_b32 s%d, s%d, 13" % (S_H13, S_HEAD)); e("s_lshl_b32 s%d, s%d, 8" % (S_H8, S_HEAD))
    if OPT.get("trace", 0):
        l = A.newlab("L_rt")
        e("s_lshl_b32 s93, s%d, 5" % S_TEAM); e("s_add_u32 s93, s93, s%d" % S_HEAD); e("s_lshl_b32 s93, s93, 6")
        e("s_cmp_lg_u32 s%d, 0" % S_WAVE); e("s_cbranch_scc1 %s" % l)
        e("s_add_u32 s28, s93, %d" % WS_TRACE)
        e("s_mov_b64 exec, 1"); e("v_mov_b32 v10, s94"); e("v_mov_b32 v11, 0"); e("buffer_store_dword v10, v11, s[4:7], s28 offen"); e("s_mov_b64 exec, s[26:27]")
        lab(l)
    rt(1)

LW_VQ, LW_VO, LW_A0, LW_A1, LW_AO = 40, 41, 43, 44, 45
LW_WB = 53
LW_TMP = 72
def load_setup(wave_stride):
    L = VLANE; a, b_, c_, d_, f_ = VS, VS + 1, VS + 2, VS + 3, VS + 4
    e("s_mul_i32 s34, s%d, %d" % (S_WAVE, wave_stride))
    e("s_lshl_b32 s36, s%d, 20" % S_WAVE)
    e("v_lshrrev_b32 v%d, 2, v%d" % (a, L)); e("v_lshlrev_b32 v%d, 13, v%d" % (b_, a))
    e("v_lshrrev_b32 v%d, 5, v%d" % (c_, L)); e("v_lshlrev_b32 v%d, 1, v%d" % (c_, c_))
    e("v_and_b32 v%d, 3, v%d" % (d_, L)); e("v_xor_b32 v%d, v%d, v%d" % (d_, d_, c_)); e("v_lshlrev_b32 v%d, 4, v%d" % (d_, d_))
    e("v_add_u32 v%d, v%d, v%d" % (b_, b_, d_))
    e("s_lshl_b32 s29, s%d, 6" % S_WAVE); e("s_add_u32 s28, s%d, s29" % S_H8)
    e("v_add_u32 v%d, s28, v%d" % (LW_VQ, b_))
    e("v_lshrrev_b32 v%d, 4, v%d" % (a, L)); e("v_lshlrev_b32 v%d, 10, v%d" % (b_, a))
    e("s_lshl_b32 s28, s%d, 8" % S_WAVE); e("v_add_u32 v%d, s28, v%d" % (b_, b_))
    e("v_and_b32 v%d, 1, v%d" % (c_, a)); e("v_lshrrev_b32 v%d, 1, v%d" % (f_, a)); e("v_lshlrev_b32 v%d, 3, v%d" % (f_, f_)); e("v_add_u32 v%d, v%d, v%d" % (c_, c_, f_))
    e("v_and_b32 v%d, 15, v%d" % (d_, L)); e("v_xor_b32 v%d, v%d, v%d" % (d_, d_, c_)); e("v_lshlrev_b32 v%d, 4, v%d" % (d_, d_))
    e("v_add_u32 v%d, v%d, v%d" % (LW_VO, b_, d_))
    e("v_lshrrev_b32 v%d, 5, v%d" % (a, L)); e("v_lshlrev_b32 v%d, 10, v%d" % (a, a))
    e("v_bfe_u32 v%d, v%d, 4, 1" % (b_, L)); e("v_lshlrev_b32 v%d, 9, v%d" % (c_, b_)); e("v_add_u32 v%d, v%d, v%d" % (a, a, c_))
    e("v_bfe_u32 v%d, v%d, 2, 2" % (c_, L)); e("v_lshlrev_b32 v%d, 6, v%d" % (c_, c_)); e("v_add_u32 v%d, v%d, v%d" % (a, a, c_))
    e("v_and_b32 v%d, 3, v%d" % (c_, L)); e("v_lshlrev_b32 v%d, 3, v%d" % (c_, c_)); e("v_add_u32 v%d, v%d, v%d" % (a, a, c_))
    e("v_add_u32 v%d, s34, v%d" % (a, a))
    e("v_lshlrev_b32 v%d, 5, v%d" % (c_, b_)); e("v_add_u32 v%d, v%d, v%d" % (LW_A0, a, c_))
    e("v_xor_b32 v%d, 32, v%d" % (c_, c_)); e("v_add_u32 v%d, v%d, v%d" % (LW_A1, a, c_))
    e("v_lshrrev_b32 v%d, 4, v%d" % (a, L)); e("v_lshlrev_b32 v%d, 10, v%d" % (a, a))
    e("v_bfe_u32 v%d, v%d, 2, 2" % (c_, L)); e("v_lshlrev_b32 v%d, 8, v%d" % (d_, c_)); e("v_add_u32 v%d, v%d, v%d" % (a, a, d_))
    e("v_and_b32 v%d, 3, v%d" % (d_, L)); e("v_lshlrev_b32 v%d, 5, v%d" % (d_, d_)); e("v_add_u32 v%d, v%d, v%d" % (a, a, d_))
    e("v_add_u32 v%d, s34, v%d" % (a, a))
    e("v_bfe_u32 v%d, v%d, 3, 1" % (b_, L)); e("v_lshlrev_b32 v%d, 7, v%d" % (b_, b_))
    e("v_bfe_u32 v%d, v%d, 2, 1" % (c_, L)); e("v_lshlrev_b32 v%d, 4, v%d" % (c_, c_))
    for G in range(2):
        for Th in range(2):
            e("v_xor_b32 v%d, %d, v%d" % (d_, G * 128, b_)); e("v_xor_b32 v%d, %d, v%d" % (f_, Th * 16, c_))
            e("v_add_u32 v%d, v%d, v%d" % (d_, d_, f_)); e("v_add_u32 v%d, v%d, v%d" % (LW_AO + 2 * G + Th, a, d_))
    e("v_lshlrev_b32 v%d, 4, v%d" % (a, L)); e("v_add_u32 v%d, s34, v%d" % (LW_WB, a))

def reg(kind, n, cnt):
    return ar(n, cnt) if kind == "a" else vr(n, cnt)

def load_units(units, NS, hooks={}):
    cur_srd = [None]
    def set_srd(which):
        if cur_srd[0] == which: return
        cur_srd[0] = which
        p = S_PW + 2 * which
        e("s_mov_b32 s8, s%d" % p); e("s_mov_b32 s9, s%d" % (p + 1)); e("s_mov_b32 s10, 0x400000"); e("s_mov_b32 s11, 0x20000")
    def issue(n):
        u = units[n]; slot = n % NS
        set_srd(u["m"])
        for i in range(4):
            e("s_add_u32 m0, s34, %d" % (slot * 4096 + i * 1024))
            if u["kind"] == "qkv":
                if u.get("perm", True):
                    e("s_xor_b32 s28, s36, %d" % (u["t"] << 19)); e("s_add_u32 s28, s28, %d" % (i * 131072))
                else:
                    e("s_mov_b32 s28, %d" % ((64 * u["t"] + 16 * i) * 8192))
                A.vmem("buffer_load_dwordx4 v%d, s[8:11], s28 offen lds" % LW_VQ, ("w", n))
            else:
                qd = 2 * u["b"] + u["hb"]
                e("s_add_u32 s28, s35, %d" % ((64 * u["t"] + 16 * qd + 4 * i) * 1024))
                A.vmem("buffer_load_dwordx4 v%d, s[8:11], s28 offen lds" % LW_VO, ("w", n))
    e("s_lshl_b32 s35, s%d, 17" % S_HEAD)
    for n in range(min(NS, len(units))): issue(n)
    if "start" in hooks: hooks["start"]()
    for n, u in enumerate(units):
        slot = n % NS
        A.wait_vm(("w", n))
        if u["kind"] == "qkv":
            for uu in range(2):
                for b in range(2):
                    for hb in range(2):
                        if u["dest"] == "lds": d = vr(LW_TMP + uu * 8 + 4 * b + 2 * hb, 2)
                        elif u["dest"] == "flat": d = vr(u["base"] + uu * 8 + 4 * b + 2 * hb, 2)
                        else: d = reg(u["dest"], u["base"] + (uu * 8 + u["t"]) * 8 + 4 * b + 2 * hb, 2)
                        A.ds("ds_read_b64_tr_b16 %s, v%d offset:%d" % (d, LW_A0 + uu, slot * 4096 + b * 2048 + hb * 256), "tr")
            A.wait_lds_all()
            if u["dest"] == "lds":
                u["slot"] = slot
                for uu in range(2):
                    for b in range(2):
                        A.ds("ds_write_b128 v%d, %s offset:%d" % (LW_WB, vr(LW_TMP + uu * 8 + 4 * b, 4), slot * 4096 + uu * 2048 + b * 1024), "wb")
                A.wait_lds_all()
        else:
            for nt in range(8):
                d = reg(u["dest"], u["base"] + (nt * 2 + u["t"]) * 8 + 4 * u["b"] + 2 * u["hb"], 2)
                G, T = nt >> 2, nt & 3
                A.ds("ds_read_b64_tr_b16 %s, v%d offset:%d" % (d, LW_AO + 2 * G + (T >> 1), slot * 4096 + (T & 1) * 8), "tr")
            A.wait_lds_all()
        if n in hooks: hooks[n]()
        if n + NS < len(units): issue(n + NS)

def load_units_128(units, hooks={}):
    L = VLANE; a, b_, c_, d_, f_ = VS, VS + 1, VS + 2, VS + 3, VS + 4
    VQ0, VQ1, TA0, TA1 = 54, 55, 56, 57
    UO = 58
    TU0, TU1 = 58, 59
    AOU = [64, 65, 66, 67]
    WBU = 68
    e("v_lshrrev_b32 v%d, 3, v%d" % (a, L)); e("v_lshlrev_b32 v%d, 13, v%d" % (b_, a))
    e("s_lshr_b32 s28, s%d, 1" % S_WAVE); e("s_lshl_b32 s28, s28, 7"); e("s_add_u32 s28, s28, s%d" % S_H8); e("v_add_u32 v%d, s28, v%d" % (b_, b_))
    e("v_bfe_u32 v%d, v%d, 1, 1" % (c_, a))
    e("v_and_b32 v%d, 7, v%d" % (d_, L))
    for par, dst in ((0, VQ0), (1, VQ1)):
        e("v_or_b32 v%d, %d, v%d" % (f_, par << 1, c_)); e("v_lshlrev_b32 v%d, 1, v%d" % (f_, f_)); e("v_xor_b32 v%d, v%d, v%d" % (f_, f_, d_))
        e("v_lshlrev_b32 v%d, 4, v%d" % (f_, f_)); e("v_add_u32 v%d, v%d, v%d" % (dst, b_, f_))
    e("v_lshrrev_b32 v%d, 4, v%d" % (a, L)); e("v_lshlrev_b32 v%d, 10, v%d" % (a, a))
    e("v_bfe_u32 v%d, v%d, 2, 2" % (b_, L)); e("v_lshlrev_b32 v%d, 7, v%d" % (b_, b_)); e("v_add_u32 v%d, v%d, v%d" % (a, a, b_))
    e("v_and_b32 v%d, 3, v%d" % (b_, L)); e("v_lshlrev_b32 v%d, 3, v%d" % (b_, b_)); e("v_add_u32 v%d, v%d, v%d" % (a, a, b_))
    e("v_bfe_u32 v%d, v%d, 3, 1" % (b_, L)); e("v_bfe_u32 v%d, v%d, 4, 1" % (c_, L)); e("v_lshlrev_b32 v%d, 1, v%d" % (c_, c_)); e("v_or_b32 v%d, v%d, v%d" % (b_, b_, c_))
    e("s_and_b32 s28, s%d, 1" % S_WAVE); e("s_lshl_b32 s28, s28, 1")
    for u, dst in ((0, TA0), (1, TA1)):
        e("s_add_u32 s29, s28, %d" % u); e("v_xor_b32 v%d, s29, v%d" % (c_, b_)); e("v_lshlrev_b32 v%d, 5, v%d" % (c_, c_)); e("v_add_u32 v%d, v%d, v%d" % (c_, c_, a))
        e("v_add_u32 v%d, s34, v%d" % (dst, c_))
    e("s_lshl_b32 s33, s%d, 13" % S_WAVE); e("s_add_u32 s33, s33, %d" % L_KX); e("s_sub_u32 s32, s33, s34")
    e("v_add_u32 v%d, s32, v%d" % (TU0, TA0)); e("v_add_u32 v%d, s32, v%d" % (TU1, TA1))
    for k in range(4): e("v_add_u32 v%d, s32, v%d" % (AOU[k], LW_AO + k))
    e("s_lshl_b32 s35, s%d, 17" % S_HEAD)
    cur = [None]
    def set_srd(which):
        if cur[0] == which: return
        cur[0] = which
        p = S_PW + 2 * which
        e("s_mov_b32 s8, s%d" % p); e("s_mov_b32 s9, s%d" % (p + 1)); e("s_mov_b32 s10, 0x400000"); e("s_mov_b32 s11, 0x20000")
    def m0set(slot, off):
        if slot[0] == "R": e("s_add_u32 m0, s34, %d" % (slot[1] + off))
        else: e("s_add_u32 m0, s33, %d" % off)
    def issue(n):
        u = units[n]; set_srd(u["m"]); slot = u["raw"]
        if u["kind"] == "qkv":
            for i in range(8):
                e("s_xor_b32 s28, s36, %d" % (u["t"] << 19)); e("s_add_u32 s28, s28, %d" % (i * 65536)); m0set(slot, i * 1024); e("s_nop 0")
                A.vmem("buffer_load_dwordx4 v%d, s[8:11], s28 offen lds" % (VQ0 if i % 2 == 0 else VQ1), ("w", n))
        else:
            for hb in range(2):
                for i in range(4):
                    qd = 2 * u["b"] + hb
                    e("s_add_u32 s28, s35, %d" % ((64 * u["t"] + 16 * qd + 4 * i) * 1024)); m0set(slot, hb * 4096 + i * 1024); e("s_nop 0")
                    A.vmem("buffer_load_dwordx4 v%d, s[8:11], s28 offen lds" % LW_VO, ("w", n))
    prev = {}
    issued = set()
    def try_issue(done):
        for n in range(len(units)):
            if n in issued: continue
            dep = units[n]["dep"]
            if dep is not None and dep > done: break
            issue(n); issued.add(n)
    last = {}
    for n, u in enumerate(units):
        key = u["raw"]; u["dep"] = last.get(key); last[key] = n
        if u.get("dep_extra") is not None: u["dep"] = max(u["dep"] if u["dep"] is not None else -1, u["dep_extra"])
    try_issue(-1)
    if "start" in hooks: hooks["start"]()
    for n, u in enumerate(units):
        A.wait_vm(("w", n))
        slot = u["raw"]; isU = slot[0] == "U"; off = 0 if isU else slot[1]
        if u["kind"] == "qkv":
            for uu in range(2):
                for b in range(2):
                    for hb in range(2):
                        if u["dest"] == "lds": d = vr(LW_TMP + uu * 8 + 4 * b + 2 * hb, 2)
                        elif u["dest"] == "flat": d = vr(u["base"] + uu * 8 + 4 * b + 2 * hb, 2)
                        else: d = reg(u["dest"], u["base"] + (uu * 8 + u["t"]) * 8 + 4 * b + 2 * hb, 2)
                        ad = ((TU0, TU1) if isU else (TA0, TA1))[uu]
                        A.ds("ds_read_b64_tr_b16 %s, v%d offset:%d" % (d, ad, off + b * 4096 + hb * 512), "tr")
            A.wait_lds_all()
            if u["dest"] == "lds":
                for uu in range(2):
                    for b in range(2):
                        A.ds("ds_write_b128 v%d, %s offset:%d" % (LW_WB, vr(LW_TMP + uu * 8 + 4 * b, 4), u["slot"] * 4096 + uu * 2048 + b * 1024), "wb")
                A.wait_lds_all()
        else:
            for hb in range(2):
                for nt in range(8):
                    G, T = nt >> 2, nt & 3
                    d = reg(u["dest"], u["base"] + (nt * 2 + u["t"]) * 8 + 4 * u["b"] + 2 * hb, 2)
                    ad = (AOU if isU else [LW_AO + k for k in range(4)])[2 * G + (T >> 1)]
                    A.ds("ds_read_b64_tr_b16 %s, v%d offset:%d" % (d, ad, off + hb * 4096 + (T & 1) * 8), "tr")
            A.wait_lds_all()
        if n in hooks: hooks[n]()
        try_issue(n)

def load_units_reg(units, hooks={}, maxfly=60):
    SCR = 54
    SA0, SA1, SAO = 55, 56, 57
    SAOr = [57, 58, 59, 64]
    e("s_lshl_b32 s28, s%d, 13" % S_WAVE); e("s_add_u32 s28, s28, %d" % L_KX); e("s_sub_u32 s29, s28, s34")
    e("v_add_u32 v%d, s28, v%d" % (SCR, V_L16))
    e("v_add_u32 v%d, s29, v%d" % (SA0, LW_A0)); e("v_add_u32 v%d, s29, v%d" % (SA1, LW_A1))
    for k in range(4): e("v_add_u32 v%d, s29, v%d" % (SAOr[k], LW_AO + k))
    e("s_lshl_b32 s35, s%d, 17" % S_HEAD)
    cur_srd = [None]
    def set_srd(which):
        if cur_srd[0] == which: return
        cur_srd[0] = which
        p = S_PW + 2 * which
        e("s_mov_b32 s8, s%d" % p); e("s_mov_b32 s9, s%d" % (p + 1)); e("s_mov_b32 s10, 0x400000"); e("s_mov_b32 s11, 0x20000")
    def quads(u):
        if u["kind"] == "qkv":
            if u["dest"] == "flat": return [("v", u["base"] + 4 * i) for i in range(4)]
            b0 = u["base"] + u["t"] * 8
            return [(u["dest"], b0), (u["dest"], b0 + 4), (u["dest"], b0 + 64), (u["dest"], b0 + 68)]
        return [(u["dest"], u["base"] + (nt * 2 + u["t"]) * 8 + 4 * u["b"]) for nt in range(8)]
    def nloads(u): return 8 if u["kind"] == "wo" else 4
    def issue(n):
        u = units[n]; set_srd(u["m"])
        if u["kind"] == "qkv":
            for i in range(4):
                e("s_xor_b32 s28, s36, %d" % (u["t"] << 19)); e("s_add_u32 s28, s28, %d" % (i * 131072))
                if u["dest"] == "lds":
                    e("s_add_u32 m0, s34, %d" % (u["slot"] * 4096 + i * 1024)); e("s_nop 0")
                    A.vmem("buffer_load_dwordx4 v%d, s[8:11], s28 offen lds" % LW_VQ, ("w", n))
                else:
                    k, r = quads(u)[i]
                    A.vmem("buffer_load_dwordx4 %s, v%d, s[8:11], s28 offen" % (reg(k, r, 4), LW_VQ), ("w", n))
        else:
            for hb in range(2):
                for i in range(4):
                    qd = 2 * u["b"] + hb
                    e("s_add_u32 s28, s35, %d" % ((64 * u["t"] + 16 * qd + 4 * i) * 1024))
                    k, r = quads(u)[hb * 4 + i]
                    A.vmem("buffer_load_dwordx4 %s, v%d, s[8:11], s28 offen" % (reg(k, r, 4), LW_VO), ("w", n))
    nxt = [0]; fly = [0]
    def pump():
        while nxt[0] < len(units) and fly[0] + nloads(units[nxt[0]]) <= maxfly:
            issue(nxt[0]); fly[0] += nloads(units[nxt[0]]); nxt[0] += 1
    pump()
    for n, u in enumerate(units):
        A.wait_vm(("w", n)); fly[0] -= nloads(u)
        if u["kind"] == "qkv" and u["dest"] == "lds":
            slot = u["slot"]
            for uu in range(2):
                for b in range(2):
                    for hb in range(2):
                        A.ds("ds_read_b64_tr_b16 %s, v%d offset:%d" % (vr(LW_TMP + uu * 8 + 4 * b + 2 * hb, 2), LW_A0 + uu, slot * 4096 + b * 2048 + hb * 256), "tr")
            if n in hooks: hooks[n]()
            pump()
            A.wait_lds_all()
            for uu in range(2):
                for b in range(2):
                    A.ds("ds_write_b128 v%d, %s offset:%d" % (LW_WB, vr(LW_TMP + uu * 8 + 4 * b, 4), slot * 4096 + uu * 2048 + b * 1024), "wb")
            A.wait_lds_all()
        elif u["kind"] == "qkv":
            for i, (k, r) in enumerate(quads(u)):
                A.ds("ds_write_b128 v%d, %s offset:%d" % (SCR, reg(k, r, 4), i * 1024), "sw")
            if n in hooks: hooks[n]()
            pump()
            A.wait_lds_all()
            for uu in range(2):
                for b in range(2):
                    for hb in range(2):
                        if u["dest"] == "flat": d = vr(u["base"] + uu * 8 + 4 * b + 2 * hb, 2)
                        else: d = reg(u["dest"], u["base"] + (uu * 8 + u["t"]) * 8 + 4 * b + 2 * hb, 2)
                        A.ds("ds_read_b64_tr_b16 %s, v%d offset:%d" % (d, (SA0, SA1)[uu], b * 2048 + hb * 256), "tr")
            A.wait_lds_all()
        else:
            for i, (k, r) in enumerate(quads(u)):
                A.ds("ds_write_b128 v%d, %s offset:%d" % (SCR, reg(k, r, 4), i * 1024), "sw")
            if n in hooks: hooks[n]()
            pump()
            A.wait_lds_all()
            for hb in range(2):
                for nt in range(8):
                    G, T = nt >> 2, nt & 3
                    d = reg(u["dest"], u["base"] + (nt * 2 + u["t"]) * 8 + 4 * u["b"] + 2 * hb, 2)
                    A.ds("ds_read_b64_tr_b16 %s, v%d offset:%d" % (d, SAOr[2 * G + (T >> 1)], hb * 4096 + (T & 1) * 8), "tr")
            A.wait_lds_all()

def units_qkv(m, dest, base):
    return [dict(kind="qkv", m=m, t=t, dest=dest, base=base) for t in range(8)]
def units_wo(dest, base):
    return [dict(kind="wo", m=3, t=t, b=b, hb=hb, dest=dest, base=base) for t in range(2) for b in range(2) for hb in range(2)]

def pubaddr(dst, tmp):
    e("v_lshrrev_b32 v%d, 2, v%d" % (dst, V_L16)); e("v_and_b32 v%d, 0xc0, v%d" % (dst, dst))
    e("v_lshlrev_b32 v%d, 1, v%d" % (tmp, V_L16)); e("v_and_b32 v%d, 32, v%d" % (tmp, tmp)); e("v_add_u32 v%d, v%d, v%d" % (dst, dst, tmp))
    e("v_lshrrev_b32 v%d, 3, v%d" % (tmp, V_L16)); e("v_and_b32 v%d, 28, v%d" % (tmp, tmp)); e("v_add_u32 v%d, v%d, v%d" % (dst, dst, tmp))

def chain():
    L = VLANE; a, b_, c_, d_ = VS, VS + 1, VS + 2, VS + 3
    lab("L_chain")
    e("v_lshlrev_b32 v%d, 4, v%d" % (V_L16, L))
    e("s_mul_i32 s28, s%d, %d" % (S_WAVE, WVSTRIDE)); e("v_add_u32 v%d, s28, v%d" % (V_WVA, V_L16))
    e("v_and_b32 v%d, 15, v%d" % (a, L)); e("v_lshlrev_b32 v%d, 5, v%d" % (a, a)); e("v_lshrrev_b32 v%d, 4, v%d" % (b_, L)); e("v_lshlrev_b32 v%d, 3, v%d" % (b_, b_))
    e("v_add_u32 v%d, v%d, v%d" % (a, a, b_)); e("s_lshl_b32 s28, s%d, 10" % S_WAVE); e("s_add_u32 s28, s28, %d" % L_X); e("v_add_u32 v%d, s28, v%d" % (V_XWR, a))
    e("v_lshrrev_b32 v%d, 5, v%d" % (a, L)); e("v_lshlrev_b32 v%d, 8, v%d" % (a, a))
    e("v_bfe_u32 v%d, v%d, 2, 2" % (b_, L)); e("v_lshlrev_b32 v%d, 6, v%d" % (b_, b_)); e("v_add_u32 v%d, v%d, v%d" % (a, a, b_))
    e("v_and_b32 v%d, 1, v%d" % (b_, L)); e("v_lshlrev_b32 v%d, 5, v%d" % (b_, b_)); e("v_add_u32 v%d, v%d, v%d" % (a, a, b_))
    e("v_bfe_u32 v%d, v%d, 4, 1" % (b_, L)); e("v_lshlrev_b32 v%d, 3, v%d" % (b_, b_)); e("v_add_u32 v%d, v%d, v%d" % (a, a, b_))
    e("s_lshr_b32 s28, s%d, 1" % S_WAVE); e("s_lshl_b32 s28, s28, 10"); e("s_and_b32 s29, s%d, 1" % S_WAVE); e("s_lshl_b32 s29, s29, 9")
    e("s_add_u32 s28, s28, s29"); e("s_add_u32 s28, s28, %d" % L_O); e("v_add_u32 v%d, s28, v%d" % (a, a))
    e("v_and_b32 v%d, 2, v%d" % (b_, L)); e("v_cmp_ne_u32 vcc, 0, v%d" % b_); e("s_nop 1"); e("s_mov_b64 s[50:51], vcc")
    e("v_lshlrev_b32 v%d, 3, v%d" % (b_, L)); e("v_add_u32 v%d, %d, v%d" % (b_, L_DUM, b_))
    e("s_nop 0")
    e("v_cndmask_b32 v%d, v%d, v%d, vcc" % (V_OWR, b_, a))
    e("v_and_b32 v%d, 8, v%d" % (b_, L)); e("v_cmp_eq_u32 s[48:49], 0, v%d" % b_)
    e("v_bfe_u32 v%d, v%d, 2, 2" % (a, L)); e("s_lshl_b32 s28, s%d, 3" % S_WAVE); e("v_add_u32 v%d, s28, v%d" % (a, a))
    if OPT.get("swz", 1): e("v_add_u32 v%d, s%d, v%d" % (c_, S_HEAD, a))
    else: e("v_mov_b32 v%d, s%d" % (c_, S_HEAD))
    e("v_and_b32 v%d, 31, v%d" % (c_, c_)); e("v_lshlrev_b32 v%d, 8, v%d" % (c_, c_))
    e("v_lshlrev_b32 v%d, 13, v%d" % (a, a)); e("v_add_u32 v%d, v%d, v%d" % (a, a, c_))
    e("v_lshrrev_b32 v%d, 4, v%d" % (b_, L)); e("v_lshlrev_b32 v%d, 6, v%d" % (b_, b_)); e("v_add_u32 v%d, v%d, v%d" % (a, a, b_))
    e("v_and_b32 v%d, 3, v%d" % (b_, L)); e("v_lshlrev_b32 v%d, 4, v%d" % (b_, b_)); e("v_add_u32 v%d, v%d, v%d" % (V_PS0, a, b_))
    e("v_and_b32 v%d, 1, v%d" % (c_, L)); e("v_cmp_eq_u32 vcc, 0, v%d" % c_)
    e("v_mov_b32 v%d, 0xEEEEEEEE" % a); e("v_mov_b32 v%d, 0x44444444" % b_); e("v_cndmask_b32 v%d, v%d, v%d, vcc" % (V_IDX, a, b_))
    cval = struct.unpack("<I", struct.pack("<f", (128 ** -0.5) * math.log2(math.e)))[0]
    e("s_mov_b32 s%d, 0x%08x" % (S_C, cval))
    e("v_and_b32 v%d, 1, v%d" % (a, L)); e("v_lshlrev_b32 v%d, 4, v%d" % (a, a)); e("v_mov_b32 v%d, 0x3f80" % b_); e("v_lshlrev_b32 v%d, v%d, v%d" % (b_, a, b_))
    e("v_bfe_u32 v%d, v%d, 1, 2" % (a, L))
    for i in range(4):
        e("v_cmp_eq_u32 vcc, %d, v%d" % (i, a)); e("s_nop 1"); e("v_cndmask_b32 v%d, 0, v%d, vcc" % (12 + i, b_))
    e("v_add_u32 v%d, %d, v%d" % (a, L_SEL, V_L16))
    IPUB, IM0 = 60, 61
    e("ds_write_b128 v%d, v[12:15]" % a); e("s_waitcnt lgkmcnt(0)")
    def hook_start():
        pubaddr(60, c_)
        e("s_cmp_lg_u32 s%d, 0" % S_WAVE); e("s_cbranch_scc1 L_noinit")
        IPUB, IM0 = 60, 61
        e("s_load_dwordx2 s[30:31], s[0:1], %d" % KA["mem0"])
        e("v_lshrrev_b32 v%d, 4, v%d" % (a, L)); e("v_lshlrev_b32 v%d, 11, v%d" % (a, a))
        e("v_and_b32 v%d, 1, v%d" % (b_, L)); e("v_lshlrev_b32 v%d, 10, v%d" % (b_, b_)); e("v_add_u32 v%d, v%d, v%d" % (a, a, b_))
        e("v_bfe_u32 v%d, v%d, 1, 2" % (b_, L)); e("v_lshlrev_b32 v%d, 3, v%d" % (b_, b_)); e("v_add_u32 v%d, v%d, v%d" % (a, a, b_))
        e("v_bfe_u32 v%d, v%d, 3, 1" % (b_, L)); e("v_lshlrev_b32 v%d, 2, v%d" % (b_, b_)); e("v_add_u32 v%d, v%d, v%d" % (a, a, b_))
        e("s_lshl_b32 s29, s%d, 5" % S_HEAD); e("v_add_u32 v%d, s29, v%d" % (a, a))
        e("s_waitcnt lgkmcnt(0)")
        e("global_load_dword v%d, v%d, s[30:31]" % (IM0, a))
        for i in range(4): e("v_mov_b32 v%d, -1" % (12 + i))
        for b in range(2):
            for half in range(2):
                e("s_add_u32 s29, s%d, %d" % (S_H13, WS_PB + b * 0x40000 + half * 4096))
                for x in range(4):
                    e("buffer_store_dwordx4 v[12:15], v%d, s[4:7], s29 offen offset:%d" % (V_L16, x * 1024))
        for b in (1, 2):
            e("s_add_u32 s29, s%d, %d" % (S_H8, WS_MB + b * 8192))
            e("buffer_store_dword v12, v%d, s[4:7], s29 offen" % IPUB)
        e("v_lshlrev_b32 v%d, 7, v%d" % (a, L)); e("v_mov_b32 v%d, 0" % b_)
        e("s_lshl_b32 s29, s%d, 2" % S_HEAD); e("s_add_u32 s29, s29, %d" % WS_FL)
        e("s_mov_b64 exec, 0x1ff")
        e("buffer_store_dword v%d, v%d, s[4:7], s29 offen sc0 sc1" % (b_, a))
        e("s_mov_b64 exec, s[26:27]")
        lab("L_noinit")

    def hook_mem0():
        l = A.newlab("L_hk")
        e("s_cmp_lg_u32 s%d, 0" % S_WAVE); e("s_cbranch_scc1 %s" % l)
        e("s_add_u32 s29, s%d, %d" % (S_H8, WS_MB))
        e("buffer_store_dword v%d, v%d, s[4:7], s29 offen" % (IM0, IPUB))
        e("s_mov_b64 exec, 1")
        e("v_mov_b32 v62, 24"); e("v_mov_b32 v63, 1"); e("global_atomic_add v62, v63, s[24:25] sc1")
        e("s_mov_b64 exec, s[26:27]")
        lab(l)
    def hook_arrive():
        l = A.newlab("L_hk")
        e("s_cmp_lg_u32 s%d, 0" % S_WAVE); e("s_cbranch_scc1 %s" % l)
        e("s_mov_b64 exec, 1")
        e("v_mov_b32 v62, %d" % bar_off(0)); e("v_mov_b32 v63, 1"); e("global_atomic_add v62, v63, s[24:25] sc1")
        e("s_mov_b64 exec, s[26:27]")
        lab(l)
    load_setup(WVSTRIDE)
    wvu = units_qkv(2, "lds", 0); wvu[0]["dest"] = "flat"; wvu[0]["base"] = V_WV0
    rt(2)
    if OPT.get("regload", 0):
        for t in range(1, 8): wvu[t]["slot"] = t - 1
        wo_units = [dict(kind="wo", m=3, t=t, b=b, dest="v", base=V_WO) for t in range(2) for b in range(2)]
        units = wvu[1:] + [wvu[0]] + units_qkv(0, "a", 0) + units_qkv(1, "a", 128) + wo_units
        load_units_reg(units, {0: hook_mem0, OPT.get('harr', 16): hook_arrive}, maxfly=OPT.get('maxfly', 40))
    elif OPT.get("ld128", 0):
        wo_units = [dict(kind="wo", m=3, t=t, b=b, dest="v", base=V_WO) for t in range(2) for b in range(2)]
        first = units_qkv(0, "a", 0) + units_qkv(1, "a", 128) + wo_units + [wvu[0]]
        ring = [("R", 0), ("R", 8192), ("R", 16384), ("U", 0)]
        for n, u in enumerate(first): u["raw"] = ring[n % 4]
        for k in range(1, 8):
            wvu[k]["raw"] = ("U", 0) if k % 2 == 1 else ("R", 20480)
            wvu[k]["slot"] = k - 1
        units = first + wvu[1:]
        nf = len(first)
        wvu[2]["dep_extra"] = max(n for n, u in enumerate(first) if u["raw"] == ("R", 16384))
        load_units_128(units, {'start': hook_start, 4: hook_mem0, 8: hook_arrive})
    else:
        units = units_qkv(0, "a", 0) + units_qkv(1, "a", 128) + units_wo("v", V_WO) + wvu
        load_units(units, 7, {'start': hook_start, 7: hook_mem0, 14: hook_arrive})
    rt(3)
    wvslot = {u["t"]: u["slot"] for u in wvu[1:]}
    e("s_cmp_lg_u32 s%d, 0" % S_WAVE); e("s_cbranch_scc1 L_tb_done")
    e("s_mov_b64 exec, 1")
    e("v_mov_b32 v%d, %d" % (a, bar_off(0))); e("s_mov_b32 s29, 0")
    lab("L_tb")
    e("global_load_dword v%d, v%d, s[24:25] sc0 sc1" % (b_, a)); e("s_waitcnt vmcnt(0)"); e("v_readfirstlane_b32 s30, v%d" % b_)
    e("s_add_u32 s29, s29, 1"); e("s_cmp_gt_u32 s29, 0x40000"); e("s_cbranch_scc1 L_tb2")
    e("s_cmp_lt_u32 s30, 32"); e("s_cbranch_scc1 L_tb")
    lab("L_tb2")
    e("s_mov_b64 exec, s[26:27]")
    lab("L_tb_done")
    e("s_mov_b32 s%d, 0" % S_STEP)
    e("s_mov_b32 s%d, %d" % (S_MCUR, WS_MB)); e("s_mov_b32 s%d, %d" % (S_MPREV, WS_MB + 2 * 8192)); e("s_mov_b32 s%d, %d" % (S_PCUR, WS_PB))
    e("s_add_u32 s%d, s%d, %d" % (S_KXO, S_H13, WS_KX)); e("s_add_u32 s%d, s%d, %d" % (S_VXO, S_H13, WS_VX))
    e("s_mov_b32 s%d, 0" % S_SPIN); e("s_mov_b32 s%d, 0" % S_PAR); e("s_mov_b32 s37, %d" % (WS_HIST + 0x90000)); e("s_mov_b32 s38, %d" % (WS_HIST + 0x91000))
    def need_seg(target_sgpr_or_none):
        if OPT["stage"] < 2: return
        lok = A.newlab("L_rdy"); lp = A.newlab("L_rp")
        if target_sgpr_or_none is None: e("s_mov_b32 s14, %d" % (1 if OPT.get("l2warm", 0) else 0))
        else:
            e("s_add_u32 s14, s%d, %d" % (target_sgpr_or_none, 2 if OPT.get("l2warm", 0) else 1)); e("s_min_u32 s14, s14, 63")
        e("s_cmp_lt_u32 s14, s%d" % S_RDY); e("s_cbranch_scc1 %s" % lok)
        e("s_mov_b32 s17, 0")
        lab(lp)
        e("v_lshlrev_b32 v%d, 3, v%d" % (VT, V_L16))
        e("s_lshl_b32 s29, s%d, 2" % S_HEAD); e("s_add_u32 s29, s29, %d" % FL_KV)
        e("s_mov_b64 exec, 0xff")
        e("buffer_load_dword v%d, v%d, s[4:7], s29 offen sc0 sc1" % (VT + 1, VT))
        e("s_mov_b64 exec, s[26:27]")
        e("s_waitcnt vmcnt(0)")
        e("s_mov_b32 s15, 64")
        for t in range(1, 8):
            e("v_readlane_b32 s16, v%d, %d" % (VT + 1, t)); e("s_nop 0"); e("s_mul_i32 s16, s16, 7"); e("s_add_u32 s16, s16, %d" % (t - 1)); e("s_min_u32 s15, s15, s16")
        e("s_mov_b32 s%d, s15" % S_RDY)
        e("s_add_u32 s17, s17, 1"); e("s_cmp_gt_u32 s17, 0x40000"); e("s_cbranch_scc1 %s" % lok)
        e("s_cmp_lt_u32 s14, s%d" % S_RDY); e("s_cbranch_scc0 %s" % lp)
        lab(lok)
    def dma8(so, lb, par_sgpr):
        for i in range(8):
            if i % 4 == 0:
                e("s_add_u32 s28, s%d, %d" % (so, i * 1024)); e("s_add_u32 s29, s%d, %d" % (par_sgpr, lb + i * 1024)); e("s_mov_b32 m0, s29"); e("s_nop 0")
            e("buffer_load_dwordx4 v%d, s[4:7], s28 offen offset:%d sc1 lds" % (V_L16, (i % 4) * 1024))
    e("s_mov_b32 s%d, 0" % S_RDY)
    need_seg(None)
    l0 = A.newlab("L_pf"); l1 = A.newlab("L_pf")
    e("s_cmp_eq_u32 s%d, 1" % S_WAVE); e("s_cbranch_scc0 %s" % l0); dma8(S_KXO, L_KX, S_PAR); lab(l0)
    e("s_cmp_eq_u32 s%d, 2" % S_WAVE); e("s_cbranch_scc0 %s" % l1); dma8(S_VXO, L_VX, S_PAR); lab(l1)
    e("s_waitcnt vmcnt(0)"); e("s_barrier")
    rt(4)
    if OPT["stamps"]:
        for i in range(16): e("s_mov_b32 s%d, 0" % (S_ST + i))
        e("s_memtime s[82:83]"); e("s_waitcnt lgkmcnt(0)"); e("s_mov_b32 s80, s82")
    if not OPT["final"]:
        e("s_memtime s[84:85]"); e("s_memrealtime s[88:89]"); e("s_waitcnt lgkmcnt(0)")

    T0, T1, T2, T3, T4, T5 = range(VT, VT + 6)
    def wvreg(t): return V_WV0 if t == 0 else (V_WVR if t % 2 == 1 else V_KX)
    def rd_wv(t):
        r = wvreg(t)
        return [lambda u=u, b=b: A.ds("ds_read_b128 %s, v%d offset:%d" % (vr(r + 8 * u + 4 * b, 4), V_WVA, wvslot[t] * 4096 + u * 2048 + b * 1024), ("wv", t, u)) for u in range(2) for b in range(2)]
    def scalprep():
        e("s_add_u32 s%d, s%d, 0x40000" % (S_KXO, S_KXO)); e("s_add_u32 s%d, s%d, 0x40000" % (S_VXO, S_VXO))
        e("s_cmp_lt_u32 s%d, 2" % S_WAVE); e("s_cselect_b32 s%d, s%d, s%d" % (S_DMA, S_KXO, S_VXO)); e("s_lshr_b32 s29, s%d, 1" % S_WAVE); e("s_lshl_b32 s29, s29, 13"); e("s_add_u32 s29, s29, %d" % L_KX)
        e("s_lshl_b32 s19, s%d, 12" % S_WAVE); e("s_and_b32 s18, s19, 4096"); e("s_add_u32 s%d, s%d, s18" % (S_DMA, S_DMA))
        e("s_xor_b32 s18, s%d, 8192" % S_PAR); e("s_add_u32 s29, s29, s18"); e("s_add_u32 s29, s29, s19")
        e("s_mov_b32 m0, s29")
        e("s_add_u32 s12, s%d, %d" % (S_PAR, L_KX)); e("s_lshl_b32 s28, s%d, 11" % S_WAVE); e("s_add_u32 s13, s28, s%d" % S_PAR); e("s_add_u32 s13, s13, %d" % L_VX)
        if OPT["stage"] >= 3:
            e("s_max_u32 s34, s%d, 1" % S_STEP); e("s_sub_u32 s34, s34, 1"); e("s_lshl_b32 s101, s%d, 2" % S_HEAD); e("s_add_u32 s101, s101, %d" % FL_KM)
            e("s_mov_b32 s35, s38")
            e("s_lshl_b32 s28, s%d, 16" % S_STEP); e("s_lshl_b32 s29, s%d, 11" % S_HEAD); e("s_add_u32 s38, s28, s29"); e("s_lshl_b32 s29, s%d, 9" % S_WAVE); e("s_add_u32 s38, s38, s29"); e("s_add_u32 s38, s38, %d" % WS_KM)
            e("s_mov_b32 s36, s37"); e("s_add_u32 s37, s38, %d" % (WS_VM - WS_KM))
    def nextprep():
        ZS_ = V_KX + 12
        e("v_mfma_f32_32x32x16_bf16 %s, %s, %s, 0" % (vr(V_QK, 16), vr(ZS_, 4), vr(ZS_, 4)))
        e("v_mfma_f32_16x16x32_bf16 %s, %s, %s, 0" % (vr(V_VA, 4), vr(ZS_, 4), vr(ZS_, 4)))
        e("v_mfma_f32_16x16x32_bf16 %s, %s, %s, 0" % (vr(V_VA + 4, 4), vr(ZS_, 4), vr(ZS_, 4)))
        for f in rd_wv(1): f()
        e("s_lshl_b32 s28, s%d, 11" % S_WAVE); e("s_add_u32 s%d, s%d, s28" % (S_MQ, S_MCUR))
        if OPT["stage"] >= 2:
            lsk = A.newlab("L_sk63")
            e("s_cmp_eq_u32 s%d, 63" % S_STEP); e("s_cbranch_scc1 %s" % lsk)
            need_seg(S_STEP)
            lab(lsk)
        if not OPT.get("scal_top", 0): scalprep()
    for i in range(4): e("v_mov_b32 v%d, 0" % (V_KX + 12 + i))
    e("s_nop 1")
    A.lds = []
    nextprep()
    WV1_TAGS = list(A.lds)
    lab("L_step")
    A.lds = list(WV1_TAGS); A.vm = []
    QA, KA_ = V_QK, V_QK + 8
    ts(20)
    if OPT.get("steptrace", 0):
        l = A.newlab("L_stt")
        e("s_cmp_lg_u32 s%d, 2" % S_WAVE); e("s_cbranch_scc1 %s" % l)
        e("s_memrealtime s[90:91]"); e("s_waitcnt lgkmcnt(0)")
        e("s_lshl_b32 s28, s%d, 6" % S_HEAD); e("s_add_u32 s28, s28, s%d" % S_STEP); e("s_lshl_b32 s28, s28, 2"); e("s_add_u32 s28, s28, %d" % (WS_TRACE + 0x10000))
        e("s_mov_b64 exec, 1"); e("v_mov_b32 v10, s90"); e("v_mov_b32 v11, 0"); e("buffer_store_dword v10, v11, s[4:7], s28 offen"); e("s_mov_b64 exec, s[26:27]")
        lab(l)
    if OPT.get("red_sets", 1) == 2: e("s_waitcnt vmcnt(%d)" % (2 if OPT["hist"] else 1))
    for i in range(4): e("v_mov_b32 v%d, 0" % (V_S + i))
    e("s_lshl_b32 s28, s%d, 11" % S_WAVE)
    e("v_add_u32 v%d, s28, v%d" % (T2, V_L16)); e("v_add_u32 v%d, %d, v%d" % (T2, L_MEM, T2))
    for a2 in range(1, 4): e("v_xor_b32 v%d, %d, v%d" % (T2 + a2, a2 << 11, T2))
    def smf(acc, areg, breg):
        e("v_smfmac_f32_16x16x64_bf16 %s, %s, %s, v%d" % (vr(acc, 4), vr(areg, 4), breg, V_IDX))
    def areg_of(tau, own): return (own + 4 * tau) if tau < 2 else (V_MEM + 4 * tau)
    def qk_l(tau, own=V_MEM):
        areg = areg_of(tau, own)
        return [lambda acc=acc, base=base, u=u: smf(acc, areg, ar(base + (u * 8 + tau) * 8, 8)) for (acc, base, u) in ((QA, 0, 0), (KA_, 128, 0), (QA + 4, 0, 1), (KA_ + 4, 128, 1))]
    def vv_l(tau, own=V_MEM):
        areg = areg_of(tau, own)
        return [lambda u=u: smf(V_VA + 4 * u, areg, vr(wvreg(tau) + 8 * u, 8)) for u in range(2)]
    def poll_issue(base):
        for tau in range(2):
            e("buffer_load_dwordx4 %s, v%d, s[4:7], s%d offen offset:%d sc1" % (vr(base + 4 * tau, 4), V_L16, S_MQ, tau * 1024))
    def poll_check(M):
        e("v_max3_u32 v%d, v%d, v%d, v%d" % (T0, M, M + 1, M + 2)); e("v_max3_u32 v%d, v%d, v%d, v%d" % (T1, M + 3, M + 4, M + 5))
        e("v_max3_u32 v%d, v%d, v%d, v%d" % (T0, T0, M + 6, M + 7)); e("v_max_u32 v%d, v%d, v%d" % (T0, T0, T1))
        e("v_cmp_eq_u32 vcc, -1, v%d" % T0)
    SA, SB = V_MEM, V_MEM + 24
    if OPT.get("scal_top", 0): scalprep()
    for i in range(OPT["dly_mem"]): e("s_nop 7")
    if OPT.get("early_rd", 0):
        for f in rd_wv(2): f()
    poll_issue(SA)
    ts(21)
    if not OPT.get("early_rd", 0):
        for f in rd_wv(2): f()
    for i in range(OPT.get("gap_mem", 0)): e("s_nop 7")
    mem2 = OPT.get("mem_sets", 1) == 2
    spec = (not mem2) and OPT.get("spec", 1)
    if mem2: poll_issue(SB)
    lab("L_pmA")
    e("s_add_u32 s%d, s%d, 1" % (S_SPIN, S_SPIN))
    e("s_waitcnt vmcnt(%d)" % (2 if mem2 else 0))
    ts(22)
    if spec:
        M = SA
        q0 = qk_l(0, SA); q1 = qk_l(1, SA)
        q0[0](); e("v_max3_u32 v%d, v%d, v%d, v%d" % (T0, M, M + 1, M + 2)); e("v_max3_u32 v%d, v%d, v%d, v%d" % (T1, M + 3, M + 4, M + 5))
        q0[1](); e("ds_write_b128 v%d, %s" % (T2, vr(M, 4)))
        q0[2](); e("v_max3_u32 v%d, v%d, v%d, v%d" % (T0, T0, M + 6, M + 7)); e("v_max_u32 v%d, v%d, v%d" % (T0, T0, T1))
        q0[3](); e("ds_write_b128 v%d, %s offset:1024" % (T2, vr(M + 4, 4)))
        q1[0](); e("v_cmp_eq_u32 vcc, -1, v%d" % T0)
        q1[1](); e("v_add_u32 v%d, s12, v%d" % (T1, V_L16))
        e("s_cmp_gt_u32 s%d, 0x200000" % S_SPIN); e("s_cbranch_scc1 L_specok")
        if OPT["nowait"]: e("s_branch L_specok")
        e("s_cbranch_vccz L_specok")
        poll_issue(SA) if False else None
        e("s_waitcnt lgkmcnt(0)")
        poll_issue(SA)
        A.nop(6)
        e("v_mfma_f32_32x32x16_bf16 %s, %s, %s, 0" % (vr(V_QK, 16), vr(V_S, 4), vr(V_S, 4)))
        e("s_branch L_pmA")
        lab("L_specok")
        stamp(0)
        q1[2](); q1[3]()
    else:
        poll_check(SA)
        e("s_cmp_gt_u32 s%d, 0x200000" % S_SPIN); e("s_cbranch_scc1 L_goA")
        if OPT["nowait"]: e("s_branch L_goA")
        e("s_cbranch_vccz L_goA")
        poll_issue(SA)
        if mem2:
            e("s_waitcnt vmcnt(2)")
            poll_check(SB)
            e("s_nop 1")
            e("s_cbranch_vccz L_goB")
            poll_issue(SB)
        e("s_branch L_pmA")
    def rd_m(tau): return lambda: A.ds("ds_read_b128 %s, v%d offset:%d" % (vr(V_MEM + 4 * tau, 4), T2 + (tau >> 1), (tau & 1) * 1024), ("m", tau))
    def rd_kx(f):
        kk, kt = f >> 1, f & 1
        return lambda: A.ds("ds_read_b128 %s, v%d offset:%d" % (vr(V_MEM + 4 * f, 4), T1, (kt * 4 + kk) * 1024), ("kx", kk))
    def rd_vx(u): return lambda: A.ds("ds_read_b128 %s, v%d offset:%d" % (vr(V_KX + 4 * u, 4), T0, u * 1024), ("vx", u))
    def run(mf, fl=()):
        fl = list(fl)
        for f in mf:
            f()
            if fl: fl.pop(0)()
        for f in fl: f()
    def vv(tau, fl=()):
        vl = vv_l(tau); fl = list(fl)
        A.wait_lds(("wv", tau, 0)); vl[0]()
        if fl: fl.pop(0)()
        A.wait_lds(("wv", tau, 1)); vl[1]()
        for f in fl: f()
    lds_state = list(A.lds)
    for variant, own in ((("B", SB), ("A", SA)) if mem2 else (("A", SA),)):
        A.lds = list(lds_state)
        if not spec:
            lab("L_go" + variant)
            if variant == "A": stamp(0)
            else: ts(0)
            q0 = qk_l(0, own); q1 = qk_l(1, own)
            q0[0](); e("ds_write_b128 v%d, %s" % (T2, vr(own, 4)))
            q0[1](); e("ds_write_b128 v%d, %s offset:1024" % (T2, vr(own + 4, 4)))
            q0[2](); e("v_add_u32 v%d, s12, v%d" % (T1, V_L16))
            q0[3]()
            if mem2: e("s_waitcnt vmcnt(0)")
            for i2, f in enumerate(q1):
                f()
        if variant == "A": stamp(8, 2)
        A.wait_lds_all(); e("s_barrier")
        if variant == "A": stamp(9, 2)
        rd_m(2)(); rd_m(3)()
        run(vv_l(0, own), [rd_m(4), rd_m(5)])
        run(vv_l(1, own), [rd_m(6), rd_m(7)])
        if variant == "B": e("s_branch L_joinP0")
    lab("L_joinP0")
    e("v_add_u32 v%d, s13, v%d" % (T0, V_L16))
    KH = V_S + 4
    def kmrd(u):
        def f():
            if OPT["stage"] >= 3: A.ds("ds_read_b32 v%d, v%d offset:%d" % (KH + u, V_XWR, u * 512), ("kh", u))
        return f
    def kmst(u):
        def f():
            if OPT["stage"] >= 3 and not OPT.get("nokm", 0):
                A.wait_lds(("kh", u))
                e("buffer_store_dword v%d, v%d, s[4:7], s35 offen offset:%d sc0 sc1" % (KH + u, T2, u * 256))
        return f
    def vmst(u):
        def f():
            if OPT["stage"] >= 3 and not OPT.get("nokm", 0):
                if u == 0: e("v_lshrrev_b32 v%d, 2, v%d" % (T2, V_L16))
                e("buffer_store_dword v%d, v%d, s[4:7], s36 offen offset:%d sc0 sc1" % (V_S + 9 + u, T2, u * 256))
        return f
    def dma(i): return lambda: (None if OPT.get("nodma", 0) else e("buffer_load_dwordx4 v%d, s[4:7], s%d offen offset:%d sc1 lds" % (V_L16, S_DMA, i * 1024)))
    dpos = OPT.get("dmapos", 1)
    if dpos == 0:
        for i in range(4): dma(i)()
    if OPT.get("spread", 1):
        A.wait_lds(("m", 2)); run(qk_l(2), rd_wv(3))
        A.wait_lds(("m", 3)); run(qk_l(3), [rd_kx(0), rd_kx(1), dma(0)])
        vv(2, [dma(1)])
        ts(33)
        A.wait_lds(("m", 4)); run(qk_l(4), rd_wv(4))
        ts(34)
        A.wait_lds(("m", 5)); run(qk_l(5), [rd_kx(2), dma(2), kmrd(0), kmrd(1)])
        vv(3, [dma(3)])
        if OPT["stage"] >= 3:
            lfk = A.newlab("L_fkm")
            e("s_cmp_eq_u32 s%d, 1" % S_WAVE); e("s_cbranch_scc0 %s" % lfk)
            e("v_mov_b32 v%d, s34" % T4); e("s_mov_b64 exec, 1"); e("buffer_store_dword v%d, v%d, s[4:7], s101 offen sc0 sc1" % (T4, V_L16)); e("s_mov_b64 exec, s[26:27]")
            lab(lfk)
        ts(35)
        A.wait_lds(("m", 6)); run(qk_l(6), rd_wv(5))
        vv(4, [rd_kx(3), vmst(0)])
        ts(36)
        A.wait_lds(("m", 7)); run(qk_l(7), rd_wv(6))
        vv5fill = [vmst(1), kmst(0), kmst(1)]
    else:
        A.wait_lds(("m", 2)); run(qk_l(2), rd_wv(3))
        A.wait_lds(("m", 3)); run(qk_l(3), [rd_kx(0), rd_kx(1)] + ([dma(0), dma(1)] if dpos == 1 else []))
        vv(2, ([dma(2), dma(3)] if dpos == 1 else []) + [kmrd(0), kmrd(1), vmst(0), vmst(1)])
        ts(33)
        def warm():
            if OPT.get("l2warm", 0) and not OPT.get("nodma", 0):
                e("v_lshlrev_b32 v%d, 2, v%d" % (T5, V_L16)); e("s_mov_b32 m0, %d" % L_DUM); e("s_add_u32 s28, s%d, 0x40000" % S_DMA)
                e("buffer_load_dword v%d, s[4:7], s28 offen lds" % T5)
        warm()
        if OPT["stage"] >= 3:
            lfk = A.newlab("L_fkm")
            e("s_cmp_eq_u32 s%d, 1" % S_WAVE); e("s_cbranch_scc0 %s" % lfk)
            e("v_mov_b32 v%d, s34" % T4); e("s_mov_b64 exec, 1"); e("buffer_store_dword v%d, v%d, s[4:7], s101 offen sc0 sc1" % (T4, V_L16)); e("s_mov_b64 exec, s[26:27]")
            lab(lfk)
        A.wait_lds(("m", 4)); run(qk_l(4), rd_wv(4))
        ts(34)
        A.wait_lds(("m", 5)); run(qk_l(5), [rd_kx(2), kmst(0), kmst(1)])
        vv(3)
        ts(35)
        A.wait_lds(("m", 6)); run(qk_l(6), rd_wv(5))
        vv(4, [rd_kx(3)])
        ts(36)
        A.wait_lds(("m", 7)); run(qk_l(7), rd_wv(6))
    stamp(1)
    vv(5, vv5fill if OPT.get("spread", 1) else [])
    ts(70)
    e("v_lshrrev_b32 v%d, 1, v%d" % (T3, V_L16)); e("v_add_u32 v%d, %d, v%d" % (T3, L_X, T3))
    for u in range(2):
        q, k_ = QA + 4 * u, KA_ + 4 * u
        e("v_add_f32 v%d, v%d, v%d" % (k_, k_, k_ + 1)); e("v_add_f32 v%d, v%d, v%d" % (k_ + 2, k_ + 2, k_ + 3))
        e("v_add_f32 v%d, v%d, v%d" % (q, q, q + 1)); e("v_add_f32 v%d, v%d, v%d" % (q + 2, q + 2, q + 3))
        e("v_cvt_pk_bf16_f32 v%d, v%d, v%d" % (k_, k_, k_ + 2)); e("v_cvt_pk_bf16_f32 v%d, v%d, v%d" % (k_ + 1, q, q + 2))
        A.ds("ds_write_b64 v%d, %s offset:%d" % (V_XWR, vr(k_, 2), u * 512), "xw")
    ts(71)
    for f in rd_wv(7): f()
    ts(72)
    vv(6)
    ts(73)
    if OPT["stage"] >= 3 and OPT["nsteps"] == 64 and OPT["final"]:
        e("s_cmp_eq_u32 s%d, 63" % S_STEP); e("s_cbranch_scc1 L_tail63")
    if OPT["stage"] >= 3:
        pass
    va = V_VA
    ZS = V_KX + 12
    stamp(10, 2)
    A.wait_lds("xw"); e("s_barrier")
    stamp(11, 2)
    for kk in range(4):
        for b in range(2):
            A.ds("ds_read_b64_tr_b16 %s, v%d offset:%d" % (vr(V_QK + 4 * kk + 2 * b, 2), T3, kk * 1024 + b * 512), ("x", kk))
    stamp(2)
    def vpk(u):
        x = va + 4 * u
        return [lambda: e("v_add_f32 v%d, v%d, v%d" % (x, x, x + 1)), lambda: e("v_add_f32 v%d, v%d, v%d" % (x + 2, x + 2, x + 3)),
                lambda: e("v_cvt_pk_bf16_f32 v%d, v%d, v%d" % (x, x, x + 2)), lambda: e("v_mov_b32 v%d, 0" % (x + 1))]
    zs = [lambda i=i: e("v_mov_b32 v%d, 0" % (ZS + i)) for i in range(4)]
    sfill = {0: [[rd_kx(4)], [rd_kx(5)], [rd_kx(6)]], 1: [[lambda: vv_l(7)[0]()], [lambda: vv_l(7)[1]()], [rd_kx(7)]],
             2: [[rd_vx(0), zs[0]], [rd_vx(1), zs[1]], [zs[2], zs[3]]], 3: [vpk(0)[:2], vpk(0)[2:], vpk(1)[:2]]}
    for kk in range(4):
        A.wait_lds(("x", kk)); A.wait_lds(("kx", kk))
        if kk == 1: A.wait_lds(("wv", 7, 1))
        X = vr(V_QK + 4 * kk, 4)
        cs = lambda r: "0" if kk == 0 else vr(r, 4)
        for idx, (dst, a_op) in enumerate(((V_S, vr(V_MEM + kk * 8, 4)), (V_S + 4, vr(V_MEM + kk * 8 + 4, 4)), (V_S + 8, X))):
            e("v_mfma_f32_16x16x32_bf16 %s, %s, %s, %s" % (vr(dst, 4), a_op, X, cs(dst)))
            for f in sfill[kk][idx]: f()
    for f in vpk(1)[2:]: f()
    e("v_add_u32 v%d, %d, v%d" % (T5, L_O, V_L16))
    A.nop(1)
    stamp(3)
    S = V_S
    e("v_max3_f32 v%d, v%d, v%d, v%d" % (T0, S, S + 1, S + 2)); e("v_max3_f32 v%d, v%d, v%d, v%d" % (T1, S + 4, S + 5, S + 6))
    e("v_max3_f32 v%d, v%d, v%d, v%d" % (T0, T0, S + 3, S + 7)); e("v_max3_f32 v%d, v%d, v%d, v%d" % (T1, T1, S + 8, S + 9))
    e("v_max_f32 v%d, v%d, v%d" % (T0, T0, T1))
    e("v_mov_b32 v%d, v%d" % (T1, T0))
    A.nop(2)
    e("v_permlane16_swap_b32 v%d, v%d" % (T0, T1)); e("v_max_f32 v%d, v%d, v%d" % (T0, T0, T1))
    e("v_mov_b32 v%d, v%d" % (T1, T0))
    e("v_mov_b32 v%d, 0" % (S + 11)); e("s_nop 0")
    e("v_permlane32_swap_b32 v%d, v%d" % (T0, T1)); e("v_max_f32 v%d, v%d, v%d" % (T0, T0, T1))
    e("v_mul_f32 v%d, s%d, v%d" % (T0, S_C, T0))
    if OPT.get("pk", 0):
        for i in range(0, 10, 2): e("v_pk_fma_f32 %s, %s, s[%d:%d], %s op_sel_hi:[1,0,0] neg_lo:[0,0,1] neg_hi:[0,0,1]" % (vr(S + i, 2), vr(S + i, 2), S_C, S_C + 1, vr(T0, 2)))
    else:
        for i in range(10): e("v_fma_f32 v%d, v%d, s%d, -v%d" % (S + i, S + i, S_C, T0))
    for i in range(8): e("v_exp_f32 v%d, v%d" % (S + i, S + i))
    e("v_exp_f32 v%d, v%d" % (S + 8, S + 8))
    e("v_add_f32 v%d, v%d, v%d" % (T2, S, S + 1)); e("v_add_f32 v%d, v%d, v%d" % (T3, S + 2, S + 3))
    e("v_exp_f32 v%d, v%d" % (S + 9, S + 9))
    e("v_cvt_pk_bf16_f32 v%d, v%d, v%d" % (S, S, S + 1)); e("v_cvt_pk_bf16_f32 v%d, v%d, v%d" % (S + 1, S + 2, S + 3))
    e("v_cvt_pk_bf16_f32 v%d, v%d, v%d" % (S + 2, S + 4, S + 5)); e("v_cvt_pk_bf16_f32 v%d, v%d, v%d" % (S + 3, S + 6, S + 7))
    e("v_add_f32 v%d, v%d, v%d" % (T2, T2, S + 4)); e("v_add_f32 v%d, v%d, v%d" % (T3, T3, S + 5))
    stamp(12, 2)
    O0, O1 = V_QK + 4, V_QK + 8
    A.wait_lds(("vx", 1))
    e("v_mfma_f32_16x16x32_bf16 %s, %s, %s, 0" % (vr(O0, 4), vr(V_KX, 4), vr(S, 4)))
    e("v_cvt_pk_bf16_f32 v%d, v%d, v%d" % (S + 10, S + 8, S + 9))
    e("v_add_f32 v%d, v%d, v%d" % (T2, T2, S + 6))
    e("v_mfma_f32_16x16x32_bf16 %s, %s, %s, 0" % (vr(O1, 4), vr(V_KX + 4, 4), vr(S, 4)))
    e("v_add_f32 v%d, v%d, v%d" % (T3, T3, S + 7)); e("v_add_f32 v%d, v%d, v%d" % (T2, T2, S + 8))
    e("v_mfma_f32_16x16x16_bf16 %s, %s, %s, %s" % (vr(O0, 4), vr(va, 2), vr(S + 10, 2), vr(O0, 4)))
    e("v_add_f32 v%d, v%d, v%d" % (T3, T3, S + 9)); e("v_add_f32 v%d, v%d, v%d" % (T2, T2, T3))
    e("v_mfma_f32_16x16x16_bf16 %s, %s, %s, %s" % (vr(O1, 4), vr(va + 4, 2), vr(S + 10, 2), vr(O1, 4)))
    ts(63)
    e("v_mov_b32 v%d, v%d" % (T3, T2)); A.nop(2); e("v_permlane16_swap_b32 v%d, v%d" % (T2, T3)); e("v_add_f32 v%d, v%d, v%d" % (T2, T2, T3))
    e("v_mov_b32 v%d, v%d" % (T3, T2)); A.nop(2); e("v_permlane32_swap_b32 v%d, v%d" % (T2, T3)); e("v_add_f32 v%d, v%d, v%d" % (T2, T2, T3))
    e("v_rcp_f32 v%d, v%d" % (T2, T2))
    e("s_nop 0")
    ts(64)
    W0 = V_QK
    for r in range(2): e("v_mul_f32 v%d, v%d, v%d" % (O0 + r, O0 + r, T2)); e("v_mul_f32 v%d, v%d, v%d" % (O1 + r, O1 + r, T2))
    e("v_cvt_pk_bf16_f32 v%d, v%d, v%d" % (W0, O0, O0 + 1)); e("v_cvt_pk_bf16_f32 v%d, v%d, v%d" % (W0 + 1, O1, O1 + 1))
    if OPT.get("omask", 0): e("s_mov_b64 exec, s[50:51]")
    A.ds("ds_write_b64 v%d, %s" % (V_OWR, vr(W0, 2)), "ow")
    if OPT.get("omask", 0): e("s_mov_b64 exec, s[26:27]")
    for r in range(2, 4): e("v_mul_f32 v%d, v%d, v%d" % (O0 + r, O0 + r, T2)); e("v_mul_f32 v%d, v%d, v%d" % (O1 + r, O1 + r, T2))
    e("v_cvt_pk_bf16_f32 v%d, v%d, v%d" % (W0 + 2, O0 + 2, O0 + 3)); e("v_cvt_pk_bf16_f32 v%d, v%d, v%d" % (W0 + 3, O1 + 2, O1 + 3))
    if OPT.get("omask", 0): e("s_mov_b64 exec, s[50:51]")
    A.ds("ds_write_b64 v%d, %s offset:16" % (V_OWR, vr(W0 + 2, 2)), "ow")
    if OPT.get("omask", 0): e("s_mov_b64 exec, s[26:27]")
    if OPT["stage"] >= 3:
        e("v_mov_b32 v%d, v%d" % (V_S + 9, va)); e("v_mov_b32 v%d, v%d" % (V_S + 10, va + 4))
    ts(65)
    e("s_cmp_eq_u32 s%d, 63" % S_STEP); e("s_cbranch_scc1 L_chain_done")
    e("v_mfma_f32_32x32x16_bf16 %s, %s, %s, 0" % (vr(V_MEM, 16), vr(ZS, 4), vr(ZS, 4)))
    e("v_mfma_f32_32x32x16_bf16 %s, %s, %s, 0" % (vr(V_MEM + 16, 16), vr(ZS, 4), vr(ZS, 4)))
    e("v_add_u32 v%d, %d, v%d" % (T2, L_SEL, V_L16))
    A.ds("ds_read_b128 %s, v%d" % (vr(V_KX + 8, 4), T2), "sel")
    l3 = A.newlab("L_w3")
    e("s_cmp_eq_u32 s%d, 3" % S_WAVE); e("s_cbranch_scc0 %s" % l3); e("s_waitcnt vmcnt(%d)" % (8 if OPT["stage"] >= 3 else 4)); lab(l3)
    stamp(13, 2)
    A.wait_lds_all(); e("s_barrier")
    for t in range(2):
        A.ds("ds_read_b128 %s, v%d offset:%d" % (vr(V_KX + 4 * t, 4), T5, t * 1024), ("o", t))
    stamp(4)
    def wo(nt, t):
        e("v_smfmac_f32_16x16x64_bf16 %s, %s, %s, v%d" % (vr(V_MEM + 4 * nt, 4), vr(V_KX + 4 * t, 4), vr(V_WO + (nt * 2 + t) * 8, 8), V_IDX))
    def fin_l(nt, dst):
        T = V_MEM + 4 * nt
        return [lambda: e("v_add_f32 v%d, v%d, v%d" % (T, T, T + 1)), lambda: e("v_add_f32 v%d, v%d, v%d" % (T + 2, T + 2, T + 3)),
                lambda: e("v_cvt_pk_bf16_f32 v%d, v%d, v%d" % (dst, T, T + 2))] + ([lambda: e("v_bfi_b32 v%d, 1, s%d, v%d" % (dst, S_TAG, dst))] if (nt % 4 == 0 or OPT.get("fulltag", 0)) else [])
    A.wait_lds(("o", 0)); A.wait_lds(("o", 1))
    pub = [lambda: e("s_add_u32 s30, s%d, %d" % (S_PCUR, 4 * 8192)), lambda: e("s_bfe_u32 s%d, s%d, 0x10001" % (S_TAG, S_STEP)),
           lambda: e("v_lshrrev_b32 v%d, 2, v%d" % (T4, V_L16)), lambda: e("v_and_b32 v%d, 0xc0, v%d" % (T4, T4)),
           lambda: e("v_lshlrev_b32 v%d, 1, v%d" % (T3, V_L16)), lambda: e("v_and_b32 v%d, 32, v%d" % (T3, T3)), lambda: e("v_add_u32 v%d, v%d, v%d" % (T4, T4, T3)),
           lambda: e("v_lshrrev_b32 v%d, 3, v%d" % (T3, V_L16)), lambda: e("v_and_b32 v%d, 28, v%d" % (T3, T3)), lambda: e("v_add_u32 v%d, v%d, v%d" % (T4, T4, T3))]
    late = [lambda: e("s_add_u32 s%d, s%d, 8192" % (S_MNXT, S_MCUR)), lambda: e("s_cmp_eq_u32 s%d, %d" % (S_MNXT, WS_MB + 3 * 8192)), lambda: e("s_cselect_b32 s%d, %d, s%d" % (S_MNXT, WS_MB, S_MNXT)),
            lambda: e("s_add_u32 s%d, s%d, s%d" % (S_RED, S_PCUR, S_H13)), lambda: e("s_add_u32 s33, s%d, 4096" % S_RED), lambda: e("s_add_u32 s31, s%d, s%d" % (S_MNXT, S_H8))]
    q = pub[:]
    ts(60)
    for nt in range(8):
        if nt == 4: ts(61)
        for t in range(2):
            wo(nt, t)
            for _ in range(2):
                if q: q.pop(0)()
        if nt >= 2:
            q += fin_l(nt - 2, V_S + nt - 2)
            if nt - 2 == 3: q.append(lambda: e("buffer_store_dwordx4 %s, v%d, s[4:7], s%d offen %s" % (vr(V_S, 4), V_PS0, S_PCUR, PSTF)))
    ts(62)
    while q: q.pop(0)()
    for f in late[:3]: f()
    for nt in (6, 7):
        for f in fin_l(nt, V_S + nt): f()
    e("buffer_store_dwordx4 %s, v%d, s[4:7], s30 offen %s" % (vr(V_S + 4, 4), V_PS0, PSTF))
    for f in late[3:]: f()
    stamp(5)
    lp = A.newlab("L_nopois")
    e("s_cmp_eq_u32 s%d, 3" % S_WAVE); e("s_cbranch_scc0 %s" % lp)
    e("v_mov_b32 v%d, -1" % (V_S + 8))
    e("s_add_u32 s29, s%d, s%d" % (S_MPREV, S_H8))
    e("buffer_store_dword v%d, v%d, s[4:7], s29 offen" % (V_S + 8, T4))
    lab(lp)
    e("s_mov_b32 s%d, s%d" % (S_MPREV, S_MCUR))
    e("s_mov_b32 s%d, s%d" % (S_MCUR, S_MNXT)); e("s_xor_b32 s%d, s%d, 0x40000" % (S_PCUR, S_PCUR))
    e("s_xor_b32 s%d, s%d, 8192" % (S_PAR, S_PAR))
    e("s_add_u32 s%d, s%d, 1" % (S_STEP, S_STEP))
    nextprep()
    e("s_cmp_eq_u32 s%d, 0" % S_WAVE); e("s_cbranch_scc0 L_red_done")
    lab("L_reduce")
    QA_ = [V_MEM + 4 * x for x in range(8)]
    QB_ = [V_WVR, V_WVR + 4, V_WVR + 8, V_WVR + 12, V_VA, V_VA + 4, V_QK + 4, V_QK + 8]
    DA, DB = V_KX + 12, V_QK + 12
    assert OPT.get('red_sets', 1) == 1
    def red_issue(Q):
        for x in range(8):
            e("buffer_load_dwordx4 %s, v%d, s[4:7], s%d offen offset:%d sc1" % (vr(Q[x], 4), V_L16, S_RED if x < 4 else 33, (x & 3) * 1024))
    def red_proc(Q, D, tag, W, stampit=False):
        op = "0x80" if tag else "0xfe"
        for x in range(8):
            e("s_waitcnt vmcnt(%d)" % (W + 7 - x))
            if stampit and x in (0, 7): ts(41 + x)
            e("v_mfma_f32_16x16x32_bf16 %s, %s, %s, %s" % (vr(D, 4), vr(Q[x], 4), vr(V_KX + 8, 4), "0" if x == 0 else vr(D, 4)))
            a_ = Q[x]
            if OPT.get("fulltag", 0):
                if x == 0:
                    e("v_bitop3_b32 v%d, v%d, v%d, v%d bitop3:%s" % (T0, a_, a_ + 1, a_ + 2, op)); e("v_bitop3_b32 v%d, v%d, v%d, v%d bitop3:%s" % (T0, T0, a_ + 3, a_ + 3, op))
                else:
                    e("v_bitop3_b32 v%d, v%d, v%d, v%d bitop3:%s" % (T0, T0, a_, a_ + 1, op)); e("v_bitop3_b32 v%d, v%d, v%d, v%d bitop3:%s" % (T0, T0, a_ + 2, a_ + 3, op))
            else:
                if x == 1: e("v_bitop3_b32 v%d, v%d, v%d, v%d bitop3:%s" % (T0, Q[0], Q[1], Q[1], op))
                elif x in (3, 5, 7): e("v_bitop3_b32 v%d, v%d, v%d, v%d bitop3:%s" % (T0, T0, Q[x - 1], Q[x], op))
                if x == 3 and OPT.get("early", 0) and not OPT["nowait"]:
                    le = A.newlab("L_ee")
                    e("v_and_b32 v%d, 1, v%d" % (T1, T0)); e("v_cmp_ne_u32 vcc, %d, v%d" % (tag, T1))
                    e("s_cmp_gt_u32 s%d, 0x200000" % S_SPIN); e("s_cbranch_scc1 %s" % le)
                    e("s_cbranch_vccnz L_rretry%d" % tag)
                    lab(le)
        e("v_and_b32 v%d, 1, v%d" % (T0, T0))
        e("v_cmp_ne_u32 vcc, %d, v%d" % (tag, T0))
    two = OPT.get("red_sets", 1) == 2
    for i in range(OPT["dly_red"]): e("s_nop 7")
    red_issue(QA_)
    if two:
        for i in range(OPT.get("gap_red", 2)): e("s_nop 7")
        red_issue(QB_)
    ts(40)
    e("s_waitcnt lgkmcnt(0)")
    e("s_cmp_lg_u32 s%d, 0" % S_TAG); e("s_cbranch_scc1 L_prA1")
    for tag in range(2):
        lab("L_prA%d" % tag)
        e("s_add_u32 s%d, s%d, 1" % (S_SPIN, S_SPIN))
        red_proc(QA_, DA, tag, 8 if two else 0, True)
        e("s_cmp_gt_u32 s%d, 0x200000" % S_SPIN); e("s_cbranch_scc1 L_rgoA")
        if OPT["nowait"]: e("s_branch L_rgoA")
        e("s_cbranch_vccz L_rgoA")
        lab("L_rretry%d" % tag)
        red_issue(QA_)
        if two:
            red_proc(QB_, DB, tag, 8)
            e("s_nop 1")
            e("s_cbranch_vccz L_rgoB")
            red_issue(QB_)
        e("s_branch L_prA%d" % tag)
    if two:
        lab("L_rgoB")
        A.nop(4)
        e("v_cndmask_b32 v%d, v%d, v%d, s[48:49]" % (T0, DB + 2, DB)); e("v_cndmask_b32 v%d, v%d, v%d, s[48:49]" % (T1, DB + 3, DB + 1))
        e("s_branch L_rpub")
    lab("L_rgoA")
    A.nop(3)
    e("v_cndmask_b32 v%d, v%d, v%d, s[48:49]" % (T0, DA + 2, DA)); e("v_cndmask_b32 v%d, v%d, v%d, s[48:49]" % (T1, DA + 3, DA + 1))
    lab("L_rpub")
    ts(50)
    e("v_cvt_pk_bf16_f32 v%d, v%d, v%d" % (T0, T0, T1))
    e("buffer_store_dword v%d, v%d, s[4:7], s31 offen %s" % (T0, T4, PUBF))
    if OPT["hist"]:
        e("s_lshl_b32 s30, s%d, 13" % S_STEP); e("s_add_u32 s30, s30, s%d" % S_H8); e("s_add_u32 s30, s30, %d" % WS_HIST)
        e("buffer_store_dword v%d, v%d, s[4:7], s30 offen" % (T0, T4))
    lab("L_red_done")
    stamp(6)
    e("s_barrier")
    stamp(7)
    e("s_cmp_lt_u32 s%d, %d" % (S_STEP, OPT["nsteps"])); e("s_cbranch_scc1 L_step")
    if OPT["stage"] >= 3 and OPT["nsteps"] == 64 and OPT["final"]:
        e("s_branch L_chain_done")
        lab("L_tail63")
        e("s_waitcnt lgkmcnt(0)")
        for u in range(2): smf(V_VA + 4 * u, V_MEM + 28, vr(wvreg(7) + 8 * u, 8))
        e("v_lshrrev_b32 v6, 2, v%d" % V_L16)
        for u in range(2):
            e("buffer_store_dword v%d, v6, s[4:7], s38 offen offset:%d sc0 sc1" % (KA_ + 4 * u, u * 256))
        A.nop(8)
        for u in range(2):
            x = V_VA + 4 * u
            e("v_add_f32 v%d, v%d, v%d" % (x, x, x + 1)); e("v_add_f32 v%d, v%d, v%d" % (x + 2, x + 2, x + 3))
            e("v_cvt_pk_bf16_f32 v%d, v%d, v%d" % (x, x, x + 2))
            e("buffer_store_dword v%d, v6, s[4:7], s37 offen offset:%d sc0 sc1" % (x, u * 256))
        e("s_waitcnt vmcnt(0)"); e("s_barrier")
        lfk = A.newlab("L_fkm")
        e("s_cmp_eq_u32 s%d, 1" % S_WAVE); e("s_cbranch_scc0 L_end")
        e("v_mov_b32 v6, 64"); e("v_mov_b32 v7, 0")
        e("s_mov_b64 exec, 1"); e("buffer_store_dword v6, v7, s[4:7], s101 offen sc0 sc1"); e("s_mov_b64 exec, s[26:27]")
        e("s_waitcnt vmcnt(0)")
        e("s_branch L_end")
    lab("L_chain_done")
    rt(5)
    if OPT["stage"] >= 3:
        e("v_lshrrev_b32 v6, 2, v%d" % V_L16)
        for u in range(2): e("ds_read_b32 v%d, v%d offset:%d" % (8 + u, V_XWR, u * 512))
        for u in range(2):
            e("buffer_store_dword v%d, v6, s[4:7], s37 offen offset:%d sc0 sc1" % (V_S + 9 + u, u * 256))
        e("s_waitcnt lgkmcnt(0)")
        for u in range(2):
            e("buffer_store_dword v%d, v6, s[4:7], s38 offen offset:%d sc0 sc1" % (8 + u, u * 256))
        e("s_waitcnt vmcnt(0)"); e("s_barrier")
        lfk = A.newlab("L_fkm")
        e("s_cmp_eq_u32 s%d, 1" % S_WAVE); e("s_cbranch_scc0 %s" % lfk)
        e("v_mov_b32 v6, 64"); e("v_mov_b32 v7, 0"); e("s_lshl_b32 s28, s%d, 2" % S_HEAD); e("s_add_u32 s28, s28, %d" % FL_KM)
        e("s_mov_b64 exec, 1"); e("buffer_store_dword v6, v7, s[4:7], s28 offen sc0 sc1"); e("s_mov_b64 exec, s[26:27]")
        lab(lfk)
    if not OPT["final"]:
        e("s_memtime s[86:87]"); e("s_memrealtime s[90:91]"); e("s_waitcnt lgkmcnt(0)")
        e("s_sub_u32 s86, s86, s84"); e("s_sub_u32 s90, s90, s88")
        e("s_lshl_b32 s28, s%d, 2" % S_HEAD); e("s_add_u32 s28, s28, s%d" % S_WAVE); e("s_lshl_b32 s28, s28, 7"); e("s_add_u32 s28, s28, %d" % WS_STAMP)
        e("s_mov_b64 exec, 1"); e("v_mov_b32 v10, 0")
        vals = [86, 90, S_SPIN] + ([S_ST + i for i in range(16)] if OPT["stamps"] else []) + [64 + 2 * k for k in range(len(TS))]
        for i, r in enumerate(vals):
            e("v_mov_b32 v11, s%d" % r); e("buffer_store_dword v11, v10, s[4:7], s28 offen offset:%d" % (4 * i))
    e("s_waitcnt vmcnt(0)")
    e("s_branch L_end")

S_X = 12
S_SEG, S_K, S_NSEG, S_XB = 40, 41, 42, 43
S_RANK, S_SUB = 38, 37
def wait_dbg_counter(off_bytes_sgpr_or_int, target, lname):
    e("s_mov_b64 exec, 1")
    if isinstance(off_bytes_sgpr_or_int, int): e("v_mov_b32 v32, %d" % off_bytes_sgpr_or_int)
    else: e("v_mov_b32 v32, %s" % off_bytes_sgpr_or_int)
    e("s_mov_b32 s29, 0")
    lab(lname)
    e("global_load_dword v33, v32, s[24:25] sc0 sc1"); e("s_waitcnt vmcnt(0)"); e("v_readfirstlane_b32 s30, v33")
    e("s_add_u32 s29, s29, 1"); e("s_cmp_gt_u32 s29, 0x40000"); e("s_cbranch_scc1 %s_d" % lname)
    e("s_cmp_lt_u32 s30, %d" % target); e("s_cbranch_scc1 %s" % lname)
    lab(lname + "_d")
    e("s_mov_b64 exec, s[26:27]")

CV_HS, CV_CS = 4416, 17664
CV_XR, CV_XS = 70656, 7680
CV_YB = 101376
def conv_task():
    lskip = A.newlab("L_cv_skip")
    e("s_cmp_lt_u32 s%d, 2" % S_TEAM); e("s_cbranch_scc1 %s" % lskip)
    e("s_cmp_gt_u32 s%d, 5" % S_TEAM); e("s_cbranch_scc1 %s" % lskip)
    TASK, CH = 44, 45
    e("s_sub_u32 s%d, s%d, 2" % (TASK, S_TEAM)); e("s_lshl_b32 s%d, s%d, 5" % (TASK, TASK)); e("s_add_u32 s%d, s%d, s%d" % (TASK, TASK, S_HEAD))
    e("s_lshl_b32 s%d, s%d, 2" % (CH, TASK)); e("s_add_u32 s%d, s%d, s%d" % (CH, CH, S_WAVE))
    e("s_load_dwordx4 s[64:67], s[0:1], %d" % KA["q"])
    e("s_load_dwordx4 s[68:71], s[0:1], %d" % KA["v"])
    e("s_load_dwordx4 s[72:75], s[0:1], %d" % KA["ssmk"])
    e("s_load_dwordx2 s[76:77], s[0:1], %d" % KA["out"])
    e("s_waitcnt lgkmcnt(0)")
    e("s_lshl_b32 s28, s%d, 5" % TASK); e("s_add_u32 s70, s70, s28"); e("s_addc_u32 s71, s71, 0")
    e("s_lshl_b32 s28, s%d, 3" % TASK); e("s_add_u32 s74, s74, s28"); e("s_addc_u32 s75, s75, 0")
    e("s_load_dwordx8 s[80:87], s[70:71], 0"); e("s_load_dwordx2 s[88:89], s[74:75], 0")
    LN = 2
    e("v_lshrrev_b32 v%d, 4, v%d" % (LN, V_L16))
    srd(8, 72, 0x200000)
    e("s_mul_i32 s32, s%d, %d" % (S_WAVE, CV_CS))
    e("s_lshl_b32 s33, s%d, 12" % CH)
    for r in range(4):
        for i in range(4):
            e("s_add_u32 m0, s32, %d" % (r * CV_HS + 64 + i * 1024)); e("s_add_u32 s28, s33, %d" % (i * 1024 + 2 * r))
            e("buffer_load_dwordx4 v%d, s[8:11], s28 offen lds" % V_L16)
    for i in range(4): e("v_mov_b32 v%d, 0" % (4 + i))
    e("v_bfe_u32 v8, v%d, 2, 2" % LN); e("v_mul_u32_u24 v8, %d, v8" % CV_HS); e("v_and_b32 v9, 3, v%d" % LN); e("v_lshlrev_b32 v9, 4, v9"); e("v_add_u32 v8, v8, v9"); e("v_add_u32 v8, s32, v8")
    e("ds_write_b128 v8, v[4:7]")
    e("v_and_b32 v9, 3, v%d" % LN); e("v_lshlrev_b32 v10, 1, v9"); e("v_add_u32 v10, s33, v10")
    e("buffer_load_ushort v11, v10, s[8:11], 0 offen")
    e("v_bfe_u32 v12, v%d, 2, 2" % LN); e("v_mul_u32_u24 v13, %d, v12" % (CV_HS - 2)); e("v_lshlrev_b32 v14, 1, v9"); e("v_add_u32 v13, v13, v14"); e("v_add_u32 v13, 64, v13"); e("v_add_u32 v13, s32, v13")
    e("v_cmp_lt_u32 vcc, v9, v12"); e("v_cmp_gt_u32 s[30:31], 16, v%d" % LN); e("s_nop 1"); e("s_and_b64 s[30:31], s[30:31], vcc")
    e("s_mul_i32 s28, s%d, %d" % (S_WAVE, CV_XS)); e("s_add_u32 s28, s28, %d" % CV_XR); e("v_add_u32 v8, s28, v%d" % V_L16)
    e("ds_write_b128 v8, v[4:7]"); e("ds_write_b128 v8, v[4:7] offset:1024")
    e("v_cmp_gt_u32 vcc, 32, v%d" % LN); e("s_nop 1"); e("s_mov_b64 exec, vcc"); e("ds_write_b128 v8, v[4:7] offset:2048"); e("s_mov_b64 exec, s[26:27]")
    e("s_waitcnt vmcnt(0)")
    e("s_mov_b64 exec, s[30:31]"); e("ds_write_b16 v13, v11"); e("s_mov_b64 exec, s[26:27]")
    srd(8, 66, 0x200000)
    srd(12, 68, 0x200000)
    TH = 3
    e("s_lshl_b32 s28, s%d, 6" % S_WAVE); e("v_add_u32 v%d, s28, v%d" % (TH, LN))
    e("v_lshlrev_b32 v4, 13, v%d" % TH); e("s_lshl_b32 s28, s%d, 3" % TASK); e("v_add_u32 v4, s28, v4")
    KR, VR = 16, 40
    for j in range(11):
        e("v_add_u32 v5, %d, v4" % ((j - 3) * 1024 & 0xffffffff))
        e("buffer_load_dwordx2 %s, v5, s[8:11], 0 offen" % vr(KR + 2 * j, 2))
    for j in range(8):
        e("v_add_u32 v5, %d, v4" % (j * 1024))
        e("buffer_load_dwordx2 %s, v5, s[12:15], 0 offen" % vr(VR + 2 * j, 2))
    e("s_waitcnt lgkmcnt(0)")
    SK = {}
    for cch in range(4):
        for j in range(4):
            src = 80 + 2 * cch + (j >> 1)
            dst = 96 + cch * 4 + j
            if j & 1: e("s_and_b32 s28, s%d, 0xffff0000" % src)
            else: e("s_lshl_b32 s28, s%d, 16" % src)
            e("v_mov_b32 v%d, s28" % dst)
            SK[(cch, j)] = dst
    for cch in range(4):
        src = 88 + (cch >> 1)
        if cch & 1: e("s_and_b32 s28, s%d, 0xffff0000" % src)
        else: e("s_lshl_b32 s28, s%d, 16" % src)
        e("v_mov_b32 v%d, s28" % (112 + cch))
    e("s_waitcnt vmcnt(0)")
    KV = 116
    XP = 56
    for cch in range(4):
        d, hi = cch >> 1, cch & 1
        U = 72
        for j in range(11):
            if hi: e("v_and_b32 v%d, 0xffff0000, v%d" % (U + j, KR + 2 * j + d))
            else: e("v_lshlrev_b32 v%d, 16, v%d" % (U + j, KR + 2 * j + d))
        for t in range(8):
            e("v_mul_f32 v%d, v%d, v%d" % (84 + t, U + t, SK[(cch, 3)]))
            for j in (2, 1, 0):
                e("v_fmac_f32 v%d, v%d, v%d" % (84 + t, U + t + 3 - j, SK[(cch, j)]))
            if hi: e("v_and_b32 v92, 0xffff0000, v%d" % (VR + 2 * t + d))
            else: e("v_lshlrev_b32 v92, 16, v%d" % (VR + 2 * t + d))
            e("v_mul_f32 v%d, v%d, v92" % (84 + t, 84 + t))
        for p in range(4):
            e("v_cvt_pk_bf16_f32 v%d, v%d, v%d" % (XP + 4 * cch + p, 84 + 7 - 2 * p, 84 + 6 - 2 * p))
    e("v_lshrrev_b32 v4, 2, v%d" % TH); e("v_mul_u32_u24 v4, 80, v4"); e("v_and_b32 v5, 3, v%d" % TH); e("v_lshlrev_b32 v5, 4, v5"); e("v_add_u32 v4, v4, v5")
    e("v_add_u32 v4, %d, v4" % (CV_XR + 32 * 80))
    e("s_waitcnt lgkmcnt(0)"); e("s_barrier")
    for cch in range(4):
        e("ds_write_b128 v4, %s offset:%d" % (vr(XP + 4 * cch, 4), cch * CV_XS))
    srd(8, 64, 0x200000)
    e("v_lshlrev_b32 v4, 13, v%d" % TH); e("s_lshl_b32 s28, s%d, 3" % TASK); e("v_add_u32 v4, s28, v4")
    QR = 16
    for j in range(8):
        e("v_add_u32 v5, %d, v4" % (j * 1024))
        e("buffer_load_dwordx2 %s, v5, s[8:11], 0 offen" % vr(QR + 2 * j, 2))
    e("s_waitcnt lgkmcnt(0)"); e("s_barrier")
    e("v_and_b32 v6, 31, v%d" % LN); e("v_lshrrev_b32 v7, 5, v%d" % LN)
    e("v_add_u32 v8, 1, v6"); e("v_and_b32 v8, 3, v8"); e("v_mul_u32_u24 v8, %d, v8" % CV_HS)
    e("v_lshlrev_b32 v9, 3, v7"); e("v_sub_u32 v9, v6, v9"); e("v_add_u32 v9, 25, v9"); e("v_lshrrev_b32 v9, 2, v9"); e("v_lshlrev_b32 v9, 3, v9")
    e("v_add_u32 v8, v8, v9"); e("v_add_u32 v8, s32, v8"); e("v_subrev_u32 v8, 32, v8")
    e("v_mul_u32_u24 v9, 80, v6"); e("v_lshlrev_b32 v10, 4, v7"); e("v_add_u32 v9, v9, v10")
    e("s_mul_i32 s28, s%d, %d" % (S_WAVE, CV_XS)); e("s_add_u32 s28, s28, %d" % (CV_XR - 31 * 80)); e("v_add_u32 v9, s28, v9")
    Y0, Y1 = 128, 144
    FA, FB = 72, 88
    steps = []
    for dl in range(64):
        for kk in range(2):
            steps.append((dl, kk))
    A.lds = []
    def issue(n):
        dl, kk = steps[n]; u = 2 * dl - kk
        ra = FA + (n % 4) * 4
        A.ds("ds_read_b64 %s, v8 offset:%d" % (vr(ra, 2), (u + 1) * 32), ("cv", n))
        A.ds("ds_read_b64 %s, v8 offset:%d" % (vr(ra + 2, 2), (u + 1) * 32 + 8), ("cv", n))
        rb = 88 + (n % 3) * 8
        A.ds("ds_read_b128 %s, v9 offset:%d" % (vr(rb, 4), (63 - dl) * 80 + kk * 32 + 2560), ("cv", n))
        if dl <= 31:
            A.ds("ds_read_b128 %s, v9 offset:%d" % (vr(rb + 4, 4), (63 - dl) * 80 + kk * 32), ("cv", n))
    issue(0); issue(1)
    first = [True, True]
    for n in range(len(steps)):
        dl, kk = steps[n]
        A.wait_lds(("cv", n))
        ra = FA + (n % 4) * 4; rb = 88 + (n % 3) * 8
        e("v_mfma_f32_32x32x16_bf16 %s, %s, %s, %s" % (ar(Y1, 16), vr(ra, 4), vr(rb, 4), "0" if n == 0 else ar(Y1, 16)))
        if dl <= 31:
            e("v_mfma_f32_32x32x16_bf16 %s, %s, %s, %s" % (ar(Y0, 16), vr(ra, 4), vr(rb + 4, 4), "0" if n == 0 else ar(Y0, 16)))
        if n + 2 < len(steps): issue(n + 2)
    A.nop(16)
    e("v_lshlrev_b32 v10, 6, v6"); e("v_lshlrev_b32 v11, 3, v7"); e("v_add_u32 v10, v10, v11")
    e("s_lshl_b32 s28, s%d, 12" % S_WAVE); e("s_add_u32 s28, s28, %d" % CV_YB); e("v_add_u32 v10, s28, v10")
    for tile, Y in ((0, Y0), (1, Y1)):
        for q4 in range(4):
            for r in range(4): e("v_accvgpr_read_b32 v%d, a%d" % (72 + r, Y + 4 * q4 + r))
            e("s_nop 0")
            e("v_cvt_pk_bf16_f32 v76, v72, v73"); e("v_cvt_pk_bf16_f32 v77, v74, v75")
            e("ds_write_b64 v10, v[76:77] offset:%d" % (tile * 2048 + q4 * 16))
            e("s_nop 1")
    e("s_waitcnt lgkmcnt(0)"); e("s_barrier")
    e("v_lshlrev_b32 v4, 4, v%d" % TH); e("v_add_u32 v4, %d, v4" % CV_YB)
    YR = 72
    for cch in range(4):
        e("ds_read_b128 %s, v4 offset:%d" % (vr(YR + 4 * cch, 4), cch * 4096))
    e("s_waitcnt lgkmcnt(0) vmcnt(0)")
    srd(8, 76, 0x400000)
    OUTR = 40
    for t in range(8):
        for pr in range(2):
            vals = []
            for h in range(2):
                cch = 2 * pr + h
                ysrc = YR + 4 * cch + (t >> 1)
                if t & 1: e("v_and_b32 v%d, 0xffff0000, v%d" % (92 + h, ysrc))
                else: e("v_lshlrev_b32 v%d, 16, v%d" % (92 + h, ysrc))
                p = (7 - t) >> 1
                ksrc = XP + 4 * cch + p
                if (7 - t) & 1: e("v_and_b32 v94, 0xffff0000, v%d" % ksrc)
                else: e("v_lshlrev_b32 v94, 16, v%d" % ksrc)
                e("v_fmac_f32 v%d, v94, v%d" % (92 + h, 112 + cch))
                qsrc = QR + 2 * t + pr
                if h: e("v_and_b32 v94, 0xffff0000, v%d" % qsrc)
                else: e("v_lshlrev_b32 v94, 16, v%d" % qsrc)
                e("v_mul_f32 v%d, v%d, v94" % (92 + h, 92 + h))
            e("v_cvt_pk_bf16_f32 v%d, v92, v93" % (OUTR + 2 * t + pr))
    e("v_lshlrev_b32 v4, 14, v%d" % TH); e("s_lshl_b32 s28, s%d, 3" % TASK); e("v_add_u32 v4, s28, v4")
    for t in range(8):
        e("v_add_u32 v5, %d, v4" % (t * 2048))
        e("buffer_store_dwordx2 %s, v5, s[8:11], 0 offen" % vr(OUTR + 2 * t, 2))
    e("s_waitcnt vmcnt(0)"); e("s_barrier")
    e("s_load_dwordx2 s[30:31], s[0:1], %d" % KA["x"]); e("s_waitcnt lgkmcnt(0)")
    srd(S_X, 30, 0x200000)
    lab(lskip)

XL_T0, XL_QB, XL_KMI, XL_OB, XL_SEL = 0, 65536, 73728, 77824, 86016
S_OUT = 16
S_QT, S_EH, S_XPB, S_PAR2 = 44, 45, 46, 47
def xt_dma_g(seg_sgpr, buf_sgpr):
    e("s_lshr_b32 s28, s%d, 1" % S_WAVE); e("s_lshl_b32 s29, s%d, 15" % seg_sgpr); e("s_lshl_b32 s30, s28, 14"); e("s_add_u32 s29, s29, s30")
    e("s_and_b32 s30, s%d, 1" % S_WAVE); e("s_lshl_b32 s31, s30, 9"); e("s_add_u32 s29, s29, s31")
    e("s_lshl_b32 s31, s%d, 13" % S_WAVE); e("s_add_u32 s31, s31, s%d" % buf_sgpr)
    for i in range(8):
        e("s_add_u32 m0, s31, %d" % (i * 1024)); e("s_add_u32 s30, s29, %d" % (i * 64))
        e("buffer_load_dwordx4 v1, s[12:15], s30 offen lds")

def xphase2():
    L = VLANE
    e("s_mov_b32 s%d, s%d" % (S_HEAD, S_RANK))
    e("s_lshl_b32 s%d, s%d, 13" % (S_H13, S_HEAD)); e("s_lshl_b32 s%d, s%d, 8" % (S_H8, S_HEAD))
    e("s_cmp_eq_u32 s%d, 1" % S_TEAM); e("s_cselect_b32 s%d, 10, 9" % S_NSEG)
    e("s_barrier")
    e("v_lshrrev_b32 v%d, 4, v%d" % (L, V_L16))
    load_setup(32768)
    uq = units_qkv(0, "a", 0)
    for u in uq: u["perm"] = False
    load_units(uq + units_wo("v", V_WO), 8)
    e("s_barrier")
    rt(5)
    if OPT.get("conv", 0): conv_task()
    rt(6)
    KXF, VXF, QF, S, KMF, VMF, OO = 12, 44, 60, 76, 88, 104, 112
    T0, T1, T2, T3, T4, T5 = 6, 7, 8, 9, 10, 11
    V_THR, V_XPS, V_XD = 3, 4, 1
    e("v_lshrrev_b32 v%d, 4, v%d" % (L, V_L16))
    e("s_load_dwordx2 s[30:31], s[0:1], %d" % KA["out"])
    e("s_and_b32 s%d, s%d, 1" % (S_QT, S_WAVE)); e("s_lshr_b32 s%d, s%d, 1" % (S_EH, S_WAVE))
    e("v_lshrrev_b32 v1, 2, v%d" % L); e("v_lshrrev_b32 v2, 4, v%d" % L); e("v_xor_b32 v2, v2, v%d" % L); e("v_and_b32 v2, 3, v2"); e("v_lshlrev_b32 v2, 4, v2")
    e("v_lshlrev_b32 v1, 10, v1"); e("v_add_u32 v1, v1, v2")
    e("v_and_b32 v5, 15, v%d" % L); e("v_lshrrev_b32 v2, 2, v5"); e("v_lshrrev_b32 v34, 4, v%d" % L); e("v_xor_b32 v2, v2, v34"); e("v_and_b32 v2, 3, v2")
    e("v_lshlrev_b32 v5, 2, v5"); e("v_add_u32 v5, v5, v2"); e("v_lshlrev_b32 v5, 4, v5")
    e("v_and_b32 v%d, 15, v%d" % (V_THR, L)); e("v_lshrrev_b32 v2, 4, v%d" % L); e("v_lshlrev_b32 v2, 2, v2"); e("v_sub_u32 v%d, v%d, v2" % (V_THR, V_THR))
    e("s_lshl_b32 s28, s%d, 4" % S_QT); e("v_add_u32 v%d, s28, v%d" % (V_THR, V_THR))
    e("v_bfe_u32 v%d, v%d, 2, 2" % (V_XPS, L)); e("v_lshlrev_b32 v%d, 13, v%d" % (V_XPS, V_XPS))
    e("v_lshrrev_b32 v2, 4, v%d" % L); e("v_lshlrev_b32 v2, 6, v2"); e("v_add_u32 v%d, v%d, v2" % (V_XPS, V_XPS))
    e("v_and_b32 v2, 3, v%d" % L); e("v_lshlrev_b32 v2, 4, v2"); e("v_add_u32 v%d, v%d, v2" % (V_XPS, V_XPS)); e("v_add_u32 v%d, s%d, v%d" % (V_XPS, S_H8, V_XPS))
    e("v_and_b32 v6, 1, v%d" % L); e("v_lshlrev_b32 v6, 4, v6"); e("v_mov_b32 v7, 0x3f80"); e("v_lshlrev_b32 v7, v6, v7")
    e("v_bfe_u32 v6, v%d, 1, 2" % L)
    for i in range(4):
        e("v_cmp_eq_u32 vcc, %d, v6" % i); e("s_nop 1"); e("v_cndmask_b32 v%d, 0, v7, vcc" % (12 + i))
    e("v_add_u32 v6, %d, v%d" % (XL_SEL, V_L16)); e("ds_write_b128 v6, v[12:15]")
    e("s_waitcnt lgkmcnt(0)")
    srd(S_OUT, 30, 0x400000)
    cval = struct.unpack("<I", struct.pack("<f", (128 ** -0.5) * math.log2(math.e)))[0]
    e("s_mov_b32 s%d, 0x%08x" % (S_C, cval))
    e("s_lshl_b32 s%d, s%d, 21" % (S_XPB, S_TEAM)); e("s_add_u32 s%d, s%d, %d" % (S_XPB, S_XPB, WS_XP))
    e("s_sub_u32 s%d, s%d, 1" % (S_SEG, S_TEAM)); e("s_mov_b32 s%d, 0" % S_K); e("s_mov_b32 s%d, 0" % S_XB); e("s_mov_b32 s%d, 0" % S_PAR2)
    xt_dma_g(S_SEG, S_XB)
    e("s_and_b32 s33, s%d, 3" % S_TEAM); e("s_lshl_b32 s33, s33, 6"); e("s_lshr_b32 s29, s%d, 2" % S_TEAM); e("s_lshl_b32 s29, s29, 2"); e("s_add_u32 s33, s33, s29"); e("s_add_u32 s33, s33, 16")
    wait_dbg_counter("s33", 32, "L_x2_init")
    lab("L_x2")
    A.lds = []; A.vm = []
    lkv = A.newlab("L_x2kv")
    e("s_cmp_lg_u32 s%d, 0" % S_WAVE); e("s_cbranch_scc1 %s_s" % lkv)
    e("s_mov_b64 exec, 1"); e("v_mov_b32 v6, 0"); e("s_lshl_b32 s28, s%d, 7" % S_TEAM); e("s_lshl_b32 s29, s%d, 2" % S_HEAD); e("s_add_u32 s28, s28, s29"); e("s_add_u32 s28, s28, %d" % FL_KV); e("s_mov_b32 s29, 0")
    lab(lkv)
    e("buffer_load_dword v7, v6, s[4:7], s28 offen sc0 sc1"); e("s_waitcnt vmcnt(0)"); e("v_readfirstlane_b32 s30, v7")
    e("s_add_u32 s29, s29, 1"); e("s_cmp_gt_u32 s29, 0x80000"); e("s_cbranch_scc1 %s_d" % lkv)
    e("s_cmp_gt_u32 s30, s%d" % S_K); e("s_cbranch_scc1 %s_d" % lkv)
    e("s_sleep 8"); e("s_branch %s" % lkv)
    lab(lkv + "_d")
    e("s_mov_b64 exec, s[26:27]")
    lab(lkv + "_s")
    e("s_waitcnt vmcnt(0)"); e("s_barrier")
    e("s_lshl_b32 s28, s%d, 18" % S_SEG); e("s_add_u32 s28, s28, s%d" % S_H13)
    e("s_add_u32 s29, s28, %d" % WS_KX); e("s_add_u32 s30, s29, 4096")
    for kt in range(2):
        for kk in range(4):
            A.vmem("buffer_load_dwordx4 %s, v%d, s[4:7], s%d offen offset:%d sc1" % (vr(KXF + (kt * 4 + kk) * 4, 4), V_L16, 29 + kt, kk * 1024), "kx")
    e("s_lshl_b32 s29, s%d, 12" % S_EH); e("s_add_u32 s29, s29, s28"); e("s_add_u32 s29, s29, %d" % WS_VX)
    for i in range(4):
        A.vmem("buffer_load_dwordx4 %s, v%d, s[4:7], s29 offen offset:%d sc1" % (vr(VXF + 4 * i, 4), V_L16, i * 1024), "vx")
    ln = A.newlab("L_x2n")
    e("s_add_u32 s32, s%d, 1" % S_K); e("s_cmp_ge_u32 s32, s%d" % S_NSEG); e("s_cbranch_scc1 %s" % ln)
    e("s_add_u32 s33, s%d, 7" % S_SEG); e("s_xor_b32 s36, s%d, 32768" % S_XB)
    xt_dma_g(33, 36)
    lab(ln)
    XF = KMF
    e("v_add_u32 v2, s%d, v5" % S_XB)
    def rdx(kk):
        for tt in range(2):
            A.ds("ds_read_b128 %s, v2 offset:%d" % (vr(XF + (kk % 2) * 8 + tt * 4, 4), (tt * 16 + kk) * 1024), ("x", kk))
    rdx(0); rdx(1)
    for kk in range(16):
        A.wait_lds(("x", kk))
        t, b = kk >> 1, kk & 1
        for u in range(2):
            for tt in range(2):
                xf = vr(XF + (kk % 2) * 8 + tt * 4, 4)
                cq = "0" if kk == 0 else vr(QF + (u * 2 + tt) * 4, 4)
                e("v_mfma_f32_16x16x32_bf16 %s, %s, %s, %s" % (vr(QF + (u * 2 + tt) * 4, 4), ar((u * 8 + t) * 8 + 4 * b, 4), xf, cq))
        if kk + 2 < 16: rdx(kk + 2)
    A.nop(8)
    for tt in range(2):
        for u in range(2):
            a0 = QF + (u * 2 + tt) * 4
            e("v_cvt_pk_bf16_f32 v%d, v%d, v%d" % (OO + tt * 4 + 2 * u, a0, a0 + 1)); e("v_cvt_pk_bf16_f32 v%d, v%d, v%d" % (OO + tt * 4 + 2 * u + 1, a0 + 2, a0 + 3))
    e("s_lshl_b32 s28, s%d, 10" % S_WAVE); e("s_add_u32 s28, s28, %d" % XL_QB); e("v_add_u32 v2, s28, v%d" % V_L16)
    for tt in range(2):
        A.ds("ds_write_b128 v2, %s offset:%d" % (vr(OO + tt * 4, 4), tt * 4096), "qw")
    A.wait_lds_all(); e("s_barrier")
    e("s_lshl_b32 s28, s%d, 12" % S_QT); e("s_add_u32 s28, s28, %d" % XL_QB); e("v_add_u32 v2, s28, v%d" % V_L16)
    for kk in range(4):
        A.ds("ds_read_b128 %s, v2 offset:%d" % (vr(QF + 4 * kk, 4), kk * 1024), ("q", kk))
    e("s_waitcnt vmcnt(12)")
    l12 = A.newlab("L_x2w")
    e("s_cmp_lt_u32 s32, s%d" % S_NSEG); e("s_cbranch_scc1 %s" % l12); e("s_waitcnt vmcnt(4)"); lab(l12)
    for kk in range(4):
        A.wait_lds(("q", kk))
        for kt in range(2):
            cs = "0" if kk == 0 else vr(S + 4 * kt, 4)
            e("v_mfma_f32_16x16x32_bf16 %s, %s, %s, %s" % (vr(S + 4 * kt, 4), vr(KXF + (kt * 4 + kk) * 4, 4), vr(QF + 4 * kk, 4), cs))
    lw = A.newlab("L_x2km")
    e("s_cmp_lg_u32 s%d, 0" % S_WAVE); e("s_cbranch_scc1 %s_s" % lw)
    e("s_mov_b64 exec, 1"); e("v_mov_b32 v%d, 0" % T0); e("s_lshl_b32 s28, s%d, 2" % S_HEAD); e("s_add_u32 s28, s28, %d" % FL_KM); e("s_mov_b32 s29, 0")
    lab(lw)
    e("buffer_load_dword v%d, v%d, s[4:7], s28 offen sc0 sc1" % (T1, T0)); e("s_waitcnt vmcnt(0)"); e("v_readfirstlane_b32 s30, v%d" % T1)
    e("s_add_u32 s29, s29, 1"); e("s_cmp_gt_u32 s29, 0x80000"); e("s_cbranch_scc1 %s_d" % lw)
    e("s_cmp_gt_u32 s30, s%d" % S_SEG); e("s_cbranch_scc1 %s_d" % lw)
    e("s_add_u32 s30, s30, 2"); e("s_cmp_gt_u32 s30, s%d" % S_SEG); e("s_cbranch_scc1 %s_n" % lw)
    e("s_sleep %d" % OPT.get("slp", 8)); e("s_branch %s" % lw)
    lab(lw + "_n")
    e("s_sleep 2"); e("s_branch %s" % lw)
    lab(lw + "_d")
    e("s_mov_b64 exec, s[26:27]")
    lab(lw + "_s")
    e("s_waitcnt vmcnt(0)"); e("s_barrier")
    rtk(8, S_SEG, 63)
    e("s_lshl_b32 s28, s%d, 16" % S_SEG); e("s_lshl_b32 s29, s%d, 11" % S_HEAD); e("s_add_u32 s28, s28, s29")
    e("s_lshl_b32 s29, s%d, 9" % S_WAVE); e("s_add_u32 s29, s29, s28"); e("s_add_u32 s29, s29, %d" % WS_KM)
    e("v_lshrrev_b32 v%d, 2, v%d" % (T0, V_L16))
    for u in range(2):
        e("buffer_load_dword v%d, v%d, s[4:7], s29 offen offset:%d sc1" % (T2 + u, T0, u * 256))
    e("s_lshl_b32 s29, s%d, 10" % S_EH); e("s_add_u32 s29, s29, s28"); e("s_add_u32 s29, s29, %d" % WS_VM)
    for i in range(4):
        e("buffer_load_dword v%d, v%d, s[4:7], s29 offen offset:%d sc1" % (VMF + 2 * i, T0, i * 256))
        e("v_mov_b32 v%d, 0" % (VMF + 2 * i + 1))
    e("v_and_b32 v%d, 0xf0, v%d" % (T4, V_L16)); e("v_lshlrev_b32 v%d, 1, v%d" % (T4, T4)); e("v_lshrrev_b32 v%d, 8, v%d" % (T1, V_L16)); e("v_lshlrev_b32 v%d, 3, v%d" % (T1, T1))
    e("v_add_u32 v%d, v%d, v%d" % (T4, T4, T1)); e("s_lshl_b32 s29, s%d, 10" % S_WAVE); e("s_add_u32 s29, s29, %d" % XL_KMI); e("v_add_u32 v%d, s29, v%d" % (T4, T4))
    e("s_waitcnt vmcnt(0)")
    for u in range(2):
        e("ds_write_b32 v%d, v%d offset:%d" % (T4, T2 + u, u * 512))
    e("s_waitcnt lgkmcnt(0)"); e("s_barrier")
    rtk(9, S_SEG, 63)
    e("v_lshrrev_b32 v%d, 1, v%d" % (T0, V_L16))
    e("v_add_u32 v%d, %d, v%d" % (T0, XL_KMI, T0))
    for kk in range(4):
        for b in range(2):
            A.ds("ds_read_b64_tr_b16 %s, v%d offset:%d" % (vr(KMF + 4 * kk + 2 * b, 2), T0, kk * 1024 + b * 512), ("km", kk))
    for kk in range(4):
        A.wait_lds(("km", kk))
        e("v_mfma_f32_16x16x32_bf16 %s, %s, %s, %s" % (vr(S + 8, 4), vr(KMF + 4 * kk, 4), vr(QF + 4 * kk, 4), "0" if kk == 0 else vr(S + 8, 4)))
    e("v_mov_b32 v%d, 0xff800000" % T5)
    for kt in range(2):
        for r in range(4):
            e("v_cmp_gt_i32 vcc, %d, v%d" % (16 * kt + r, V_THR)); e("s_nop 1"); e("v_cndmask_b32 v%d, v%d, v%d, vcc" % (S + 4 * kt + r, S + 4 * kt + r, T5))
    A.nop(2)
    e("v_max3_f32 v%d, v%d, v%d, v%d" % (T0, S, S + 1, S + 2)); e("v_max3_f32 v%d, v%d, v%d, v%d" % (T1, S + 4, S + 5, S + 6))
    e("v_max3_f32 v%d, v%d, v%d, v%d" % (T0, T0, S + 3, S + 7)); e("v_max3_f32 v%d, v%d, v%d, v%d" % (T1, T1, S + 8, S + 9))
    e("v_max_f32 v%d, v%d, v%d" % (T0, T0, T1))
    e("v_mov_b32 v%d, v%d" % (T1, T0)); A.nop(2); e("v_permlane16_swap_b32 v%d, v%d" % (T0, T1)); e("v_max_f32 v%d, v%d, v%d" % (T0, T0, T1))
    e("v_mov_b32 v%d, v%d" % (T1, T0)); A.nop(2); e("v_permlane32_swap_b32 v%d, v%d" % (T0, T1)); e("v_max_f32 v%d, v%d, v%d" % (T0, T0, T1))
    e("v_mul_f32 v%d, s%d, v%d" % (T0, S_C, T0))
    for i in range(10): e("v_fma_f32 v%d, v%d, s%d, -v%d" % (S + i, S + i, S_C, T0))
    for i in range(10): e("v_exp_f32 v%d, v%d" % (S + i, S + i))
    e("s_nop 0")
    e("v_add_f32 v%d, v%d, v%d" % (T2, S, S + 1)); e("v_add_f32 v%d, v%d, v%d" % (T3, S + 2, S + 3))
    for i in range(4, 10, 2):
        e("v_add_f32 v%d, v%d, v%d" % (T2, T2, S + i)); e("v_add_f32 v%d, v%d, v%d" % (T3, T3, S + i + 1))
    e("v_add_f32 v%d, v%d, v%d" % (T2, T2, T3))
    for i in range(4): e("v_cvt_pk_bf16_f32 v%d, v%d, v%d" % (S + i, S + 2 * i, S + 2 * i + 1))
    e("v_cvt_pk_bf16_f32 v%d, v%d, v%d" % (S + 10, S + 8, S + 9)); e("v_mov_b32 v%d, 0" % (S + 11))
    e("v_mov_b32 v%d, v%d" % (T3, T2)); A.nop(2); e("v_permlane16_swap_b32 v%d, v%d" % (T2, T3)); e("v_add_f32 v%d, v%d, v%d" % (T2, T2, T3))
    e("v_mov_b32 v%d, v%d" % (T3, T2)); A.nop(2); e("v_permlane32_swap_b32 v%d, v%d" % (T2, T3)); e("v_add_f32 v%d, v%d, v%d" % (T2, T2, T3))
    e("v_rcp_f32 v%d, v%d" % (T2, T2))
    for i in range(4):
        e("v_mfma_f32_16x16x32_bf16 %s, %s, %s, 0" % (vr(OO + 4 * i, 4), vr(VXF + 4 * i, 4), vr(S, 4)))
    for i in range(4):
        e("v_mfma_f32_16x16x16_bf16 %s, %s, %s, %s" % (vr(OO + 4 * i, 4), vr(VMF + 2 * i, 2), vr(S + 10, 2), vr(OO + 4 * i, 4)))
    A.nop(8)
    for i in range(16): e("v_mul_f32 v%d, v%d, v%d" % (OO + i, OO + i, T2))
    for j in range(2):
        for tsub in range(2):
            a0 = OO + (2 * j + tsub) * 4
            e("v_cvt_pk_bf16_f32 v%d, v%d, v%d" % (QF + 4 * j + 2 * tsub, a0, a0 + 1)); e("v_cvt_pk_bf16_f32 v%d, v%d, v%d" % (QF + 4 * j + 2 * tsub + 1, a0 + 2, a0 + 3))
    e("s_lshl_b32 s28, s%d, 12" % S_QT); e("s_lshl_b32 s29, s%d, 11" % S_EH); e("s_add_u32 s28, s28, s29"); e("s_add_u32 s28, s28, %d" % XL_OB); e("v_add_u32 v2, s28, v%d" % V_L16)
    for j in range(2):
        A.ds("ds_write_b128 v2, %s offset:%d" % (vr(QF + 4 * j, 4), j * 1024), "ow")
    A.wait_lds_all(); e("s_barrier")
    rtk(10, S_SEG, 63)
    e("v_add_u32 v2, %d, v%d" % (XL_OB, V_L16))
    ACC, AF, PKR = 12, 44, 60
    e("s_add_u32 s33, s%d, s%d" % (S_XPB, S_PAR2))
    for qt in range(2):
        for kk in range(4):
            A.ds("ds_read_b128 %s, v2 offset:%d" % (vr(AF + 4 * kk, 4), qt * 4096 + kk * 1024), ("o", kk))
        for kk in range(4):
            A.wait_lds(("o", kk))
            t, b = kk >> 1, kk & 1
            for nt in range(8):
                e("v_mfma_f32_16x16x32_bf16 %s, %s, %s, %s" % (vr(ACC + 4 * nt, 4), vr(AF + 4 * kk, 4), vr(V_WO + (nt * 2 + t) * 8 + 4 * b, 4), "0" if kk == 0 else vr(ACC + 4 * nt, 4)))
        A.nop(8)
        for p in range(4):
            for tsub in range(2):
                a0 = ACC + 4 * (2 * p + tsub)
                e("v_cvt_pk_bf16_f32 v%d, v%d, v%d" % (PKR + 4 * p + 2 * tsub, a0, a0 + 1)); e("v_cvt_pk_bf16_f32 v%d, v%d, v%d" % (PKR + 4 * p + 2 * tsub + 1, a0 + 2, a0 + 3))
            e("s_lshl_b32 s28, s%d, 17" % S_WAVE); e("s_add_u32 s28, s28, s33"); e("s_add_u32 s28, s28, %d" % ((qt * 16 + p) * 4 * 8192))
            e("buffer_store_dwordx4 %s, v%d, s[4:7], s28 offen" % (vr(PKR + 4 * p, 4), V_XPS))
        A.nop(2)
    e("s_waitcnt vmcnt(0)"); e("s_barrier")
    rtk(11, S_SEG, 63)
    lf = A.newlab("L_x2f")
    e("s_cmp_lg_u32 s%d, 0" % S_WAVE); e("s_cbranch_scc1 %s" % lf)
    e("s_add_u32 s28, s%d, 1" % S_K); e("v_mov_b32 v%d, s28" % T0); e("v_mov_b32 v%d, 0" % T1)
    e("s_lshl_b32 s28, s%d, 7" % S_TEAM); e("s_lshl_b32 s29, s%d, 2" % S_HEAD); e("s_add_u32 s28, s28, s29"); e("s_add_u32 s28, s28, %d" % FL_XP)
    e("s_mov_b64 exec, 1"); e("buffer_store_dword v%d, v%d, s[4:7], s28 offen" % (T0, T1)); e("s_mov_b64 exec, s[26:27]")
    lab(lf)
    lw = A.newlab("L_x2r")
    e("v_lshrrev_b32 v%d, 2, v%d" % (T0, V_L16)); e("v_and_b32 v%d, 127, v%d" % (T0, T0))
    e("s_lshl_b32 s28, s%d, 7" % S_TEAM); e("s_add_u32 s28, s28, %d" % FL_XP); e("s_mov_b32 s29, 0")
    e("v_add_u32 v%d, %d, v%d" % (T3, XL_SEL, V_L16)); e("ds_read_b128 v[44:47], v%d" % T3)
    lab(lw)
    e("buffer_load_dword v%d, v%d, s[4:7], s28 offen sc1" % (T1, T0)); e("s_waitcnt vmcnt(0)")
    e("v_cmp_ge_u32 vcc, s%d, v%d" % (S_K, T1))
    e("s_add_u32 s29, s29, 1"); e("s_cmp_gt_u32 s29, 0x80000"); e("s_cbranch_scc1 %s_d" % lw)
    e("s_cbranch_vccnz %s" % lw)
    lab(lw + "_d")
    rtk(12, S_SEG, 63)
    e("s_lshl_b32 s28, s%d, 2" % S_HEAD); e("s_add_u32 s28, s28, s%d" % S_WAVE); e("s_lshl_b32 s28, s28, 13"); e("s_add_u32 s28, s28, s33"); e("s_add_u32 s29, s28, 4096")
    for x in range(8):
        e("buffer_load_dwordx4 %s, v%d, s[4:7], s%d offen offset:%d sc1" % (vr(12 + 4 * x, 4), V_L16, 28 if x < 4 else 29, (x & 3) * 1024))
    e("s_waitcnt lgkmcnt(0)")
    for x in range(8):
        e("s_waitcnt vmcnt(%d)" % (7 - x))
        e("v_mfma_f32_16x16x32_bf16 v[48:51], %s, v[44:47], %s" % (vr(12 + 4 * x, 4), "0" if x == 0 else "v[48:51]"))
    e("v_lshrrev_b32 v%d, 8, v%d" % (T0, V_L16)); e("v_lshlrev_b32 v%d, 2, v%d" % (T0, T0))
    e("v_bfe_u32 v%d, v%d, 4, 2" % (T1, V_L16)); e("v_add_u32 v%d, v%d, v%d" % (T0, T0, T1)); e("v_lshlrev_b32 v%d, 11, v%d" % (T0, T0))
    e("v_bfe_u32 v%d, v%d, 6, 1" % (T1, V_L16)); e("v_lshlrev_b32 v%d, 3, v%d" % (T1, T1)); e("v_add_u32 v%d, v%d, v%d" % (T0, T0, T1))
    e("s_lshr_b32 s28, s%d, 4" % S_HEAD); e("s_lshl_b32 s28, s28, 4"); e("s_lshl_b32 s29, s%d, 5" % S_SEG); e("s_add_u32 s28, s28, s29"); e("s_lshl_b32 s28, s28, 11")
    e("s_bfe_u32 s29, s%d, 0x20002" % S_HEAD); e("s_lshl_b32 s29, s29, 8"); e("s_add_u32 s28, s28, s29")
    e("s_bfe_u32 s29, s%d, 0x10001" % S_HEAD); e("s_lshl_b32 s29, s29, 7"); e("s_add_u32 s28, s28, s29")
    e("s_and_b32 s29, s%d, 1" % S_HEAD); e("s_lshl_b32 s29, s29, 4"); e("s_add_u32 s28, s28, s29")
    e("s_lshl_b32 s29, s%d, 5" % S_WAVE); e("s_add_u32 s28, s28, s29"); e("s_add_u32 s28, s28, 1024")
    A.nop(4)
    e("v_cvt_pk_bf16_f32 v48, v48, v49"); e("v_cvt_pk_bf16_f32 v49, v50, v51")
    e("v_and_b32 v%d, 128, v%d" % (T1, V_L16)); e("v_cmp_eq_u32 vcc, 0, v%d" % T1)
    e("s_nop 1")
    e("s_mov_b64 exec, vcc")
    e("buffer_store_dwordx2 v[48:49], v%d, s[16:19], s28 offen" % T0)
    e("s_mov_b64 exec, s[26:27]")
    e("s_add_u32 s%d, s%d, 7" % (S_SEG, S_SEG)); e("s_xor_b32 s%d, s%d, 32768" % (S_XB, S_XB)); e("s_xor_b32 s%d, s%d, 0x100000" % (S_PAR2, S_PAR2))
    e("s_add_u32 s%d, s%d, 1" % (S_K, S_K))
    e("s_cmp_lt_u32 s%d, s%d" % (S_K, S_NSEG)); e("s_cbranch_scc1 L_x2")
    e("s_waitcnt vmcnt(0)")
    rt(7)
    e("s_branch L_end")

def xteam():
    L = VLANE
    lab("L_xteam")
    e("v_lshlrev_b32 v%d, 4, v%d" % (V_L16, L))
    e("s_load_dwordx2 s[30:31], s[0:1], %d" % KA["x"])
    e("v_lshrrev_b32 v1, 2, v%d" % L); e("v_lshrrev_b32 v2, 4, v%d" % L); e("v_xor_b32 v2, v2, v%d" % L); e("v_and_b32 v2, 3, v2"); e("v_lshlrev_b32 v2, 4, v2")
    e("v_lshlrev_b32 v1, 10, v1"); e("v_add_u32 v1, v1, v2")
    e("v_and_b32 v5, 15, v%d" % L); e("v_lshrrev_b32 v2, 2, v5"); e("v_lshrrev_b32 v34, 4, v%d" % L); e("v_xor_b32 v2, v2, v34"); e("v_and_b32 v2, 3, v2")
    e("v_lshlrev_b32 v5, 2, v5"); e("v_add_u32 v5, v5, v2"); e("v_lshlrev_b32 v5, 4, v5")
    e("s_waitcnt lgkmcnt(0)")
    srd(S_X, 30, 0x200000)
    if OPT["stage"] >= 3:
        lx = A.newlab("L_xi")
        e("s_cmp_lg_u32 s%d, 1" % S_WAVE); e("s_cbranch_scc1 %s" % lx)
        e("s_mov_b64 exec, 1")
        e("v_mov_b32 v32, 0"); e("s_lshl_b32 s28, s%d, 7" % S_TEAM); e("s_lshl_b32 s29, s%d, 2" % S_HEAD); e("s_add_u32 s28, s28, s29"); e("s_add_u32 s28, s28, %d" % FL_XP)
        e("buffer_store_dword v32, v32, s[4:7], s28 offen"); e("s_waitcnt vmcnt(0)")
        e("s_and_b32 s28, s%d, 3" % S_TEAM); e("s_lshl_b32 s28, s28, 6"); e("s_lshr_b32 s29, s%d, 2" % S_TEAM); e("s_lshl_b32 s29, s29, 2"); e("s_add_u32 s28, s28, s29"); e("s_add_u32 s28, s28, 16")
        e("v_mov_b32 v32, s28"); e("v_mov_b32 v33, 1")
        e("global_atomic_add v32, v33, s[24:25] sc1")
        e("s_mov_b64 exec, s[26:27]")
        lab(lx)
    if OPT.get("warm", 1):
        e("s_sub_u32 s28, s%d, 1" % S_TEAM); e("s_lshl_b32 s28, s28, 5"); e("s_add_u32 s28, s28, s%d" % S_HEAD); e("s_lshl_b32 s28, s28, 2"); e("s_add_u32 s28, s28, s%d" % S_WAVE)
        e("s_mul_i32 s28, s28, 5120")
        for which, base in ((0, 100), (3, 104)):
            p = S_PW + 2 * which
            e("s_mov_b32 s8, s%d" % p); e("s_mov_b32 s9, s%d" % (p + 1)); e("s_mov_b32 s10, 0x400000"); e("s_mov_b32 s11, 0x20000")
            for i in range(5):
                e("s_add_u32 s29, s28, %d" % (i * 1024))
                e("buffer_load_dwordx4 %s, v%d, s[8:11], s29 offen" % (vr(base, 4), V_L16))
    e("s_mov_b32 s%d, s%d" % (S_RANK, S_HEAD))
    e("s_sub_u32 s28, s%d, 1" % S_TEAM); e("s_lshl_b32 s28, s28, 5"); e("s_add_u32 s28, s28, s%d" % S_HEAD)
    e("s_mul_i32 s29, s28, 9363"); e("s_lshr_b32 s%d, s29, 16" % S_HEAD); e("s_mul_i32 s29, s%d, 7" % S_HEAD); e("s_sub_u32 s%d, s28, s29" % S_SUB)
    e("s_lshl_b32 s%d, s%d, 13" % (S_H13, S_HEAD)); e("s_lshl_b32 s%d, s%d, 8" % (S_H8, S_HEAD))
    e("s_cmp_eq_u32 s%d, 0" % S_SUB); e("s_cselect_b32 s%d, 10, 9" % S_NSEG)
    load_setup(32768)
    uk = units_qkv(1, "a", 128); uv = units_qkv(2, "v", 128)
    for u in uk + uv: u["perm"] = False
    rt(2)
    load_units(uk + uv, 8)
    e("s_barrier")
    rt(3)
    def xt_dma(seg_sgpr, buf_sgpr):
        e("s_lshr_b32 s28, s%d, 1" % S_WAVE); e("s_lshl_b32 s29, s%d, 15" % seg_sgpr); e("s_lshl_b32 s30, s28, 14"); e("s_add_u32 s29, s29, s30")
        e("s_and_b32 s30, s%d, 1" % S_WAVE); e("s_lshl_b32 s31, s30, 9"); e("s_add_u32 s29, s29, s31")
        e("s_lshl_b32 s31, s%d, 13" % S_WAVE); e("s_add_u32 s31, s31, s%d" % buf_sgpr)
        for i in range(8):
            e("s_add_u32 m0, s31, %d" % (i * 1024)); e("s_add_u32 s30, s29, %d" % (i * 64))
            e("buffer_load_dwordx4 v1, s[12:15], s30 offen lds")
    e("s_mov_b32 s%d, s%d" % (S_SEG, S_SUB)); e("s_mov_b32 s%d, 0" % S_K); e("s_mov_b32 s%d, 0" % S_XB)
    xt_dma(S_SEG, S_XB)
    if OPT["stage"] >= 2:
        wait_dbg_counter(24, 32, "L_x1_init")
    AK, AV, XF, PK = 40, 56, 72, 88
    lab("L_x1")
    e("s_waitcnt vmcnt(4)")
    l0 = A.newlab("L_x1a")
    e("s_cmp_lg_u32 s%d, 0" % S_K); e("s_cbranch_scc1 %s" % l0); e("s_waitcnt vmcnt(0)"); lab(l0)
    e("s_barrier")
    lf = A.newlab("L_x1f")
    e("s_cmp_lt_u32 s%d, 2" % S_K); e("s_cbranch_scc1 %s" % lf)
    e("s_cmp_lg_u32 s%d, 0" % S_WAVE); e("s_cbranch_scc1 %s" % lf)
    e("s_sub_u32 s28, s%d, 1" % S_K); e("v_mov_b32 v32, s28"); e("v_mov_b32 v33, 0")
    e("s_lshl_b32 s28, s%d, 7" % S_SUB); e("s_lshl_b32 s29, s%d, 2" % S_HEAD); e("s_add_u32 s28, s28, s29"); e("s_add_u32 s28, s28, %d" % (FL_KV + 128))
    e("s_mov_b64 exec, 1"); e("buffer_store_dword v32, v33, s[4:7], s28 offen sc0 sc1"); e("s_mov_b64 exec, s[26:27]")
    lab(lf)
    ln = A.newlab("L_x1n")
    e("s_add_u32 s32, s%d, 1" % S_K); e("s_cmp_ge_u32 s32, s%d" % S_NSEG); e("s_cbranch_scc1 %s" % ln)
    e("s_add_u32 s33, s%d, 7" % S_SEG); e("s_xor_b32 s36, s%d, 32768" % S_XB)
    xt_dma(33, 36)
    lab(ln)
    e("v_add_u32 v2, s%d, v5" % S_XB)
    A.lds = []
    def rdx(kk):
        for tt in range(2):
            A.ds("ds_read_b128 %s, v2 offset:%d" % (vr(XF + (kk % 2) * 8 + tt * 4, 4), (tt * 16 + kk) * 1024), ("x", kk))
    rdx(0); rdx(1)
    for kk in range(16):
        A.wait_lds(("x", kk))
        t, b = kk >> 1, kk & 1
        for u in range(2):
            for tt in range(2):
                xf = vr(XF + (kk % 2) * 8 + tt * 4, 4)
                ck = "0" if kk == 0 else vr(AK + (u * 2 + tt) * 4, 4)
                cv = "0" if kk == 0 else vr(AV + (u * 2 + tt) * 4, 4)
                e("v_mfma_f32_16x16x32_bf16 %s, %s, %s, %s" % (vr(AK + (u * 2 + tt) * 4, 4), ar(128 + (u * 8 + t) * 8 + 4 * b, 4), xf, ck))
                e("v_mfma_f32_16x16x32_bf16 %s, %s, %s, %s" % (vr(AV + (u * 2 + tt) * 4, 4), xf, vr(128 + (u * 8 + t) * 8 + 4 * b, 4), cv))
        if kk + 2 < 16: rdx(kk + 2)
    A.nop(8)
    for tt in range(2):
        for u in range(2):
            a0 = AK + (u * 2 + tt) * 4
            e("v_cvt_pk_bf16_f32 v%d, v%d, v%d" % (PK + tt * 4 + 2 * u, a0, a0 + 1)); e("v_cvt_pk_bf16_f32 v%d, v%d, v%d" % (PK + tt * 4 + 2 * u + 1, a0 + 2, a0 + 3))
    for u in range(2):
        for tt in range(2):
            a0 = AV + (u * 2 + tt) * 4
            e("v_cvt_pk_bf16_f32 v%d, v%d, v%d" % (PK + 8 + u * 4 + 2 * tt, a0, a0 + 1)); e("v_cvt_pk_bf16_f32 v%d, v%d, v%d" % (PK + 8 + u * 4 + 2 * tt + 1, a0 + 2, a0 + 3))
    e("s_lshl_b32 s28, s%d, 18" % S_SEG); e("s_add_u32 s28, s28, s%d" % S_H13)
    e("s_lshl_b32 s29, s%d, 10" % S_WAVE); e("s_add_u32 s29, s29, s28"); e("s_add_u32 s30, s29, %d" % (WS_KX + 4096)); e("s_add_u32 s29, s29, %d" % WS_KX)
    e("buffer_store_dwordx4 %s, v%d, s[4:7], s29 offen sc0 sc1" % (vr(PK, 4), V_L16))
    e("buffer_store_dwordx4 %s, v%d, s[4:7], s30 offen sc0 sc1" % (vr(PK + 4, 4), V_L16))
    e("s_lshl_b32 s29, s%d, 11" % S_WAVE); e("s_add_u32 s29, s29, s28"); e("s_add_u32 s29, s29, %d" % WS_VX)
    e("buffer_store_dwordx4 %s, v%d, s[4:7], s29 offen sc0 sc1" % (vr(PK + 8, 4), V_L16))
    e("buffer_store_dwordx4 %s, v%d, s[4:7], s29 offen offset:1024 sc0 sc1" % (vr(PK + 12, 4), V_L16))
    lf0 = A.newlab("L_x1f0")
    e("s_cmp_lg_u32 s%d, 0" % S_K); e("s_cbranch_scc1 %s" % lf0)
    e("s_waitcnt vmcnt(0)"); e("s_barrier")
    e("s_cmp_lg_u32 s%d, 0" % S_WAVE); e("s_cbranch_scc1 %s" % lf0)
    e("v_mov_b32 v32, 1"); e("v_mov_b32 v33, 0")
    e("s_lshl_b32 s28, s%d, 7" % S_SUB); e("s_lshl_b32 s29, s%d, 2" % S_HEAD); e("s_add_u32 s28, s28, s29"); e("s_add_u32 s28, s28, %d" % (FL_KV + 128))
    e("s_mov_b64 exec, 1"); e("buffer_store_dword v32, v33, s[4:7], s28 offen sc0 sc1"); e("s_mov_b64 exec, s[26:27]")
    lab(lf0)
    e("s_add_u32 s%d, s%d, 7" % (S_SEG, S_SEG)); e("s_xor_b32 s%d, s%d, 32768" % (S_XB, S_XB)); e("s_add_u32 s%d, s%d, 1" % (S_K, S_K))
    e("s_cmp_lt_u32 s%d, s%d" % (S_K, S_NSEG)); e("s_cbranch_scc1 L_x1")
    e("s_waitcnt vmcnt(0)"); e("s_barrier")
    rt(4)
    lf = A.newlab("L_x1g")
    e("s_cmp_lg_u32 s%d, 0" % S_WAVE); e("s_cbranch_scc1 %s" % lf)
    e("v_mov_b32 v32, s%d" % S_NSEG); e("v_mov_b32 v33, 0")
    e("s_lshl_b32 s28, s%d, 7" % S_SUB); e("s_lshl_b32 s29, s%d, 2" % S_HEAD); e("s_add_u32 s28, s28, s29"); e("s_add_u32 s28, s28, %d" % (FL_KV + 128))
    e("s_mov_b64 exec, 1"); e("buffer_store_dword v32, v33, s[4:7], s28 offen sc0 sc1"); e("s_mov_b64 exec, s[26:27]")
    lab(lf)
    e("s_waitcnt vmcnt(0)")
    if OPT["stage"] < 3:
        e("s_branch L_end"); return
    xphase2()

hdr = []
if OPT["final"]:
    hdr.append("; Fused kernel: branch A (short conv + long causal conv as Toeplitz MFMA) and branch B (memory-recurrent attention).")
    hdr.append("; One persistent workgroup per CU. Workgroups form teams by the XCD they actually run on (HW_REG_XCC_ID):")
hdr.append("; @launch grid=(256,1,1) block=(256,1,1) lds=%d" % LDS_TOTAL)
hdr.append('.amdgcn_target "amdgcn-amd-amdhsa--gfx950"')
hdr.append(".text\n.globl %s\n.p2align 8\n.type %s,@function\n%s:" % (KNAME, KNAME, KNAME))
prologue()
e("s_cmp_eq_u32 s%d, 0" % S_TEAM); e("s_cbranch_scc1 L_chain")
if OPT["stage"] >= 2: e("s_branch L_xteam")
else: e("s_branch L_end")
chain()
if OPT["stage"] >= 2: xteam()
lab("L_end")
e("s_endpgm")
tail = '''.section .rodata,"a"
.p2align 6
.amdhsa_kernel %s
  .amdhsa_next_free_vgpr 512
  .amdhsa_next_free_sgpr 102
  .amdhsa_accum_offset 256
  .amdhsa_group_segment_fixed_size 0
  .amdhsa_kernarg_size 128
  .amdhsa_user_sgpr_count 2
  .amdhsa_user_sgpr_kernarg_segment_ptr 1
  .amdhsa_system_sgpr_workgroup_id_x 1
.end_amdhsa_kernel
''' % KNAME
open(OUTP, "w").write("\n".join(hdr) + "\n" + A.text() + tail)
print("wrote", OUTP, len(A.L), "lines")
```

```python
import sys, os, struct, math
sys.path.insert(0, os.path.dirname(os.path.abspath(__file__)))
from asmlib import *

KNAME = "concat_heads__ssm_conv_h3__memory_aug_recurrent_mem_tr__prompt_kernel"
OPT = dict(final=0, nowait=0, stage=1, hist=0, stamps=0, nsteps=64, dly_red=0, dly_mem=0, slp=32)
for a in sys.argv[1:]:
    if "=" in a:
        k, v = a.split("="); OPT[k] = int(v) if v.lstrip("-").isdigit() else v
OUTP = OPT.get("out", "chain.s")

KA = dict(q=0, k=8, v=16, shift=24, ssmk=32, ssmd=40, x=48, mem0=56, wq=64, wk=72, wv=80, wo=88, seg=96, out=104, dbg=112, ws=120)
WS_KX = 0x0000000
WS_VX = 0x1000000
WS_KM = 0x2000000
WS_VM = 0x3000000
WS_PB = 0x2C00000
WS_MB = 0x2CC0000
WS_FL = 0x2CD0000
WS_HIST = 0x2D00000
WS_STAMP = 0x2E00000
WS_XP = 0x4000000
FL_KV, FL_KM, FL_XP = WS_FL, WS_FL + 1024, WS_FL + 2048
WVSTRIDE = 28672
L_KX, L_VX, L_MEM, L_X, L_O, L_SEL, L_DUM = 114688, 131072, 147456, 155648, 159744, 161792, 162816
LDS_TOTAL = 163840
S_WS = 4
S_W = 8
S_XCC, S_WAVE, S_HEAD, S_TEAM = 20, 21, 22, 23
S_DBG = 24
S_ALL = 26
S_STEP, S_MCUR, S_MNXT, S_PCUR, S_RED, S_MQ, S_KXO, S_VXO = 40, 41, 42, 43, 44, 45, 46, 47
S_DMA = 39
S_LO8 = 48
S_LO32 = 50
S_C, S_SPIN, S_FIRST, S_PAR = 52, 53, 54, 55
S_PW = 56
S_ST = 64
S_MPREV, S_H13, S_H8, S_PPREV = 96, 97, 98, 99
S_RDY = 100
S_TAG = 99
V_L16, V_XWR, V_OWR, V_PS0, V_IDX, V_WVA = 0, 1, 2, 3, 4, 5
VT = 6
V_KX = 12
V_LD = 12
V_S = 28
V_MEM = 40
V_QK = 72
V_VA = 88
V_WVR = 96
V_WV0 = 112
V_WO = 128
VLANE = 30
VS = 32

A = Asm()
PSTF = str(OPT.get('pst', '')).replace('_', ' ')
PUBF = str(OPT.get('pub', '')).replace('_', ' ')
e, c, lab = A.e, A.c, A.lab
def v(i): return "v%d" % i

def srd(base_s, ptr_s, size):
    e("s_mov_b32 s%d, s%d" % (base_s, ptr_s)); e("s_mov_b32 s%d, s%d" % (base_s + 1, ptr_s + 1))
    e("s_mov_b32 s%d, 0x%x" % (base_s + 2, size)); e("s_mov_b32 s%d, 0x20000" % (base_s + 3))

TS = [int(x) for x in str(OPT.get("ts", "")).split(",") if x != ""]
def ts(i):
    if i in TS:
        k = TS.index(i)
        e("%s s[%d:%d]" % ("s_memrealtime" if OPT.get("rts", 0) else "s_memtime", 64 + 2 * k, 65 + 2 * k))
def stamp(i, lvl=1):
    ts(i)
    if OPT["stamps"] < lvl: return
    if OPT["stamps"] == 2 and lvl == 1: pass
    e("s_memtime s[82:83]"); e("s_waitcnt lgkmcnt(0)"); A.lds = []
    e("s_sub_u32 s81, s82, s80"); e("s_add_u32 s%d, s%d, s81" % (S_ST + i, S_ST + i)); e("s_mov_b32 s80, s82")

def bar_off(t): return (t & 3) * 64 + 16 + (t >> 2) * 4
WS_TRACE = 0x2F00000
def rtk(i, kreg, kval):
    if not OPT.get("trace", 0): return
    l = A.newlab("L_rtk")
    e("s_cmp_lg_u32 s%d, %d" % (kreg, kval)); e("s_cbranch_scc1 %s" % l)
    rt(i)
    lab(l)
def rt(i):
    if not OPT.get("trace", 0): return
    l = A.newlab("L_rt")
    e("s_cmp_lg_u32 s%d, 0" % S_WAVE); e("s_cbranch_scc1 %s" % l)
    e("s_memrealtime s[90:91]"); e("s_waitcnt lgkmcnt(0)")
    e("s_add_u32 s28, s93, %d" % (WS_TRACE + 4 * i))
    e("s_mov_b64 exec, 1"); e("v_mov_b32 v10, s90"); e("v_mov_b32 v11, 0"); e("buffer_store_dword v10, v11, s[4:7], s28 offen"); e("s_mov_b64 exec, s[26:27]")
    lab(l)
def prologue():
    e("s_cmp_ge_u32 s2, 256"); e("s_cbranch_scc1 L_end")
    if OPT.get("trace", 0): e("s_memrealtime s[94:95]")
    e("s_load_dwordx2 s[24:25], s[0:1], %d" % KA["dbg"])
    e("s_load_dwordx2 s[28:29], s[0:1], %d" % KA["ws"])
    e("s_load_dwordx4 s[56:59], s[0:1], %d" % KA["wq"])
    e("s_load_dwordx4 s[60:63], s[0:1], %d" % KA["wv"])
    e("s_getreg_b32 s%d, hwreg(HW_REG_XCC_ID)" % S_XCC)
    e("s_and_b32 s%d, s%d, 15" % (S_XCC, S_XCC))
    e("v_lshrrev_b32 v1, 6, v0"); e("s_nop 0"); e("v_readfirstlane_b32 s%d, v1" % S_WAVE)
    e("v_and_b32 v%d, 63, v0" % VLANE)
    e("s_mov_b64 s[26:27], exec")
    e("s_waitcnt lgkmcnt(0)")
    srd(S_WS, 28, 0x10000000)
    e("s_cmp_lg_u32 s%d, 0" % S_WAVE); e("s_cbranch_scc1 L_roles_wait")
    e("s_mov_b64 exec, 1")
    e("s_and_b32 s28, s%d, 3" % S_XCC); e("s_lshl_b32 s28, s28, 6"); e("s_lshr_b32 s29, s%d, 2" % S_XCC); e("s_lshl_b32 s29, s29, 2"); e("s_add_u32 s28, s28, s29")
    e("v_mov_b32 v3, s28"); e("v_mov_b32 v4, 1")
    e("global_atomic_add v5, v3, v4, s[24:25] sc0 sc1"); e("s_waitcnt vmcnt(0)")
    e("v_mov_b32 v3, %d" % L_DUM)
    e("ds_write_b32 v3, v5"); e("s_waitcnt lgkmcnt(0)")
    e("s_mov_b64 exec, s[26:27]")
    lab("L_roles_wait")
    e("s_barrier")
    e("v_mov_b32 v3, %d" % L_DUM); e("ds_read_b32 v4, v3"); e("s_waitcnt lgkmcnt(0)")
    e("v_readfirstlane_b32 s%d, v4" % S_HEAD); e("s_mov_b32 s%d, s%d" % (S_TEAM, S_XCC))
    e("s_barrier")
    e("s_cmp_ge_u32 s%d, 32" % S_HEAD); e("s_cbranch_scc1 L_end")
    e("s_cmp_ge_u32 s%d, 8" % S_TEAM); e("s_cbranch_scc1 L_end")
    e("s_lshl_b32 s%d, s%d, 13" % (S_H13, S_HEAD)); e("s_lshl_b32 s%d, s%d, 8" % (S_H8, S_HEAD))
    if OPT.get("trace", 0):
        l = A.newlab("L_rt")
        e("s_lshl_b32 s93, s%d, 5" % S_TEAM); e("s_add_u32 s93, s93, s%d" % S_HEAD); e("s_lshl_b32 s93, s93, 6")
        e("s_cmp_lg_u32 s%d, 0" % S_WAVE); e("s_cbranch_scc1 %s" % l)
        e("s_add_u32 s28, s93, %d" % WS_TRACE)
        e("s_mov_b64 exec, 1"); e("v_mov_b32 v10, s94"); e("v_mov_b32 v11, 0"); e("buffer_store_dword v10, v11, s[4:7], s28 offen"); e("s_mov_b64 exec, s[26:27]")
        lab(l)
    rt(1)

LW_VQ, LW_VO, LW_A0, LW_A1, LW_AO = 40, 41, 43, 44, 45
LW_WB = 53
LW_TMP = 72
def load_setup(wave_stride):
    L = VLANE; a, b_, c_, d_, f_ = VS, VS + 1, VS + 2, VS + 3, VS + 4
    e("s_mul_i32 s34, s%d, %d" % (S_WAVE, wave_stride))
    e("s_lshl_b32 s36, s%d, 20" % S_WAVE)
    e("v_lshrrev_b32 v%d, 2, v%d" % (a, L)); e("v_lshlrev_b32 v%d, 13, v%d" % (b_, a))
    e("v_lshrrev_b32 v%d, 5, v%d" % (c_, L)); e("v_lshlrev_b32 v%d, 1, v%d" % (c_, c_))
    e("v_and_b32 v%d, 3, v%d" % (d_, L)); e("v_xor_b32 v%d, v%d, v%d" % (d_, d_, c_)); e("v_lshlrev_b32 v%d, 4, v%d" % (d_, d_))
    e("v_add_u32 v%d, v%d, v%d" % (b_, b_, d_))
    e("s_lshl_b32 s29, s%d, 6" % S_WAVE); e("s_add_u32 s28, s%d, s29" % S_H8)
    e("v_add_u32 v%d, s28, v%d" % (LW_VQ, b_))
    e("v_lshrrev_b32 v%d, 4, v%d" % (a, L)); e("v_lshlrev_b32 v%d, 10, v%d" % (b_, a))
    e("s_lshl_b32 s28, s%d, 8" % S_WAVE); e("v_add_u32 v%d, s28, v%d" % (b_, b_))
    e("v_and_b32 v%d, 1, v%d" % (c_, a)); e("v_lshrrev_b32 v%d, 1, v%d" % (f_, a)); e("v_lshlrev_b32 v%d, 3, v%d" % (f_, f_)); e("v_add_u32 v%d, v%d, v%d" % (c_, c_, f_))
    e("v_and_b32 v%d, 15, v%d" % (d_, L)); e("v_xor_b32 v%d, v%d, v%d" % (d_, d_, c_)); e("v_lshlrev_b32 v%d, 4, v%d" % (d_, d_))
    e("v_add_u32 v%d, v%d, v%d" % (LW_VO, b_, d_))
    e("v_lshrrev_b32 v%d, 5, v%d" % (a, L)); e("v_lshlrev_b32 v%d, 10, v%d" % (a, a))
    e("v_bfe_u32 v%d, v%d, 4, 1" % (b_, L)); e("v_lshlrev_b32 v%d, 9, v%d" % (c_, b_)); e("v_add_u32 v%d, v%d, v%d" % (a, a, c_))
    e("v_bfe_u32 v%d, v%d, 2, 2" % (c_, L)); e("v_lshlrev_b32 v%d, 6, v%d" % (c_, c_)); e("v_add_u32 v%d, v%d, v%d" % (a, a, c_))
    e("v_and_b32 v%d, 3, v%d" % (c_, L)); e("v_lshlrev_b32 v%d, 3, v%d" % (c_, c_)); e("v_add_u32 v%d, v%d, v%d" % (a, a, c_))
    e("v_add_u32 v%d, s34, v%d" % (a, a))
    e("v_lshlrev_b32 v%d, 5, v%d" % (c_, b_)); e("v_add_u32 v%d, v%d, v%d" % (LW_A0, a, c_))
    e("v_xor_b32 v%d, 32, v%d" % (c_, c_)); e("v_add_u32 v%d, v%d, v%d" % (LW_A1, a, c_))
    e("v_lshrrev_b32 v%d, 4, v%d" % (a, L)); e("v_lshlrev_b32 v%d, 10, v%d" % (a, a))
    e("v_bfe_u32 v%d, v%d, 2, 2" % (c_, L)); e("v_lshlrev_b32 v%d, 8, v%d" % (d_, c_)); e("v_add_u32 v%d, v%d, v%d" % (a, a, d_))
    e("v_and_b32 v%d, 3, v%d" % (d_, L)); e("v_lshlrev_b32 v%d, 5, v%d" % (d_, d_)); e("v_add_u32 v%d, v%d, v%d" % (a, a, d_))
    e("v_add_u32 v%d, s34, v%d" % (a, a))
    e("v_bfe_u32 v%d, v%d, 3, 1" % (b_, L)); e("v_lshlrev_b32 v%d, 7, v%d" % (b_, b_))
    e("v_bfe_u32 v%d, v%d, 2, 1" % (c_, L)); e("v_lshlrev_b32 v%d, 4, v%d" % (c_, c_))
    for G in range(2):
        for Th in range(2):
            e("v_xor_b32 v%d, %d, v%d" % (d_, G * 128, b_)); e("v_xor_b32 v%d, %d, v%d" % (f_, Th * 16, c_))
            e("v_add_u32 v%d, v%d, v%d" % (d_, d_, f_)); e("v_add_u32 v%d, v%d, v%d" % (LW_AO + 2 * G + Th, a, d_))
    e("v_lshlrev_b32 v%d, 4, v%d" % (a, L)); e("v_add_u32 v%d, s34, v%d" % (LW_WB, a))

def reg(kind, n, cnt):
    return ar(n, cnt) if kind == "a" else vr(n, cnt)

def load_units(units, NS, hooks={}):
    cur_srd = [None]
    def set_srd(which):
        if cur_srd[0] == which: return
        cur_srd[0] = which
        p = S_PW + 2 * which
        e("s_mov_b32 s8, s%d" % p); e("s_mov_b32 s9, s%d" % (p + 1)); e("s_mov_b32 s10, 0x400000"); e("s_mov_b32 s11, 0x20000")
    def issue(n):
        u = units[n]; slot = n % NS
        set_srd(u["m"])
        for i in range(4):
            e("s_add_u32 m0, s34, %d" % (slot * 4096 + i * 1024))
            if u["kind"] == "qkv":
                if u.get("perm", True):
                    e("s_xor_b32 s28, s36, %d" % (u["t"] << 19)); e("s_add_u32 s28, s28, %d" % (i * 131072))
                else:
                    e("s_mov_b32 s28, %d" % ((64 * u["t"] + 16 * i) * 8192))
                A.vmem("buffer_load_dwordx4 v%d, s[8:11], s28 offen lds" % LW_VQ, ("w", n))
            else:
                qd = 2 * u["b"] + u["hb"]
                e("s_add_u32 s28, s35, %d" % ((64 * u["t"] + 16 * qd + 4 * i) * 1024))
                A.vmem("buffer_load_dwordx4 v%d, s[8:11], s28 offen lds" % LW_VO, ("w", n))
    e("s_lshl_b32 s35, s%d, 17" % S_HEAD)
    for n in range(min(NS, len(units))): issue(n)
    if "start" in hooks: hooks["start"]()
    for n, u in enumerate(units):
        slot = n % NS
        A.wait_vm(("w", n))
        if u["kind"] == "qkv":
            for uu in range(2):
                for b in range(2):
                    for hb in range(2):
                        if u["dest"] == "lds": d = vr(LW_TMP + uu * 8 + 4 * b + 2 * hb, 2)
                        elif u["dest"] == "flat": d = vr(u["base"] + uu * 8 + 4 * b + 2 * hb, 2)
                        else: d = reg(u["dest"], u["base"] + (uu * 8 + u["t"]) * 8 + 4 * b + 2 * hb, 2)
                        A.ds("ds_read_b64_tr_b16 %s, v%d offset:%d" % (d, LW_A0 + uu, slot * 4096 + b * 2048 + hb * 256), "tr")
            A.wait_lds_all()
            if u["dest"] == "lds":
                u["slot"] = slot
                for uu in range(2):
                    for b in range(2):
                        A.ds("ds_write_b128 v%d, %s offset:%d" % (LW_WB, vr(LW_TMP + uu * 8 + 4 * b, 4), slot * 4096 + uu * 2048 + b * 1024), "wb")
                A.wait_lds_all()
        else:
            for nt in range(8):
                d = reg(u["dest"], u["base"] + (nt * 2 + u["t"]) * 8 + 4 * u["b"] + 2 * u["hb"], 2)
                G, T = nt >> 2, nt & 3
                A.ds("ds_read_b64_tr_b16 %s, v%d offset:%d" % (d, LW_AO + 2 * G + (T >> 1), slot * 4096 + (T & 1) * 8), "tr")
            A.wait_lds_all()
        if n in hooks: hooks[n]()
        if n + NS < len(units): issue(n + NS)

def load_units_128(units, hooks={}):
    L = VLANE; a, b_, c_, d_, f_ = VS, VS + 1, VS + 2, VS + 3, VS + 4
    VQ0, VQ1, TA0, TA1 = 54, 55, 56, 57
    UO = 58
    TU0, TU1 = 58, 59
    AOU = [64, 65, 66, 67]
    WBU = 68
    e("v_lshrrev_b32 v%d, 3, v%d" % (a, L)); e("v_lshlrev_b32 v%d, 13, v%d" % (b_, a))
    e("s_lshr_b32 s28, s%d, 1" % S_WAVE); e("s_lshl_b32 s28, s28, 7"); e("s_add_u32 s28, s28, s%d" % S_H8); e("v_add_u32 v%d, s28, v%d" % (b_, b_))
    e("v_bfe_u32 v%d, v%d, 1, 1" % (c_, a))
    e("v_and_b32 v%d, 7, v%d" % (d_, L))
    for par, dst in ((0, VQ0), (1, VQ1)):
        e("v_or_b32 v%d, %d, v%d" % (f_, par << 1, c_)); e("v_lshlrev_b32 v%d, 1, v%d" % (f_, f_)); e("v_xor_b32 v%d, v%d, v%d" % (f_, f_, d_))
        e("v_lshlrev_b32 v%d, 4, v%d" % (f_, f_)); e("v_add_u32 v%d, v%d, v%d" % (dst, b_, f_))
    e("v_lshrrev_b32 v%d, 4, v%d" % (a, L)); e("v_lshlrev_b32 v%d, 10, v%d" % (a, a))
    e("v_bfe_u32 v%d, v%d, 2, 2" % (b_, L)); e("v_lshlrev_b32 v%d, 7, v%d" % (b_, b_)); e("v_add_u32 v%d, v%d, v%d" % (a, a, b_))
    e("v_and_b32 v%d, 3, v%d" % (b_, L)); e("v_lshlrev_b32 v%d, 3, v%d" % (b_, b_)); e("v_add_u32 v%d, v%d, v%d" % (a, a, b_))
    e("v_bfe_u32 v%d, v%d, 3, 1" % (b_, L)); e("v_bfe_u32 v%d, v%d, 4, 1" % (c_, L)); e("v_lshlrev_b32 v%d, 1, v%d" % (c_, c_)); e("v_or_b32 v%d, v%d, v%d" % (b_, b_, c_))
    e("s_and_b32 s28, s%d, 1" % S_WAVE); e("s_lshl_b32 s28, s28, 1")
    for u, dst in ((0, TA0), (1, TA1)):
        e("s_add_u32 s29, s28, %d" % u); e("v_xor_b32 v%d, s29, v%d" % (c_, b_)); e("v_lshlrev_b32 v%d, 5, v%d" % (c_, c_)); e("v_add_u32 v%d, v%d, v%d" % (c_, c_, a))
        e("v_add_u32 v%d, s34, v%d" % (dst, c_))
    e("s_lshl_b32 s33, s%d, 13" % S_WAVE); e("s_add_u32 s33, s33, %d" % L_KX); e("s_sub_u32 s32, s33, s34")
    e("v_add_u32 v%d, s32, v%d" % (TU0, TA0)); e("v_add_u32 v%d, s32, v%d" % (TU1, TA1))
    for k in range(4): e("v_add_u32 v%d, s32, v%d" % (AOU[k], LW_AO + k))
    e("s_lshl_b32 s35, s%d, 17" % S_HEAD)
    cur = [None]
    def set_srd(which):
        if cur[0] == which: return
        cur[0] = which
        p = S_PW + 2 * which
        e("s_mov_b32 s8, s%d" % p); e("s_mov_b32 s9, s%d" % (p + 1)); e("s_mov_b32 s10, 0x400000"); e("s_mov_b32 s11, 0x20000")
    def m0set(slot, off):
        if slot[0] == "R": e("s_add_u32 m0, s34, %d" % (slot[1] + off))
        else: e("s_add_u32 m0, s33, %d" % off)
    def issue(n):
        u = units[n]; set_srd(u["m"]); slot = u["raw"]
        if u["kind"] == "qkv":
            for i in range(8):
                e("s_xor_b32 s28, s36, %d" % (u["t"] << 19)); e("s_add_u32 s28, s28, %d" % (i * 65536)); m0set(slot, i * 1024); e("s_nop 0")
                A.vmem("buffer_load_dwordx4 v%d, s[8:11], s28 offen lds" % (VQ0 if i % 2 == 0 else VQ1), ("w", n))
        else:
            for hb in range(2):
                for i in range(4):
                    qd = 2 * u["b"] + hb
                    e("s_add_u32 s28, s35, %d" % ((64 * u["t"] + 16 * qd + 4 * i) * 1024)); m0set(slot, hb * 4096 + i * 1024); e("s_nop 0")
                    A.vmem("buffer_load_dwordx4 v%d, s[8:11], s28 offen lds" % LW_VO, ("w", n))
    prev = {}
    issued = set()
    def try_issue(done):
        for n in range(len(units)):
            if n in issued: continue
            dep = units[n]["dep"]
            if dep is not None and dep > done: break
            issue(n); issued.add(n)
    last = {}
    for n, u in enumerate(units):
        key = u["raw"]; u["dep"] = last.get(key); last[key] = n
        if u.get("dep_extra") is not None: u["dep"] = max(u["dep"] if u["dep"] is not None else -1, u["dep_extra"])
    try_issue(-1)
    if "start" in hooks: hooks["start"]()
    for n, u in enumerate(units):
        A.wait_vm(("w", n))
        slot = u["raw"]; isU = slot[0] == "U"; off = 0 if isU else slot[1]
        if u["kind"] == "qkv":
            for uu in range(2):
                for b in range(2):
                    for hb in range(2):
                        if u["dest"] == "lds": d = vr(LW_TMP + uu * 8 + 4 * b + 2 * hb, 2)
                        elif u["dest"] == "flat": d = vr(u["base"] + uu * 8 + 4 * b + 2 * hb, 2)
                        else: d = reg(u["dest"], u["base"] + (uu * 8 + u["t"]) * 8 + 4 * b + 2 * hb, 2)
                        ad = ((TU0, TU1) if isU else (TA0, TA1))[uu]
                        A.ds("ds_read_b64_tr_b16 %s, v%d offset:%d" % (d, ad, off + b * 4096 + hb * 512), "tr")
            A.wait_lds_all()
            if u["dest"] == "lds":
                for uu in range(2):
                    for b in range(2):
                        A.ds("ds_write_b128 v%d, %s offset:%d" % (LW_WB, vr(LW_TMP + uu * 8 + 4 * b, 4), u["slot"] * 4096 + uu * 2048 + b * 1024), "wb")
                A.wait_lds_all()
        else:
            for hb in range(2):
                for nt in range(8):
                    G, T = nt >> 2, nt & 3
                    d = reg(u["dest"], u["base"] + (nt * 2 + u["t"]) * 8 + 4 * u["b"] + 2 * hb, 2)
                    ad = (AOU if isU else [LW_AO + k for k in range(4)])[2 * G + (T >> 1)]
                    A.ds("ds_read_b64_tr_b16 %s, v%d offset:%d" % (d, ad, off + hb * 4096 + (T & 1) * 8), "tr")
            A.wait_lds_all()
        if n in hooks: hooks[n]()
        try_issue(n)

def load_units_reg(units, hooks={}, maxfly=60):
    SCR = 54
    SA0, SA1, SAO = 55, 56, 57
    SAOr = [57, 58, 59, 64]
    e("s_lshl_b32 s28, s%d, 13" % S_WAVE); e("s_add_u32 s28, s28, %d" % L_KX); e("s_sub_u32 s29, s28, s34")
    e("v_add_u32 v%d, s28, v%d" % (SCR, V_L16))
    e("v_add_u32 v%d, s29, v%d" % (SA0, LW_A0)); e("v_add_u32 v%d, s29, v%d" % (SA1, LW_A1))
    for k in range(4): e("v_add_u32 v%d, s29, v%d" % (SAOr[k], LW_AO + k))
    e("s_lshl_b32 s35, s%d, 17" % S_HEAD)
    cur_srd = [None]
    def set_srd(which):
        if cur_srd[0] == which: return
        cur_srd[0] = which
        p = S_PW + 2 * which
        e("s_mov_b32 s8, s%d" % p); e("s_mov_b32 s9, s%d" % (p + 1)); e("s_mov_b32 s10, 0x400000"); e("s_mov_b32 s11, 0x20000")
    def quads(u):
        if u["kind"] == "qkv":
            if u["dest"] == "flat": return [("v", u["base"] + 4 * i) for i in range(4)]
            b0 = u["base"] + u["t"] * 8
            return [(u["dest"], b0), (u["dest"], b0 + 4), (u["dest"], b0 + 64), (u["dest"], b0 + 68)]
        return [(u["dest"], u["base"] + (nt * 2 + u["t"]) * 8 + 4 * u["b"]) for nt in range(8)]
    def nloads(u): return 8 if u["kind"] == "wo" else 4
    def issue(n):
        u = units[n]; set_srd(u["m"])
        if u["kind"] == "qkv":
            for i in range(4):
                e("s_xor_b32 s28, s36, %d" % (u["t"] << 19)); e("s_add_u32 s28, s28, %d" % (i * 131072))
                if u["dest"] == "lds":
                    e("s_add_u32 m0, s34, %d" % (u["slot"] * 4096 + i * 1024)); e("s_nop 0")
                    A.vmem("buffer_load_dwordx4 v%d, s[8:11], s28 offen lds" % LW_VQ, ("w", n))
                else:
                    k, r = quads(u)[i]
                    A.vmem("buffer_load_dwordx4 %s, v%d, s[8:11], s28 offen" % (reg(k, r, 4), LW_VQ), ("w", n))
        else:
            for hb in range(2):
                for i in range(4):
                    qd = 2 * u["b"] + hb
                    e("s_add_u32 s28, s35, %d" % ((64 * u["t"] + 16 * qd + 4 * i) * 1024))
                    k, r = quads(u)[hb * 4 + i]
                    A.vmem("buffer_load_dwordx4 %s, v%d, s[8:11], s28 offen" % (reg(k, r, 4), LW_VO), ("w", n))
    nxt = [0]; fly = [0]
    def pump():
        while nxt[0] < len(units) and fly[0] + nloads(units[nxt[0]]) <= maxfly:
            issue(nxt[0]); fly[0] += nloads(units[nxt[0]]); nxt[0] += 1
    pump()
    for n, u in enumerate(units):
        A.wait_vm(("w", n)); fly[0] -= nloads(u)
        if u["kind"] == "qkv" and u["dest"] == "lds":
            slot = u["slot"]
            for uu in range(2):
                for b in range(2):
                    for hb in range(2):
                        A.ds("ds_read_b64_tr_b16 %s, v%d offset:%d" % (vr(LW_TMP + uu * 8 + 4 * b + 2 * hb, 2), LW_A0 + uu, slot * 4096 + b * 2048 + hb * 256), "tr")
            if n in hooks: hooks[n]()
            pump()
            A.wait_lds_all()
            for uu in range(2):
                for b in range(2):
                    A.ds("ds_write_b128 v%d, %s offset:%d" % (LW_WB, vr(LW_TMP + uu * 8 + 4 * b, 4), slot * 4096 + uu * 2048 + b * 1024), "wb")
            A.wait_lds_all()
        elif u["kind"] == "qkv":
            for i, (k, r) in enumerate(quads(u)):
                A.ds("ds_write_b128 v%d, %s offset:%d" % (SCR, reg(k, r, 4), i * 1024), "sw")
            if n in hooks: hooks[n]()
            pump()
            A.wait_lds_all()
            for uu in range(2):
                for b in range(2):
                    for hb in range(2):
                        if u["dest"] == "flat": d = vr(u["base"] + uu * 8 + 4 * b + 2 * hb, 2)
                        else: d = reg(u["dest"], u["base"] + (uu * 8 + u["t"]) * 8 + 4 * b + 2 * hb, 2)
                        A.ds("ds_read_b64_tr_b16 %s, v%d offset:%d" % (d, (SA0, SA1)[uu], b * 2048 + hb * 256), "tr")
            A.wait_lds_all()
        else:
            for i, (k, r) in enumerate(quads(u)):
                A.ds("ds_write_b128 v%d, %s offset:%d" % (SCR, reg(k, r, 4), i * 1024), "sw")
            if n in hooks: hooks[n]()
            pump()
            A.wait_lds_all()
            for hb in range(2):
                for nt in range(8):
                    G, T = nt >> 2, nt & 3
                    d = reg(u["dest"], u["base"] + (nt * 2 + u["t"]) * 8 + 4 * u["b"] + 2 * hb, 2)
                    A.ds("ds_read_b64_tr_b16 %s, v%d offset:%d" % (d, SAOr[2 * G + (T >> 1)], hb * 4096 + (T & 1) * 8), "tr")
            A.wait_lds_all()

def units_qkv(m, dest, base):
    return [dict(kind="qkv", m=m, t=t, dest=dest, base=base) for t in range(8)]
def units_wo(dest, base):
    return [dict(kind="wo", m=3, t=t, b=b, hb=hb, dest=dest, base=base) for t in range(2) for b in range(2) for hb in range(2)]

def pubaddr(dst, tmp):
    e("v_lshrrev_b32 v%d, 2, v%d" % (dst, V_L16)); e("v_and_b32 v%d, 0xc0, v%d" % (dst, dst))
    e("v_lshlrev_b32 v%d, 1, v%d" % (tmp, V_L16)); e("v_and_b32 v%d, 32, v%d" % (tmp, tmp)); e("v_add_u32 v%d, v%d, v%d" % (dst, dst, tmp))
    e("v_lshrrev_b32 v%d, 3, v%d" % (tmp, V_L16)); e("v_and_b32 v%d, 28, v%d" % (tmp, tmp)); e("v_add_u32 v%d, v%d, v%d" % (dst, dst, tmp))

def chain():
    L = VLANE; a, b_, c_, d_ = VS, VS + 1, VS + 2, VS + 3
    lab("L_chain")
    e("v_lshlrev_b32 v%d, 4, v%d" % (V_L16, L))
    e("s_mul_i32 s28, s%d, %d" % (S_WAVE, WVSTRIDE)); e("v_add_u32 v%d, s28, v%d" % (V_WVA, V_L16))
    e("v_and_b32 v%d, 15, v%d" % (a, L)); e("v_lshlrev_b32 v%d, 5, v%d" % (a, a)); e("v_lshrrev_b32 v%d, 4, v%d" % (b_, L)); e("v_lshlrev_b32 v%d, 3, v%d" % (b_, b_))
    e("v_add_u32 v%d, v%d, v%d" % (a, a, b_)); e("s_lshl_b32 s28, s%d, 10" % S_WAVE); e("s_add_u32 s28, s28, %d" % L_X); e("v_add_u32 v%d, s28, v%d" % (V_XWR, a))
    e("v_lshrrev_b32 v%d, 5, v%d" % (a, L)); e("v_lshlrev_b32 v%d, 8, v%d" % (a, a))
    e("v_bfe_u32 v%d, v%d, 2, 2" % (b_, L)); e("v_lshlrev_b32 v%d, 6, v%d" % (b_, b_)); e("v_add_u32 v%d, v%d, v%d" % (a, a, b_))
    e("v_and_b32 v%d, 1, v%d" % (b_, L)); e("v_lshlrev_b32 v%d, 5, v%d" % (b_, b_)); e("v_add_u32 v%d, v%d, v%d" % (a, a, b_))
    e("v_bfe_u32 v%d, v%d, 4, 1" % (b_, L)); e("v_lshlrev_b32 v%d, 3, v%d" % (b_, b_)); e("v_add_u32 v%d, v%d, v%d" % (a, a, b_))
    e("s_lshr_b32 s28, s%d, 1" % S_WAVE); e("s_lshl_b32 s28, s28, 10"); e("s_and_b32 s29, s%d, 1" % S_WAVE); e("s_lshl_b32 s29, s29, 9")
    e("s_add_u32 s28, s28, s29"); e("s_add_u32 s28, s28, %d" % L_O); e("v_add_u32 v%d, s28, v%d" % (a, a))
    e("v_and_b32 v%d, 2, v%d" % (b_, L)); e("v_cmp_ne_u32 vcc, 0, v%d" % b_); e("s_nop 1"); e("s_mov_b64 s[50:51], vcc")
    e("v_lshlrev_b32 v%d, 3, v%d" % (b_, L)); e("v_add_u32 v%d, %d, v%d" % (b_, L_DUM, b_))
    e("s_nop 0")
    e("v_cndmask_b32 v%d, v%d, v%d, vcc" % (V_OWR, b_, a))
    e("v_and_b32 v%d, 8, v%d" % (b_, L)); e("v_cmp_eq_u32 s[48:49], 0, v%d" % b_)
    e("v_bfe_u32 v%d, v%d, 2, 2" % (a, L)); e("s_lshl_b32 s28, s%d, 3" % S_WAVE); e("v_add_u32 v%d, s28, v%d" % (a, a))
    if OPT.get("swz", 1): e("v_add_u32 v%d, s%d, v%d" % (c_, S_HEAD, a))
    else: e("v_mov_b32 v%d, s%d" % (c_, S_HEAD))
    e("v_and_b32 v%d, 31, v%d" % (c_, c_)); e("v_lshlrev_b32 v%d, 8, v%d" % (c_, c_))
    e("v_lshlrev_b32 v%d, 13, v%d" % (a, a)); e("v_add_u32 v%d, v%d, v%d" % (a, a, c_))
    e("v_lshrrev_b32 v%d, 4, v%d" % (b_, L)); e("v_lshlrev_b32 v%d, 6, v%d" % (b_, b_)); e("v_add_u32 v%d, v%d, v%d" % (a, a, b_))
    e("v_and_b32 v%d, 3, v%d" % (b_, L)); e("v_lshlrev_b32 v%d, 4, v%d" % (b_, b_)); e("v_add_u32 v%d, v%d, v%d" % (V_PS0, a, b_))
    e("v_and_b32 v%d, 1, v%d" % (c_, L)); e("v_cmp_eq_u32 vcc, 0, v%d" % c_)
    e("v_mov_b32 v%d, 0xEEEEEEEE" % a); e("v_mov_b32 v%d, 0x44444444" % b_); e("v_cndmask_b32 v%d, v%d, v%d, vcc" % (V_IDX, a, b_))
    cval = struct.unpack("<I", struct.pack("<f", (128 ** -0.5) * math.log2(math.e)))[0]
    e("s_mov_b32 s%d, 0x%08x" % (S_C, cval))
    e("v_and_b32 v%d, 1, v%d" % (a, L)); e("v_lshlrev_b32 v%d, 4, v%d" % (a, a)); e("v_mov_b32 v%d, 0x3f80" % b_); e("v_lshlrev_b32 v%d, v%d, v%d" % (b_, a, b_))
    e("v_bfe_u32 v%d, v%d, 1, 2" % (a, L))
    for i in range(4):
        e("v_cmp_eq_u32 vcc, %d, v%d" % (i, a)); e("s_nop 1"); e("v_cndmask_b32 v%d, 0, v%d, vcc" % (12 + i, b_))
    e("v_add_u32 v%d, %d, v%d" % (a, L_SEL, V_L16))
    IPUB, IM0 = 60, 61
    e("ds_write_b128 v%d, v[12:15]" % a); e("s_waitcnt lgkmcnt(0)")
    def hook_start():
        pubaddr(60, c_)
        e("s_cmp_lg_u32 s%d, 0" % S_WAVE); e("s_cbranch_scc1 L_noinit")
        IPUB, IM0 = 60, 61
        e("s_load_dwordx2 s[30:31], s[0:1], %d" % KA["mem0"])
        e("v_lshrrev_b32 v%d, 4, v%d" % (a, L)); e("v_lshlrev_b32 v%d, 11, v%d" % (a, a))
        e("v_and_b32 v%d, 1, v%d" % (b_, L)); e("v_lshlrev_b32 v%d, 10, v%d" % (b_, b_)); e("v_add_u32 v%d, v%d, v%d" % (a, a, b_))
        e("v_bfe_u32 v%d, v%d, 1, 2" % (b_, L)); e("v_lshlrev_b32 v%d, 3, v%d" % (b_, b_)); e("v_add_u32 v%d, v%d, v%d" % (a, a, b_))
        e("v_bfe_u32 v%d, v%d, 3, 1" % (b_, L)); e("v_lshlrev_b32 v%d, 2, v%d" % (b_, b_)); e("v_add_u32 v%d, v%d, v%d" % (a, a, b_))
        e("s_lshl_b32 s29, s%d, 5" % S_HEAD); e("v_add_u32 v%d, s29, v%d" % (a, a))
        e("s_waitcnt lgkmcnt(0)")
        e("global_load_dword v%d, v%d, s[30:31]" % (IM0, a))
        for i in range(4): e("v_mov_b32 v%d, -1" % (12 + i))
        for b in range(2):
            for half in range(2):
                e("s_add_u32 s29, s%d, %d" % (S_H13, WS_PB + b * 0x40000 + half * 4096))
                for x in range(4):
                    e("buffer_store_dwordx4 v[12:15], v%d, s[4:7], s29 offen offset:%d" % (V_L16, x * 1024))
        for b in (1, 2):
            e("s_add_u32 s29, s%d, %d" % (S_H8, WS_MB + b * 8192))
            e("buffer_store_dword v12, v%d, s[4:7], s29 offen" % IPUB)
        e("v_lshlrev_b32 v%d, 7, v%d" % (a, L)); e("v_mov_b32 v%d, 0" % b_)
        e("s_lshl_b32 s29, s%d, 2" % S_HEAD); e("s_add_u32 s29, s29, %d" % WS_FL)
        e("s_mov_b64 exec, 0x1ff")
        e("buffer_store_dword v%d, v%d, s[4:7], s29 offen sc0 sc1" % (b_, a))
        e("s_mov_b64 exec, s[26:27]")
        lab("L_noinit")

    def hook_mem0():
        l = A.newlab("L_hk")
        e("s_cmp_lg_u32 s%d, 0" % S_WAVE); e("s_cbranch_scc1 %s" % l)
        e("s_add_u32 s29, s%d, %d" % (S_H8, WS_MB))
        e("buffer_store_dword v%d, v%d, s[4:7], s29 offen" % (IM0, IPUB))
        e("s_mov_b64 exec, 1")
        e("v_mov_b32 v62, 24"); e("v_mov_b32 v63, 1"); e("global_atomic_add v62, v63, s[24:25] sc1")
        e("s_mov_b64 exec, s[26:27]")
        lab(l)
    def hook_arrive():
        l = A.newlab("L_hk")
        e("s_cmp_lg_u32 s%d, 0" % S_WAVE); e("s_cbranch_scc1 %s" % l)
        e("s_mov_b64 exec, 1")
        e("v_mov_b32 v62, %d" % bar_off(0)); e("v_mov_b32 v63, 1"); e("global_atomic_add v62, v63, s[24:25] sc1")
        e("s_mov_b64 exec, s[26:27]")
        lab(l)
    load_setup(WVSTRIDE)
    wvu = units_qkv(2, "lds", 0); wvu[0]["dest"] = "flat"; wvu[0]["base"] = V_WV0
    rt(2)
    if OPT.get("regload", 0):
        for t in range(1, 8): wvu[t]["slot"] = t - 1
        wo_units = [dict(kind="wo", m=3, t=t, b=b, dest="v", base=V_WO) for t in range(2) for b in range(2)]
        units = wvu[1:] + [wvu[0]] + units_qkv(0, "a", 0) + units_qkv(1, "a", 128) + wo_units
        load_units_reg(units, {0: hook_mem0, OPT.get('harr', 16): hook_arrive}, maxfly=OPT.get('maxfly', 40))
    elif OPT.get("ld128", 0):
        wo_units = [dict(kind="wo", m=3, t=t, b=b, dest="v", base=V_WO) for t in range(2) for b in range(2)]
        first = units_qkv(0, "a", 0) + units_qkv(1, "a", 128) + wo_units + [wvu[0]]
        ring = [("R", 0), ("R", 8192), ("R", 16384), ("U", 0)]
        for n, u in enumerate(first): u["raw"] = ring[n % 4]
        for k in range(1, 8):
            wvu[k]["raw"] = ("U", 0) if k % 2 == 1 else ("R", 20480)
            wvu[k]["slot"] = k - 1
        units = first + wvu[1:]
        nf = len(first)
        wvu[2]["dep_extra"] = max(n for n, u in enumerate(first) if u["raw"] == ("R", 16384))
        load_units_128(units, {'start': hook_start, 4: hook_mem0, 8: hook_arrive})
    else:
        units = units_qkv(0, "a", 0) + units_qkv(1, "a", 128) + units_wo("v", V_WO) + wvu
        load_units(units, 7, {'start': hook_start, 7: hook_mem0, 14: hook_arrive})
    rt(3)
    wvslot = {u["t"]: u["slot"] for u in wvu[1:]}
    e("s_cmp_lg_u32 s%d, 0" % S_WAVE); e("s_cbranch_scc1 L_tb_done")
    e("s_mov_b64 exec, 1")
    e("v_mov_b32 v%d, %d" % (a, bar_off(0))); e("s_mov_b32 s29, 0")
    lab("L_tb")
    e("global_load_dword v%d, v%d, s[24:25] sc0 sc1" % (b_, a)); e("s_waitcnt vmcnt(0)"); e("v_readfirstlane_b32 s30, v%d" % b_)
    e("s_add_u32 s29, s29, 1"); e("s_cmp_gt_u32 s29, 0x40000"); e("s_cbranch_scc1 L_tb2")
    e("s_cmp_lt_u32 s30, 32"); e("s_cbranch_scc1 L_tb")
    lab("L_tb2")
    e("s_mov_b64 exec, s[26:27]")
    lab("L_tb_done")
    e("s_mov_b32 s%d, 0" % S_STEP)
    e("s_mov_b32 s%d, %d" % (S_MCUR, WS_MB)); e("s_mov_b32 s%d, %d" % (S_MPREV, WS_MB + 2 * 8192)); e("s_mov_b32 s%d, %d" % (S_PCUR, WS_PB))
    e("s_add_u32 s%d, s%d, %d" % (S_KXO, S_H13, WS_KX)); e("s_add_u32 s%d, s%d, %d" % (S_VXO, S_H13, WS_VX))
    e("s_mov_b32 s%d, 0" % S_SPIN); e("s_mov_b32 s%d, 0" % S_PAR); e("s_mov_b32 s37, %d" % (WS_HIST + 0x90000)); e("s_mov_b32 s38, %d" % (WS_HIST + 0x91000))
    def need_seg(target_sgpr_or_none):
        if OPT["stage"] < 2: return
        lok = A.newlab("L_rdy"); lp = A.newlab("L_rp")
        if target_sgpr_or_none is None: e("s_mov_b32 s14, %d" % (1 if OPT.get("l2warm", 0) else 0))
        else:
            e("s_add_u32 s14, s%d, %d" % (target_sgpr_or_none, 2 if OPT.get("l2warm", 0) else 1)); e("s_min_u32 s14, s14, 63")
        e("s_cmp_lt_u32 s14, s%d" % S_RDY); e("s_cbranch_scc1 %s" % lok)
        e("s_mov_b32 s17, 0")
        lab(lp)
        e("v_lshlrev_b32 v%d, 3, v%d" % (VT, V_L16))
        e("s_lshl_b32 s29, s%d, 2" % S_HEAD); e("s_add_u32 s29, s29, %d" % FL_KV)
        e("s_mov_b64 exec, 0xff")
        e("buffer_load_dword v%d, v%d, s[4:7], s29 offen sc0 sc1" % (VT + 1, VT))
        e("s_mov_b64 exec, s[26:27]")
        e("s_waitcnt vmcnt(0)")
        e("s_mov_b32 s15, 64")
        for t in range(1, 8):
            e("v_readlane_b32 s16, v%d, %d" % (VT + 1, t)); e("s_nop 0"); e("s_mul_i32 s16, s16, 7"); e("s_add_u32 s16, s16, %d" % (t - 1)); e("s_min_u32 s15, s15, s16")
        e("s_mov_b32 s%d, s15" % S_RDY)
        e("s_add_u32 s17, s17, 1"); e("s_cmp_gt_u32 s17, 0x40000"); e("s_cbranch_scc1 %s" % lok)
        e("s_cmp_lt_u32 s14, s%d" % S_RDY); e("s_cbranch_scc0 %s" % lp)
        lab(lok)
    def dma8(so, lb, par_sgpr):
        for i in range(8):
            if i % 4 == 0:
                e("s_add_u32 s28, s%d, %d" % (so, i * 1024)); e("s_add_u32 s29, s%d, %d" % (par_sgpr, lb + i * 1024)); e("s_mov_b32 m0, s29"); e("s_nop 0")
            e("buffer_load_dwordx4 v%d, s[4:7], s28 offen offset:%d sc1 lds" % (V_L16, (i % 4) * 1024))
    e("s_mov_b32 s%d, 0" % S_RDY)
    need_seg(None)
    l0 = A.newlab("L_pf"); l1 = A.newlab("L_pf")
    e("s_cmp_eq_u32 s%d, 1" % S_WAVE); e("s_cbranch_scc0 %s" % l0); dma8(S_KXO, L_KX, S_PAR); lab(l0)
    e("s_cmp_eq_u32 s%d, 2" % S_WAVE); e("s_cbranch_scc0 %s" % l1); dma8(S_VXO, L_VX, S_PAR); lab(l1)
    e("s_waitcnt vmcnt(0)"); e("s_barrier")
    rt(4)
    if OPT["stamps"]:
        for i in range(16): e("s_mov_b32 s%d, 0" % (S_ST + i))
        e("s_memtime s[82:83]"); e("s_waitcnt lgkmcnt(0)"); e("s_mov_b32 s80, s82")
    if not OPT["final"]:
        e("s_memtime s[84:85]"); e("s_memrealtime s[88:89]"); e("s_waitcnt lgkmcnt(0)")

    T0, T1, T2, T3, T4, T5 = range(VT, VT + 6)
    def wvreg(t): return V_WV0 if t == 0 else (V_WVR if t % 2 == 1 else V_KX)
    def rd_wv(t):
        r = wvreg(t)
        return [lambda u=u, b=b: A.ds("ds_read_b128 %s, v%d offset:%d" % (vr(r + 8 * u + 4 * b, 4), V_WVA, wvslot[t] * 4096 + u * 2048 + b * 1024), ("wv", t, u)) for u in range(2) for b in range(2)]
    def scalprep():
        e("s_add_u32 s%d, s%d, 0x40000" % (S_KXO, S_KXO)); e("s_add_u32 s%d, s%d, 0x40000" % (S_VXO, S_VXO))
        e("s_cmp_lt_u32 s%d, 2" % S_WAVE); e("s_cselect_b32 s%d, s%d, s%d" % (S_DMA, S_KXO, S_VXO)); e("s_lshr_b32 s29, s%d, 1" % S_WAVE); e("s_lshl_b32 s29, s29, 13"); e("s_add_u32 s29, s29, %d" % L_KX)
        e("s_lshl_b32 s19, s%d, 12" % S_WAVE); e("s_and_b32 s18, s19, 4096"); e("s_add_u32 s%d, s%d, s18" % (S_DMA, S_DMA))
        e("s_xor_b32 s18, s%d, 8192" % S_PAR); e("s_add_u32 s29, s29, s18"); e("s_add_u32 s29, s29, s19")
        e("s_mov_b32 m0, s29")
        e("s_add_u32 s12, s%d, %d" % (S_PAR, L_KX)); e("s_lshl_b32 s28, s%d, 11" % S_WAVE); e("s_add_u32 s13, s28, s%d" % S_PAR); e("s_add_u32 s13, s13, %d" % L_VX)
        if OPT["stage"] >= 3:
            e("s_max_u32 s34, s%d, 1" % S_STEP); e("s_sub_u32 s34, s34, 1"); e("s_lshl_b32 s101, s%d, 2" % S_HEAD); e("s_add_u32 s101, s101, %d" % FL_KM)
            e("s_mov_b32 s35, s38")
            e("s_lshl_b32 s28, s%d, 16" % S_STEP); e("s_lshl_b32 s29, s%d, 11" % S_HEAD); e("s_add_u32 s38, s28, s29"); e("s_lshl_b32 s29, s%d, 9" % S_WAVE); e("s_add_u32 s38, s38, s29"); e("s_add_u32 s38, s38, %d" % WS_KM)
            e("s_mov_b32 s36, s37"); e("s_add_u32 s37, s38, %d" % (WS_VM - WS_KM))
    def nextprep():
        ZS_ = V_KX + 12
        e("v_mfma_f32_32x32x16_bf16 %s, %s, %s, 0" % (vr(V_QK, 16), vr(ZS_, 4), vr(ZS_, 4)))
        e("v_mfma_f32_16x16x32_bf16 %s, %s, %s, 0" % (vr(V_VA, 4), vr(ZS_, 4), vr(ZS_, 4)))
        e("v_mfma_f32_16x16x32_bf16 %s, %s, %s, 0" % (vr(V_VA + 4, 4), vr(ZS_, 4), vr(ZS_, 4)))
        for f in rd_wv(1): f()
        e("s_lshl_b32 s28, s%d, 11" % S_WAVE); e("s_add_u32 s%d, s%d, s28" % (S_MQ, S_MCUR))
        if OPT["stage"] >= 2:
            lsk = A.newlab("L_sk63")
            e("s_cmp_eq_u32 s%d, 63" % S_STEP); e("s_cbranch_scc1 %s" % lsk)
            need_seg(S_STEP)
            lab(lsk)
        if not OPT.get("scal_top", 0): scalprep()
    for i in range(4): e("v_mov_b32 v%d, 0" % (V_KX + 12 + i))
    e("s_nop 1")
    A.lds = []
    nextprep()
    WV1_TAGS = list(A.lds)
    lab("L_step")
    A.lds = list(WV1_TAGS); A.vm = []
    QA, KA_ = V_QK, V_QK + 8
    ts(20)
    if OPT.get("steptrace", 0):
        l = A.newlab("L_stt")
        e("s_cmp_lg_u32 s%d, 2" % S_WAVE); e("s_cbranch_scc1 %s" % l)
        e("s_memrealtime s[90:91]"); e("s_waitcnt lgkmcnt(0)")
        e("s_lshl_b32 s28, s%d, 6" % S_HEAD); e("s_add_u32 s28, s28, s%d" % S_STEP); e("s_lshl_b32 s28, s28, 2"); e("s_add_u32 s28, s28, %d" % (WS_TRACE + 0x10000))
        e("s_mov_b64 exec, 1"); e("v_mov_b32 v10, s90"); e("v_mov_b32 v11, 0"); e("buffer_store_dword v10, v11, s[4:7], s28 offen"); e("s_mov_b64 exec, s[26:27]")
        lab(l)
    if OPT.get("red_sets", 1) == 2: e("s_waitcnt vmcnt(%d)" % (2 if OPT["hist"] else 1))
    for i in range(4): e("v_mov_b32 v%d, 0" % (V_S + i))
    e("s_lshl_b32 s28, s%d, 11" % S_WAVE)
    e("v_add_u32 v%d, s28, v%d" % (T2, V_L16)); e("v_add_u32 v%d, %d, v%d" % (T2, L_MEM, T2))
    for a2 in range(1, 4): e("v_xor_b32 v%d, %d, v%d" % (T2 + a2, a2 << 11, T2))
    def smf(acc, areg, breg):
        e("v_smfmac_f32_16x16x64_bf16 %s, %s, %s, v%d" % (vr(acc, 4), vr(areg, 4), breg, V_IDX))
    def areg_of(tau, own): return (own + 4 * tau) if tau < 2 else (V_MEM + 4 * tau)
    def qk_l(tau, own=V_MEM):
        areg = areg_of(tau, own)
        return [lambda acc=acc, base=base, u=u: smf(acc, areg, ar(base + (u * 8 + tau) * 8, 8)) for (acc, base, u) in ((QA, 0, 0), (KA_, 128, 0), (QA + 4, 0, 1), (KA_ + 4, 128, 1))]
    def vv_l(tau, own=V_MEM):
        areg = areg_of(tau, own)
        return [lambda u=u: smf(V_VA + 4 * u, areg, vr(wvreg(tau) + 8 * u, 8)) for u in range(2)]
    def poll_issue(base):
        for tau in range(2):
            e("buffer_load_dwordx4 %s, v%d, s[4:7], s%d offen offset:%d sc1" % (vr(base + 4 * tau, 4), V_L16, S_MQ, tau * 1024))
    def poll_check(M):
        e("v_max3_u32 v%d, v%d, v%d, v%d" % (T0, M, M + 1, M + 2)); e("v_max3_u32 v%d, v%d, v%d, v%d" % (T1, M + 3, M + 4, M + 5))
        e("v_max3_u32 v%d, v%d, v%d, v%d" % (T0, T0, M + 6, M + 7)); e("v_max_u32 v%d, v%d, v%d" % (T0, T0, T1))
        e("v_cmp_eq_u32 vcc, -1, v%d" % T0)
    SA, SB = V_MEM, V_MEM + 24
    if OPT.get("scal_top", 0): scalprep()
    for i in range(OPT["dly_mem"]): e("s_nop 7")
    if OPT.get("early_rd", 0):
        for f in rd_wv(2): f()
    poll_issue(SA)
    ts(21)
    if not OPT.get("early_rd", 0):
        for f in rd_wv(2): f()
    for i in range(OPT.get("gap_mem", 0)): e("s_nop 7")
    mem2 = OPT.get("mem_sets", 1) == 2
    spec = (not mem2) and OPT.get("spec", 1)
    if mem2: poll_issue(SB)
    lab("L_pmA")
    e("s_add_u32 s%d, s%d, 1" % (S_SPIN, S_SPIN))
    e("s_waitcnt vmcnt(%d)" % (2 if mem2 else 0))
    ts(22)
    if spec:
        M = SA
        q0 = qk_l(0, SA); q1 = qk_l(1, SA)
        q0[0](); e("v_max3_u32 v%d, v%d, v%d, v%d" % (T0, M, M + 1, M + 2)); e("v_max3_u32 v%d, v%d, v%d, v%d" % (T1, M + 3, M + 4, M + 5))
        q0[1](); e("ds_write_b128 v%d, %s" % (T2, vr(M, 4)))
        q0[2](); e("v_max3_u32 v%d, v%d, v%d, v%d" % (T0, T0, M + 6, M + 7)); e("v_max_u32 v%d, v%d, v%d" % (T0, T0, T1))
        q0[3](); e("ds_write_b128 v%d, %s offset:1024" % (T2, vr(M + 4, 4)))
        q1[0](); e("v_cmp_eq_u32 vcc, -1, v%d" % T0)
        q1[1](); e("v_add_u32 v%d, s12, v%d" % (T1, V_L16))
        e("s_cmp_gt_u32 s%d, 0x200000" % S_SPIN); e("s_cbranch_scc1 L_specok")
        if OPT["nowait"]: e("s_branch L_specok")
        e("s_cbranch_vccz L_specok")
        poll_issue(SA) if False else None
        e("s_waitcnt lgkmcnt(0)")
        poll_issue(SA)
        A.nop(6)
        e("v_mfma_f32_32x32x16_bf16 %s, %s, %s, 0" % (vr(V_QK, 16), vr(V_S, 4), vr(V_S, 4)))
        e("s_branch L_pmA")
        lab("L_specok")
        stamp(0)
        q1[2](); q1[3]()
    else:
        poll_check(SA)
        e("s_cmp_gt_u32 s%d, 0x200000" % S_SPIN); e("s_cbranch_scc1 L_goA")
        if OPT["nowait"]: e("s_branch L_goA")
        e("s_cbranch_vccz L_goA")
        poll_issue(SA)
        if mem2:
            e("s_waitcnt vmcnt(2)")
            poll_check(SB)
            e("s_nop 1")
            e("s_cbranch_vccz L_goB")
            poll_issue(SB)
        e("s_branch L_pmA")
    def rd_m(tau): return lambda: A.ds("ds_read_b128 %s, v%d offset:%d" % (vr(V_MEM + 4 * tau, 4), T2 + (tau >> 1), (tau & 1) * 1024), ("m", tau))
    def rd_kx(f):
        kk, kt = f >> 1, f & 1
        return lambda: A.ds("ds_read_b128 %s, v%d offset:%d" % (vr(V_MEM + 4 * f, 4), T1, (kt * 4 + kk) * 1024), ("kx", kk))
    def rd_vx(u): return lambda: A.ds("ds_read_b128 %s, v%d offset:%d" % (vr(V_KX + 4 * u, 4), T0, u * 1024), ("vx", u))
    def run(mf, fl=()):
        fl = list(fl)
        for f in mf:
            f()
            if fl: fl.pop(0)()
        for f in fl: f()
    def vv(tau, fl=()):
        vl = vv_l(tau); fl = list(fl)
        A.wait_lds(("wv", tau, 0)); vl[0]()
        if fl: fl.pop(0)()
        A.wait_lds(("wv", tau, 1)); vl[1]()
        for f in fl: f()
    lds_state = list(A.lds)
    for variant, own in ((("B", SB), ("A", SA)) if mem2 else (("A", SA),)):
        A.lds = list(lds_state)
        if not spec:
            lab("L_go" + variant)
            if variant == "A": stamp(0)
            else: ts(0)
            q0 = qk_l(0, own); q1 = qk_l(1, own)
            q0[0](); e("ds_write_b128 v%d, %s" % (T2, vr(own, 4)))
            q0[1](); e("ds_write_b128 v%d, %s offset:1024" % (T2, vr(own + 4, 4)))
            q0[2](); e("v_add_u32 v%d, s12, v%d" % (T1, V_L16))
            q0[3]()
            if mem2: e("s_waitcnt vmcnt(0)")
            for i2, f in enumerate(q1):
                f()
        if variant == "A": stamp(8, 2)
        A.wait_lds_all(); e("s_barrier")
        if variant == "A": stamp(9, 2)
        rd_m(2)(); rd_m(3)()
        run(vv_l(0, own), [rd_m(4), rd_m(5)])
        run(vv_l(1, own), [rd_m(6), rd_m(7)])
        if variant == "B": e("s_branch L_joinP0")
    lab("L_joinP0")
    e("v_add_u32 v%d, s13, v%d" % (T0, V_L16))
    KH = V_S + 4
    def kmrd(u):
        def f():
            if OPT["stage"] >= 3: A.ds("ds_read_b32 v%d, v%d offset:%d" % (KH + u, V_XWR, u * 512), ("kh", u))
        return f
    def kmst(u):
        def f():
            if OPT["stage"] >= 3 and not OPT.get("nokm", 0):
                A.wait_lds(("kh", u))
                e("buffer_store_dword v%d, v%d, s[4:7], s35 offen offset:%d sc0 sc1" % (KH + u, T2, u * 256))
        return f
    def vmst(u):
        def f():
            if OPT["stage"] >= 3 and not OPT.get("nokm", 0):
                if u == 0: e("v_lshrrev_b32 v%d, 2, v%d" % (T2, V_L16))
                e("buffer_store_dword v%d, v%d, s[4:7], s36 offen offset:%d sc0 sc1" % (V_S + 9 + u, T2, u * 256))
        return f
    def dma(i): return lambda: (None if OPT.get("nodma", 0) else e("buffer_load_dwordx4 v%d, s[4:7], s%d offen offset:%d sc1 lds" % (V_L16, S_DMA, i * 1024)))
    dpos = OPT.get("dmapos", 1)
    if dpos == 0:
        for i in range(4): dma(i)()
    if OPT.get("spread", 1):
        A.wait_lds(("m", 2)); run(qk_l(2), rd_wv(3))
        A.wait_lds(("m", 3)); run(qk_l(3), [rd_kx(0), rd_kx(1), dma(0)])
        vv(2, [dma(1)])
        ts(33)
        A.wait_lds(("m", 4)); run(qk_l(4), rd_wv(4))
        ts(34)
        A.wait_lds(("m", 5)); run(qk_l(5), [rd_kx(2), dma(2), kmrd(0), kmrd(1)])
        vv(3, [dma(3)])
        if OPT["stage"] >= 3:
            lfk = A.newlab("L_fkm")
            e("s_cmp_eq_u32 s%d, 1" % S_WAVE); e("s_cbranch_scc0 %s" % lfk)
            e("v_mov_b32 v%d, s34" % T4); e("s_mov_b64 exec, 1"); e("buffer_store_dword v%d, v%d, s[4:7], s101 offen sc0 sc1" % (T4, V_L16)); e("s_mov_b64 exec, s[26:27]")
            lab(lfk)
        ts(35)
        A.wait_lds(("m", 6)); run(qk_l(6), rd_wv(5))
        vv(4, [rd_kx(3), vmst(0)])
        ts(36)
        A.wait_lds(("m", 7)); run(qk_l(7), rd_wv(6))
        vv5fill = [vmst(1), kmst(0), kmst(1)]
    else:
        A.wait_lds(("m", 2)); run(qk_l(2), rd_wv(3))
        A.wait_lds(("m", 3)); run(qk_l(3), [rd_kx(0), rd_kx(1)] + ([dma(0), dma(1)] if dpos == 1 else []))
        vv(2, ([dma(2), dma(3)] if dpos == 1 else []) + [kmrd(0), kmrd(1), vmst(0), vmst(1)])
        ts(33)
        def warm():
            if OPT.get("l2warm", 0) and not OPT.get("nodma", 0):
                e("v_lshlrev_b32 v%d, 2, v%d" % (T5, V_L16)); e("s_mov_b32 m0, %d" % L_DUM); e("s_add_u32 s28, s%d, 0x40000" % S_DMA)
                e("buffer_load_dword v%d, s[4:7], s28 offen lds" % T5)
        warm()
        if OPT["stage"] >= 3:
            lfk = A.newlab("L_fkm")
            e("s_cmp_eq_u32 s%d, 1" % S_WAVE); e("s_cbranch_scc0 %s" % lfk)
            e("v_mov_b32 v%d, s34" % T4); e("s_mov_b64 exec, 1"); e("buffer_store_dword v%d, v%d, s[4:7], s101 offen sc0 sc1" % (T4, V_L16)); e("s_mov_b64 exec, s[26:27]")
            lab(lfk)
        A.wait_lds(("m", 4)); run(qk_l(4), rd_wv(4))
        ts(34)
        A.wait_lds(("m", 5)); run(qk_l(5), [rd_kx(2), kmst(0), kmst(1)])
        vv(3)
        ts(35)
        A.wait_lds(("m", 6)); run(qk_l(6), rd_wv(5))
        vv(4, [rd_kx(3)])
        ts(36)
        A.wait_lds(("m", 7)); run(qk_l(7), rd_wv(6))
    stamp(1)
    vv(5, vv5fill if OPT.get("spread", 1) else [])
    ts(70)
    e("v_lshrrev_b32 v%d, 1, v%d" % (T3, V_L16)); e("v_add_u32 v%d, %d, v%d" % (T3, L_X, T3))
    for u in range(2):
        q, k_ = QA + 4 * u, KA_ + 4 * u
        e("v_add_f32 v%d, v%d, v%d" % (k_, k_, k_ + 1)); e("v_add_f32 v%d, v%d, v%d" % (k_ + 2, k_ + 2, k_ + 3))
        e("v_add_f32 v%d, v%d, v%d" % (q, q, q + 1)); e("v_add_f32 v%d, v%d, v%d" % (q + 2, q + 2, q + 3))
        e("v_cvt_pk_bf16_f32 v%d, v%d, v%d" % (k_, k_, k_ + 2)); e("v_cvt_pk_bf16_f32 v%d, v%d, v%d" % (k_ + 1, q, q + 2))
        A.ds("ds_write_b64 v%d, %s offset:%d" % (V_XWR, vr(k_, 2), u * 512), "xw")
    ts(71)
    for f in rd_wv(7): f()
    ts(72)
    vv(6)
    ts(73)
    if OPT["stage"] >= 3 and OPT["nsteps"] == 64 and OPT["final"]:
        e("s_cmp_eq_u32 s%d, 63" % S_STEP); e("s_cbranch_scc1 L_tail63")
    if OPT["stage"] >= 3:
        pass
    va = V_VA
    ZS = V_KX + 12
    stamp(10, 2)
    A.wait_lds("xw"); e("s_barrier")
    stamp(11, 2)
    for kk in range(4):
        for b in range(2):
            A.ds("ds_read_b64_tr_b16 %s, v%d offset:%d" % (vr(V_QK + 4 * kk + 2 * b, 2), T3, kk * 1024 + b * 512), ("x", kk))
    stamp(2)
    def vpk(u):
        x = va + 4 * u
        return [lambda: e("v_add_f32 v%d, v%d, v%d" % (x, x, x + 1)), lambda: e("v_add_f32 v%d, v%d, v%d" % (x + 2, x + 2, x + 3)),
                lambda: e("v_cvt_pk_bf16_f32 v%d, v%d, v%d" % (x, x, x + 2)), lambda: e("v_mov_b32 v%d, 0" % (x + 1))]
    zs = [lambda i=i: e("v_mov_b32 v%d, 0" % (ZS + i)) for i in range(4)]
    sfill = {0: [[rd_kx(4)], [rd_kx(5)], [rd_kx(6)]], 1: [[lambda: vv_l(7)[0]()], [lambda: vv_l(7)[1]()], [rd_kx(7)]],
             2: [[rd_vx(0), zs[0]], [rd_vx(1), zs[1]], [zs[2], zs[3]]], 3: [vpk(0)[:2], vpk(0)[2:], vpk(1)[:2]]}
    for kk in range(4):
        A.wait_lds(("x", kk)); A.wait_lds(("kx", kk))
        if kk == 1: A.wait_lds(("wv", 7, 1))
        X = vr(V_QK + 4 * kk, 4)
        cs = lambda r: "0" if kk == 0 else vr(r, 4)
        for idx, (dst, a_op) in enumerate(((V_S, vr(V_MEM + kk * 8, 4)), (V_S + 4, vr(V_MEM + kk * 8 + 4, 4)), (V_S + 8, X))):
            e("v_mfma_f32_16x16x32_bf16 %s, %s, %s, %s" % (vr(dst, 4), a_op, X, cs(dst)))
            for f in sfill[kk][idx]: f()
    for f in vpk(1)[2:]: f()
    e("v_add_u32 v%d, %d, v%d" % (T5, L_O, V_L16))
    A.nop(1)
    stamp(3)
    S = V_S
    e("v_max3_f32 v%d, v%d, v%d, v%d" % (T0, S, S + 1, S + 2)); e("v_max3_f32 v%d, v%d, v%d, v%d" % (T1, S + 4, S + 5, S + 6))
    e("v_max3_f32 v%d, v%d, v%d, v%d" % (T0, T0, S + 3, S + 7)); e("v_max3_f32 v%d, v%d, v%d, v%d" % (T1, T1, S + 8, S + 9))
    e("v_max_f32 v%d, v%d, v%d" % (T0, T0, T1))
    e("v_mov_b32 v%d, v%d" % (T1, T0))
    A.nop(2)
    e("v_permlane16_swap_b32 v%d, v%d" % (T0, T1)); e("v_max_f32 v%d, v%d, v%d" % (T0, T0, T1))
    e("v_mov_b32 v%d, v%d" % (T1, T0))
    e("v_mov_b32 v%d, 0" % (S + 11)); e("s_nop 0")
    e("v_permlane32_swap_b32 v%d, v%d" % (T0, T1)); e("v_max_f32 v%d, v%d, v%d" % (T0, T0, T1))
    e("v_mul_f32 v%d, s%d, v%d" % (T0, S_C, T0))
    if OPT.get("pk", 0):
        for i in range(0, 10, 2): e("v_pk_fma_f32 %s, %s, s[%d:%d], %s op_sel_hi:[1,0,0] neg_lo:[0,0,1] neg_hi:[0,0,1]" % (vr(S + i, 2), vr(S + i, 2), S_C, S_C + 1, vr(T0, 2)))
    else:
        for i in range(10): e("v_fma_f32 v%d, v%d, s%d, -v%d" % (S + i, S + i, S_C, T0))
    for i in range(8): e("v_exp_f32 v%d, v%d" % (S + i, S + i))
    e("v_exp_f32 v%d, v%d" % (S + 8, S + 8))
    e("v_add_f32 v%d, v%d, v%d" % (T2, S, S + 1)); e("v_add_f32 v%d, v%d, v%d" % (T3, S + 2, S + 3))
    e("v_exp_f32 v%d, v%d" % (S + 9, S + 9))
    e("v_cvt_pk_bf16_f32 v%d, v%d, v%d" % (S, S, S + 1)); e("v_cvt_pk_bf16_f32 v%d, v%d, v%d" % (S + 1, S + 2, S + 3))
    e("v_cvt_pk_bf16_f32 v%d, v%d, v%d" % (S + 2, S + 4, S + 5)); e("v_cvt_pk_bf16_f32 v%d, v%d, v%d" % (S + 3, S + 6, S + 7))
    e("v_add_f32 v%d, v%d, v%d" % (T2, T2, S + 4)); e("v_add_f32 v%d, v%d, v%d" % (T3, T3, S + 5))
    stamp(12, 2)
    O0, O1 = V_QK + 4, V_QK + 8
    A.wait_lds(("vx", 1))
    e("v_mfma_f32_16x16x32_bf16 %s, %s, %s, 0" % (vr(O0, 4), vr(V_KX, 4), vr(S, 4)))
    e("v_cvt_pk_bf16_f32 v%d, v%d, v%d" % (S + 10, S + 8, S + 9))
    e("v_add_f32 v%d, v%d, v%d" % (T2, T2, S + 6))
    e("v_mfma_f32_16x16x32_bf16 %s, %s, %s, 0" % (vr(O1, 4), vr(V_KX + 4, 4), vr(S, 4)))
    e("v_add_f32 v%d, v%d, v%d" % (T3, T3, S + 7)); e("v_add_f32 v%d, v%d, v%d" % (T2, T2, S + 8))
    e("v_mfma_f32_16x16x16_bf16 %s, %s, %s, %s" % (vr(O0, 4), vr(va, 2), vr(S + 10, 2), vr(O0, 4)))
    e("v_add_f32 v%d, v%d, v%d" % (T3, T3, S + 9)); e("v_add_f32 v%d, v%d, v%d" % (T2, T2, T3))
    e("v_mfma_f32_16x16x16_bf16 %s, %s, %s, %s" % (vr(O1, 4), vr(va + 4, 2), vr(S + 10, 2), vr(O1, 4)))
    ts(63)
    e("v_mov_b32 v%d, v%d" % (T3, T2)); A.nop(2); e("v_permlane16_swap_b32 v%d, v%d" % (T2, T3)); e("v_add_f32 v%d, v%d, v%d" % (T2, T2, T3))
    e("v_mov_b32 v%d, v%d" % (T3, T2)); A.nop(2); e("v_permlane32_swap_b32 v%d, v%d" % (T2, T3)); e("v_add_f32 v%d, v%d, v%d" % (T2, T2, T3))
    e("v_rcp_f32 v%d, v%d" % (T2, T2))
    e("s_nop 0")
    ts(64)
    W0 = V_QK
    for r in range(2): e("v_mul_f32 v%d, v%d, v%d" % (O0 + r, O0 + r, T2)); e("v_mul_f32 v%d, v%d, v%d" % (O1 + r, O1 + r, T2))
    e("v_cvt_pk_bf16_f32 v%d, v%d, v%d" % (W0, O0, O0 + 1)); e("v_cvt_pk_bf16_f32 v%d, v%d, v%d" % (W0 + 1, O1, O1 + 1))
    if OPT.get("omask", 0): e("s_mov_b64 exec, s[50:51]")
    A.ds("ds_write_b64 v%d, %s" % (V_OWR, vr(W0, 2)), "ow")
    if OPT.get("omask", 0): e("s_mov_b64 exec, s[26:27]")
    for r in range(2, 4): e("v_mul_f32 v%d, v%d, v%d" % (O0 + r, O0 + r, T2)); e("v_mul_f32 v%d, v%d, v%d" % (O1 + r, O1 + r, T2))
    e("v_cvt_pk_bf16_f32 v%d, v%d, v%d" % (W0 + 2, O0 + 2, O0 + 3)); e("v_cvt_pk_bf16_f32 v%d, v%d, v%d" % (W0 + 3, O1 + 2, O1 + 3))
    if OPT.get("omask", 0): e("s_mov_b64 exec, s[50:51]")
    A.ds("ds_write_b64 v%d, %s offset:16" % (V_OWR, vr(W0 + 2, 2)), "ow")
    if OPT.get("omask", 0): e("s_mov_b64 exec, s[26:27]")
    if OPT["stage"] >= 3:
        e("v_mov_b32 v%d, v%d" % (V_S + 9, va)); e("v_mov_b32 v%d, v%d" % (V_S + 10, va + 4))
    ts(65)
    e("s_cmp_eq_u32 s%d, 63" % S_STEP); e("s_cbranch_scc1 L_chain_done")
    e("v_mfma_f32_32x32x16_bf16 %s, %s, %s, 0" % (vr(V_MEM, 16), vr(ZS, 4), vr(ZS, 4)))
    e("v_mfma_f32_32x32x16_bf16 %s, %s, %s, 0" % (vr(V_MEM + 16, 16), vr(ZS, 4), vr(ZS, 4)))
    e("v_add_u32 v%d, %d, v%d" % (T2, L_SEL, V_L16))
    A.ds("ds_read_b128 %s, v%d" % (vr(V_KX + 8, 4), T2), "sel")
    l3 = A.newlab("L_w3")
    e("s_cmp_eq_u32 s%d, 3" % S_WAVE); e("s_cbranch_scc0 %s" % l3); e("s_waitcnt vmcnt(%d)" % (8 if OPT["stage"] >= 3 else 4)); lab(l3)
    stamp(13, 2)
    A.wait_lds_all(); e("s_barrier")
    for t in range(2):
        A.ds("ds_read_b128 %s, v%d offset:%d" % (vr(V_KX + 4 * t, 4), T5, t * 1024), ("o", t))
    stamp(4)
    def wo(nt, t):
        e("v_smfmac_f32_16x16x64_bf16 %s, %s, %s, v%d" % (vr(V_MEM + 4 * nt, 4), vr(V_KX + 4 * t, 4), vr(V_WO + (nt * 2 + t) * 8, 8), V_IDX))
    def fin_l(nt, dst):
        T = V_MEM + 4 * nt
        return [lambda: e("v_add_f32 v%d, v%d, v%d" % (T, T, T + 1)), lambda: e("v_add_f32 v%d, v%d, v%d" % (T + 2, T + 2, T + 3)),
                lambda: e("v_cvt_pk_bf16_f32 v%d, v%d, v%d" % (dst, T, T + 2))] + ([lambda: e("v_bfi_b32 v%d, 1, s%d, v%d" % (dst, S_TAG, dst))] if (nt % 4 == 0 or OPT.get("fulltag", 0)) else [])
    A.wait_lds(("o", 0)); A.wait_lds(("o", 1))
    pub = [lambda: e("s_add_u32 s30, s%d, %d" % (S_PCUR, 4 * 8192)), lambda: e("s_bfe_u32 s%d, s%d, 0x10001" % (S_TAG, S_STEP)),
           lambda: e("v_lshrrev_b32 v%d, 2, v%d" % (T4, V_L16)), lambda: e("v_and_b32 v%d, 0xc0, v%d" % (T4, T4)),
           lambda: e("v_lshlrev_b32 v%d, 1, v%d" % (T3, V_L16)), lambda: e("v_and_b32 v%d, 32, v%d" % (T3, T3)), lambda: e("v_add_u32 v%d, v%d, v%d" % (T4, T4, T3)),
           lambda: e("v_lshrrev_b32 v%d, 3, v%d" % (T3, V_L16)), lambda: e("v_and_b32 v%d, 28, v%d" % (T3, T3)), lambda: e("v_add_u32 v%d, v%d, v%d" % (T4, T4, T3))]
    late = [lambda: e("s_add_u32 s%d, s%d, 8192" % (S_MNXT, S_MCUR)), lambda: e("s_cmp_eq_u32 s%d, %d" % (S_MNXT, WS_MB + 3 * 8192)), lambda: e("s_cselect_b32 s%d, %d, s%d" % (S_MNXT, WS_MB, S_MNXT)),
            lambda: e("s_add_u32 s%d, s%d, s%d" % (S_RED, S_PCUR, S_H13)), lambda: e("s_add_u32 s33, s%d, 4096" % S_RED), lambda: e("s_add_u32 s31, s%d, s%d" % (S_MNXT, S_H8))]
    q = pub[:]
    ts(60)
    for nt in range(8):
        if nt == 4: ts(61)
        for t in range(2):
            wo(nt, t)
            for _ in range(2):
                if q: q.pop(0)()
        if nt >= 2:
            q += fin_l(nt - 2, V_S + nt - 2)
            if nt - 2 == 3: q.append(lambda: e("buffer_store_dwordx4 %s, v%d, s[4:7], s%d offen %s" % (vr(V_S, 4), V_PS0, S_PCUR, PSTF)))
    ts(62)
    while q: q.pop(0)()
    for f in late[:3]: f()
    for nt in (6, 7):
        for f in fin_l(nt, V_S + nt): f()
    e("buffer_store_dwordx4 %s, v%d, s[4:7], s30 offen %s" % (vr(V_S + 4, 4), V_PS0, PSTF))
    for f in late[3:]: f()
    stamp(5)
    lp = A.newlab("L_nopois")
    e("s_cmp_eq_u32 s%d, 3" % S_WAVE); e("s_cbranch_scc0 %s" % lp)
    e("v_mov_b32 v%d, -1" % (V_S + 8))
    e("s_add_u32 s29, s%d, s%d" % (S_MPREV, S_H8))
    e("buffer_store_dword v%d, v%d, s[4:7], s29 offen" % (V_S + 8, T4))
    lab(lp)
    e("s_mov_b32 s%d, s%d" % (S_MPREV, S_MCUR))
    e("s_mov_b32 s%d, s%d" % (S_MCUR, S_MNXT)); e("s_xor_b32 s%d, s%d, 0x40000" % (S_PCUR, S_PCUR))
    e("s_xor_b32 s%d, s%d, 8192" % (S_PAR, S_PAR))
    e("s_add_u32 s%d, s%d, 1" % (S_STEP, S_STEP))
    nextprep()
    e("s_cmp_eq_u32 s%d, 0" % S_WAVE); e("s_cbranch_scc0 L_red_done")
    lab("L_reduce")
    QA_ = [V_MEM + 4 * x for x in range(8)]
    QB_ = [V_WVR, V_WVR + 4, V_WVR + 8, V_WVR + 12, V_VA, V_VA + 4, V_QK + 4, V_QK + 8]
    DA, DB = V_KX + 12, V_QK + 12
    assert OPT.get('red_sets', 1) == 1
    def red_issue(Q):
        for x in range(8):
            e("buffer_load_dwordx4 %s, v%d, s[4:7], s%d offen offset:%d sc1" % (vr(Q[x], 4), V_L16, S_RED if x < 4 else 33, (x & 3) * 1024))
    def red_proc(Q, D, tag, W, stampit=False):
        op = "0x80" if tag else "0xfe"
        for x in range(8):
            e("s_waitcnt vmcnt(%d)" % (W + 7 - x))
            if stampit and x in (0, 7): ts(41 + x)
            e("v_mfma_f32_16x16x32_bf16 %s, %s, %s, %s" % (vr(D, 4), vr(Q[x], 4), vr(V_KX + 8, 4), "0" if x == 0 else vr(D, 4)))
            a_ = Q[x]
            if OPT.get("fulltag", 0):
                if x == 0:
                    e("v_bitop3_b32 v%d, v%d, v%d, v%d bitop3:%s" % (T0, a_, a_ + 1, a_ + 2, op)); e("v_bitop3_b32 v%d, v%d, v%d, v%d bitop3:%s" % (T0, T0, a_ + 3, a_ + 3, op))
                else:
                    e("v_bitop3_b32 v%d, v%d, v%d, v%d bitop3:%s" % (T0, T0, a_, a_ + 1, op)); e("v_bitop3_b32 v%d, v%d, v%d, v%d bitop3:%s" % (T0, T0, a_ + 2, a_ + 3, op))
            else:
                if x == 1: e("v_bitop3_b32 v%d, v%d, v%d, v%d bitop3:%s" % (T0, Q[0], Q[1], Q[1], op))
                elif x in (3, 5, 7): e("v_bitop3_b32 v%d, v%d, v%d, v%d bitop3:%s" % (T0, T0, Q[x - 1], Q[x], op))
                if x == 3 and OPT.get("early", 0) and not OPT["nowait"]:
                    le = A.newlab("L_ee")
                    e("v_and_b32 v%d, 1, v%d" % (T1, T0)); e("v_cmp_ne_u32 vcc, %d, v%d" % (tag, T1))
                    e("s_cmp_gt_u32 s%d, 0x200000" % S_SPIN); e("s_cbranch_scc1 %s" % le)
                    e("s_cbranch_vccnz L_rretry%d" % tag)
                    lab(le)
        e("v_and_b32 v%d, 1, v%d" % (T0, T0))
        e("v_cmp_ne_u32 vcc, %d, v%d" % (tag, T0))
    two = OPT.get("red_sets", 1) == 2
    for i in range(OPT["dly_red"]): e("s_nop 7")
    red_issue(QA_)
    if two:
        for i in range(OPT.get("gap_red", 2)): e("s_nop 7")
        red_issue(QB_)
    ts(40)
    e("s_waitcnt lgkmcnt(0)")
    e("s_cmp_lg_u32 s%d, 0" % S_TAG); e("s_cbranch_scc1 L_prA1")
    for tag in range(2):
        lab("L_prA%d" % tag)
        e("s_add_u32 s%d, s%d, 1" % (S_SPIN, S_SPIN))
        red_proc(QA_, DA, tag, 8 if two else 0, True)
        e("s_cmp_gt_u32 s%d, 0x200000" % S_SPIN); e("s_cbranch_scc1 L_rgoA")
        if OPT["nowait"]: e("s_branch L_rgoA")
        e("s_cbranch_vccz L_rgoA")
        lab("L_rretry%d" % tag)
        red_issue(QA_)
        if two:
            red_proc(QB_, DB, tag, 8)
            e("s_nop 1")
            e("s_cbranch_vccz L_rgoB")
            red_issue(QB_)
        e("s_branch L_prA%d" % tag)
    if two:
        lab("L_rgoB")
        A.nop(4)
        e("v_cndmask_b32 v%d, v%d, v%d, s[48:49]" % (T0, DB + 2, DB)); e("v_cndmask_b32 v%d, v%d, v%d, s[48:49]" % (T1, DB + 3, DB + 1))
        e("s_branch L_rpub")
    lab("L_rgoA")
    A.nop(3)
    e("v_cndmask_b32 v%d, v%d, v%d, s[48:49]" % (T0, DA + 2, DA)); e("v_cndmask_b32 v%d, v%d, v%d, s[48:49]" % (T1, DA + 3, DA + 1))
    lab("L_rpub")
    ts(50)
    e("v_cvt_pk_bf16_f32 v%d, v%d, v%d" % (T0, T0, T1))
    e("buffer_store_dword v%d, v%d, s[4:7], s31 offen %s" % (T0, T4, PUBF))
    if OPT["hist"]:
        e("s_lshl_b32 s30, s%d, 13" % S_STEP); e("s_add_u32 s30, s30, s%d" % S_H8); e("s_add_u32 s30, s30, %d" % WS_HIST)
        e("buffer_store_dword v%d, v%d, s[4:7], s30 offen" % (T0, T4))
    lab("L_red_done")
    stamp(6)
    e("s_barrier")
    stamp(7)
    e("s_cmp_lt_u32 s%d, %d" % (S_STEP, OPT["nsteps"])); e("s_cbranch_scc1 L_step")
    if OPT["stage"] >= 3 and OPT["nsteps"] == 64 and OPT["final"]:
        e("s_branch L_chain_done")
        lab("L_tail63")
        e("s_waitcnt lgkmcnt(0)")
        for u in range(2): smf(V_VA + 4 * u, V_MEM + 28, vr(wvreg(7) + 8 * u, 8))
        e("v_lshrrev_b32 v6, 2, v%d" % V_L16)
        for u in range(2):
            e("buffer_store_dword v%d, v6, s[4:7], s38 offen offset:%d sc0 sc1" % (KA_ + 4 * u, u * 256))
        A.nop(8)
        for u in range(2):
            x = V_VA + 4 * u
            e("v_add_f32 v%d, v%d, v%d" % (x, x, x + 1)); e("v_add_f32 v%d, v%d, v%d" % (x + 2, x + 2, x + 3))
            e("v_cvt_pk_bf16_f32 v%d, v%d, v%d" % (x, x, x + 2))
            e("buffer_store_dword v%d, v6, s[4:7], s37 offen offset:%d sc0 sc1" % (x, u * 256))
        e("s_waitcnt vmcnt(0)"); e("s_barrier")
        lfk = A.newlab("L_fkm")
        e("s_cmp_eq_u32 s%d, 1" % S_WAVE); e("s_cbranch_scc0 L_end")
        e("v_mov_b32 v6, 64"); e("v_mov_b32 v7, 0")
        e("s_mov_b64 exec, 1"); e("buffer_store_dword v6, v7, s[4:7], s101 offen sc0 sc1"); e("s_mov_b64 exec, s[26:27]")
        e("s_waitcnt vmcnt(0)")
        e("s_branch L_end")
    lab("L_chain_done")
    rt(5)
    if OPT["stage"] >= 3:
        e("v_lshrrev_b32 v6, 2, v%d" % V_L16)
        for u in range(2): e("ds_read_b32 v%d, v%d offset:%d" % (8 + u, V_XWR, u * 512))
        for u in range(2):
            e("buffer_store_dword v%d, v6, s[4:7], s37 offen offset:%d sc0 sc1" % (V_S + 9 + u, u * 256))
        e("s_waitcnt lgkmcnt(0)")
        for u in range(2):
            e("buffer_store_dword v%d, v6, s[4:7], s38 offen offset:%d sc0 sc1" % (8 + u, u * 256))
        e("s_waitcnt vmcnt(0)"); e("s_barrier")
        lfk = A.newlab("L_fkm")
        e("s_cmp_eq_u32 s%d, 1" % S_WAVE); e("s_cbranch_scc0 %s" % lfk)
        e("v_mov_b32 v6, 64"); e("v_mov_b32 v7, 0"); e("s_lshl_b32 s28, s%d, 2" % S_HEAD); e("s_add_u32 s28, s28, %d" % FL_KM)
        e("s_mov_b64 exec, 1"); e("buffer_store_dword v6, v7, s[4:7], s28 offen sc0 sc1"); e("s_mov_b64 exec, s[26:27]")
        lab(lfk)
    if not OPT["final"]:
        e("s_memtime s[86:87]"); e("s_memrealtime s[90:91]"); e("s_waitcnt lgkmcnt(0)")
        e("s_sub_u32 s86, s86, s84"); e("s_sub_u32 s90, s90, s88")
        e("s_lshl_b32 s28, s%d, 2" % S_HEAD); e("s_add_u32 s28, s28, s%d" % S_WAVE); e("s_lshl_b32 s28, s28, 7"); e("s_add_u32 s28, s28, %d" % WS_STAMP)
        e("s_mov_b64 exec, 1"); e("v_mov_b32 v10, 0")
        vals = [86, 90, S_SPIN] + ([S_ST + i for i in range(16)] if OPT["stamps"] else []) + [64 + 2 * k for k in range(len(TS))]
        for i, r in enumerate(vals):
            e("v_mov_b32 v11, s%d" % r); e("buffer_store_dword v11, v10, s[4:7], s28 offen offset:%d" % (4 * i))
    e("s_waitcnt vmcnt(0)")
    e("s_branch L_end")

S_X = 12
S_SEG, S_K, S_NSEG, S_XB = 40, 41, 42, 43
S_RANK, S_SUB = 38, 37
def wait_dbg_counter(off_bytes_sgpr_or_int, target, lname):
    e("s_mov_b64 exec, 1")
    if isinstance(off_bytes_sgpr_or_int, int): e("v_mov_b32 v32, %d" % off_bytes_sgpr_or_int)
    else: e("v_mov_b32 v32, %s" % off_bytes_sgpr_or_int)
    e("s_mov_b32 s29, 0")
    lab(lname)
    e("global_load_dword v33, v32, s[24:25] sc0 sc1"); e("s_waitcnt vmcnt(0)"); e("v_readfirstlane_b32 s30, v33")
    e("s_add_u32 s29, s29, 1"); e("s_cmp_gt_u32 s29, 0x40000"); e("s_cbranch_scc1 %s_d" % lname)
    e("s_cmp_lt_u32 s30, %d" % target); e("s_cbranch_scc1 %s" % lname)
    lab(lname + "_d")
    e("s_mov_b64 exec, s[26:27]")

CV_HS, CV_CS = 4416, 17664
CV_XR, CV_XS = 70656, 7680
CV_YB = 101376
def conv_task():
    lskip = A.newlab("L_cv_skip")
    e("s_cmp_lt_u32 s%d, 2" % S_TEAM); e("s_cbranch_scc1 %s" % lskip)
    e("s_cmp_gt_u32 s%d, 5" % S_TEAM); e("s_cbranch_scc1 %s" % lskip)
    TASK, CH = 44, 45
    e("s_sub_u32 s%d, s%d, 2" % (TASK, S_TEAM)); e("s_lshl_b32 s%d, s%d, 5" % (TASK, TASK)); e("s_add_u32 s%d, s%d, s%d" % (TASK, TASK, S_HEAD))
    e("s_lshl_b32 s%d, s%d, 2" % (CH, TASK)); e("s_add_u32 s%d, s%d, s%d" % (CH, CH, S_WAVE))
    e("s_load_dwordx4 s[64:67], s[0:1], %d" % KA["q"])
    e("s_load_dwordx4 s[68:71], s[0:1], %d" % KA["v"])
    e("s_load_dwordx4 s[72:75], s[0:1], %d" % KA["ssmk"])
    e("s_load_dwordx2 s[76:77], s[0:1], %d" % KA["out"])
    e("s_waitcnt lgkmcnt(0)")
    e("s_lshl_b32 s28, s%d, 5" % TASK); e("s_add_u32 s70, s70, s28"); e("s_addc_u32 s71, s71, 0")
    e("s_lshl_b32 s28, s%d, 3" % TASK); e("s_add_u32 s74, s74, s28"); e("s_addc_u32 s75, s75, 0")
    e("s_load_dwordx8 s[80:87], s[70:71], 0"); e("s_load_dwordx2 s[88:89], s[74:75], 0")
    LN = 2
    e("v_lshrrev_b32 v%d, 4, v%d" % (LN, V_L16))
    srd(8, 72, 0x200000)
    e("s_mul_i32 s32, s%d, %d" % (S_WAVE, CV_CS))
    e("s_lshl_b32 s33, s%d, 12" % CH)
    for r in range(4):
        for i in range(4):
            e("s_add_u32 m0, s32, %d" % (r * CV_HS + 64 + i * 1024)); e("s_add_u32 s28, s33, %d" % (i * 1024 + 2 * r))
            e("buffer_load_dwordx4 v%d, s[8:11], s28 offen lds" % V_L16)
    for i in range(4): e("v_mov_b32 v%d, 0" % (4 + i))
    e("v_bfe_u32 v8, v%d, 2, 2" % LN); e("v_mul_u32_u24 v8, %d, v8" % CV_HS); e("v_and_b32 v9, 3, v%d" % LN); e("v_lshlrev_b32 v9, 4, v9"); e("v_add_u32 v8, v8, v9"); e("v_add_u32 v8, s32, v8")
    e("ds_write_b128 v8, v[4:7]")
    e("v_and_b32 v9, 3, v%d" % LN); e("v_lshlrev_b32 v10, 1, v9"); e("v_add_u32 v10, s33, v10")
    e("buffer_load_ushort v11, v10, s[8:11], 0 offen")
    e("v_bfe_u32 v12, v%d, 2, 2" % LN); e("v_mul_u32_u24 v13, %d, v12" % (CV_HS - 2)); e("v_lshlrev_b32 v14, 1, v9"); e("v_add_u32 v13, v13, v14"); e("v_add_u32 v13, 64, v13"); e("v_add_u32 v13, s32, v13")
    e("v_cmp_lt_u32 vcc, v9, v12"); e("v_cmp_gt_u32 s[30:31], 16, v%d" % LN); e("s_nop 1"); e("s_and_b64 s[30:31], s[30:31], vcc")
    e("s_mul_i32 s28, s%d, %d" % (S_WAVE, CV_XS)); e("s_add_u32 s28, s28, %d" % CV_XR); e("v_add_u32 v8, s28, v%d" % V_L16)
    e("ds_write_b128 v8, v[4:7]"); e("ds_write_b128 v8, v[4:7] offset:1024")
    e("v_cmp_gt_u32 vcc, 32, v%d" % LN); e("s_nop 1"); e("s_mov_b64 exec, vcc"); e("ds_write_b128 v8, v[4:7] offset:2048"); e("s_mov_b64 exec, s[26:27]")
    e("s_waitcnt vmcnt(0)")
    e("s_mov_b64 exec, s[30:31]"); e("ds_write_b16 v13, v11"); e("s_mov_b64 exec, s[26:27]")
    srd(8, 66, 0x200000)
    srd(12, 68, 0x200000)
    TH = 3
    e("s_lshl_b32 s28, s%d, 6" % S_WAVE); e("v_add_u32 v%d, s28, v%d" % (TH, LN))
    e("v_lshlrev_b32 v4, 13, v%d" % TH); e("s_lshl_b32 s28, s%d, 3" % TASK); e("v_add_u32 v4, s28, v4")
    KR, VR = 16, 40
    for j in range(11):
        e("v_add_u32 v5, %d, v4" % ((j - 3) * 1024 & 0xffffffff))
        e("buffer_load_dwordx2 %s, v5, s[8:11], 0 offen" % vr(KR + 2 * j, 2))
    for j in range(8):
        e("v_add_u32 v5, %d, v4" % (j * 1024))
        e("buffer_load_dwordx2 %s, v5, s[12:15], 0 offen" % vr(VR + 2 * j, 2))
    e("s_waitcnt lgkmcnt(0)")
    SK = {}
    for cch in range(4):
        for j in range(4):
            src = 80 + 2 * cch + (j >> 1)
            dst = 96 + cch * 4 + j
            if j & 1: e("s_and_b32 s28, s%d, 0xffff0000" % src)
            else: e("s_lshl_b32 s28, s%d, 16" % src)
            e("v_mov_b32 v%d, s28" % dst)
            SK[(cch, j)] = dst
    for cch in range(4):
        src = 88 + (cch >> 1)
        if cch & 1: e("s_and_b32 s28, s%d, 0xffff0000" % src)
        else: e("s_lshl_b32 s28, s%d, 16" % src)
        e("v_mov_b32 v%d, s28" % (112 + cch))
    e("s_waitcnt vmcnt(0)")
    KV = 116
    XP = 56
    for cch in range(4):
        d, hi = cch >> 1, cch & 1
        U = 72
        for j in range(11):
            if hi: e("v_and_b32 v%d, 0xffff0000, v%d" % (U + j, KR + 2 * j + d))
            else: e("v_lshlrev_b32 v%d, 16, v%d" % (U + j, KR + 2 * j + d))
        for t in range(8):
            e("v_mul_f32 v%d, v%d, v%d" % (84 + t, U + t, SK[(cch, 3)]))
            for j in (2, 1, 0):
                e("v_fmac_f32 v%d, v%d, v%d" % (84 + t, U + t + 3 - j, SK[(cch, j)]))
            if hi: e("v_and_b32 v92, 0xffff0000, v%d" % (VR + 2 * t + d))
            else: e("v_lshlrev_b32 v92, 16, v%d" % (VR + 2 * t + d))
            e("v_mul_f32 v%d, v%d, v92" % (84 + t, 84 + t))
        for p in range(4):
            e("v_cvt_pk_bf16_f32 v%d, v%d, v%d" % (XP + 4 * cch + p, 84 + 7 - 2 * p, 84 + 6 - 2 * p))
    e("v_lshrrev_b32 v4, 2, v%d" % TH); e("v_mul_u32_u24 v4, 80, v4"); e("v_and_b32 v5, 3, v%d" % TH); e("v_lshlrev_b32 v5, 4, v5"); e("v_add_u32 v4, v4, v5")
    e("v_add_u32 v4, %d, v4" % (CV_XR + 32 * 80))
    e("s_waitcnt lgkmcnt(0)"); e("s_barrier")
    for cch in range(4):
        e("ds_write_b128 v4, %s offset:%d" % (vr(XP + 4 * cch, 4), cch * CV_XS))
    srd(8, 64, 0x200000)
    e("v_lshlrev_b32 v4, 13, v%d" % TH); e("s_lshl_b32 s28, s%d, 3" % TASK); e("v_add_u32 v4, s28, v4")
    QR = 16
    for j in range(8):
        e("v_add_u32 v5, %d, v4" % (j * 1024))
        e("buffer_load_dwordx2 %s, v5, s[8:11], 0 offen" % vr(QR + 2 * j, 2))
    e("s_waitcnt lgkmcnt(0)"); e("s_barrier")
    e("v_and_b32 v6, 31, v%d" % LN); e("v_lshrrev_b32 v7, 5, v%d" % LN)
    e("v_add_u32 v8, 1, v6"); e("v_and_b32 v8, 3, v8"); e("v_mul_u32_u24 v8, %d, v8" % CV_HS)
    e("v_lshlrev_b32 v9, 3, v7"); e("v_sub_u32 v9, v6, v9"); e("v_add_u32 v9, 25, v9"); e("v_lshrrev_b32 v9, 2, v9"); e("v_lshlrev_b32 v9, 3, v9")
    e("v_add_u32 v8, v8, v9"); e("v_add_u32 v8, s32, v8"); e("v_subrev_u32 v8, 32, v8")
    e("v_mul_u32_u24 v9, 80, v6"); e("v_lshlrev_b32 v10, 4, v7"); e("v_add_u32 v9, v9, v10")
    e("s_mul_i32 s28, s%d, %d" % (S_WAVE, CV_XS)); e("s_add_u32 s28, s28, %d" % (CV_XR - 31 * 80)); e("v_add_u32 v9, s28, v9")
    Y0, Y1 = 128, 144
    FA, FB = 72, 88
    steps = []
    for dl in range(64):
        for kk in range(2):
            steps.append((dl, kk))
    A.lds = []
    def issue(n):
        dl, kk = steps[n]; u = 2 * dl - kk
        ra = FA + (n % 4) * 4
        A.ds("ds_read_b64 %s, v8 offset:%d" % (vr(ra, 2), (u + 1) * 32), ("cv", n))
        A.ds("ds_read_b64 %s, v8 offset:%d" % (vr(ra + 2, 2), (u + 1) * 32 + 8), ("cv", n))
        rb = 88 + (n % 3) * 8
        A.ds("ds_read_b128 %s, v9 offset:%d" % (vr(rb, 4), (63 - dl) * 80 + kk * 32 + 2560), ("cv", n))
        if dl <= 31:
            A.ds("ds_read_b128 %s, v9 offset:%d" % (vr(rb + 4, 4), (63 - dl) * 80 + kk * 32), ("cv", n))
    issue(0); issue(1)
    first = [True, True]
    for n in range(len(steps)):
        dl, kk = steps[n]
        A.wait_lds(("cv", n))
        ra = FA + (n % 4) * 4; rb = 88 + (n % 3) * 8
        e("v_mfma_f32_32x32x16_bf16 %s, %s, %s, %s" % (ar(Y1, 16), vr(ra, 4), vr(rb, 4), "0" if n == 0 else ar(Y1, 16)))
        if dl <= 31:
            e("v_mfma_f32_32x32x16_bf16 %s, %s, %s, %s" % (ar(Y0, 16), vr(ra, 4), vr(rb + 4, 4), "0" if n == 0 else ar(Y0, 16)))
        if n + 2 < len(steps): issue(n + 2)
    A.nop(16)
    e("v_lshlrev_b32 v10, 6, v6"); e("v_lshlrev_b32 v11, 3, v7"); e("v_add_u32 v10, v10, v11")
    e("s_lshl_b32 s28, s%d, 12" % S_WAVE); e("s_add_u32 s28, s28, %d" % CV_YB); e("v_add_u32 v10, s28, v10")
    for tile, Y in ((0, Y0), (1, Y1)):
        for q4 in range(4):
            for r in range(4): e("v_accvgpr_read_b32 v%d, a%d" % (72 + r, Y + 4 * q4 + r))
            e("s_nop 0")
            e("v_cvt_pk_bf16_f32 v76, v72, v73"); e("v_cvt_pk_bf16_f32 v77, v74, v75")
            e("ds_write_b64 v10, v[76:77] offset:%d" % (tile * 2048 + q4 * 16))
            e("s_nop 1")
    e("s_waitcnt lgkmcnt(0)"); e("s_barrier")
    e("v_lshlrev_b32 v4, 4, v%d" % TH); e("v_add_u32 v4, %d, v4" % CV_YB)
    YR = 72
    for cch in range(4):
        e("ds_read_b128 %s, v4 offset:%d" % (vr(YR + 4 * cch, 4), cch * 4096))
    e("s_waitcnt lgkmcnt(0) vmcnt(0)")
    srd(8, 76, 0x400000)
    OUTR = 40
    for t in range(8):
        for pr in range(2):
            vals = []
            for h in range(2):
                cch = 2 * pr + h
                ysrc = YR + 4 * cch + (t >> 1)
                if t & 1: e("v_and_b32 v%d, 0xffff0000, v%d" % (92 + h, ysrc))
                else: e("v_lshlrev_b32 v%d, 16, v%d" % (92 + h, ysrc))
                p = (7 - t) >> 1
                ksrc = XP + 4 * cch + p
                if (7 - t) & 1: e("v_and_b32 v94, 0xffff0000, v%d" % ksrc)
                else: e("v_lshlrev_b32 v94, 16, v%d" % ksrc)
                e("v_fmac_f32 v%d, v94, v%d" % (92 + h, 112 + cch))
                qsrc = QR + 2 * t + pr
                if h: e("v_and_b32 v94, 0xffff0000, v%d" % qsrc)
                else: e("v_lshlrev_b32 v94, 16, v%d" % qsrc)
                e("v_mul_f32 v%d, v%d, v94" % (92 + h, 92 + h))
            e("v_cvt_pk_bf16_f32 v%d, v92, v93" % (OUTR + 2 * t + pr))
    e("v_lshlrev_b32 v4, 14, v%d" % TH); e("s_lshl_b32 s28, s%d, 3" % TASK); e("v_add_u32 v4, s28, v4")
    for t in range(8):
        e("v_add_u32 v5, %d, v4" % (t * 2048))
        e("buffer_store_dwordx2 %s, v5, s[8:11], 0 offen" % vr(OUTR + 2 * t, 2))
    e("s_waitcnt vmcnt(0)"); e("s_barrier")
    e("s_load_dwordx2 s[30:31], s[0:1], %d" % KA["x"]); e("s_waitcnt lgkmcnt(0)")
    srd(S_X, 30, 0x200000)
    lab(lskip)

XL_T0, XL_QB, XL_KMI, XL_OB, XL_SEL = 0, 65536, 73728, 77824, 86016
S_OUT = 16
S_QT, S_EH, S_XPB, S_PAR2 = 44, 45, 46, 47
def xt_dma_g(seg_sgpr, buf_sgpr):
    e("s_lshr_b32 s28, s%d, 1" % S_WAVE); e("s_lshl_b32 s29, s%d, 15" % seg_sgpr); e("s_lshl_b32 s30, s28, 14"); e("s_add_u32 s29, s29, s30")
    e("s_and_b32 s30, s%d, 1" % S_WAVE); e("s_lshl_b32 s31, s30, 9"); e("s_add_u32 s29, s29, s31")
    e("s_lshl_b32 s31, s%d, 13" % S_WAVE); e("s_add_u32 s31, s31, s%d" % buf_sgpr)
    for i in range(8):
        e("s_add_u32 m0, s31, %d" % (i * 1024)); e("s_add_u32 s30, s29, %d" % (i * 64))
        e("buffer_load_dwordx4 v1, s[12:15], s30 offen lds")

def xphase2():
    L = VLANE
    e("s_mov_b32 s%d, s%d" % (S_HEAD, S_RANK))
    e("s_lshl_b32 s%d, s%d, 13" % (S_H13, S_HEAD)); e("s_lshl_b32 s%d, s%d, 8" % (S_H8, S_HEAD))
    e("s_cmp_eq_u32 s%d, 1" % S_TEAM); e("s_cselect_b32 s%d, 10, 9" % S_NSEG)
    e("s_barrier")
    e("v_lshrrev_b32 v%d, 4, v%d" % (L, V_L16))
    load_setup(32768)
    uq = units_qkv(0, "a", 0)
    for u in uq: u["perm"] = False
    load_units(uq + units_wo("v", V_WO), 8)
    e("s_barrier")
    rt(5)
    if OPT.get("conv", 0): conv_task()
    rt(6)
    KXF, VXF, QF, S, KMF, VMF, OO = 12, 44, 60, 76, 88, 104, 112
    T0, T1, T2, T3, T4, T5 = 6, 7, 8, 9, 10, 11
    V_THR, V_XPS, V_XD = 3, 4, 1
    e("v_lshrrev_b32 v%d, 4, v%d" % (L, V_L16))
    e("s_load_dwordx2 s[30:31], s[0:1], %d" % KA["out"])
    e("s_and_b32 s%d, s%d, 1" % (S_QT, S_WAVE)); e("s_lshr_b32 s%d, s%d, 1" % (S_EH, S_WAVE))
    e("v_lshrrev_b32 v1, 2, v%d" % L); e("v_lshrrev_b32 v2, 4, v%d" % L); e("v_xor_b32 v2, v2, v%d" % L); e("v_and_b32 v2, 3, v2"); e("v_lshlrev_b32 v2, 4, v2")
    e("v_lshlrev_b32 v1, 10, v1"); e("v_add_u32 v1, v1, v2")
    e("v_and_b32 v5, 15, v%d" % L); e("v_lshrrev_b32 v2, 2, v5"); e("v_lshrrev_b32 v34, 4, v%d" % L); e("v_xor_b32 v2, v2, v34"); e("v_and_b32 v2, 3, v2")
    e("v_lshlrev_b32 v5, 2, v5"); e("v_add_u32 v5, v5, v2"); e("v_lshlrev_b32 v5, 4, v5")
    e("v_and_b32 v%d, 15, v%d" % (V_THR, L)); e("v_lshrrev_b32 v2, 4, v%d" % L); e("v_lshlrev_b32 v2, 2, v2"); e("v_sub_u32 v%d, v%d, v2" % (V_THR, V_THR))
    e("s_lshl_b32 s28, s%d, 4" % S_QT); e("v_add_u32 v%d, s28, v%d" % (V_THR, V_THR))
    e("v_bfe_u32 v%d, v%d, 2, 2" % (V_XPS, L)); e("v_lshlrev_b32 v%d, 13, v%d" % (V_XPS, V_XPS))
    e("v_lshrrev_b32 v2, 4, v%d" % L); e("v_lshlrev_b32 v2, 6, v2"); e("v_add_u32 v%d, v%d, v2" % (V_XPS, V_XPS))
    e("v_and_b32 v2, 3, v%d" % L); e("v_lshlrev_b32 v2, 4, v2"); e("v_add_u32 v%d, v%d, v2" % (V_XPS, V_XPS)); e("v_add_u32 v%d, s%d, v%d" % (V_XPS, S_H8, V_XPS))
    e("v_and_b32 v6, 1, v%d" % L); e("v_lshlrev_b32 v6, 4, v6"); e("v_mov_b32 v7, 0x3f80"); e("v_lshlrev_b32 v7, v6, v7")
    e("v_bfe_u32 v6, v%d, 1, 2" % L)
    for i in range(4):
        e("v_cmp_eq_u32 vcc, %d, v6" % i); e("s_nop 1"); e("v_cndmask_b32 v%d, 0, v7, vcc" % (12 + i))
    e("v_add_u32 v6, %d, v%d" % (XL_SEL, V_L16)); e("ds_write_b128 v6, v[12:15]")
    e("s_waitcnt lgkmcnt(0)")
    srd(S_OUT, 30, 0x400000)
    cval = struct.unpack("<I", struct.pack("<f", (128 ** -0.5) * math.log2(math.e)))[0]
    e("s_mov_b32 s%d, 0x%08x" % (S_C, cval))
    e("s_lshl_b32 s%d, s%d, 21" % (S_XPB, S_TEAM)); e("s_add_u32 s%d, s%d, %d" % (S_XPB, S_XPB, WS_XP))
    e("s_sub_u32 s%d, s%d, 1" % (S_SEG, S_TEAM)); e("s_mov_b32 s%d, 0" % S_K); e("s_mov_b32 s%d, 0" % S_XB); e("s_mov_b32 s%d, 0" % S_PAR2)
    xt_dma_g(S_SEG, S_XB)
    e("s_and_b32 s33, s%d, 3" % S_TEAM); e("s_lshl_b32 s33, s33, 6"); e("s_lshr_b32 s29, s%d, 2" % S_TEAM); e("s_lshl_b32 s29, s29, 2"); e("s_add_u32 s33, s33, s29"); e("s_add_u32 s33, s33, 16")
    wait_dbg_counter("s33", 32, "L_x2_init")
    lab("L_x2")
    A.lds = []; A.vm = []
    lkv = A.newlab("L_x2kv")
    e("s_cmp_lg_u32 s%d, 0" % S_WAVE); e("s_cbranch_scc1 %s_s" % lkv)
    e("s_mov_b64 exec, 1"); e("v_mov_b32 v6, 0"); e("s_lshl_b32 s28, s%d, 7" % S_TEAM); e("s_lshl_b32 s29, s%d, 2" % S_HEAD); e("s_add_u32 s28, s28, s29"); e("s_add_u32 s28, s28, %d" % FL_KV); e("s_mov_b32 s29, 0")
    lab(lkv)
    e("buffer_load_dword v7, v6, s[4:7], s28 offen sc0 sc1"); e("s_waitcnt vmcnt(0)"); e("v_readfirstlane_b32 s30, v7")
    e("s_add_u32 s29, s29, 1"); e("s_cmp_gt_u32 s29, 0x80000"); e("s_cbranch_scc1 %s_d" % lkv)
    e("s_cmp_gt_u32 s30, s%d" % S_K); e("s_cbranch_scc1 %s_d" % lkv)
    e("s_sleep 8"); e("s_branch %s" % lkv)
    lab(lkv + "_d")
    e("s_mov_b64 exec, s[26:27]")
    lab(lkv + "_s")
    e("s_waitcnt vmcnt(0)"); e("s_barrier")
    e("s_lshl_b32 s28, s%d, 18" % S_SEG); e("s_add_u32 s28, s28, s%d" % S_H13)
    e("s_add_u32 s29, s28, %d" % WS_KX); e("s_add_u32 s30, s29, 4096")
    for kt in range(2):
        for kk in range(4):
            A.vmem("buffer_load_dwordx4 %s, v%d, s[4:7], s%d offen offset:%d sc1" % (vr(KXF + (kt * 4 + kk) * 4, 4), V_L16, 29 + kt, kk * 1024), "kx")
    e("s_lshl_b32 s29, s%d, 12" % S_EH); e("s_add_u32 s29, s29, s28"); e("s_add_u32 s29, s29, %d" % WS_VX)
    for i in range(4):
        A.vmem("buffer_load_dwordx4 %s, v%d, s[4:7], s29 offen offset:%d sc1" % (vr(VXF + 4 * i, 4), V_L16, i * 1024), "vx")
    ln = A.newlab("L_x2n")
    e("s_add_u32 s32, s%d, 1" % S_K); e("s_cmp_ge_u32 s32, s%d" % S_NSEG); e("s_cbranch_scc1 %s" % ln)
    e("s_add_u32 s33, s%d, 7" % S_SEG); e("s_xor_b32 s36, s%d, 32768" % S_XB)
    xt_dma_g(33, 36)
    lab(ln)
    XF = KMF
    e("v_add_u32 v2, s%d, v5" % S_XB)
    def rdx(kk):
        for tt in range(2):
            A.ds("ds_read_b128 %s, v2 offset:%d" % (vr(XF + (kk % 2) * 8 + tt * 4, 4), (tt * 16 + kk) * 1024), ("x", kk))
    rdx(0); rdx(1)
    for kk in range(16):
        A.wait_lds(("x", kk))
        t, b = kk >> 1, kk & 1
        for u in range(2):
            for tt in range(2):
                xf = vr(XF + (kk % 2) * 8 + tt * 4, 4)
                cq = "0" if kk == 0 else vr(QF + (u * 2 + tt) * 4, 4)
                e("v_mfma_f32_16x16x32_bf16 %s, %s, %s, %s" % (vr(QF + (u * 2 + tt) * 4, 4), ar((u * 8 + t) * 8 + 4 * b, 4), xf, cq))
        if kk + 2 < 16: rdx(kk + 2)
    A.nop(8)
    for tt in range(2):
        for u in range(2):
            a0 = QF + (u * 2 + tt) * 4
            e("v_cvt_pk_bf16_f32 v%d, v%d, v%d" % (OO + tt * 4 + 2 * u, a0, a0 + 1)); e("v_cvt_pk_bf16_f32 v%d, v%d, v%d" % (OO + tt * 4 + 2 * u + 1, a0 + 2, a0 + 3))
    e("s_lshl_b32 s28, s%d, 10" % S_WAVE); e("s_add_u32 s28, s28, %d" % XL_QB); e("v_add_u32 v2, s28, v%d" % V_L16)
    for tt in range(2):
        A.ds("ds_write_b128 v2, %s offset:%d" % (vr(OO + tt * 4, 4), tt * 4096), "qw")
    A.wait_lds_all(); e("s_barrier")
    e("s_lshl_b32 s28, s%d, 12" % S_QT); e("s_add_u32 s28, s28, %d" % XL_QB); e("v_add_u32 v2, s28, v%d" % V_L16)
    for kk in range(4):
        A.ds("ds_read_b128 %s, v2 offset:%d" % (vr(QF + 4 * kk, 4), kk * 1024), ("q", kk))
    e("s_waitcnt vmcnt(12)")
    l12 = A.newlab("L_x2w")
    e("s_cmp_lt_u32 s32, s%d" % S_NSEG); e("s_cbranch_scc1 %s" % l12); e("s_waitcnt vmcnt(4)"); lab(l12)
    for kk in range(4):
        A.wait_lds(("q", kk))
        for kt in range(2):
            cs = "0" if kk == 0 else vr(S + 4 * kt, 4)
            e("v_mfma_f32_16x16x32_bf16 %s, %s, %s, %s" % (vr(S + 4 * kt, 4), vr(KXF + (kt * 4 + kk) * 4, 4), vr(QF + 4 * kk, 4), cs))
    lw = A.newlab("L_x2km")
    e("s_cmp_lg_u32 s%d, 0" % S_WAVE); e("s_cbranch_scc1 %s_s" % lw)
    e("s_mov_b64 exec, 1"); e("v_mov_b32 v%d, 0" % T0); e("s_lshl_b32 s28, s%d, 2" % S_HEAD); e("s_add_u32 s28, s28, %d" % FL_KM); e("s_mov_b32 s29, 0")
    lab(lw)
    e("buffer_load_dword v%d, v%d, s[4:7], s28 offen sc0 sc1" % (T1, T0)); e("s_waitcnt vmcnt(0)"); e("v_readfirstlane_b32 s30, v%d" % T1)
    e("s_add_u32 s29, s29, 1"); e("s_cmp_gt_u32 s29, 0x80000"); e("s_cbranch_scc1 %s_d" % lw)
    e("s_cmp_gt_u32 s30, s%d" % S_SEG); e("s_cbranch_scc1 %s_d" % lw)
    e("s_add_u32 s30, s30, 2"); e("s_cmp_gt_u32 s30, s%d" % S_SEG); e("s_cbranch_scc1 %s_n" % lw)
    e("s_add_u32 s30, s30, 2"); e("s_cmp_gt_u32 s30, s%d" % S_SEG); e("s_cbranch_scc1 %s_m" % lw)
    e("s_sleep %d" % OPT.get("slpf", 32)); e("s_branch %s" % lw)
    lab(lw + "_m")
    e("s_sleep %d" % OPT.get("slp", 8)); e("s_branch %s" % lw)
    lab(lw + "_n")
    e("s_sleep %d" % OPT.get("slpn", 2)); e("s_branch %s" % lw)
    lab(lw + "_d")
    e("s_mov_b64 exec, s[26:27]")
    lab(lw + "_s")
    e("s_waitcnt vmcnt(0)"); e("s_barrier")
    rtk(8, S_SEG, 63)
    e("s_lshl_b32 s28, s%d, 16" % S_SEG); e("s_lshl_b32 s29, s%d, 11" % S_HEAD); e("s_add_u32 s28, s28, s29")
    e("s_lshl_b32 s29, s%d, 9" % S_WAVE); e("s_add_u32 s29, s29, s28"); e("s_add_u32 s29, s29, %d" % WS_KM)
    e("v_lshrrev_b32 v%d, 2, v%d" % (T0, V_L16))
    for u in range(2):
        e("buffer_load_dword v%d, v%d, s[4:7], s29 offen offset:%d sc1" % (T2 + u, T0, u * 256))
    e("s_lshl_b32 s29, s%d, 10" % S_EH); e("s_add_u32 s29, s29, s28"); e("s_add_u32 s29, s29, %d" % WS_VM)
    for i in range(4):
        e("buffer_load_dword v%d, v%d, s[4:7], s29 offen offset:%d sc1" % (VMF + 2 * i, T0, i * 256))
        e("v_mov_b32 v%d, 0" % (VMF + 2 * i + 1))
    e("v_and_b32 v%d, 0xf0, v%d" % (T4, V_L16)); e("v_lshlrev_b32 v%d, 1, v%d" % (T4, T4)); e("v_lshrrev_b32 v%d, 8, v%d" % (T1, V_L16)); e("v_lshlrev_b32 v%d, 3, v%d" % (T1, T1))
    e("v_add_u32 v%d, v%d, v%d" % (T4, T4, T1)); e("s_lshl_b32 s29, s%d, 10" % S_WAVE); e("s_add_u32 s29, s29, %d" % XL_KMI); e("v_add_u32 v%d, s29, v%d" % (T4, T4))
    e("s_waitcnt vmcnt(0)")
    for u in range(2):
        e("ds_write_b32 v%d, v%d offset:%d" % (T4, T2 + u, u * 512))
    e("s_waitcnt lgkmcnt(0)"); e("s_barrier")
    rtk(9, S_SEG, 63)
    e("v_lshrrev_b32 v%d, 1, v%d" % (T0, V_L16))
    e("v_add_u32 v%d, %d, v%d" % (T0, XL_KMI, T0))
    for kk in range(4):
        for b in range(2):
            A.ds("ds_read_b64_tr_b16 %s, v%d offset:%d" % (vr(KMF + 4 * kk + 2 * b, 2), T0, kk * 1024 + b * 512), ("km", kk))
    for kk in range(4):
        A.wait_lds(("km", kk))
        e("v_mfma_f32_16x16x32_bf16 %s, %s, %s, %s" % (vr(S + 8, 4), vr(KMF + 4 * kk, 4), vr(QF + 4 * kk, 4), "0" if kk == 0 else vr(S + 8, 4)))
    e("v_mov_b32 v%d, 0xff800000" % T5)
    for kt in range(2):
        for r in range(4):
            e("v_cmp_gt_i32 vcc, %d, v%d" % (16 * kt + r, V_THR)); e("s_nop 1"); e("v_cndmask_b32 v%d, v%d, v%d, vcc" % (S + 4 * kt + r, S + 4 * kt + r, T5))
    A.nop(2)
    e("v_max3_f32 v%d, v%d, v%d, v%d" % (T0, S, S + 1, S + 2)); e("v_max3_f32 v%d, v%d, v%d, v%d" % (T1, S + 4, S + 5, S + 6))
    e("v_max3_f32 v%d, v%d, v%d, v%d" % (T0, T0, S + 3, S + 7)); e("v_max3_f32 v%d, v%d, v%d, v%d" % (T1, T1, S + 8, S + 9))
    e("v_max_f32 v%d, v%d, v%d" % (T0, T0, T1))
    e("v_mov_b32 v%d, v%d" % (T1, T0)); A.nop(2); e("v_permlane16_swap_b32 v%d, v%d" % (T0, T1)); e("v_max_f32 v%d, v%d, v%d" % (T0, T0, T1))
    e("v_mov_b32 v%d, v%d" % (T1, T0)); A.nop(2); e("v_permlane32_swap_b32 v%d, v%d" % (T0, T1)); e("v_max_f32 v%d, v%d, v%d" % (T0, T0, T1))
    e("v_mul_f32 v%d, s%d, v%d" % (T0, S_C, T0))
    for i in range(10): e("v_fma_f32 v%d, v%d, s%d, -v%d" % (S + i, S + i, S_C, T0))
    for i in range(10): e("v_exp_f32 v%d, v%d" % (S + i, S + i))
    e("s_nop 0")
    e("v_add_f32 v%d, v%d, v%d" % (T2, S, S + 1)); e("v_add_f32 v%d, v%d, v%d" % (T3, S + 2, S + 3))
    for i in range(4, 10, 2):
        e("v_add_f32 v%d, v%d, v%d" % (T2, T2, S + i)); e("v_add_f32 v%d, v%d, v%d" % (T3, T3, S + i + 1))
    e("v_add_f32 v%d, v%d, v%d" % (T2, T2, T3))
    for i in range(4): e("v_cvt_pk_bf16_f32 v%d, v%d, v%d" % (S + i, S + 2 * i, S + 2 * i + 1))
    e("v_cvt_pk_bf16_f32 v%d, v%d, v%d" % (S + 10, S + 8, S + 9)); e("v_mov_b32 v%d, 0" % (S + 11))
    e("v_mov_b32 v%d, v%d" % (T3, T2)); A.nop(2); e("v_permlane16_swap_b32 v%d, v%d" % (T2, T3)); e("v_add_f32 v%d, v%d, v%d" % (T2, T2, T3))
    e("v_mov_b32 v%d, v%d" % (T3, T2)); A.nop(2); e("v_permlane32_swap_b32 v%d, v%d" % (T2, T3)); e("v_add_f32 v%d, v%d, v%d" % (T2, T2, T3))
    e("v_rcp_f32 v%d, v%d" % (T2, T2))
    for i in range(4):
        e("v_mfma_f32_16x16x32_bf16 %s, %s, %s, 0" % (vr(OO + 4 * i, 4), vr(VXF + 4 * i, 4), vr(S, 4)))
    for i in range(4):
        e("v_mfma_f32_16x16x16_bf16 %s, %s, %s, %s" % (vr(OO + 4 * i, 4), vr(VMF + 2 * i, 2), vr(S + 10, 2), vr(OO + 4 * i, 4)))
    A.nop(8)
    for i in range(16): e("v_mul_f32 v%d, v%d, v%d" % (OO + i, OO + i, T2))
    for j in range(2):
        for tsub in range(2):
            a0 = OO + (2 * j + tsub) * 4
            e("v_cvt_pk_bf16_f32 v%d, v%d, v%d" % (QF + 4 * j + 2 * tsub, a0, a0 + 1)); e("v_cvt_pk_bf16_f32 v%d, v%d, v%d" % (QF + 4 * j + 2 * tsub + 1, a0 + 2, a0 + 3))
    e("s_lshl_b32 s28, s%d, 12" % S_QT); e("s_lshl_b32 s29, s%d, 11" % S_EH); e("s_add_u32 s28, s28, s29"); e("s_add_u32 s28, s28, %d" % XL_OB); e("v_add_u32 v2, s28, v%d" % V_L16)
    for j in range(2):
        A.ds("ds_write_b128 v2, %s offset:%d" % (vr(QF + 4 * j, 4), j * 1024), "ow")
    A.wait_lds_all(); e("s_barrier")
    rtk(10, S_SEG, 63)
    e("v_add_u32 v2, %d, v%d" % (XL_OB, V_L16))
    ACC, AF, PKR = 12, 44, 60
    e("s_add_u32 s33, s%d, s%d" % (S_XPB, S_PAR2))
    for qt in range(2):
        for kk in range(4):
            A.ds("ds_read_b128 %s, v2 offset:%d" % (vr(AF + 4 * kk, 4), qt * 4096 + kk * 1024), ("o", kk))
        for kk in range(4):
            A.wait_lds(("o", kk))
            t, b = kk >> 1, kk & 1
            for nt in range(8):
                e("v_mfma_f32_16x16x32_bf16 %s, %s, %s, %s" % (vr(ACC + 4 * nt, 4), vr(AF + 4 * kk, 4), vr(V_WO + (nt * 2 + t) * 8 + 4 * b, 4), "0" if kk == 0 else vr(ACC + 4 * nt, 4)))
        A.nop(8)
        for p in range(4):
            for tsub in range(2):
                a0 = ACC + 4 * (2 * p + tsub)
                e("v_cvt_pk_bf16_f32 v%d, v%d, v%d" % (PKR + 4 * p + 2 * tsub, a0, a0 + 1)); e("v_cvt_pk_bf16_f32 v%d, v%d, v%d" % (PKR + 4 * p + 2 * tsub + 1, a0 + 2, a0 + 3))
            e("s_lshl_b32 s28, s%d, 17" % S_WAVE); e("s_add_u32 s28, s28, s33"); e("s_add_u32 s28, s28, %d" % ((qt * 16 + p) * 4 * 8192))
            e("buffer_store_dwordx4 %s, v%d, s[4:7], s28 offen" % (vr(PKR + 4 * p, 4), V_XPS))
        A.nop(2)
    e("s_waitcnt vmcnt(0)"); e("s_barrier")
    rtk(11, S_SEG, 63)
    lf = A.newlab("L_x2f")
    e("s_cmp_lg_u32 s%d, 0" % S_WAVE); e("s_cbranch_scc1 %s" % lf)
    e("s_add_u32 s28, s%d, 1" % S_K); e("v_mov_b32 v%d, s28" % T0); e("v_mov_b32 v%d, 0" % T1)
    e("s_lshl_b32 s28, s%d, 7" % S_TEAM); e("s_lshl_b32 s29, s%d, 2" % S_HEAD); e("s_add_u32 s28, s28, s29"); e("s_add_u32 s28, s28, %d" % FL_XP)
    e("s_mov_b64 exec, 1"); e("buffer_store_dword v%d, v%d, s[4:7], s28 offen" % (T0, T1)); e("s_mov_b64 exec, s[26:27]")
    lab(lf)
    lw = A.newlab("L_x2r")
    e("v_lshrrev_b32 v%d, 2, v%d" % (T0, V_L16)); e("v_and_b32 v%d, 127, v%d" % (T0, T0))
    e("s_lshl_b32 s28, s%d, 7" % S_TEAM); e("s_add_u32 s28, s28, %d" % FL_XP); e("s_mov_b32 s29, 0")
    e("v_add_u32 v%d, %d, v%d" % (T3, XL_SEL, V_L16)); e("ds_read_b128 v[44:47], v%d" % T3)
    lab(lw)
    e("buffer_load_dword v%d, v%d, s[4:7], s28 offen sc1" % (T1, T0)); e("s_waitcnt vmcnt(0)")
    e("v_cmp_ge_u32 vcc, s%d, v%d" % (S_K, T1))
    e("s_add_u32 s29, s29, 1"); e("s_cmp_gt_u32 s29, 0x80000"); e("s_cbranch_scc1 %s_d" % lw)
    e("s_cbranch_vccnz %s" % lw)
    lab(lw + "_d")
    rtk(12, S_SEG, 63)
    e("s_lshl_b32 s28, s%d, 2" % S_HEAD); e("s_add_u32 s28, s28, s%d" % S_WAVE); e("s_lshl_b32 s28, s28, 13"); e("s_add_u32 s28, s28, s33"); e("s_add_u32 s29, s28, 4096")
    for x in range(8):
        e("buffer_load_dwordx4 %s, v%d, s[4:7], s%d offen offset:%d sc1" % (vr(12 + 4 * x, 4), V_L16, 28 if x < 4 else 29, (x & 3) * 1024))
    e("s_waitcnt lgkmcnt(0)")
    for x in range(8):
        e("s_waitcnt vmcnt(%d)" % (7 - x))
        e("v_mfma_f32_16x16x32_bf16 v[48:51], %s, v[44:47], %s" % (vr(12 + 4 * x, 4), "0" if x == 0 else "v[48:51]"))
    e("v_lshrrev_b32 v%d, 8, v%d" % (T0, V_L16)); e("v_lshlrev_b32 v%d, 2, v%d" % (T0, T0))
    e("v_bfe_u32 v%d, v%d, 4, 2" % (T1, V_L16)); e("v_add_u32 v%d, v%d, v%d" % (T0, T0, T1)); e("v_lshlrev_b32 v%d, 11, v%d" % (T0, T0))
    e("v_bfe_u32 v%d, v%d, 6, 1" % (T1, V_L16)); e("v_lshlrev_b32 v%d, 3, v%d" % (T1, T1)); e("v_add_u32 v%d, v%d, v%d" % (T0, T0, T1))
    e("s_lshr_b32 s28, s%d, 4" % S_HEAD); e("s_lshl_b32 s28, s28, 4"); e("s_lshl_b32 s29, s%d, 5" % S_SEG); e("s_add_u32 s28, s28, s29"); e("s_lshl_b32 s28, s28, 11")
    e("s_bfe_u32 s29, s%d, 0x20002" % S_HEAD); e("s_lshl_b32 s29, s29, 8"); e("s_add_u32 s28, s28, s29")
    e("s_bfe_u32 s29, s%d, 0x10001" % S_HEAD); e("s_lshl_b32 s29, s29, 7"); e("s_add_u32 s28, s28, s29")
    e("s_and_b32 s29, s%d, 1" % S_HEAD); e("s_lshl_b32 s29, s29, 4"); e("s_add_u32 s28, s28, s29")
    e("s_lshl_b32 s29, s%d, 5" % S_WAVE); e("s_add_u32 s28, s28, s29"); e("s_add_u32 s28, s28, 1024")
    A.nop(4)
    e("v_cvt_pk_bf16_f32 v48, v48, v49"); e("v_cvt_pk_bf16_f32 v49, v50, v51")
    e("v_and_b32 v%d, 128, v%d" % (T1, V_L16)); e("v_cmp_eq_u32 vcc, 0, v%d" % T1)
    e("s_nop 1")
    e("s_mov_b64 exec, vcc")
    e("buffer_store_dwordx2 v[48:49], v%d, s[16:19], s28 offen" % T0)
    e("s_mov_b64 exec, s[26:27]")
    e("s_add_u32 s%d, s%d, 7" % (S_SEG, S_SEG)); e("s_xor_b32 s%d, s%d, 32768" % (S_XB, S_XB)); e("s_xor_b32 s%d, s%d, 0x100000" % (S_PAR2, S_PAR2))
    e("s_add_u32 s%d, s%d, 1" % (S_K, S_K))
    e("s_cmp_lt_u32 s%d, s%d" % (S_K, S_NSEG)); e("s_cbranch_scc1 L_x2")
    e("s_waitcnt vmcnt(0)")
    rt(7)
    e("s_branch L_end")

def xteam():
    L = VLANE
    lab("L_xteam")
    e("v_lshlrev_b32 v%d, 4, v%d" % (V_L16, L))
    e("s_load_dwordx2 s[30:31], s[0:1], %d" % KA["x"])
    e("v_lshrrev_b32 v1, 2, v%d" % L); e("v_lshrrev_b32 v2, 4, v%d" % L); e("v_xor_b32 v2, v2, v%d" % L); e("v_and_b32 v2, 3, v2"); e("v_lshlrev_b32 v2, 4, v2")
    e("v_lshlrev_b32 v1, 10, v1"); e("v_add_u32 v1, v1, v2")
    e("v_and_b32 v5, 15, v%d" % L); e("v_lshrrev_b32 v2, 2, v5"); e("v_lshrrev_b32 v34, 4, v%d" % L); e("v_xor_b32 v2, v2, v34"); e("v_and_b32 v2, 3, v2")
    e("v_lshlrev_b32 v5, 2, v5"); e("v_add_u32 v5, v5, v2"); e("v_lshlrev_b32 v5, 4, v5")
    e("s_waitcnt lgkmcnt(0)")
    srd(S_X, 30, 0x200000)
    if OPT["stage"] >= 3:
        lx = A.newlab("L_xi")
        e("s_cmp_lg_u32 s%d, 1" % S_WAVE); e("s_cbranch_scc1 %s" % lx)
        e("s_mov_b64 exec, 1")
        e("v_mov_b32 v32, 0"); e("s_lshl_b32 s28, s%d, 7" % S_TEAM); e("s_lshl_b32 s29, s%d, 2" % S_HEAD); e("s_add_u32 s28, s28, s29"); e("s_add_u32 s28, s28, %d" % FL_XP)
        e("buffer_store_dword v32, v32, s[4:7], s28 offen"); e("s_waitcnt vmcnt(0)")
        e("s_and_b32 s28, s%d, 3" % S_TEAM); e("s_lshl_b32 s28, s28, 6"); e("s_lshr_b32 s29, s%d, 2" % S_TEAM); e("s_lshl_b32 s29, s29, 2"); e("s_add_u32 s28, s28, s29"); e("s_add_u32 s28, s28, 16")
        e("v_mov_b32 v32, s28"); e("v_mov_b32 v33, 1")
        e("global_atomic_add v32, v33, s[24:25] sc1")
        e("s_mov_b64 exec, s[26:27]")
        lab(lx)
    if OPT.get("warm", 1):
        e("s_sub_u32 s28, s%d, 1" % S_TEAM); e("s_lshl_b32 s28, s28, 5"); e("s_add_u32 s28, s28, s%d" % S_HEAD); e("s_lshl_b32 s28, s28, 2"); e("s_add_u32 s28, s28, s%d" % S_WAVE)
        e("s_mul_i32 s28, s28, 5120")
        for which, base in ((0, 100), (3, 104)):
            p = S_PW + 2 * which
            e("s_mov_b32 s8, s%d" % p); e("s_mov_b32 s9, s%d" % (p + 1)); e("s_mov_b32 s10, 0x400000"); e("s_mov_b32 s11, 0x20000")
            for i in range(5):
                e("s_add_u32 s29, s28, %d" % (i * 1024))
                e("buffer_load_dwordx4 %s, v%d, s[8:11], s29 offen" % (vr(base, 4), V_L16))
    e("s_mov_b32 s%d, s%d" % (S_RANK, S_HEAD))
    e("s_sub_u32 s28, s%d, 1" % S_TEAM); e("s_lshl_b32 s28, s28, 5"); e("s_add_u32 s28, s28, s%d" % S_HEAD)
    e("s_mul_i32 s29, s28, 9363"); e("s_lshr_b32 s%d, s29, 16" % S_HEAD); e("s_mul_i32 s29, s%d, 7" % S_HEAD); e("s_sub_u32 s%d, s28, s29" % S_SUB)
    e("s_lshl_b32 s%d, s%d, 13" % (S_H13, S_HEAD)); e("s_lshl_b32 s%d, s%d, 8" % (S_H8, S_HEAD))
    e("s_cmp_eq_u32 s%d, 0" % S_SUB); e("s_cselect_b32 s%d, 10, 9" % S_NSEG)
    load_setup(32768)
    uk = units_qkv(1, "a", 128); uv = units_qkv(2, "v", 128)
    for u in uk + uv: u["perm"] = False
    rt(2)
    load_units(uk + uv, 8)
    e("s_barrier")
    rt(3)
    def xt_dma(seg_sgpr, buf_sgpr):
        e("s_lshr_b32 s28, s%d, 1" % S_WAVE); e("s_lshl_b32 s29, s%d, 15" % seg_sgpr); e("s_lshl_b32 s30, s28, 14"); e("s_add_u32 s29, s29, s30")
        e("s_and_b32 s30, s%d, 1" % S_WAVE); e("s_lshl_b32 s31, s30, 9"); e("s_add_u32 s29, s29, s31")
        e("s_lshl_b32 s31, s%d, 13" % S_WAVE); e("s_add_u32 s31, s31, s%d" % buf_sgpr)
        for i in range(8):
            e("s_add_u32 m0, s31, %d" % (i * 1024)); e("s_add_u32 s30, s29, %d" % (i * 64))
            e("buffer_load_dwordx4 v1, s[12:15], s30 offen lds")
    e("s_mov_b32 s%d, s%d" % (S_SEG, S_SUB)); e("s_mov_b32 s%d, 0" % S_K); e("s_mov_b32 s%d, 0" % S_XB)
    xt_dma(S_SEG, S_XB)
    if OPT["stage"] >= 2:
        wait_dbg_counter(24, 32, "L_x1_init")
    AK, AV, XF, PK = 40, 56, 72, 88
    lab("L_x1")
    e("s_waitcnt vmcnt(4)")
    l0 = A.newlab("L_x1a")
    e("s_cmp_lg_u32 s%d, 0" % S_K); e("s_cbranch_scc1 %s" % l0); e("s_waitcnt vmcnt(0)"); lab(l0)
    e("s_barrier")
    lf = A.newlab("L_x1f")
    e("s_cmp_lt_u32 s%d, 2" % S_K); e("s_cbranch_scc1 %s" % lf)
    e("s_cmp_lg_u32 s%d, 0" % S_WAVE); e("s_cbranch_scc1 %s" % lf)
    e("s_sub_u32 s28, s%d, 1" % S_K); e("v_mov_b32 v32, s28"); e("v_mov_b32 v33, 0")
    e("s_lshl_b32 s28, s%d, 7" % S_SUB); e("s_lshl_b32 s29, s%d, 2" % S_HEAD); e("s_add_u32 s28, s28, s29"); e("s_add_u32 s28, s28, %d" % (FL_KV + 128))
    e("s_mov_b64 exec, 1"); e("buffer_store_dword v32, v33, s[4:7], s28 offen sc0 sc1"); e("s_mov_b64 exec, s[26:27]")
    lab(lf)
    ln = A.newlab("L_x1n")
    e("s_add_u32 s32, s%d, 1" % S_K); e("s_cmp_ge_u32 s32, s%d" % S_NSEG); e("s_cbranch_scc1 %s" % ln)
    e("s_add_u32 s33, s%d, 7" % S_SEG); e("s_xor_b32 s36, s%d, 32768" % S_XB)
    xt_dma(33, 36)
    lab(ln)
    e("v_add_u32 v2, s%d, v5" % S_XB)
    A.lds = []
    def rdx(kk):
        for tt in range(2):
            A.ds("ds_read_b128 %s, v2 offset:%d" % (vr(XF + (kk % 2) * 8 + tt * 4, 4), (tt * 16 + kk) * 1024), ("x", kk))
    rdx(0); rdx(1)
    for kk in range(16):
        A.wait_lds(("x", kk))
        t, b = kk >> 1, kk & 1
        for u in range(2):
            for tt in range(2):
                xf = vr(XF + (kk % 2) * 8 + tt * 4, 4)
                ck = "0" if kk == 0 else vr(AK + (u * 2 + tt) * 4, 4)
                cv = "0" if kk == 0 else vr(AV + (u * 2 + tt) * 4, 4)
                e("v_mfma_f32_16x16x32_bf16 %s, %s, %s, %s" % (vr(AK + (u * 2 + tt) * 4, 4), ar(128 + (u * 8 + t) * 8 + 4 * b, 4), xf, ck))
                e("v_mfma_f32_16x16x32_bf16 %s, %s, %s, %s" % (vr(AV + (u * 2 + tt) * 4, 4), xf, vr(128 + (u * 8 + t) * 8 + 4 * b, 4), cv))
        if kk + 2 < 16: rdx(kk + 2)
    A.nop(8)
    for tt in range(2):
        for u in range(2):
            a0 = AK + (u * 2 + tt) * 4
            e("v_cvt_pk_bf16_f32 v%d, v%d, v%d" % (PK + tt * 4 + 2 * u, a0, a0 + 1)); e("v_cvt_pk_bf16_f32 v%d, v%d, v%d" % (PK + tt * 4 + 2 * u + 1, a0 + 2, a0 + 3))
    for u in range(2):
        for tt in range(2):
            a0 = AV + (u * 2 + tt) * 4
            e("v_cvt_pk_bf16_f32 v%d, v%d, v%d" % (PK + 8 + u * 4 + 2 * tt, a0, a0 + 1)); e("v_cvt_pk_bf16_f32 v%d, v%d, v%d" % (PK + 8 + u * 4 + 2 * tt + 1, a0 + 2, a0 + 3))
    e("s_lshl_b32 s28, s%d, 18" % S_SEG); e("s_add_u32 s28, s28, s%d" % S_H13)
    e("s_lshl_b32 s29, s%d, 10" % S_WAVE); e("s_add_u32 s29, s29, s28"); e("s_add_u32 s30, s29, %d" % (WS_KX + 4096)); e("s_add_u32 s29, s29, %d" % WS_KX)
    e("buffer_store_dwordx4 %s, v%d, s[4:7], s29 offen sc0 sc1" % (vr(PK, 4), V_L16))
    e("buffer_store_dwordx4 %s, v%d, s[4:7], s30 offen sc0 sc1" % (vr(PK + 4, 4), V_L16))
    e("s_lshl_b32 s29, s%d, 11" % S_WAVE); e("s_add_u32 s29, s29, s28"); e("s_add_u32 s29, s29, %d" % WS_VX)
    e("buffer_store_dwordx4 %s, v%d, s[4:7], s29 offen sc0 sc1" % (vr(PK + 8, 4), V_L16))
    e("buffer_store_dwordx4 %s, v%d, s[4:7], s29 offen offset:1024 sc0 sc1" % (vr(PK + 12, 4), V_L16))
    lf0 = A.newlab("L_x1f0")
    e("s_cmp_lg_u32 s%d, 0" % S_K); e("s_cbranch_scc1 %s" % lf0)
    e("s_waitcnt vmcnt(0)"); e("s_barrier")
    e("s_cmp_lg_u32 s%d, 0" % S_WAVE); e("s_cbranch_scc1 %s" % lf0)
    e("v_mov_b32 v32, 1"); e("v_mov_b32 v33, 0")
    e("s_lshl_b32 s28, s%d, 7" % S_SUB); e("s_lshl_b32 s29, s%d, 2" % S_HEAD); e("s_add_u32 s28, s28, s29"); e("s_add_u32 s28, s28, %d" % (FL_KV + 128))
    e("s_mov_b64 exec, 1"); e("buffer_store_dword v32, v33, s[4:7], s28 offen sc0 sc1"); e("s_mov_b64 exec, s[26:27]")
    lab(lf0)
    e("s_add_u32 s%d, s%d, 7" % (S_SEG, S_SEG)); e("s_xor_b32 s%d, s%d, 32768" % (S_XB, S_XB)); e("s_add_u32 s%d, s%d, 1" % (S_K, S_K))
    e("s_cmp_lt_u32 s%d, s%d" % (S_K, S_NSEG)); e("s_cbranch_scc1 L_x1")
    e("s_waitcnt vmcnt(0)"); e("s_barrier")
    rt(4)
    lf = A.newlab("L_x1g")
    e("s_cmp_lg_u32 s%d, 0" % S_WAVE); e("s_cbranch_scc1 %s" % lf)
    e("v_mov_b32 v32, s%d" % S_NSEG); e("v_mov_b32 v33, 0")
    e("s_lshl_b32 s28, s%d, 7" % S_SUB); e("s_lshl_b32 s29, s%d, 2" % S_HEAD); e("s_add_u32 s28, s28, s29"); e("s_add_u32 s28, s28, %d" % (FL_KV + 128))
    e("s_mov_b64 exec, 1"); e("buffer_store_dword v32, v33, s[4:7], s28 offen sc0 sc1"); e("s_mov_b64 exec, s[26:27]")
    lab(lf)
    e("s_waitcnt vmcnt(0)")
    if OPT["stage"] < 3:
        e("s_branch L_end"); return
    xphase2()

hdr = []
if OPT["final"]:
    hdr.append("; Fused kernel: branch A (short conv + long causal conv as Toeplitz MFMA) and branch B (memory-recurrent attention).")
    hdr.append("; One persistent workgroup per CU. Workgroups form teams by the XCD they actually run on (HW_REG_XCC_ID):")
hdr.append("; @launch grid=(256,1,1) block=(256,1,1) lds=%d" % LDS_TOTAL)
hdr.append('.amdgcn_target "amdgcn-amd-amdhsa--gfx950"')
hdr.append(".text\n.globl %s\n.p2align 8\n.type %s,@function\n%s:" % (KNAME, KNAME, KNAME))
prologue()
e("s_cmp_eq_u32 s%d, 0" % S_TEAM); e("s_cbranch_scc1 L_chain")
if OPT["stage"] >= 2: e("s_branch L_xteam")
else: e("s_branch L_end")
chain()
if OPT["stage"] >= 2: xteam()
lab("L_end")
e("s_endpgm")
tail = '''.section .rodata,"a"
.p2align 6
.amdhsa_kernel %s
  .amdhsa_next_free_vgpr 512
  .amdhsa_next_free_sgpr 102
  .amdhsa_accum_offset 256
  .amdhsa_group_segment_fixed_size 0
  .amdhsa_kernarg_size 128
  .amdhsa_user_sgpr_count 2
  .amdhsa_user_sgpr_kernarg_segment_ptr 1
  .amdhsa_system_sgpr_workgroup_id_x 1
.end_amdhsa_kernel
''' % KNAME
open(OUTP, "w").write("\n".join(hdr) + "\n" + A.text() + tail)
print("wrote", OUTP, len(A.L), "lines")
```

```python
import sys, os, struct, math
sys.path.insert(0, os.path.dirname(os.path.abspath(__file__)))
from asmlib import *

KNAME = "concat_heads__ssm_conv_h3__memory_aug_recurrent_mem_tr__prompt_kernel"
OPT = dict(final=0, nowait=0, stage=1, hist=0, stamps=0, nsteps=64, dly_red=0, dly_mem=0, slp=32, slpf=127, slpn=8, spec=0)
for a in sys.argv[1:]:
    if "=" in a:
        k, v = a.split("="); OPT[k] = int(v) if v.lstrip("-").isdigit() else v
OUTP = OPT.get("out", "chain.s")

KA = dict(q=0, k=8, v=16, shift=24, ssmk=32, ssmd=40, x=48, mem0=56, wq=64, wk=72, wv=80, wo=88, seg=96, out=104, dbg=112, ws=120)
WS_KX = 0x0000000
WS_VX = 0x1000000
WS_KM = 0x2000000
WS_VM = 0x3000000
WS_PB = 0x2C00000
WS_MB = 0x2CC0000
WS_FL = 0x2CD0000
WS_HIST = 0x2D00000
WS_STAMP = 0x2E00000
WS_XP = 0x4000000
FL_KV, FL_KM, FL_XP = WS_FL, WS_FL + 0x2000, WS_FL + 2048
WVSTRIDE = 28672
L_KX, L_VX, L_MEM, L_X, L_O, L_SEL, L_DUM = 114688, 131072, 147456, 155648, 159744, 161792, 162816
LDS_TOTAL = 163840
S_WS = 4
S_W = 8
S_XCC, S_WAVE, S_HEAD, S_TEAM = 20, 21, 22, 23
S_DBG = 24
S_ALL = 26
S_STEP, S_MCUR, S_MNXT, S_PCUR, S_RED, S_MQ, S_KXO, S_VXO = 40, 41, 42, 43, 44, 45, 46, 47
S_DMA = 39
S_LO8 = 48
S_LO32 = 50
S_C, S_SPIN, S_FIRST, S_PAR = 52, 53, 54, 55
S_PW = 56
S_ST = 64
S_MPREV, S_H13, S_H8, S_PPREV = 96, 97, 98, 99
S_RDY = 100
S_TAG = 99
V_L16, V_XWR, V_OWR, V_PS0, V_IDX, V_WVA = 0, 1, 2, 3, 4, 5
VT = 6
V_KX = 12
V_LD = 12
V_S = 28
V_MEM = 40
V_QK = 72
V_VA = 88
V_WVR = 96
V_WV0 = 112
V_WO = 128
VLANE = 30
VS = 32

A = Asm()
PSTF = str(OPT.get('pst', '')).replace('_', ' ')
PUBF = str(OPT.get('pub', '')).replace('_', ' ')
e, c, lab = A.e, A.c, A.lab
def v(i): return "v%d" % i

def srd(base_s, ptr_s, size):
    e("s_mov_b32 s%d, s%d" % (base_s, ptr_s)); e("s_mov_b32 s%d, s%d" % (base_s + 1, ptr_s + 1))
    e("s_mov_b32 s%d, 0x%x" % (base_s + 2, size)); e("s_mov_b32 s%d, 0x20000" % (base_s + 3))

TS = [int(x) for x in str(OPT.get("ts", "")).split(",") if x != ""]
def ts(i):
    if i in TS:
        k = TS.index(i)
        e("%s s[%d:%d]" % ("s_memrealtime" if OPT.get("rts", 0) else "s_memtime", 64 + 2 * k, 65 + 2 * k))
def stamp(i, lvl=1):
    ts(i)
    if OPT["stamps"] < lvl: return
    if OPT["stamps"] == 2 and lvl == 1: pass
    e("s_memtime s[82:83]"); e("s_waitcnt lgkmcnt(0)"); A.lds = []
    e("s_sub_u32 s81, s82, s80"); e("s_add_u32 s%d, s%d, s81" % (S_ST + i, S_ST + i)); e("s_mov_b32 s80, s82")

def bar_off(t): return (t & 3) * 64 + 16 + (t >> 2) * 4
WS_TRACE = 0x2F00000
def rtk(i, kreg, kval):
    if not OPT.get("trace", 0): return
    l = A.newlab("L_rtk")
    e("s_cmp_lg_u32 s%d, %d" % (kreg, kval)); e("s_cbranch_scc1 %s" % l)
    rt(i)
    lab(l)
def rt(i):
    if not OPT.get("trace", 0): return
    l = A.newlab("L_rt")
    e("s_cmp_lg_u32 s%d, 0" % S_WAVE); e("s_cbranch_scc1 %s" % l)
    e("s_memrealtime s[90:91]"); e("s_waitcnt lgkmcnt(0)")
    e("s_add_u32 s28, s93, %d" % (WS_TRACE + 4 * i))
    e("s_mov_b64 exec, 1"); e("v_mov_b32 v10, s90"); e("v_mov_b32 v11, 0"); e("buffer_store_dword v10, v11, s[4:7], s28 offen"); e("s_mov_b64 exec, s[26:27]")
    lab(l)
def prologue():
    e("s_cmp_ge_u32 s2, 256"); e("s_cbranch_scc1 L_end")
    if OPT.get("trace", 0): e("s_memrealtime s[94:95]")
    e("s_load_dwordx2 s[24:25], s[0:1], %d" % KA["dbg"])
    e("s_load_dwordx2 s[28:29], s[0:1], %d" % KA["ws"])
    e("s_load_dwordx4 s[56:59], s[0:1], %d" % KA["wq"])
    e("s_load_dwordx4 s[60:63], s[0:1], %d" % KA["wv"])
    e("s_getreg_b32 s%d, hwreg(HW_REG_XCC_ID)" % S_XCC)
    e("s_and_b32 s%d, s%d, 15" % (S_XCC, S_XCC))
    e("v_lshrrev_b32 v1, 6, v0"); e("s_nop 0"); e("v_readfirstlane_b32 s%d, v1" % S_WAVE)
    e("v_and_b32 v%d, 63, v0" % VLANE)
    e("s_mov_b64 s[26:27], exec")
    e("s_waitcnt lgkmcnt(0)")
    srd(S_WS, 28, 0x10000000)
    e("s_cmp_lg_u32 s%d, 0" % S_WAVE); e("s_cbranch_scc1 L_roles_wait")
    e("s_mov_b64 exec, 1")
    e("s_and_b32 s28, s%d, 3" % S_XCC); e("s_lshl_b32 s28, s28, 6"); e("s_lshr_b32 s29, s%d, 2" % S_XCC); e("s_lshl_b32 s29, s29, 2"); e("s_add_u32 s28, s28, s29")
    e("v_mov_b32 v3, s28"); e("v_mov_b32 v4, 1")
    e("global_atomic_add v5, v3, v4, s[24:25] sc0 sc1"); e("s_waitcnt vmcnt(0)")
    e("v_mov_b32 v3, %d" % L_DUM)
    e("ds_write_b32 v3, v5"); e("s_waitcnt lgkmcnt(0)")
    e("s_mov_b64 exec, s[26:27]")
    lab("L_roles_wait")
    e("s_barrier")
    e("v_mov_b32 v3, %d" % L_DUM); e("ds_read_b32 v4, v3"); e("s_waitcnt lgkmcnt(0)")
    e("v_readfirstlane_b32 s%d, v4" % S_HEAD); e("s_mov_b32 s%d, s%d" % (S_TEAM, S_XCC))
    e("s_barrier")
    e("s_cmp_ge_u32 s%d, 32" % S_HEAD); e("s_cbranch_scc1 L_end")
    e("s_cmp_ge_u32 s%d, 8" % S_TEAM); e("s_cbranch_scc1 L_end")
    e("s_lshl_b32 s%d, s%d, 13" % (S_H13, S_HEAD)); e("s_lshl_b32 s%d, s%d, 8" % (S_H8, S_HEAD))
    if OPT.get("trace", 0):
        l = A.newlab("L_rt")
        e("s_lshl_b32 s93, s%d, 5" % S_TEAM); e("s_add_u32 s93, s93, s%d" % S_HEAD); e("s_lshl_b32 s93, s93, 6")
        e("s_cmp_lg_u32 s%d, 0" % S_WAVE); e("s_cbranch_scc1 %s" % l)
        e("s_add_u32 s28, s93, %d" % WS_TRACE)
        e("s_mov_b64 exec, 1"); e("v_mov_b32 v10, s94"); e("v_mov_b32 v11, 0"); e("buffer_store_dword v10, v11, s[4:7], s28 offen"); e("s_mov_b64 exec, s[26:27]")
        lab(l)
    rt(1)

LW_VQ, LW_VO, LW_A0, LW_A1, LW_AO = 40, 41, 43, 44, 45
LW_WB = 53
LW_TMP = 72
def load_setup(wave_stride):
    L = VLANE; a, b_, c_, d_, f_ = VS, VS + 1, VS + 2, VS + 3, VS + 4
    e("s_mul_i32 s34, s%d, %d" % (S_WAVE, wave_stride))
    e("s_lshl_b32 s36, s%d, 20" % S_WAVE)
    e("v_lshrrev_b32 v%d, 2, v%d" % (a, L)); e("v_lshlrev_b32 v%d, 13, v%d" % (b_, a))
    e("v_lshrrev_b32 v%d, 5, v%d" % (c_, L)); e("v_lshlrev_b32 v%d, 1, v%d" % (c_, c_))
    e("v_and_b32 v%d, 3, v%d" % (d_, L)); e("v_xor_b32 v%d, v%d, v%d" % (d_, d_, c_)); e("v_lshlrev_b32 v%d, 4, v%d" % (d_, d_))
    e("v_add_u32 v%d, v%d, v%d" % (b_, b_, d_))
    e("s_lshl_b32 s29, s%d, 6" % S_WAVE); e("s_add_u32 s28, s%d, s29" % S_H8)
    e("v_add_u32 v%d, s28, v%d" % (LW_VQ, b_))
    e("v_lshrrev_b32 v%d, 4, v%d" % (a, L)); e("v_lshlrev_b32 v%d, 10, v%d" % (b_, a))
    e("s_lshl_b32 s28, s%d, 8" % S_WAVE); e("v_add_u32 v%d, s28, v%d" % (b_, b_))
    e("v_and_b32 v%d, 1, v%d" % (c_, a)); e("v_lshrrev_b32 v%d, 1, v%d" % (f_, a)); e("v_lshlrev_b32 v%d, 3, v%d" % (f_, f_)); e("v_add_u32 v%d, v%d, v%d" % (c_, c_, f_))
    e("v_and_b32 v%d, 15, v%d" % (d_, L)); e("v_xor_b32 v%d, v%d, v%d" % (d_, d_, c_)); e("v_lshlrev_b32 v%d, 4, v%d" % (d_, d_))
    e("v_add_u32 v%d, v%d, v%d" % (LW_VO, b_, d_))
    e("v_lshrrev_b32 v%d, 5, v%d" % (a, L)); e("v_lshlrev_b32 v%d, 10, v%d" % (a, a))
    e("v_bfe_u32 v%d, v%d, 4, 1" % (b_, L)); e("v_lshlrev_b32 v%d, 9, v%d" % (c_, b_)); e("v_add_u32 v%d, v%d, v%d" % (a, a, c_))
    e("v_bfe_u32 v%d, v%d, 2, 2" % (c_, L)); e("v_lshlrev_b32 v%d, 6, v%d" % (c_, c_)); e("v_add_u32 v%d, v%d, v%d" % (a, a, c_))
    e("v_and_b32 v%d, 3, v%d" % (c_, L)); e("v_lshlrev_b32 v%d, 3, v%d" % (c_, c_)); e("v_add_u32 v%d, v%d, v%d" % (a, a, c_))
    e("v_add_u32 v%d, s34, v%d" % (a, a))
    e("v_lshlrev_b32 v%d, 5, v%d" % (c_, b_)); e("v_add_u32 v%d, v%d, v%d" % (LW_A0, a, c_))
    e("v_xor_b32 v%d, 32, v%d" % (c_, c_)); e("v_add_u32 v%d, v%d, v%d" % (LW_A1, a, c_))
    e("v_lshrrev_b32 v%d, 4, v%d" % (a, L)); e("v_lshlrev_b32 v%d, 10, v%d" % (a, a))
    e("v_bfe_u32 v%d, v%d, 2, 2" % (c_, L)); e("v_lshlrev_b32 v%d, 8, v%d" % (d_, c_)); e("v_add_u32 v%d, v%d, v%d" % (a, a, d_))
    e("v_and_b32 v%d, 3, v%d" % (d_, L)); e("v_lshlrev_b32 v%d, 5, v%d" % (d_, d_)); e("v_add_u32 v%d, v%d, v%d" % (a, a, d_))
    e("v_add_u32 v%d, s34, v%d" % (a, a))
    e("v_bfe_u32 v%d, v%d, 3, 1" % (b_, L)); e("v_lshlrev_b32 v%d, 7, v%d" % (b_, b_))
    e("v_bfe_u32 v%d, v%d, 2, 1" % (c_, L)); e("v_lshlrev_b32 v%d, 4, v%d" % (c_, c_))
    for G in range(2):
        for Th in range(2):
            e("v_xor_b32 v%d, %d, v%d" % (d_, G * 128, b_)); e("v_xor_b32 v%d, %d, v%d" % (f_, Th * 16, c_))
            e("v_add_u32 v%d, v%d, v%d" % (d_, d_, f_)); e("v_add_u32 v%d, v%d, v%d" % (LW_AO + 2 * G + Th, a, d_))
    e("v_lshlrev_b32 v%d, 4, v%d" % (a, L)); e("v_add_u32 v%d, s34, v%d" % (LW_WB, a))

def reg(kind, n, cnt):
    return ar(n, cnt) if kind == "a" else vr(n, cnt)

def load_units(units, NS, hooks={}):
    cur_srd = [None]
    def set_srd(which):
        if cur_srd[0] == which: return
        cur_srd[0] = which
        p = S_PW + 2 * which
        e("s_mov_b32 s8, s%d" % p); e("s_mov_b32 s9, s%d" % (p + 1)); e("s_mov_b32 s10, 0x400000"); e("s_mov_b32 s11, 0x20000")
    def issue(n):
        u = units[n]; slot = n % NS
        set_srd(u["m"])
        for i in range(4):
            e("s_add_u32 m0, s34, %d" % (slot * 4096 + i * 1024))
            if u["kind"] == "qkv":
                if u.get("perm", True):
                    e("s_xor_b32 s28, s36, %d" % (u["t"] << 19)); e("s_add_u32 s28, s28, %d" % (i * 131072))
                else:
                    e("s_mov_b32 s28, %d" % ((64 * u["t"] + 16 * i) * 8192))
                A.vmem("buffer_load_dwordx4 v%d, s[8:11], s28 offen lds" % LW_VQ, ("w", n))
            else:
                qd = 2 * u["b"] + u["hb"]
                e("s_add_u32 s28, s35, %d" % ((64 * u["t"] + 16 * qd + 4 * i) * 1024))
                A.vmem("buffer_load_dwordx4 v%d, s[8:11], s28 offen lds" % LW_VO, ("w", n))
    e("s_lshl_b32 s35, s%d, 17" % S_HEAD)
    for n in range(min(NS, len(units))): issue(n)
    if "start" in hooks: hooks["start"]()
    for n, u in enumerate(units):
        slot = n % NS
        A.wait_vm(("w", n))
        if u["kind"] == "qkv":
            for uu in range(2):
                for b in range(2):
                    for hb in range(2):
                        if u["dest"] == "lds": d = vr(LW_TMP + uu * 8 + 4 * b + 2 * hb, 2)
                        elif u["dest"] == "flat": d = vr(u["base"] + uu * 8 + 4 * b + 2 * hb, 2)
                        else: d = reg(u["dest"], u["base"] + (uu * 8 + u["t"]) * 8 + 4 * b + 2 * hb, 2)
                        A.ds("ds_read_b64_tr_b16 %s, v%d offset:%d" % (d, LW_A0 + uu, slot * 4096 + b * 2048 + hb * 256), "tr")
            A.wait_lds_all()
            if u["dest"] == "lds":
                u["slot"] = slot
                for uu in range(2):
                    for b in range(2):
                        A.ds("ds_write_b128 v%d, %s offset:%d" % (LW_WB, vr(LW_TMP + uu * 8 + 4 * b, 4), slot * 4096 + uu * 2048 + b * 1024), "wb")
                A.wait_lds_all()
        else:
            for nt in range(8):
                d = reg(u["dest"], u["base"] + (nt * 2 + u["t"]) * 8 + 4 * u["b"] + 2 * u["hb"], 2)
                G, T = nt >> 2, nt & 3
                A.ds("ds_read_b64_tr_b16 %s, v%d offset:%d" % (d, LW_AO + 2 * G + (T >> 1), slot * 4096 + (T & 1) * 8), "tr")
            A.wait_lds_all()
        if n in hooks: hooks[n]()
        if n + NS < len(units): issue(n + NS)

def load_units_128(units, hooks={}):
    L = VLANE; a, b_, c_, d_, f_ = VS, VS + 1, VS + 2, VS + 3, VS + 4
    VQ0, VQ1, TA0, TA1 = 54, 55, 56, 57
    UO = 58
    TU0, TU1 = 58, 59
    AOU = [64, 65, 66, 67]
    WBU = 68
    e("v_lshrrev_b32 v%d, 3, v%d" % (a, L)); e("v_lshlrev_b32 v%d, 13, v%d" % (b_, a))
    e("s_lshr_b32 s28, s%d, 1" % S_WAVE); e("s_lshl_b32 s28, s28, 7"); e("s_add_u32 s28, s28, s%d" % S_H8); e("v_add_u32 v%d, s28, v%d" % (b_, b_))
    e("v_bfe_u32 v%d, v%d, 1, 1" % (c_, a))
    e("v_and_b32 v%d, 7, v%d" % (d_, L))
    for par, dst in ((0, VQ0), (1, VQ1)):
        e("v_or_b32 v%d, %d, v%d" % (f_, par << 1, c_)); e("v_lshlrev_b32 v%d, 1, v%d" % (f_, f_)); e("v_xor_b32 v%d, v%d, v%d" % (f_, f_, d_))
        e("v_lshlrev_b32 v%d, 4, v%d" % (f_, f_)); e("v_add_u32 v%d, v%d, v%d" % (dst, b_, f_))
    e("v_lshrrev_b32 v%d, 4, v%d" % (a, L)); e("v_lshlrev_b32 v%d, 10, v%d" % (a, a))
    e("v_bfe_u32 v%d, v%d, 2, 2" % (b_, L)); e("v_lshlrev_b32 v%d, 7, v%d" % (b_, b_)); e("v_add_u32 v%d, v%d, v%d" % (a, a, b_))
    e("v_and_b32 v%d, 3, v%d" % (b_, L)); e("v_lshlrev_b32 v%d, 3, v%d" % (b_, b_)); e("v_add_u32 v%d, v%d, v%d" % (a, a, b_))
    e("v_bfe_u32 v%d, v%d, 3, 1" % (b_, L)); e("v_bfe_u32 v%d, v%d, 4, 1" % (c_, L)); e("v_lshlrev_b32 v%d, 1, v%d" % (c_, c_)); e("v_or_b32 v%d, v%d, v%d" % (b_, b_, c_))
    e("s_and_b32 s28, s%d, 1" % S_WAVE); e("s_lshl_b32 s28, s28, 1")
    for u, dst in ((0, TA0), (1, TA1)):
        e("s_add_u32 s29, s28, %d" % u); e("v_xor_b32 v%d, s29, v%d" % (c_, b_)); e("v_lshlrev_b32 v%d, 5, v%d" % (c_, c_)); e("v_add_u32 v%d, v%d, v%d" % (c_, c_, a))
        e("v_add_u32 v%d, s34, v%d" % (dst, c_))
    e("s_lshl_b32 s33, s%d, 13" % S_WAVE); e("s_add_u32 s33, s33, %d" % L_KX); e("s_sub_u32 s32, s33, s34")
    e("v_add_u32 v%d, s32, v%d" % (TU0, TA0)); e("v_add_u32 v%d, s32, v%d" % (TU1, TA1))
    for k in range(4): e("v_add_u32 v%d, s32, v%d" % (AOU[k], LW_AO + k))
    e("s_lshl_b32 s35, s%d, 17" % S_HEAD)
    cur = [None]
    def set_srd(which):
        if cur[0] == which: return
        cur[0] = which
        p = S_PW + 2 * which
        e("s_mov_b32 s8, s%d" % p); e("s_mov_b32 s9, s%d" % (p + 1)); e("s_mov_b32 s10, 0x400000"); e("s_mov_b32 s11, 0x20000")
    def m0set(slot, off):
        if slot[0] == "R": e("s_add_u32 m0, s34, %d" % (slot[1] + off))
        else: e("s_add_u32 m0, s33, %d" % off)
    def issue(n):
        u = units[n]; set_srd(u["m"]); slot = u["raw"]
        if u["kind"] == "qkv":
            for i in range(8):
                e("s_xor_b32 s28, s36, %d" % (u["t"] << 19)); e("s_add_u32 s28, s28, %d" % (i * 65536)); m0set(slot, i * 1024); e("s_nop 0")
                A.vmem("buffer_load_dwordx4 v%d, s[8:11], s28 offen lds" % (VQ0 if i % 2 == 0 else VQ1), ("w", n))
        else:
            for hb in range(2):
                for i in range(4):
                    qd = 2 * u["b"] + hb
                    e("s_add_u32 s28, s35, %d" % ((64 * u["t"] + 16 * qd + 4 * i) * 1024)); m0set(slot, hb * 4096 + i * 1024); e("s_nop 0")
                    A.vmem("buffer_load_dwordx4 v%d, s[8:11], s28 offen lds" % LW_VO, ("w", n))
    prev = {}
    issued = set()
    def try_issue(done):
        for n in range(len(units)):
            if n in issued: continue
            dep = units[n]["dep"]
            if dep is not None and dep > done: break
            issue(n); issued.add(n)
    last = {}
    for n, u in enumerate(units):
        key = u["raw"]; u["dep"] = last.get(key); last[key] = n
        if u.get("dep_extra") is not None: u["dep"] = max(u["dep"] if u["dep"] is not None else -1, u["dep_extra"])
    try_issue(-1)
    if "start" in hooks: hooks["start"]()
    for n, u in enumerate(units):
        A.wait_vm(("w", n))
        slot = u["raw"]; isU = slot[0] == "U"; off = 0 if isU else slot[1]
        if u["kind"] == "qkv":
            for uu in range(2):
                for b in range(2):
                    for hb in range(2):
                        if u["dest"] == "lds": d = vr(LW_TMP + uu * 8 + 4 * b + 2 * hb, 2)
                        elif u["dest"] == "flat": d = vr(u["base"] + uu * 8 + 4 * b + 2 * hb, 2)
                        else: d = reg(u["dest"], u["base"] + (uu * 8 + u["t"]) * 8 + 4 * b + 2 * hb, 2)
                        ad = ((TU0, TU1) if isU else (TA0, TA1))[uu]
                        A.ds("ds_read_b64_tr_b16 %s, v%d offset:%d" % (d, ad, off + b * 4096 + hb * 512), "tr")
            A.wait_lds_all()
            if u["dest"] == "lds":
                for uu in range(2):
                    for b in range(2):
                        A.ds("ds_write_b128 v%d, %s offset:%d" % (LW_WB, vr(LW_TMP + uu * 8 + 4 * b, 4), u["slot"] * 4096 + uu * 2048 + b * 1024), "wb")
                A.wait_lds_all()
        else:
            for hb in range(2):
                for nt in range(8):
                    G, T = nt >> 2, nt & 3
                    d = reg(u["dest"], u["base"] + (nt * 2 + u["t"]) * 8 + 4 * u["b"] + 2 * hb, 2)
                    ad = (AOU if isU else [LW_AO + k for k in range(4)])[2 * G + (T >> 1)]
                    A.ds("ds_read_b64_tr_b16 %s, v%d offset:%d" % (d, ad, off + hb * 4096 + (T & 1) * 8), "tr")
            A.wait_lds_all()
        if n in hooks: hooks[n]()
        try_issue(n)

def load_units_reg(units, hooks={}, maxfly=60):
    SCR = 54
    SA0, SA1, SAO = 55, 56, 57
    SAOr = [57, 58, 59, 64]
    e("s_lshl_b32 s28, s%d, 13" % S_WAVE); e("s_add_u32 s28, s28, %d" % L_KX); e("s_sub_u32 s29, s28, s34")
    e("v_add_u32 v%d, s28, v%d" % (SCR, V_L16))
    e("v_add_u32 v%d, s29, v%d" % (SA0, LW_A0)); e("v_add_u32 v%d, s29, v%d" % (SA1, LW_A1))
    for k in range(4): e("v_add_u32 v%d, s29, v%d" % (SAOr[k], LW_AO + k))
    e("s_lshl_b32 s35, s%d, 17" % S_HEAD)
    cur_srd = [None]
    def set_srd(which):
        if cur_srd[0] == which: return
        cur_srd[0] = which
        p = S_PW + 2 * which
        e("s_mov_b32 s8, s%d" % p); e("s_mov_b32 s9, s%d" % (p + 1)); e("s_mov_b32 s10, 0x400000"); e("s_mov_b32 s11, 0x20000")
    def quads(u):
        if u["kind"] == "qkv":
            if u["dest"] == "flat": return [("v", u["base"] + 4 * i) for i in range(4)]
            b0 = u["base"] + u["t"] * 8
            return [(u["dest"], b0), (u["dest"], b0 + 4), (u["dest"], b0 + 64), (u["dest"], b0 + 68)]
        return [(u["dest"], u["base"] + (nt * 2 + u["t"]) * 8 + 4 * u["b"]) for nt in range(8)]
    def nloads(u): return 8 if u["kind"] == "wo" else 4
    def issue(n):
        u = units[n]; set_srd(u["m"])
        if u["kind"] == "qkv":
            for i in range(4):
                e("s_xor_b32 s28, s36, %d" % (u["t"] << 19)); e("s_add_u32 s28, s28, %d" % (i * 131072))
                if u["dest"] == "lds":
                    e("s_add_u32 m0, s34, %d" % (u["slot"] * 4096 + i * 1024)); e("s_nop 0")
                    A.vmem("buffer_load_dwordx4 v%d, s[8:11], s28 offen lds" % LW_VQ, ("w", n))
                else:
                    k, r = quads(u)[i]
                    A.vmem("buffer_load_dwordx4 %s, v%d, s[8:11], s28 offen" % (reg(k, r, 4), LW_VQ), ("w", n))
        else:
            for hb in range(2):
                for i in range(4):
                    qd = 2 * u["b"] + hb
                    e("s_add_u32 s28, s35, %d" % ((64 * u["t"] + 16 * qd + 4 * i) * 1024))
                    k, r = quads(u)[hb * 4 + i]
                    A.vmem("buffer_load_dwordx4 %s, v%d, s[8:11], s28 offen" % (reg(k, r, 4), LW_VO), ("w", n))
    nxt = [0]; fly = [0]
    def pump():
        while nxt[0] < len(units) and fly[0] + nloads(units[nxt[0]]) <= maxfly:
            issue(nxt[0]); fly[0] += nloads(units[nxt[0]]); nxt[0] += 1
    pump()
    for n, u in enumerate(units):
        A.wait_vm(("w", n)); fly[0] -= nloads(u)
        if u["kind"] == "qkv" and u["dest"] == "lds":
            slot = u["slot"]
            for uu in range(2):
                for b in range(2):
                    for hb in range(2):
                        A.ds("ds_read_b64_tr_b16 %s, v%d offset:%d" % (vr(LW_TMP + uu * 8 + 4 * b + 2 * hb, 2), LW_A0 + uu, slot * 4096 + b * 2048 + hb * 256), "tr")
            if n in hooks: hooks[n]()
            pump()
            A.wait_lds_all()
            for uu in range(2):
                for b in range(2):
                    A.ds("ds_write_b128 v%d, %s offset:%d" % (LW_WB, vr(LW_TMP + uu * 8 + 4 * b, 4), slot * 4096 + uu * 2048 + b * 1024), "wb")
            A.wait_lds_all()
        elif u["kind"] == "qkv":
            for i, (k, r) in enumerate(quads(u)):
                A.ds("ds_write_b128 v%d, %s offset:%d" % (SCR, reg(k, r, 4), i * 1024), "sw")
            if n in hooks: hooks[n]()
            pump()
            A.wait_lds_all()
            for uu in range(2):
                for b in range(2):
                    for hb in range(2):
                        if u["dest"] == "flat": d = vr(u["base"] + uu * 8 + 4 * b + 2 * hb, 2)
                        else: d = reg(u["dest"], u["base"] + (uu * 8 + u["t"]) * 8 + 4 * b + 2 * hb, 2)
                        A.ds("ds_read_b64_tr_b16 %s, v%d offset:%d" % (d, (SA0, SA1)[uu], b * 2048 + hb * 256), "tr")
            A.wait_lds_all()
        else:
            for i, (k, r) in enumerate(quads(u)):
                A.ds("ds_write_b128 v%d, %s offset:%d" % (SCR, reg(k, r, 4), i * 1024), "sw")
            if n in hooks: hooks[n]()
            pump()
            A.wait_lds_all()
            for hb in range(2):
                for nt in range(8):
                    G, T = nt >> 2, nt & 3
                    d = reg(u["dest"], u["base"] + (nt * 2 + u["t"]) * 8 + 4 * u["b"] + 2 * hb, 2)
                    A.ds("ds_read_b64_tr_b16 %s, v%d offset:%d" % (d, SAOr[2 * G + (T >> 1)], hb * 4096 + (T & 1) * 8), "tr")
            A.wait_lds_all()

def units_qkv(m, dest, base):
    return [dict(kind="qkv", m=m, t=t, dest=dest, base=base) for t in range(8)]
def units_wo(dest, base):
    return [dict(kind="wo", m=3, t=t, b=b, hb=hb, dest=dest, base=base) for t in range(2) for b in range(2) for hb in range(2)]

def pubaddr(dst, tmp):
    e("v_lshrrev_b32 v%d, 2, v%d" % (dst, V_L16)); e("v_and_b32 v%d, 0xc0, v%d" % (dst, dst))
    e("v_lshlrev_b32 v%d, 1, v%d" % (tmp, V_L16)); e("v_and_b32 v%d, 32, v%d" % (tmp, tmp)); e("v_add_u32 v%d, v%d, v%d" % (dst, dst, tmp))
    e("v_lshrrev_b32 v%d, 3, v%d" % (tmp, V_L16)); e("v_and_b32 v%d, 28, v%d" % (tmp, tmp)); e("v_add_u32 v%d, v%d, v%d" % (dst, dst, tmp))

def chain():
    L = VLANE; a, b_, c_, d_ = VS, VS + 1, VS + 2, VS + 3
    lab("L_chain")
    e("v_lshlrev_b32 v%d, 4, v%d" % (V_L16, L))
    e("s_mul_i32 s28, s%d, %d" % (S_WAVE, WVSTRIDE)); e("v_add_u32 v%d, s28, v%d" % (V_WVA, V_L16))
    e("v_and_b32 v%d, 15, v%d" % (a, L)); e("v_lshlrev_b32 v%d, 5, v%d" % (a, a)); e("v_lshrrev_b32 v%d, 4, v%d" % (b_, L)); e("v_lshlrev_b32 v%d, 3, v%d" % (b_, b_))
    e("v_add_u32 v%d, v%d, v%d" % (a, a, b_)); e("s_lshl_b32 s28, s%d, 10" % S_WAVE); e("s_add_u32 s28, s28, %d" % L_X); e("v_add_u32 v%d, s28, v%d" % (V_XWR, a))
    e("v_lshrrev_b32 v%d, 5, v%d" % (a, L)); e("v_lshlrev_b32 v%d, 8, v%d" % (a, a))
    e("v_bfe_u32 v%d, v%d, 2, 2" % (b_, L)); e("v_lshlrev_b32 v%d, 6, v%d" % (b_, b_)); e("v_add_u32 v%d, v%d, v%d" % (a, a, b_))
    e("v_and_b32 v%d, 1, v%d" % (b_, L)); e("v_lshlrev_b32 v%d, 5, v%d" % (b_, b_)); e("v_add_u32 v%d, v%d, v%d" % (a, a, b_))
    e("v_bfe_u32 v%d, v%d, 4, 1" % (b_, L)); e("v_lshlrev_b32 v%d, 3, v%d" % (b_, b_)); e("v_add_u32 v%d, v%d, v%d" % (a, a, b_))
    e("s_lshr_b32 s28, s%d, 1" % S_WAVE); e("s_lshl_b32 s28, s28, 10"); e("s_and_b32 s29, s%d, 1" % S_WAVE); e("s_lshl_b32 s29, s29, 9")
    e("s_add_u32 s28, s28, s29"); e("s_add_u32 s28, s28, %d" % L_O); e("v_add_u32 v%d, s28, v%d" % (a, a))
    e("v_and_b32 v%d, 2, v%d" % (b_, L)); e("v_cmp_ne_u32 vcc, 0, v%d" % b_); e("s_nop 1"); e("s_mov_b64 s[50:51], vcc")
    e("v_lshlrev_b32 v%d, 3, v%d" % (b_, L)); e("v_add_u32 v%d, %d, v%d" % (b_, L_DUM, b_))
    e("s_nop 0")
    e("v_cndmask_b32 v%d, v%d, v%d, vcc" % (V_OWR, b_, a))
    e("v_and_b32 v%d, 8, v%d" % (b_, L)); e("v_cmp_eq_u32 s[48:49], 0, v%d" % b_)
    e("v_bfe_u32 v%d, v%d, 2, 2" % (a, L)); e("s_lshl_b32 s28, s%d, 3" % S_WAVE); e("v_add_u32 v%d, s28, v%d" % (a, a))
    if OPT.get("swz", 1): e("v_add_u32 v%d, s%d, v%d" % (c_, S_HEAD, a))
    else: e("v_mov_b32 v%d, s%d" % (c_, S_HEAD))
    e("v_and_b32 v%d, 31, v%d" % (c_, c_)); e("v_lshlrev_b32 v%d, 8, v%d" % (c_, c_))
    e("v_lshlrev_b32 v%d, 13, v%d" % (a, a)); e("v_add_u32 v%d, v%d, v%d" % (a, a, c_))
    e("v_lshrrev_b32 v%d, 4, v%d" % (b_, L)); e("v_lshlrev_b32 v%d, 6, v%d" % (b_, b_)); e("v_add_u32 v%d, v%d, v%d" % (a, a, b_))
    e("v_and_b32 v%d, 3, v%d" % (b_, L)); e("v_lshlrev_b32 v%d, 4, v%d" % (b_, b_)); e("v_add_u32 v%d, v%d, v%d" % (V_PS0, a, b_))
    e("v_and_b32 v%d, 1, v%d" % (c_, L)); e("v_cmp_eq_u32 vcc, 0, v%d" % c_)
    e("v_mov_b32 v%d, 0xEEEEEEEE" % a); e("v_mov_b32 v%d, 0x44444444" % b_); e("v_cndmask_b32 v%d, v%d, v%d, vcc" % (V_IDX, a, b_))
    cval = struct.unpack("<I", struct.pack("<f", (128 ** -0.5) * math.log2(math.e)))[0]
    e("s_mov_b32 s%d, 0x%08x" % (S_C, cval))
    e("v_and_b32 v%d, 1, v%d" % (a, L)); e("v_lshlrev_b32 v%d, 4, v%d" % (a, a)); e("v_mov_b32 v%d, 0x3f80" % b_); e("v_lshlrev_b32 v%d, v%d, v%d" % (b_, a, b_))
    e("v_bfe_u32 v%d, v%d, 1, 2" % (a, L))
    for i in range(4):
        e("v_cmp_eq_u32 vcc, %d, v%d" % (i, a)); e("s_nop 1"); e("v_cndmask_b32 v%d, 0, v%d, vcc" % (12 + i, b_))
    e("v_add_u32 v%d, %d, v%d" % (a, L_SEL, V_L16))
    IPUB, IM0 = 60, 61
    e("ds_write_b128 v%d, v[12:15]" % a); e("s_waitcnt lgkmcnt(0)")
    def hook_start():
        pubaddr(60, c_)
        e("s_cmp_lg_u32 s%d, 0" % S_WAVE); e("s_cbranch_scc1 L_noinit")
        IPUB, IM0 = 60, 61
        e("s_load_dwordx2 s[30:31], s[0:1], %d" % KA["mem0"])
        e("v_lshrrev_b32 v%d, 4, v%d" % (a, L)); e("v_lshlrev_b32 v%d, 11, v%d" % (a, a))
        e("v_and_b32 v%d, 1, v%d" % (b_, L)); e("v_lshlrev_b32 v%d, 10, v%d" % (b_, b_)); e("v_add_u32 v%d, v%d, v%d" % (a, a, b_))
        e("v_bfe_u32 v%d, v%d, 1, 2" % (b_, L)); e("v_lshlrev_b32 v%d, 3, v%d" % (b_, b_)); e("v_add_u32 v%d, v%d, v%d" % (a, a, b_))
        e("v_bfe_u32 v%d, v%d, 3, 1" % (b_, L)); e("v_lshlrev_b32 v%d, 2, v%d" % (b_, b_)); e("v_add_u32 v%d, v%d, v%d" % (a, a, b_))
        e("s_lshl_b32 s29, s%d, 5" % S_HEAD); e("v_add_u32 v%d, s29, v%d" % (a, a))
        e("s_waitcnt lgkmcnt(0)")
        e("global_load_dword v%d, v%d, s[30:31]" % (IM0, a))
        for i in range(4): e("v_mov_b32 v%d, -1" % (12 + i))
        for b in range(2):
            for half in range(2):
                e("s_add_u32 s29, s%d, %d" % (S_H13, WS_PB + b * 0x40000 + half * 4096))
                for x in range(4):
                    e("buffer_store_dwordx4 v[12:15], v%d, s[4:7], s29 offen offset:%d" % (V_L16, x * 1024))
        for b in (1, 2):
            e("s_add_u32 s29, s%d, %d" % (S_H8, WS_MB + b * 8192))
            e("buffer_store_dword v12, v%d, s[4:7], s29 offen" % IPUB)
        e("v_lshlrev_b32 v%d, 7, v%d" % (a, L)); e("v_mov_b32 v%d, 0" % b_)
        e("s_lshl_b32 s29, s%d, 2" % S_HEAD); e("s_add_u32 s29, s29, %d" % WS_FL)
        e("s_mov_b64 exec, 0xff")
        e("buffer_store_dword v%d, v%d, s[4:7], s29 offen sc0 sc1" % (b_, a))
        e("s_mov_b64 exec, 1")
        e("s_lshl_b32 s29, s%d, 7" % S_HEAD); e("s_add_u32 s29, s29, %d" % FL_KM)
        e("buffer_store_dword v%d, v%d, s[4:7], s29 offen sc0 sc1" % (b_, a))
        e("s_mov_b64 exec, s[26:27]")
        lab("L_noinit")

    def hook_mem0():
        l = A.newlab("L_hk")
        e("s_cmp_lg_u32 s%d, 0" % S_WAVE); e("s_cbranch_scc1 %s" % l)
        e("s_add_u32 s29, s%d, %d" % (S_H8, WS_MB))
        e("buffer_store_dword v%d, v%d, s[4:7], s29 offen" % (IM0, IPUB))
        e("s_mov_b64 exec, 1")
        e("v_mov_b32 v62, 24"); e("v_mov_b32 v63, 1"); e("global_atomic_add v62, v63, s[24:25] sc1")
        e("s_mov_b64 exec, s[26:27]")
        lab(l)
    def hook_arrive():
        l = A.newlab("L_hk")
        e("s_cmp_lg_u32 s%d, 0" % S_WAVE); e("s_cbranch_scc1 %s" % l)
        e("s_mov_b64 exec, 1")
        e("v_mov_b32 v62, %d" % bar_off(0)); e("v_mov_b32 v63, 1"); e("global_atomic_add v62, v63, s[24:25] sc1")
        e("s_mov_b64 exec, s[26:27]")
        lab(l)
    load_setup(WVSTRIDE)
    wvu = units_qkv(2, "lds", 0); wvu[0]["dest"] = "flat"; wvu[0]["base"] = V_WV0
    rt(2)
    if OPT.get("regload", 0):
        for t in range(1, 8): wvu[t]["slot"] = t - 1
        wo_units = [dict(kind="wo", m=3, t=t, b=b, dest="v", base=V_WO) for t in range(2) for b in range(2)]
        units = wvu[1:] + [wvu[0]] + units_qkv(0, "a", 0) + units_qkv(1, "a", 128) + wo_units
        load_units_reg(units, {0: hook_mem0, OPT.get('harr', 16): hook_arrive}, maxfly=OPT.get('maxfly', 40))
    elif OPT.get("ld128", 0):
        wo_units = [dict(kind="wo", m=3, t=t, b=b, dest="v", base=V_WO) for t in range(2) for b in range(2)]
        first = units_qkv(0, "a", 0) + units_qkv(1, "a", 128) + wo_units + [wvu[0]]
        ring = [("R", 0), ("R", 8192), ("R", 16384), ("U", 0)]
        for n, u in enumerate(first): u["raw"] = ring[n % 4]
        for k in range(1, 8):
            wvu[k]["raw"] = ("U", 0) if k % 2 == 1 else ("R", 20480)
            wvu[k]["slot"] = k - 1
        units = first + wvu[1:]
        nf = len(first)
        wvu[2]["dep_extra"] = max(n for n, u in enumerate(first) if u["raw"] == ("R", 16384))
        load_units_128(units, {'start': hook_start, 4: hook_mem0, 8: hook_arrive})
    else:
        units = units_qkv(0, "a", 0) + units_qkv(1, "a", 128) + units_wo("v", V_WO) + wvu
        load_units(units, 7, {'start': hook_start, 7: hook_mem0, 14: hook_arrive})
    rt(3)
    wvslot = {u["t"]: u["slot"] for u in wvu[1:]}
    e("s_cmp_lg_u32 s%d, 0" % S_WAVE); e("s_cbranch_scc1 L_tb_done")
    e("s_mov_b64 exec, 1")
    e("v_mov_b32 v%d, %d" % (a, bar_off(0))); e("s_mov_b32 s29, 0")
    lab("L_tb")
    e("global_load_dword v%d, v%d, s[24:25] sc0 sc1" % (b_, a)); e("s_waitcnt vmcnt(0)"); e("v_readfirstlane_b32 s30, v%d" % b_)
    e("s_add_u32 s29, s29, 1"); e("s_cmp_gt_u32 s29, 0x40000"); e("s_cbranch_scc1 L_tb2")
    e("s_cmp_lt_u32 s30, 32"); e("s_cbranch_scc1 L_tb")
    lab("L_tb2")
    e("s_mov_b64 exec, s[26:27]")
    lab("L_tb_done")
    e("s_mov_b32 s%d, 0" % S_STEP)
    e("s_mov_b32 s%d, %d" % (S_MCUR, WS_MB)); e("s_mov_b32 s%d, %d" % (S_MPREV, WS_MB + 2 * 8192)); e("s_mov_b32 s%d, %d" % (S_PCUR, WS_PB))
    e("s_add_u32 s%d, s%d, %d" % (S_KXO, S_H13, WS_KX)); e("s_add_u32 s%d, s%d, %d" % (S_VXO, S_H13, WS_VX))
    e("s_mov_b32 s%d, 0" % S_SPIN); e("s_mov_b32 s%d, 0" % S_PAR); e("s_mov_b32 s37, %d" % (WS_HIST + 0x90000)); e("s_mov_b32 s38, %d" % (WS_HIST + 0x91000))
    def need_seg(target_sgpr_or_none):
        if OPT["stage"] < 2: return
        lok = A.newlab("L_rdy"); lp = A.newlab("L_rp")
        if target_sgpr_or_none is None: e("s_mov_b32 s14, %d" % (1 if OPT.get("l2warm", 0) else 0))
        else:
            e("s_add_u32 s14, s%d, %d" % (target_sgpr_or_none, 2 if OPT.get("l2warm", 0) else 1)); e("s_min_u32 s14, s14, 63")
        e("s_cmp_lt_u32 s14, s%d" % S_RDY); e("s_cbranch_scc1 %s" % lok)
        e("s_mov_b32 s17, 0")
        lab(lp)
        e("v_lshlrev_b32 v%d, 3, v%d" % (VT, V_L16))
        e("s_lshl_b32 s29, s%d, 2" % S_HEAD); e("s_add_u32 s29, s29, %d" % FL_KV)
        e("s_mov_b64 exec, 0xff")
        e("buffer_load_dword v%d, v%d, s[4:7], s29 offen sc0 sc1" % (VT + 1, VT))
        e("s_mov_b64 exec, s[26:27]")
        e("s_waitcnt vmcnt(0)")
        e("s_mov_b32 s15, 64")
        for t in range(1, 8):
            e("v_readlane_b32 s16, v%d, %d" % (VT + 1, t)); e("s_nop 0"); e("s_mul_i32 s16, s16, 7"); e("s_add_u32 s16, s16, %d" % (t - 1)); e("s_min_u32 s15, s15, s16")
        e("s_mov_b32 s%d, s15" % S_RDY)
        e("s_add_u32 s17, s17, 1"); e("s_cmp_gt_u32 s17, 0x40000"); e("s_cbranch_scc1 %s" % lok)
        e("s_cmp_lt_u32 s14, s%d" % S_RDY); e("s_cbranch_scc0 %s" % lp)
        lab(lok)
    def dma8(so, lb, par_sgpr):
        for i in range(8):
            if i % 4 == 0:
                e("s_add_u32 s28, s%d, %d" % (so, i * 1024)); e("s_add_u32 s29, s%d, %d" % (par_sgpr, lb + i * 1024)); e("s_mov_b32 m0, s29"); e("s_nop 0")
            e("buffer_load_dwordx4 v%d, s[4:7], s28 offen offset:%d sc1 lds" % (V_L16, (i % 4) * 1024))
    e("s_mov_b32 s%d, 0" % S_RDY)
    need_seg(None)
    l0 = A.newlab("L_pf"); l1 = A.newlab("L_pf")
    e("s_cmp_eq_u32 s%d, 1" % S_WAVE); e("s_cbranch_scc0 %s" % l0); dma8(S_KXO, L_KX, S_PAR); lab(l0)
    e("s_cmp_eq_u32 s%d, 2" % S_WAVE); e("s_cbranch_scc0 %s" % l1); dma8(S_VXO, L_VX, S_PAR); lab(l1)
    e("s_waitcnt vmcnt(0)"); e("s_barrier")
    rt(4)
    if OPT["stamps"]:
        for i in range(16): e("s_mov_b32 s%d, 0" % (S_ST + i))
        e("s_memtime s[82:83]"); e("s_waitcnt lgkmcnt(0)"); e("s_mov_b32 s80, s82")
    if not OPT["final"]:
        e("s_memtime s[84:85]"); e("s_memrealtime s[88:89]"); e("s_waitcnt lgkmcnt(0)")

    T0, T1, T2, T3, T4, T5 = range(VT, VT + 6)
    def wvreg(t): return V_WV0 if t == 0 else (V_WVR if t % 2 == 1 else V_KX)
    def rd_wv(t):
        r = wvreg(t)
        return [lambda u=u, b=b: A.ds("ds_read_b128 %s, v%d offset:%d" % (vr(r + 8 * u + 4 * b, 4), V_WVA, wvslot[t] * 4096 + u * 2048 + b * 1024), ("wv", t, u)) for u in range(2) for b in range(2)]
    def scalprep():
        e("s_add_u32 s%d, s%d, 0x40000" % (S_KXO, S_KXO)); e("s_add_u32 s%d, s%d, 0x40000" % (S_VXO, S_VXO))
        e("s_cmp_lt_u32 s%d, 2" % S_WAVE); e("s_cselect_b32 s%d, s%d, s%d" % (S_DMA, S_KXO, S_VXO)); e("s_lshr_b32 s29, s%d, 1" % S_WAVE); e("s_lshl_b32 s29, s29, 13"); e("s_add_u32 s29, s29, %d" % L_KX)
        e("s_lshl_b32 s19, s%d, 12" % S_WAVE); e("s_and_b32 s18, s19, 4096"); e("s_add_u32 s%d, s%d, s18" % (S_DMA, S_DMA))
        e("s_xor_b32 s18, s%d, 8192" % S_PAR); e("s_add_u32 s29, s29, s18"); e("s_add_u32 s29, s29, s19")
        e("s_mov_b32 m0, s29")
        e("s_add_u32 s12, s%d, %d" % (S_PAR, L_KX)); e("s_lshl_b32 s28, s%d, 11" % S_WAVE); e("s_add_u32 s13, s28, s%d" % S_PAR); e("s_add_u32 s13, s13, %d" % L_VX)
        if OPT["stage"] >= 3:
            e("s_max_u32 s34, s%d, 1" % S_STEP); e("s_sub_u32 s34, s34, 1"); e("s_lshl_b32 s101, s%d, 7" % S_HEAD); e("s_add_u32 s101, s101, %d" % FL_KM)
            e("s_mov_b32 s35, s38")
            e("s_lshl_b32 s28, s%d, 16" % S_STEP); e("s_lshl_b32 s29, s%d, 11" % S_HEAD); e("s_add_u32 s38, s28, s29"); e("s_lshl_b32 s29, s%d, 9" % S_WAVE); e("s_add_u32 s38, s38, s29"); e("s_add_u32 s38, s38, %d" % WS_KM)
            e("s_mov_b32 s36, s37"); e("s_add_u32 s37, s38, %d" % (WS_VM - WS_KM))
    def nextprep():
        ZS_ = V_KX + 12
        e("v_mfma_f32_32x32x16_bf16 %s, %s, %s, 0" % (vr(V_QK, 16), vr(ZS_, 4), vr(ZS_, 4)))
        e("v_mfma_f32_16x16x32_bf16 %s, %s, %s, 0" % (vr(V_VA, 4), vr(ZS_, 4), vr(ZS_, 4)))
        e("v_mfma_f32_16x16x32_bf16 %s, %s, %s, 0" % (vr(V_VA + 4, 4), vr(ZS_, 4), vr(ZS_, 4)))
        for f in rd_wv(1): f()
        e("s_lshl_b32 s28, s%d, 11" % S_WAVE); e("s_add_u32 s%d, s%d, s28" % (S_MQ, S_MCUR))
        if OPT["stage"] >= 2:
            lsk = A.newlab("L_sk63")
            e("s_cmp_eq_u32 s%d, 63" % S_STEP); e("s_cbranch_scc1 %s" % lsk)
            need_seg(S_STEP)
            lab(lsk)
        if not OPT.get("scal_top", 0): scalprep()
    for i in range(4): e("v_mov_b32 v%d, 0" % (V_KX + 12 + i))
    e("s_nop 1")
    A.lds = []
    nextprep()
    WV1_TAGS = list(A.lds)
    lab("L_step")
    A.lds = list(WV1_TAGS); A.vm = []
    QA, KA_ = V_QK, V_QK + 8
    ts(20)
    if OPT.get("steptrace", 0):
        l = A.newlab("L_stt")
        e("s_cmp_lg_u32 s%d, 2" % S_WAVE); e("s_cbranch_scc1 %s" % l)
        e("s_memrealtime s[90:91]"); e("s_waitcnt lgkmcnt(0)")
        e("s_lshl_b32 s28, s%d, 6" % S_HEAD); e("s_add_u32 s28, s28, s%d" % S_STEP); e("s_lshl_b32 s28, s28, 2"); e("s_add_u32 s28, s28, %d" % (WS_TRACE + 0x10000))
        e("s_mov_b64 exec, 1"); e("v_mov_b32 v10, s90"); e("v_mov_b32 v11, 0"); e("buffer_store_dword v10, v11, s[4:7], s28 offen"); e("s_mov_b64 exec, s[26:27]")
        lab(l)
    if OPT.get("red_sets", 1) == 2: e("s_waitcnt vmcnt(%d)" % (2 if OPT["hist"] else 1))
    for i in range(4): e("v_mov_b32 v%d, 0" % (V_S + i))
    e("s_lshl_b32 s28, s%d, 11" % S_WAVE)
    e("v_add_u32 v%d, s28, v%d" % (T2, V_L16)); e("v_add_u32 v%d, %d, v%d" % (T2, L_MEM, T2))
    for a2 in range(1, 4): e("v_xor_b32 v%d, %d, v%d" % (T2 + a2, a2 << 11, T2))
    def smf(acc, areg, breg):
        e("v_smfmac_f32_16x16x64_bf16 %s, %s, %s, v%d" % (vr(acc, 4), vr(areg, 4), breg, V_IDX))
    def areg_of(tau, own): return (own + 4 * tau) if tau < 2 else (V_MEM + 4 * tau)
    def qk_l(tau, own=V_MEM):
        areg = areg_of(tau, own)
        return [lambda acc=acc, base=base, u=u: smf(acc, areg, ar(base + (u * 8 + tau) * 8, 8)) for (acc, base, u) in ((QA, 0, 0), (KA_, 128, 0), (QA + 4, 0, 1), (KA_ + 4, 128, 1))]
    def vv_l(tau, own=V_MEM):
        areg = areg_of(tau, own)
        return [lambda u=u: smf(V_VA + 4 * u, areg, vr(wvreg(tau) + 8 * u, 8)) for u in range(2)]
    def poll_issue(base):
        for tau in range(2):
            e("buffer_load_dwordx4 %s, v%d, s[4:7], s%d offen offset:%d sc1" % (vr(base + 4 * tau, 4), V_L16, S_MQ, tau * 1024))
    def poll_check(M):
        e("v_max3_u32 v%d, v%d, v%d, v%d" % (T0, M, M + 1, M + 2)); e("v_max3_u32 v%d, v%d, v%d, v%d" % (T1, M + 3, M + 4, M + 5))
        e("v_max3_u32 v%d, v%d, v%d, v%d" % (T0, T0, M + 6, M + 7)); e("v_max_u32 v%d, v%d, v%d" % (T0, T0, T1))
        e("v_cmp_eq_u32 vcc, -1, v%d" % T0)
    SA, SB = V_MEM, V_MEM + 24
    if OPT.get("scal_top", 0): scalprep()
    for i in range(OPT["dly_mem"]): e("s_nop 7")
    if OPT.get("early_rd", 0):
        for f in rd_wv(2): f()
    poll_issue(SA)
    ts(21)
    if not OPT.get("early_rd", 0):
        for f in rd_wv(2): f()
    for i in range(OPT.get("gap_mem", 0)): e("s_nop 7")
    mem2 = OPT.get("mem_sets", 1) == 2
    spec = (not mem2) and OPT.get("spec", 1)
    if mem2: poll_issue(SB)
    lab("L_pmA")
    e("s_add_u32 s%d, s%d, 1" % (S_SPIN, S_SPIN))
    e("s_waitcnt vmcnt(%d)" % (2 if mem2 else 0))
    ts(22)
    if spec:
        M = SA
        q0 = qk_l(0, SA); q1 = qk_l(1, SA)
        q0[0](); e("v_max3_u32 v%d, v%d, v%d, v%d" % (T0, M, M + 1, M + 2)); e("v_max3_u32 v%d, v%d, v%d, v%d" % (T1, M + 3, M + 4, M + 5))
        q0[1](); e("ds_write_b128 v%d, %s" % (T2, vr(M, 4)))
        q0[2](); e("v_max3_u32 v%d, v%d, v%d, v%d" % (T0, T0, M + 6, M + 7)); e("v_max_u32 v%d, v%d, v%d" % (T0, T0, T1))
        q0[3](); e("ds_write_b128 v%d, %s offset:1024" % (T2, vr(M + 4, 4)))
        q1[0](); e("v_cmp_eq_u32 vcc, -1, v%d" % T0)
        q1[1](); e("v_add_u32 v%d, s12, v%d" % (T1, V_L16))
        e("s_cmp_gt_u32 s%d, 0x200000" % S_SPIN); e("s_cbranch_scc1 L_specok")
        if OPT["nowait"]: e("s_branch L_specok")
        e("s_cbranch_vccz L_specok")
        poll_issue(SA) if False else None
        e("s_waitcnt lgkmcnt(0)")
        poll_issue(SA)
        A.nop(6)
        e("v_mfma_f32_32x32x16_bf16 %s, %s, %s, 0" % (vr(V_QK, 16), vr(V_S, 4), vr(V_S, 4)))
        e("s_branch L_pmA")
        lab("L_specok")
        stamp(0)
        q1[2](); q1[3]()
    else:
        poll_check(SA)
        e("s_cmp_gt_u32 s%d, 0x200000" % S_SPIN); e("s_cbranch_scc1 L_goA")
        if OPT["nowait"]: e("s_branch L_goA")
        e("s_cbranch_vccz L_goA")
        poll_issue(SA)
        if mem2:
            e("s_waitcnt vmcnt(2)")
            poll_check(SB)
            e("s_nop 1")
            e("s_cbranch_vccz L_goB")
            poll_issue(SB)
        e("s_branch L_pmA")
    def rd_m(tau): return lambda: A.ds("ds_read_b128 %s, v%d offset:%d" % (vr(V_MEM + 4 * tau, 4), T2 + (tau >> 1), (tau & 1) * 1024), ("m", tau))
    def rd_kx(f):
        kk, kt = f >> 1, f & 1
        return lambda: A.ds("ds_read_b128 %s, v%d offset:%d" % (vr(V_MEM + 4 * f, 4), T1, (kt * 4 + kk) * 1024), ("kx", kk))
    def rd_vx(u): return lambda: A.ds("ds_read_b128 %s, v%d offset:%d" % (vr(V_KX + 4 * u, 4), T0, u * 1024), ("vx", u))
    def run(mf, fl=()):
        fl = list(fl)
        for f in mf:
            f()
            if fl: fl.pop(0)()
        for f in fl: f()
    def vv(tau, fl=()):
        vl = vv_l(tau); fl = list(fl)
        A.wait_lds(("wv", tau, 0)); vl[0]()
        if fl: fl.pop(0)()
        A.wait_lds(("wv", tau, 1)); vl[1]()
        for f in fl: f()
    lds_state = list(A.lds)
    for variant, own in ((("B", SB), ("A", SA)) if mem2 else (("A", SA),)):
        A.lds = list(lds_state)
        if not spec:
            lab("L_go" + variant)
            if variant == "A": stamp(0)
            else: ts(0)
            q0 = qk_l(0, own); q1 = qk_l(1, own)
            q0[0](); e("ds_write_b128 v%d, %s" % (T2, vr(own, 4)))
            q0[1](); e("ds_write_b128 v%d, %s offset:1024" % (T2, vr(own + 4, 4)))
            q0[2](); e("v_add_u32 v%d, s12, v%d" % (T1, V_L16))
            q0[3]()
            if mem2: e("s_waitcnt vmcnt(0)")
            for i2, f in enumerate(q1):
                f()
        if variant == "A": stamp(8, 2)
        A.wait_lds_all(); e("s_barrier")
        if variant == "A": stamp(9, 2)
        rd_m(2)(); rd_m(3)()
        run(vv_l(0, own), [rd_m(4), rd_m(5)])
        run(vv_l(1, own), [rd_m(6), rd_m(7)])
        if variant == "B": e("s_branch L_joinP0")
    lab("L_joinP0")
    e("v_add_u32 v%d, s13, v%d" % (T0, V_L16))
    KH = V_S + 4
    def kmrd(u):
        def f():
            if OPT["stage"] >= 3: A.ds("ds_read_b32 v%d, v%d offset:%d" % (KH + u, V_XWR, u * 512), ("kh", u))
        return f
    def kmst(u):
        def f():
            if OPT["stage"] >= 3 and not OPT.get("nokm", 0):
                A.wait_lds(("kh", u))
                e("buffer_store_dword v%d, v%d, s[4:7], s35 offen offset:%d sc0 sc1" % (KH + u, T2, u * 256))
        return f
    def vmst(u):
        def f():
            if OPT["stage"] >= 3 and not OPT.get("nokm", 0):
                if u == 0: e("v_lshrrev_b32 v%d, 2, v%d" % (T2, V_L16))
                e("buffer_store_dword v%d, v%d, s[4:7], s36 offen offset:%d sc0 sc1" % (V_S + 9 + u, T2, u * 256))
        return f
    def dma(i): return lambda: (None if OPT.get("nodma", 0) else e("buffer_load_dwordx4 v%d, s[4:7], s%d offen offset:%d sc1 lds" % (V_L16, S_DMA, i * 1024)))
    dpos = OPT.get("dmapos", 1)
    if dpos == 0:
        for i in range(4): dma(i)()
    if OPT.get("spread", 1):
        A.wait_lds(("m", 2)); run(qk_l(2), rd_wv(3))
        A.wait_lds(("m", 3)); run(qk_l(3), [rd_kx(0), rd_kx(1), dma(0)])
        vv(2, [dma(1)])
        ts(33)
        A.wait_lds(("m", 4)); run(qk_l(4), rd_wv(4))
        ts(34)
        A.wait_lds(("m", 5)); run(qk_l(5), [rd_kx(2), dma(2), kmrd(0), kmrd(1)])
        vv(3, [dma(3)])
        if OPT["stage"] >= 3:
            lfk = A.newlab("L_fkm")
            e("s_cmp_eq_u32 s%d, 1" % S_WAVE); e("s_cbranch_scc0 %s" % lfk)
            e("v_mov_b32 v%d, s34" % T4); e("s_mov_b64 exec, 1"); e("buffer_store_dword v%d, v%d, s[4:7], s101 offen sc0 sc1" % (T4, V_L16)); e("s_mov_b64 exec, s[26:27]")
            lab(lfk)
        ts(35)
        A.wait_lds(("m", 6)); run(qk_l(6), rd_wv(5))
        vv(4, [rd_kx(3), vmst(0)])
        ts(36)
        A.wait_lds(("m", 7)); run(qk_l(7), rd_wv(6))
        vv5fill = [vmst(1), kmst(0), kmst(1)]
    else:
        A.wait_lds(("m", 2)); run(qk_l(2), rd_wv(3))
        A.wait_lds(("m", 3)); run(qk_l(3), [rd_kx(0), rd_kx(1)] + ([dma(0), dma(1)] if dpos == 1 else []))
        vv(2, ([dma(2), dma(3)] if dpos == 1 else []) + [kmrd(0), kmrd(1), vmst(0), vmst(1)])
        ts(33)
        def warm():
            if OPT.get("l2warm", 0) and not OPT.get("nodma", 0):
                e("v_lshlrev_b32 v%d, 2, v%d" % (T5, V_L16)); e("s_mov_b32 m0, %d" % L_DUM); e("s_add_u32 s28, s%d, 0x40000" % S_DMA)
                e("buffer_load_dword v%d, s[4:7], s28 offen lds" % T5)
        warm()
        if OPT["stage"] >= 3:
            lfk = A.newlab("L_fkm")
            e("s_cmp_eq_u32 s%d, 1" % S_WAVE); e("s_cbranch_scc0 %s" % lfk)
            e("v_mov_b32 v%d, s34" % T4); e("s_mov_b64 exec, 1"); e("buffer_store_dword v%d, v%d, s[4:7], s101 offen sc0 sc1" % (T4, V_L16)); e("s_mov_b64 exec, s[26:27]")
            lab(lfk)
        A.wait_lds(("m", 4)); run(qk_l(4), rd_wv(4))
        ts(34)
        A.wait_lds(("m", 5)); run(qk_l(5), [rd_kx(2), kmst(0), kmst(1)])
        vv(3)
        ts(35)
        A.wait_lds(("m", 6)); run(qk_l(6), rd_wv(5))
        vv(4, [rd_kx(3)])
        ts(36)
        A.wait_lds(("m", 7)); run(qk_l(7), rd_wv(6))
    stamp(1)
    vv(5, vv5fill if OPT.get("spread", 1) else [])
    ts(70)
    e("v_lshrrev_b32 v%d, 1, v%d" % (T3, V_L16)); e("v_add_u32 v%d, %d, v%d" % (T3, L_X, T3))
    for u in range(2):
        q, k_ = QA + 4 * u, KA_ + 4 * u
        e("v_add_f32 v%d, v%d, v%d" % (k_, k_, k_ + 1)); e("v_add_f32 v%d, v%d, v%d" % (k_ + 2, k_ + 2, k_ + 3))
        e("v_add_f32 v%d, v%d, v%d" % (q, q, q + 1)); e("v_add_f32 v%d, v%d, v%d" % (q + 2, q + 2, q + 3))
        e("v_cvt_pk_bf16_f32 v%d, v%d, v%d" % (k_, k_, k_ + 2)); e("v_cvt_pk_bf16_f32 v%d, v%d, v%d" % (k_ + 1, q, q + 2))
        A.ds("ds_write_b64 v%d, %s offset:%d" % (V_XWR, vr(k_, 2), u * 512), "xw")
    ts(71)
    for f in rd_wv(7): f()
    ts(72)
    vv(6)
    ts(73)
    if OPT["stage"] >= 3 and OPT["nsteps"] == 64 and OPT["final"]:
        e("s_cmp_eq_u32 s%d, 63" % S_STEP); e("s_cbranch_scc1 L_tail63")
    if OPT["stage"] >= 3:
        pass
    va = V_VA
    ZS = V_KX + 12
    stamp(10, 2)
    A.wait_lds("xw"); e("s_barrier")
    stamp(11, 2)
    for kk in range(4):
        for b in range(2):
            A.ds("ds_read_b64_tr_b16 %s, v%d offset:%d" % (vr(V_QK + 4 * kk + 2 * b, 2), T3, kk * 1024 + b * 512), ("x", kk))
    stamp(2)
    def vpk(u):
        x = va + 4 * u
        return [lambda: e("v_add_f32 v%d, v%d, v%d" % (x, x, x + 1)), lambda: e("v_add_f32 v%d, v%d, v%d" % (x + 2, x + 2, x + 3)),
                lambda: e("v_cvt_pk_bf16_f32 v%d, v%d, v%d" % (x, x, x + 2)), lambda: e("v_mov_b32 v%d, 0" % (x + 1))]
    zs = [lambda i=i: e("v_mov_b32 v%d, 0" % (ZS + i)) for i in range(4)]
    sfill = {0: [[rd_kx(4)], [rd_kx(5)], [rd_kx(6)]], 1: [[lambda: vv_l(7)[0]()], [lambda: vv_l(7)[1]()], [rd_kx(7)]],
             2: [[rd_vx(0), zs[0]], [rd_vx(1), zs[1]], [zs[2], zs[3]]], 3: [vpk(0)[:2], vpk(0)[2:], vpk(1)[:2]]}
    for kk in range(4):
        A.wait_lds(("x", kk)); A.wait_lds(("kx", kk))
        if kk == 1: A.wait_lds(("wv", 7, 1))
        X = vr(V_QK + 4 * kk, 4)
        cs = lambda r: "0" if kk == 0 else vr(r, 4)
        for idx, (dst, a_op) in enumerate(((V_S, vr(V_MEM + kk * 8, 4)), (V_S + 4, vr(V_MEM + kk * 8 + 4, 4)), (V_S + 8, X))):
            e("v_mfma_f32_16x16x32_bf16 %s, %s, %s, %s" % (vr(dst, 4), a_op, X, cs(dst)))
            for f in sfill[kk][idx]: f()
    for f in vpk(1)[2:]: f()
    e("v_add_u32 v%d, %d, v%d" % (T5, L_O, V_L16))
    A.nop(1)
    stamp(3)
    S = V_S
    e("v_max3_f32 v%d, v%d, v%d, v%d" % (T0, S, S + 1, S + 2)); e("v_max3_f32 v%d, v%d, v%d, v%d" % (T1, S + 4, S + 5, S + 6))
    e("v_max3_f32 v%d, v%d, v%d, v%d" % (T0, T0, S + 3, S + 7)); e("v_max3_f32 v%d, v%d, v%d, v%d" % (T1, T1, S + 8, S + 9))
    e("v_max_f32 v%d, v%d, v%d" % (T0, T0, T1))
    e("v_mov_b32 v%d, v%d" % (T1, T0))
    A.nop(2)
    e("v_permlane16_swap_b32 v%d, v%d" % (T0, T1)); e("v_max_f32 v%d, v%d, v%d" % (T0, T0, T1))
    e("v_mov_b32 v%d, v%d" % (T1, T0))
    e("v_mov_b32 v%d, 0" % (S + 11)); e("s_nop 0")
    e("v_permlane32_swap_b32 v%d, v%d" % (T0, T1)); e("v_max_f32 v%d, v%d, v%d" % (T0, T0, T1))
    e("v_mul_f32 v%d, s%d, v%d" % (T0, S_C, T0))
    if OPT.get("pk", 0):
        for i in range(0, 10, 2): e("v_pk_fma_f32 %s, %s, s[%d:%d], %s op_sel_hi:[1,0,0] neg_lo:[0,0,1] neg_hi:[0,0,1]" % (vr(S + i, 2), vr(S + i, 2), S_C, S_C + 1, vr(T0, 2)))
    else:
        for i in range(10): e("v_fma_f32 v%d, v%d, s%d, -v%d" % (S + i, S + i, S_C, T0))
    for i in range(8): e("v_exp_f32 v%d, v%d" % (S + i, S + i))
    e("v_exp_f32 v%d, v%d" % (S + 8, S + 8))
    e("v_add_f32 v%d, v%d, v%d" % (T2, S, S + 1)); e("v_add_f32 v%d, v%d, v%d" % (T3, S + 2, S + 3))
    e("v_exp_f32 v%d, v%d" % (S + 9, S + 9))
    e("v_cvt_pk_bf16_f32 v%d, v%d, v%d" % (S, S, S + 1)); e("v_cvt_pk_bf16_f32 v%d, v%d, v%d" % (S + 1, S + 2, S + 3))
    e("v_cvt_pk_bf16_f32 v%d, v%d, v%d" % (S + 2, S + 4, S + 5)); e("v_cvt_pk_bf16_f32 v%d, v%d, v%d" % (S + 3, S + 6, S + 7))
    e("v_add_f32 v%d, v%d, v%d" % (T2, T2, S + 4)); e("v_add_f32 v%d, v%d, v%d" % (T3, T3, S + 5))
    stamp(12, 2)
    O0, O1 = V_QK + 4, V_QK + 8
    A.wait_lds(("vx", 1))
    e("v_mfma_f32_16x16x32_bf16 %s, %s, %s, 0" % (vr(O0, 4), vr(V_KX, 4), vr(S, 4)))
    e("v_cvt_pk_bf16_f32 v%d, v%d, v%d" % (S + 10, S + 8, S + 9))
    e("v_add_f32 v%d, v%d, v%d" % (T2, T2, S + 6))
    e("v_mfma_f32_16x16x32_bf16 %s, %s, %s, 0" % (vr(O1, 4), vr(V_KX + 4, 4), vr(S, 4)))
    e("v_add_f32 v%d, v%d, v%d" % (T3, T3, S + 7)); e("v_add_f32 v%d, v%d, v%d" % (T2, T2, S + 8))
    e("v_mfma_f32_16x16x16_bf16 %s, %s, %s, %s" % (vr(O0, 4), vr(va, 2), vr(S + 10, 2), vr(O0, 4)))
    e("v_add_f32 v%d, v%d, v%d" % (T3, T3, S + 9)); e("v_add_f32 v%d, v%d, v%d" % (T2, T2, T3))
    e("v_mfma_f32_16x16x16_bf16 %s, %s, %s, %s" % (vr(O1, 4), vr(va + 4, 2), vr(S + 10, 2), vr(O1, 4)))
    ts(63)
    e("v_mov_b32 v%d, v%d" % (T3, T2)); A.nop(2); e("v_permlane16_swap_b32 v%d, v%d" % (T2, T3)); e("v_add_f32 v%d, v%d, v%d" % (T2, T2, T3))
    e("v_mov_b32 v%d, v%d" % (T3, T2)); A.nop(2); e("v_permlane32_swap_b32 v%d, v%d" % (T2, T3)); e("v_add_f32 v%d, v%d, v%d" % (T2, T2, T3))
    e("v_rcp_f32 v%d, v%d" % (T2, T2))
    e("s_nop 0")
    ts(64)
    W0 = V_QK
    for r in range(2): e("v_mul_f32 v%d, v%d, v%d" % (O0 + r, O0 + r, T2)); e("v_mul_f32 v%d, v%d, v%d" % (O1 + r, O1 + r, T2))
    e("v_cvt_pk_bf16_f32 v%d, v%d, v%d" % (W0, O0, O0 + 1)); e("v_cvt_pk_bf16_f32 v%d, v%d, v%d" % (W0 + 1, O1, O1 + 1))
    if OPT.get("omask", 0): e("s_mov_b64 exec, s[50:51]")
    A.ds("ds_write_b64 v%d, %s" % (V_OWR, vr(W0, 2)), "ow")
    if OPT.get("omask", 0): e("s_mov_b64 exec, s[26:27]")
    for r in range(2, 4): e("v_mul_f32 v%d, v%d, v%d" % (O0 + r, O0 + r, T2)); e("v_mul_f32 v%d, v%d, v%d" % (O1 + r, O1 + r, T2))
    e("v_cvt_pk_bf16_f32 v%d, v%d, v%d" % (W0 + 2, O0 + 2, O0 + 3)); e("v_cvt_pk_bf16_f32 v%d, v%d, v%d" % (W0 + 3, O1 + 2, O1 + 3))
    if OPT.get("omask", 0): e("s_mov_b64 exec, s[50:51]")
    A.ds("ds_write_b64 v%d, %s offset:16" % (V_OWR, vr(W0 + 2, 2)), "ow")
    if OPT.get("omask", 0): e("s_mov_b64 exec, s[26:27]")
    if OPT["stage"] >= 3:
        e("v_mov_b32 v%d, v%d" % (V_S + 9, va)); e("v_mov_b32 v%d, v%d" % (V_S + 10, va + 4))
    ts(65)
    e("s_cmp_eq_u32 s%d, 63" % S_STEP); e("s_cbranch_scc1 L_chain_done")
    e("v_mfma_f32_32x32x16_bf16 %s, %s, %s, 0" % (vr(V_MEM, 16), vr(ZS, 4), vr(ZS, 4)))
    e("v_mfma_f32_32x32x16_bf16 %s, %s, %s, 0" % (vr(V_MEM + 16, 16), vr(ZS, 4), vr(ZS, 4)))
    e("v_add_u32 v%d, %d, v%d" % (T2, L_SEL, V_L16))
    A.ds("ds_read_b128 %s, v%d" % (vr(V_KX + 8, 4), T2), "sel")
    l3 = A.newlab("L_w3")
    e("s_cmp_eq_u32 s%d, 3" % S_WAVE); e("s_cbranch_scc0 %s" % l3); e("s_waitcnt vmcnt(%d)" % (8 if OPT["stage"] >= 3 else 4)); lab(l3)
    stamp(13, 2)
    A.wait_lds_all(); e("s_barrier")
    for t in range(2):
        A.ds("ds_read_b128 %s, v%d offset:%d" % (vr(V_KX + 4 * t, 4), T5, t * 1024), ("o", t))
    stamp(4)
    def wo(nt, t):
        e("v_smfmac_f32_16x16x64_bf16 %s, %s, %s, v%d" % (vr(V_MEM + 4 * nt, 4), vr(V_KX + 4 * t, 4), vr(V_WO + (nt * 2 + t) * 8, 8), V_IDX))
    def fin_l(nt, dst):
        T = V_MEM + 4 * nt
        return [lambda: e("v_add_f32 v%d, v%d, v%d" % (T, T, T + 1)), lambda: e("v_add_f32 v%d, v%d, v%d" % (T + 2, T + 2, T + 3)),
                lambda: e("v_cvt_pk_bf16_f32 v%d, v%d, v%d" % (dst, T, T + 2))] + ([lambda: e("v_bfi_b32 v%d, 1, s%d, v%d" % (dst, S_TAG, dst))] if (nt % 4 == 0 or OPT.get("fulltag", 0)) else [])
    A.wait_lds(("o", 0)); A.wait_lds(("o", 1))
    pub = [lambda: e("s_add_u32 s30, s%d, %d" % (S_PCUR, 4 * 8192)), lambda: e("s_bfe_u32 s%d, s%d, 0x10001" % (S_TAG, S_STEP)),
           lambda: e("v_lshrrev_b32 v%d, 2, v%d" % (T4, V_L16)), lambda: e("v_and_b32 v%d, 0xc0, v%d" % (T4, T4)),
           lambda: e("v_lshlrev_b32 v%d, 1, v%d" % (T3, V_L16)), lambda: e("v_and_b32 v%d, 32, v%d" % (T3, T3)), lambda: e("v_add_u32 v%d, v%d, v%d" % (T4, T4, T3)),
           lambda: e("v_lshrrev_b32 v%d, 3, v%d" % (T3, V_L16)), lambda: e("v_and_b32 v%d, 28, v%d" % (T3, T3)), lambda: e("v_add_u32 v%d, v%d, v%d" % (T4, T4, T3))]
    late = [lambda: e("s_add_u32 s%d, s%d, 8192" % (S_MNXT, S_MCUR)), lambda: e("s_cmp_eq_u32 s%d, %d" % (S_MNXT, WS_MB + 3 * 8192)), lambda: e("s_cselect_b32 s%d, %d, s%d" % (S_MNXT, WS_MB, S_MNXT)),
            lambda: e("s_add_u32 s%d, s%d, s%d" % (S_RED, S_PCUR, S_H13)), lambda: e("s_add_u32 s33, s%d, 4096" % S_RED), lambda: e("s_add_u32 s31, s%d, s%d" % (S_MNXT, S_H8))]
    q = pub[:]
    ts(60)
    for nt in range(8):
        if nt == 4: ts(61)
        for t in range(2):
            wo(nt, t)
            for _ in range(2):
                if q: q.pop(0)()
        if nt >= 2:
            q += fin_l(nt - 2, V_S + nt - 2)
            if nt - 2 == 3: q.append(lambda: e("buffer_store_dwordx4 %s, v%d, s[4:7], s%d offen %s" % (vr(V_S, 4), V_PS0, S_PCUR, PSTF)))
    ts(62)
    while q: q.pop(0)()
    for f in late[:3]: f()
    for nt in (6, 7):
        for f in fin_l(nt, V_S + nt): f()
    e("buffer_store_dwordx4 %s, v%d, s[4:7], s30 offen %s" % (vr(V_S + 4, 4), V_PS0, PSTF))
    for f in late[3:]: f()
    stamp(5)
    lp = A.newlab("L_nopois")
    e("s_cmp_eq_u32 s%d, 3" % S_WAVE); e("s_cbranch_scc0 %s" % lp)
    e("v_mov_b32 v%d, -1" % (V_S + 8))
    e("s_add_u32 s29, s%d, s%d" % (S_MPREV, S_H8))
    e("buffer_store_dword v%d, v%d, s[4:7], s29 offen" % (V_S + 8, T4))
    lab(lp)
    e("s_mov_b32 s%d, s%d" % (S_MPREV, S_MCUR))
    e("s_mov_b32 s%d, s%d" % (S_MCUR, S_MNXT)); e("s_xor_b32 s%d, s%d, 0x40000" % (S_PCUR, S_PCUR))
    e("s_xor_b32 s%d, s%d, 8192" % (S_PAR, S_PAR))
    e("s_add_u32 s%d, s%d, 1" % (S_STEP, S_STEP))
    nextprep()
    e("s_cmp_eq_u32 s%d, 0" % S_WAVE); e("s_cbranch_scc0 L_red_done")
    lab("L_reduce")
    QA_ = [V_MEM + 4 * x for x in range(8)]
    QB_ = [V_WVR, V_WVR + 4, V_WVR + 8, V_WVR + 12, V_VA, V_VA + 4, V_QK + 4, V_QK + 8]
    DA, DB = V_KX + 12, V_QK + 12
    assert OPT.get('red_sets', 1) == 1
    def red_issue(Q):
        for x in range(8):
            e("buffer_load_dwordx4 %s, v%d, s[4:7], s%d offen offset:%d sc1" % (vr(Q[x], 4), V_L16, S_RED if x < 4 else 33, (x & 3) * 1024))
    def red_proc(Q, D, tag, W, stampit=False):
        op = "0x80" if tag else "0xfe"
        for x in range(8):
            e("s_waitcnt vmcnt(%d)" % (W + 7 - x))
            if stampit and x in (0, 7): ts(41 + x)
            e("v_mfma_f32_16x16x32_bf16 %s, %s, %s, %s" % (vr(D, 4), vr(Q[x], 4), vr(V_KX + 8, 4), "0" if x == 0 else vr(D, 4)))
            a_ = Q[x]
            if OPT.get("fulltag", 0):
                if x == 0:
                    e("v_bitop3_b32 v%d, v%d, v%d, v%d bitop3:%s" % (T0, a_, a_ + 1, a_ + 2, op)); e("v_bitop3_b32 v%d, v%d, v%d, v%d bitop3:%s" % (T0, T0, a_ + 3, a_ + 3, op))
                else:
                    e("v_bitop3_b32 v%d, v%d, v%d, v%d bitop3:%s" % (T0, T0, a_, a_ + 1, op)); e("v_bitop3_b32 v%d, v%d, v%d, v%d bitop3:%s" % (T0, T0, a_ + 2, a_ + 3, op))
            else:
                if x == 1: e("v_bitop3_b32 v%d, v%d, v%d, v%d bitop3:%s" % (T0, Q[0], Q[1], Q[1], op))
                elif x in (3, 5, 7): e("v_bitop3_b32 v%d, v%d, v%d, v%d bitop3:%s" % (T0, T0, Q[x - 1], Q[x], op))
                if x == 3 and OPT.get("early", 0) and not OPT["nowait"]:
                    le = A.newlab("L_ee")
                    e("v_and_b32 v%d, 1, v%d" % (T1, T0)); e("v_cmp_ne_u32 vcc, %d, v%d" % (tag, T1))
                    e("s_cmp_gt_u32 s%d, 0x200000" % S_SPIN); e("s_cbranch_scc1 %s" % le)
                    e("s_cbranch_vccnz L_rretry%d" % tag)
                    lab(le)
        e("v_and_b32 v%d, 1, v%d" % (T0, T0))
        e("v_cmp_ne_u32 vcc, %d, v%d" % (tag, T0))
    two = OPT.get("red_sets", 1) == 2
    for i in range(OPT["dly_red"]): e("s_nop 7")
    red_issue(QA_)
    if two:
        for i in range(OPT.get("gap_red", 2)): e("s_nop 7")
        red_issue(QB_)
    ts(40)
    e("s_waitcnt lgkmcnt(0)")
    e("s_cmp_lg_u32 s%d, 0" % S_TAG); e("s_cbranch_scc1 L_prA1")
    for tag in range(2):
        lab("L_prA%d" % tag)
        e("s_add_u32 s%d, s%d, 1" % (S_SPIN, S_SPIN))
        red_proc(QA_, DA, tag, 8 if two else 0, True)
        e("s_cmp_gt_u32 s%d, 0x200000" % S_SPIN); e("s_cbranch_scc1 L_rgoA")
        if OPT["nowait"]: e("s_branch L_rgoA")
        e("s_cbranch_vccz L_rgoA")
        lab("L_rretry%d" % tag)
        red_issue(QA_)
        if two:
            red_proc(QB_, DB, tag, 8)
            e("s_nop 1")
            e("s_cbranch_vccz L_rgoB")
            red_issue(QB_)
        e("s_branch L_prA%d" % tag)
    if two:
        lab("L_rgoB")
        A.nop(4)
        e("v_cndmask_b32 v%d, v%d, v%d, s[48:49]" % (T0, DB + 2, DB)); e("v_cndmask_b32 v%d, v%d, v%d, s[48:49]" % (T1, DB + 3, DB + 1))
        e("s_branch L_rpub")
    lab("L_rgoA")
    A.nop(3)
    e("v_cndmask_b32 v%d, v%d, v%d, s[48:49]" % (T0, DA + 2, DA)); e("v_cndmask_b32 v%d, v%d, v%d, s[48:49]" % (T1, DA + 3, DA + 1))
    lab("L_rpub")
    ts(50)
    e("v_cvt_pk_bf16_f32 v%d, v%d, v%d" % (T0, T0, T1))
    e("buffer_store_dword v%d, v%d, s[4:7], s31 offen %s" % (T0, T4, PUBF))
    if OPT["hist"]:
        e("s_lshl_b32 s30, s%d, 13" % S_STEP); e("s_add_u32 s30, s30, s%d" % S_H8); e("s_add_u32 s30, s30, %d" % WS_HIST)
        e("buffer_store_dword v%d, v%d, s[4:7], s30 offen" % (T0, T4))
    lab("L_red_done")
    stamp(6)
    e("s_barrier")
    stamp(7)
    e("s_cmp_lt_u32 s%d, %d" % (S_STEP, OPT["nsteps"])); e("s_cbranch_scc1 L_step")
    if OPT["stage"] >= 3 and OPT["nsteps"] == 64 and OPT["final"]:
        e("s_branch L_chain_done")
        lab("L_tail63")
        e("s_waitcnt lgkmcnt(0)")
        for u in range(2): smf(V_VA + 4 * u, V_MEM + 28, vr(wvreg(7) + 8 * u, 8))
        e("v_lshrrev_b32 v6, 2, v%d" % V_L16)
        for u in range(2):
            e("buffer_store_dword v%d, v6, s[4:7], s38 offen offset:%d sc0 sc1" % (KA_ + 4 * u, u * 256))
        A.nop(8)
        for u in range(2):
            x = V_VA + 4 * u
            e("v_add_f32 v%d, v%d, v%d" % (x, x, x + 1)); e("v_add_f32 v%d, v%d, v%d" % (x + 2, x + 2, x + 3))
            e("v_cvt_pk_bf16_f32 v%d, v%d, v%d" % (x, x, x + 2))
            e("buffer_store_dword v%d, v6, s[4:7], s37 offen offset:%d sc0 sc1" % (x, u * 256))
        e("s_waitcnt vmcnt(0)"); e("s_barrier")
        lfk = A.newlab("L_fkm")
        e("s_cmp_eq_u32 s%d, 1" % S_WAVE); e("s_cbranch_scc0 L_end")
        e("v_mov_b32 v6, 64"); e("v_mov_b32 v7, 0")
        e("s_mov_b64 exec, 1"); e("buffer_store_dword v6, v7, s[4:7], s101 offen sc0 sc1"); e("s_mov_b64 exec, s[26:27]")
        e("s_waitcnt vmcnt(0)")
        e("s_branch L_end")
    lab("L_chain_done")
    rt(5)
    if OPT["stage"] >= 3:
        e("v_lshrrev_b32 v6, 2, v%d" % V_L16)
        for u in range(2): e("ds_read_b32 v%d, v%d offset:%d" % (8 + u, V_XWR, u * 512))
        for u in range(2):
            e("buffer_store_dword v%d, v6, s[4:7], s37 offen offset:%d sc0 sc1" % (V_S + 9 + u, u * 256))
        e("s_waitcnt lgkmcnt(0)")
        for u in range(2):
            e("buffer_store_dword v%d, v6, s[4:7], s38 offen offset:%d sc0 sc1" % (8 + u, u * 256))
        e("s_waitcnt vmcnt(0)"); e("s_barrier")
        lfk = A.newlab("L_fkm")
        e("s_cmp_eq_u32 s%d, 1" % S_WAVE); e("s_cbranch_scc0 %s" % lfk)
        e("v_mov_b32 v6, 64"); e("v_mov_b32 v7, 0"); e("s_lshl_b32 s28, s%d, 7" % S_HEAD); e("s_add_u32 s28, s28, %d" % FL_KM)
        e("s_mov_b64 exec, 1"); e("buffer_store_dword v6, v7, s[4:7], s28 offen sc0 sc1"); e("s_mov_b64 exec, s[26:27]")
        lab(lfk)
    if not OPT["final"]:
        e("s_memtime s[86:87]"); e("s_memrealtime s[90:91]"); e("s_waitcnt lgkmcnt(0)")
        e("s_sub_u32 s86, s86, s84"); e("s_sub_u32 s90, s90, s88")
        e("s_lshl_b32 s28, s%d, 2" % S_HEAD); e("s_add_u32 s28, s28, s%d" % S_WAVE); e("s_lshl_b32 s28, s28, 7"); e("s_add_u32 s28, s28, %d" % WS_STAMP)
        e("s_mov_b64 exec, 1"); e("v_mov_b32 v10, 0")
        vals = [86, 90, S_SPIN] + ([S_ST + i for i in range(16)] if OPT["stamps"] else []) + [64 + 2 * k for k in range(len(TS))]
        for i, r in enumerate(vals):
            e("v_mov_b32 v11, s%d" % r); e("buffer_store_dword v11, v10, s[4:7], s28 offen offset:%d" % (4 * i))
    e("s_waitcnt vmcnt(0)")
    e("s_branch L_end")

S_X = 12
S_SEG, S_K, S_NSEG, S_XB = 40, 41, 42, 43
S_RANK, S_SUB = 38, 37
def wait_dbg_counter(off_bytes_sgpr_or_int, target, lname):
    e("s_mov_b64 exec, 1")
    if isinstance(off_bytes_sgpr_or_int, int): e("v_mov_b32 v32, %d" % off_bytes_sgpr_or_int)
    else: e("v_mov_b32 v32, %s" % off_bytes_sgpr_or_int)
    e("s_mov_b32 s29, 0")
    lab(lname)
    e("global_load_dword v33, v32, s[24:25] sc0 sc1"); e("s_waitcnt vmcnt(0)"); e("v_readfirstlane_b32 s30, v33")
    e("s_add_u32 s29, s29, 1"); e("s_cmp_gt_u32 s29, 0x40000"); e("s_cbranch_scc1 %s_d" % lname)
    e("s_cmp_lt_u32 s30, %d" % target); e("s_cbranch_scc1 %s" % lname)
    lab(lname + "_d")
    e("s_mov_b64 exec, s[26:27]")

CV_HS, CV_CS = 4416, 17664
CV_XR, CV_XS = 70656, 7680
CV_YB = 101376
def conv_task():
    lskip = A.newlab("L_cv_skip")
    e("s_cmp_lt_u32 s%d, 2" % S_TEAM); e("s_cbranch_scc1 %s" % lskip)
    e("s_cmp_gt_u32 s%d, 5" % S_TEAM); e("s_cbranch_scc1 %s" % lskip)
    TASK, CH = 44, 45
    e("s_sub_u32 s%d, s%d, 2" % (TASK, S_TEAM)); e("s_lshl_b32 s%d, s%d, 5" % (TASK, TASK)); e("s_add_u32 s%d, s%d, s%d" % (TASK, TASK, S_HEAD))
    e("s_lshl_b32 s%d, s%d, 2" % (CH, TASK)); e("s_add_u32 s%d, s%d, s%d" % (CH, CH, S_WAVE))
    e("s_load_dwordx4 s[64:67], s[0:1], %d" % KA["q"])
    e("s_load_dwordx4 s[68:71], s[0:1], %d" % KA["v"])
    e("s_load_dwordx4 s[72:75], s[0:1], %d" % KA["ssmk"])
    e("s_load_dwordx2 s[76:77], s[0:1], %d" % KA["out"])
    e("s_waitcnt lgkmcnt(0)")
    e("s_lshl_b32 s28, s%d, 5" % TASK); e("s_add_u32 s70, s70, s28"); e("s_addc_u32 s71, s71, 0")
    e("s_lshl_b32 s28, s%d, 3" % TASK); e("s_add_u32 s74, s74, s28"); e("s_addc_u32 s75, s75, 0")
    e("s_load_dwordx8 s[80:87], s[70:71], 0"); e("s_load_dwordx2 s[88:89], s[74:75], 0")
    LN = 2
    e("v_lshrrev_b32 v%d, 4, v%d" % (LN, V_L16))
    srd(8, 72, 0x200000)
    e("s_mul_i32 s32, s%d, %d" % (S_WAVE, CV_CS))
    e("s_lshl_b32 s33, s%d, 12" % CH)
    for r in range(4):
        for i in range(4):
            e("s_add_u32 m0, s32, %d" % (r * CV_HS + 64 + i * 1024)); e("s_add_u32 s28, s33, %d" % (i * 1024 + 2 * r))
            e("buffer_load_dwordx4 v%d, s[8:11], s28 offen lds" % V_L16)
    for i in range(4): e("v_mov_b32 v%d, 0" % (4 + i))
    e("v_bfe_u32 v8, v%d, 2, 2" % LN); e("v_mul_u32_u24 v8, %d, v8" % CV_HS); e("v_and_b32 v9, 3, v%d" % LN); e("v_lshlrev_b32 v9, 4, v9"); e("v_add_u32 v8, v8, v9"); e("v_add_u32 v8, s32, v8")
    e("ds_write_b128 v8, v[4:7]")
    e("v_and_b32 v9, 3, v%d" % LN); e("v_lshlrev_b32 v10, 1, v9"); e("v_add_u32 v10, s33, v10")
    e("buffer_load_ushort v11, v10, s[8:11], 0 offen")
    e("v_bfe_u32 v12, v%d, 2, 2" % LN); e("v_mul_u32_u24 v13, %d, v12" % (CV_HS - 2)); e("v_lshlrev_b32 v14, 1, v9"); e("v_add_u32 v13, v13, v14"); e("v_add_u32 v13, 64, v13"); e("v_add_u32 v13, s32, v13")
    e("v_cmp_lt_u32 vcc, v9, v12"); e("v_cmp_gt_u32 s[30:31], 16, v%d" % LN); e("s_nop 1"); e("s_and_b64 s[30:31], s[30:31], vcc")
    e("s_mul_i32 s28, s%d, %d" % (S_WAVE, CV_XS)); e("s_add_u32 s28, s28, %d" % CV_XR); e("v_add_u32 v8, s28, v%d" % V_L16)
    e("ds_write_b128 v8, v[4:7]"); e("ds_write_b128 v8, v[4:7] offset:1024")
    e("v_cmp_gt_u32 vcc, 32, v%d" % LN); e("s_nop 1"); e("s_mov_b64 exec, vcc"); e("ds_write_b128 v8, v[4:7] offset:2048"); e("s_mov_b64 exec, s[26:27]")
    e("s_waitcnt vmcnt(0)")
    e("s_mov_b64 exec, s[30:31]"); e("ds_write_b16 v13, v11"); e("s_mov_b64 exec, s[26:27]")
    srd(8, 66, 0x200000)
    srd(12, 68, 0x200000)
    TH = 3
    e("s_lshl_b32 s28, s%d, 6" % S_WAVE); e("v_add_u32 v%d, s28, v%d" % (TH, LN))
    e("v_lshlrev_b32 v4, 13, v%d" % TH); e("s_lshl_b32 s28, s%d, 3" % TASK); e("v_add_u32 v4, s28, v4")
    KR, VR = 16, 40
    for j in range(11):
        e("v_add_u32 v5, %d, v4" % ((j - 3) * 1024 & 0xffffffff))
        e("buffer_load_dwordx2 %s, v5, s[8:11], 0 offen" % vr(KR + 2 * j, 2))
    for j in range(8):
        e("v_add_u32 v5, %d, v4" % (j * 1024))
        e("buffer_load_dwordx2 %s, v5, s[12:15], 0 offen" % vr(VR + 2 * j, 2))
    e("s_waitcnt lgkmcnt(0)")
    SK = {}
    for cch in range(4):
        for j in range(4):
            src = 80 + 2 * cch + (j >> 1)
            dst = 96 + cch * 4 + j
            if j & 1: e("s_and_b32 s28, s%d, 0xffff0000" % src)
            else: e("s_lshl_b32 s28, s%d, 16" % src)
            e("v_mov_b32 v%d, s28" % dst)
            SK[(cch, j)] = dst
    for cch in range(4):
        src = 88 + (cch >> 1)
        if cch & 1: e("s_and_b32 s28, s%d, 0xffff0000" % src)
        else: e("s_lshl_b32 s28, s%d, 16" % src)
        e("v_mov_b32 v%d, s28" % (112 + cch))
    e("s_waitcnt vmcnt(0)")
    KV = 116
    XP = 56
    for cch in range(4):
        d, hi = cch >> 1, cch & 1
        U = 72
        for j in range(11):
            if hi: e("v_and_b32 v%d, 0xffff0000, v%d" % (U + j, KR + 2 * j + d))
            else: e("v_lshlrev_b32 v%d, 16, v%d" % (U + j, KR + 2 * j + d))
        for t in range(8):
            e("v_mul_f32 v%d, v%d, v%d" % (84 + t, U + t, SK[(cch, 3)]))
            for j in (2, 1, 0):
                e("v_fmac_f32 v%d, v%d, v%d" % (84 + t, U + t + 3 - j, SK[(cch, j)]))
            if hi: e("v_and_b32 v92, 0xffff0000, v%d" % (VR + 2 * t + d))
            else: e("v_lshlrev_b32 v92, 16, v%d" % (VR + 2 * t + d))
            e("v_mul_f32 v%d, v%d, v92" % (84 + t, 84 + t))
        for p in range(4):
            e("v_cvt_pk_bf16_f32 v%d, v%d, v%d" % (XP + 4 * cch + p, 84 + 7 - 2 * p, 84 + 6 - 2 * p))
    e("v_lshrrev_b32 v4, 2, v%d" % TH); e("v_mul_u32_u24 v4, 80, v4"); e("v_and_b32 v5, 3, v%d" % TH); e("v_lshlrev_b32 v5, 4, v5"); e("v_add_u32 v4, v4, v5")
    e("v_add_u32 v4, %d, v4" % (CV_XR + 32 * 80))
    e("s_waitcnt lgkmcnt(0)"); e("s_barrier")
    for cch in range(4):
        e("ds_write_b128 v4, %s offset:%d" % (vr(XP + 4 * cch, 4), cch * CV_XS))
    srd(8, 64, 0x200000)
    e("v_lshlrev_b32 v4, 13, v%d" % TH); e("s_lshl_b32 s28, s%d, 3" % TASK); e("v_add_u32 v4, s28, v4")
    QR = 16
    for j in range(8):
        e("v_add_u32 v5, %d, v4" % (j * 1024))
        e("buffer_load_dwordx2 %s, v5, s[8:11], 0 offen" % vr(QR + 2 * j, 2))
    e("s_waitcnt lgkmcnt(0)"); e("s_barrier")
    e("v_and_b32 v6, 31, v%d" % LN); e("v_lshrrev_b32 v7, 5, v%d" % LN)
    e("v_add_u32 v8, 1, v6"); e("v_and_b32 v8, 3, v8"); e("v_mul_u32_u24 v8, %d, v8" % CV_HS)
    e("v_lshlrev_b32 v9, 3, v7"); e("v_sub_u32 v9, v6, v9"); e("v_add_u32 v9, 25, v9"); e("v_lshrrev_b32 v9, 2, v9"); e("v_lshlrev_b32 v9, 3, v9")
    e("v_add_u32 v8, v8, v9"); e("v_add_u32 v8, s32, v8"); e("v_subrev_u32 v8, 32, v8")
    e("v_mul_u32_u24 v9, 80, v6"); e("v_lshlrev_b32 v10, 4, v7"); e("v_add_u32 v9, v9, v10")
    e("s_mul_i32 s28, s%d, %d" % (S_WAVE, CV_XS)); e("s_add_u32 s28, s28, %d" % (CV_XR - 31 * 80)); e("v_add_u32 v9, s28, v9")
    Y0, Y1 = 128, 144
    FA, FB = 72, 88
    steps = []
    for dl in range(64):
        for kk in range(2):
            steps.append((dl, kk))
    A.lds = []
    def issue(n):
        dl, kk = steps[n]; u = 2 * dl - kk
        ra = FA + (n % 4) * 4
        A.ds("ds_read_b64 %s, v8 offset:%d" % (vr(ra, 2), (u + 1) * 32), ("cv", n))
        A.ds("ds_read_b64 %s, v8 offset:%d" % (vr(ra + 2, 2), (u + 1) * 32 + 8), ("cv", n))
        rb = 88 + (n % 3) * 8
        A.ds("ds_read_b128 %s, v9 offset:%d" % (vr(rb, 4), (63 - dl) * 80 + kk * 32 + 2560), ("cv", n))
        if dl <= 31:
            A.ds("ds_read_b128 %s, v9 offset:%d" % (vr(rb + 4, 4), (63 - dl) * 80 + kk * 32), ("cv", n))
    issue(0); issue(1)
    first = [True, True]
    for n in range(len(steps)):
        dl, kk = steps[n]
        A.wait_lds(("cv", n))
        ra = FA + (n % 4) * 4; rb = 88 + (n % 3) * 8
        e("v_mfma_f32_32x32x16_bf16 %s, %s, %s, %s" % (ar(Y1, 16), vr(ra, 4), vr(rb, 4), "0" if n == 0 else ar(Y1, 16)))
        if dl <= 31:
            e("v_mfma_f32_32x32x16_bf16 %s, %s, %s, %s" % (ar(Y0, 16), vr(ra, 4), vr(rb + 4, 4), "0" if n == 0 else ar(Y0, 16)))
        if n + 2 < len(steps): issue(n + 2)
    A.nop(16)
    e("v_lshlrev_b32 v10, 6, v6"); e("v_lshlrev_b32 v11, 3, v7"); e("v_add_u32 v10, v10, v11")
    e("s_lshl_b32 s28, s%d, 12" % S_WAVE); e("s_add_u32 s28, s28, %d" % CV_YB); e("v_add_u32 v10, s28, v10")
    for tile, Y in ((0, Y0), (1, Y1)):
        for q4 in range(4):
            for r in range(4): e("v_accvgpr_read_b32 v%d, a%d" % (72 + r, Y + 4 * q4 + r))
            e("s_nop 0")
            e("v_cvt_pk_bf16_f32 v76, v72, v73"); e("v_cvt_pk_bf16_f32 v77, v74, v75")
            e("ds_write_b64 v10, v[76:77] offset:%d" % (tile * 2048 + q4 * 16))
            e("s_nop 1")
    e("s_waitcnt lgkmcnt(0)"); e("s_barrier")
    e("v_lshlrev_b32 v4, 4, v%d" % TH); e("v_add_u32 v4, %d, v4" % CV_YB)
    YR = 72
    for cch in range(4):
        e("ds_read_b128 %s, v4 offset:%d" % (vr(YR + 4 * cch, 4), cch * 4096))
    e("s_waitcnt lgkmcnt(0) vmcnt(0)")
    srd(8, 76, 0x400000)
    OUTR = 40
    for t in range(8):
        for pr in range(2):
            vals = []
            for h in range(2):
                cch = 2 * pr + h
                ysrc = YR + 4 * cch + (t >> 1)
                if t & 1: e("v_and_b32 v%d, 0xffff0000, v%d" % (92 + h, ysrc))
                else: e("v_lshlrev_b32 v%d, 16, v%d" % (92 + h, ysrc))
                p = (7 - t) >> 1
                ksrc = XP + 4 * cch + p
                if (7 - t) & 1: e("v_and_b32 v94, 0xffff0000, v%d" % ksrc)
                else: e("v_lshlrev_b32 v94, 16, v%d" % ksrc)
                e("v_fmac_f32 v%d, v94, v%d" % (92 + h, 112 + cch))
                qsrc = QR + 2 * t + pr
                if h: e("v_and_b32 v94, 0xffff0000, v%d" % qsrc)
                else: e("v_lshlrev_b32 v94, 16, v%d" % qsrc)
                e("v_mul_f32 v%d, v%d, v94" % (92 + h, 92 + h))
            e("v_cvt_pk_bf16_f32 v%d, v92, v93" % (OUTR + 2 * t + pr))
    e("v_lshlrev_b32 v4, 14, v%d" % TH); e("s_lshl_b32 s28, s%d, 3" % TASK); e("v_add_u32 v4, s28, v4")
    for t in range(8):
        e("v_add_u32 v5, %d, v4" % (t * 2048))
        e("buffer_store_dwordx2 %s, v5, s[8:11], 0 offen" % vr(OUTR + 2 * t, 2))
    e("s_waitcnt vmcnt(0)"); e("s_barrier")
    e("s_load_dwordx2 s[30:31], s[0:1], %d" % KA["x"]); e("s_waitcnt lgkmcnt(0)")
    srd(S_X, 30, 0x200000)
    lab(lskip)

XL_T0, XL_QB, XL_KMI, XL_OB, XL_SEL = 0, 65536, 73728, 77824, 86016
S_OUT = 16
S_QT, S_EH, S_XPB, S_PAR2 = 44, 45, 46, 47
def xt_dma_g(seg_sgpr, buf_sgpr):
    e("s_lshr_b32 s28, s%d, 1" % S_WAVE); e("s_lshl_b32 s29, s%d, 15" % seg_sgpr); e("s_lshl_b32 s30, s28, 14"); e("s_add_u32 s29, s29, s30")
    e("s_and_b32 s30, s%d, 1" % S_WAVE); e("s_lshl_b32 s31, s30, 9"); e("s_add_u32 s29, s29, s31")
    e("s_lshl_b32 s31, s%d, 13" % S_WAVE); e("s_add_u32 s31, s31, s%d" % buf_sgpr)
    for i in range(8):
        e("s_add_u32 m0, s31, %d" % (i * 1024)); e("s_add_u32 s30, s29, %d" % (i * 64))
        e("buffer_load_dwordx4 v1, s[12:15], s30 offen lds")

def xphase2():
    L = VLANE
    e("s_mov_b32 s%d, s%d" % (S_HEAD, S_RANK))
    e("s_lshl_b32 s%d, s%d, 13" % (S_H13, S_HEAD)); e("s_lshl_b32 s%d, s%d, 8" % (S_H8, S_HEAD))
    e("s_cmp_eq_u32 s%d, 1" % S_TEAM); e("s_cselect_b32 s%d, 10, 9" % S_NSEG)
    e("s_barrier")
    e("v_lshrrev_b32 v%d, 4, v%d" % (L, V_L16))
    load_setup(32768)
    uq = units_qkv(0, "a", 0)
    for u in uq: u["perm"] = False
    load_units(uq + units_wo("v", V_WO), 8)
    e("s_barrier")
    rt(5)
    if OPT.get("conv", 0): conv_task()
    rt(6)
    KXF, VXF, QF, S, KMF, VMF, OO = 12, 44, 60, 76, 88, 104, 112
    T0, T1, T2, T3, T4, T5 = 6, 7, 8, 9, 10, 11
    V_THR, V_XPS, V_XD = 3, 4, 1
    e("v_lshrrev_b32 v%d, 4, v%d" % (L, V_L16))
    e("s_load_dwordx2 s[30:31], s[0:1], %d" % KA["out"])
    e("s_and_b32 s%d, s%d, 1" % (S_QT, S_WAVE)); e("s_lshr_b32 s%d, s%d, 1" % (S_EH, S_WAVE))
    e("v_lshrrev_b32 v1, 2, v%d" % L); e("v_lshrrev_b32 v2, 4, v%d" % L); e("v_xor_b32 v2, v2, v%d" % L); e("v_and_b32 v2, 3, v2"); e("v_lshlrev_b32 v2, 4, v2")
    e("v_lshlrev_b32 v1, 10, v1"); e("v_add_u32 v1, v1, v2")
    e("v_and_b32 v5, 15, v%d" % L); e("v_lshrrev_b32 v2, 2, v5"); e("v_lshrrev_b32 v34, 4, v%d" % L); e("v_xor_b32 v2, v2, v34"); e("v_and_b32 v2, 3, v2")
    e("v_lshlrev_b32 v5, 2, v5"); e("v_add_u32 v5, v5, v2"); e("v_lshlrev_b32 v5, 4, v5")
    e("v_and_b32 v%d, 15, v%d" % (V_THR, L)); e("v_lshrrev_b32 v2, 4, v%d" % L); e("v_lshlrev_b32 v2, 2, v2"); e("v_sub_u32 v%d, v%d, v2" % (V_THR, V_THR))
    e("s_lshl_b32 s28, s%d, 4" % S_QT); e("v_add_u32 v%d, s28, v%d" % (V_THR, V_THR))
    e("v_bfe_u32 v%d, v%d, 2, 2" % (V_XPS, L)); e("v_lshlrev_b32 v%d, 13, v%d" % (V_XPS, V_XPS))
    e("v_lshrrev_b32 v2, 4, v%d" % L); e("v_lshlrev_b32 v2, 6, v2"); e("v_add_u32 v%d, v%d, v2" % (V_XPS, V_XPS))
    e("v_and_b32 v2, 3, v%d" % L); e("v_lshlrev_b32 v2, 4, v2"); e("v_add_u32 v%d, v%d, v2" % (V_XPS, V_XPS)); e("v_add_u32 v%d, s%d, v%d" % (V_XPS, S_H8, V_XPS))
    e("v_and_b32 v6, 1, v%d" % L); e("v_lshlrev_b32 v6, 4, v6"); e("v_mov_b32 v7, 0x3f80"); e("v_lshlrev_b32 v7, v6, v7")
    e("v_bfe_u32 v6, v%d, 1, 2" % L)
    for i in range(4):
        e("v_cmp_eq_u32 vcc, %d, v6" % i); e("s_nop 1"); e("v_cndmask_b32 v%d, 0, v7, vcc" % (12 + i))
    e("v_add_u32 v6, %d, v%d" % (XL_SEL, V_L16)); e("ds_write_b128 v6, v[12:15]")
    e("s_waitcnt lgkmcnt(0)")
    srd(S_OUT, 30, 0x400000)
    cval = struct.unpack("<I", struct.pack("<f", (128 ** -0.5) * math.log2(math.e)))[0]
    e("s_mov_b32 s%d, 0x%08x" % (S_C, cval))
    e("s_lshl_b32 s%d, s%d, 21" % (S_XPB, S_TEAM)); e("s_add_u32 s%d, s%d, %d" % (S_XPB, S_XPB, WS_XP))
    e("s_sub_u32 s%d, s%d, 1" % (S_SEG, S_TEAM)); e("s_mov_b32 s%d, 0" % S_K); e("s_mov_b32 s%d, 0" % S_XB); e("s_mov_b32 s%d, 0" % S_PAR2)
    xt_dma_g(S_SEG, S_XB)
    e("s_and_b32 s33, s%d, 3" % S_TEAM); e("s_lshl_b32 s33, s33, 6"); e("s_lshr_b32 s29, s%d, 2" % S_TEAM); e("s_lshl_b32 s29, s29, 2"); e("s_add_u32 s33, s33, s29"); e("s_add_u32 s33, s33, 16")
    wait_dbg_counter("s33", 32, "L_x2_init")
    lab("L_x2")
    A.lds = []; A.vm = []
    lkv = A.newlab("L_x2kv")
    e("s_cmp_lg_u32 s%d, 0" % S_WAVE); e("s_cbranch_scc1 %s_s" % lkv)
    e("s_mov_b64 exec, 1"); e("v_mov_b32 v6, 0"); e("s_lshl_b32 s28, s%d, 7" % S_TEAM); e("s_lshl_b32 s29, s%d, 2" % S_HEAD); e("s_add_u32 s28, s28, s29"); e("s_add_u32 s28, s28, %d" % FL_KV); e("s_mov_b32 s29, 0")
    lab(lkv)
    e("buffer_load_dword v7, v6, s[4:7], s28 offen sc0 sc1"); e("s_waitcnt vmcnt(0)"); e("v_readfirstlane_b32 s30, v7")
    e("s_add_u32 s29, s29, 1"); e("s_cmp_gt_u32 s29, 0x80000"); e("s_cbranch_scc1 %s_d" % lkv)
    e("s_cmp_gt_u32 s30, s%d" % S_K); e("s_cbranch_scc1 %s_d" % lkv)
    e("s_sleep 8"); e("s_branch %s" % lkv)
    lab(lkv + "_d")
    e("s_mov_b64 exec, s[26:27]")
    lab(lkv + "_s")
    e("s_waitcnt vmcnt(0)"); e("s_barrier")
    e("s_lshl_b32 s28, s%d, 18" % S_SEG); e("s_add_u32 s28, s28, s%d" % S_H13)
    e("s_add_u32 s29, s28, %d" % WS_KX); e("s_add_u32 s30, s29, 4096")
    for kt in range(2):
        for kk in range(4):
            A.vmem("buffer_load_dwordx4 %s, v%d, s[4:7], s%d offen offset:%d sc1" % (vr(KXF + (kt * 4 + kk) * 4, 4), V_L16, 29 + kt, kk * 1024), "kx")
    e("s_lshl_b32 s29, s%d, 12" % S_EH); e("s_add_u32 s29, s29, s28"); e("s_add_u32 s29, s29, %d" % WS_VX)
    for i in range(4):
        A.vmem("buffer_load_dwordx4 %s, v%d, s[4:7], s29 offen offset:%d sc1" % (vr(VXF + 4 * i, 4), V_L16, i * 1024), "vx")
    ln = A.newlab("L_x2n")
    e("s_add_u32 s32, s%d, 1" % S_K); e("s_cmp_ge_u32 s32, s%d" % S_NSEG); e("s_cbranch_scc1 %s" % ln)
    e("s_add_u32 s33, s%d, 7" % S_SEG); e("s_xor_b32 s36, s%d, 32768" % S_XB)
    xt_dma_g(33, 36)
    lab(ln)
    XF = KMF
    e("v_add_u32 v2, s%d, v5" % S_XB)
    def rdx(kk):
        for tt in range(2):
            A.ds("ds_read_b128 %s, v2 offset:%d" % (vr(XF + (kk % 2) * 8 + tt * 4, 4), (tt * 16 + kk) * 1024), ("x", kk))
    rdx(0); rdx(1)
    for kk in range(16):
        A.wait_lds(("x", kk))
        t, b = kk >> 1, kk & 1
        for u in range(2):
            for tt in range(2):
                xf = vr(XF + (kk % 2) * 8 + tt * 4, 4)
                cq = "0" if kk == 0 else vr(QF + (u * 2 + tt) * 4, 4)
                e("v_mfma_f32_16x16x32_bf16 %s, %s, %s, %s" % (vr(QF + (u * 2 + tt) * 4, 4), ar((u * 8 + t) * 8 + 4 * b, 4), xf, cq))
        if kk + 2 < 16: rdx(kk + 2)
    A.nop(8)
    for tt in range(2):
        for u in range(2):
            a0 = QF + (u * 2 + tt) * 4
            e("v_cvt_pk_bf16_f32 v%d, v%d, v%d" % (OO + tt * 4 + 2 * u, a0, a0 + 1)); e("v_cvt_pk_bf16_f32 v%d, v%d, v%d" % (OO + tt * 4 + 2 * u + 1, a0 + 2, a0 + 3))
    e("s_lshl_b32 s28, s%d, 10" % S_WAVE); e("s_add_u32 s28, s28, %d" % XL_QB); e("v_add_u32 v2, s28, v%d" % V_L16)
    for tt in range(2):
        A.ds("ds_write_b128 v2, %s offset:%d" % (vr(OO + tt * 4, 4), tt * 4096), "qw")
    A.wait_lds_all(); e("s_barrier")
    e("s_lshl_b32 s28, s%d, 12" % S_QT); e("s_add_u32 s28, s28, %d" % XL_QB); e("v_add_u32 v2, s28, v%d" % V_L16)
    for kk in range(4):
        A.ds("ds_read_b128 %s, v2 offset:%d" % (vr(QF + 4 * kk, 4), kk * 1024), ("q", kk))
    e("s_waitcnt vmcnt(12)")
    l12 = A.newlab("L_x2w")
    e("s_cmp_lt_u32 s32, s%d" % S_NSEG); e("s_cbranch_scc1 %s" % l12); e("s_waitcnt vmcnt(4)"); lab(l12)
    for kk in range(4):
        A.wait_lds(("q", kk))
        for kt in range(2):
            cs = "0" if kk == 0 else vr(S + 4 * kt, 4)
            e("v_mfma_f32_16x16x32_bf16 %s, %s, %s, %s" % (vr(S + 4 * kt, 4), vr(KXF + (kt * 4 + kk) * 4, 4), vr(QF + 4 * kk, 4), cs))
    lw = A.newlab("L_x2km")
    e("s_cmp_lg_u32 s%d, 0" % S_WAVE); e("s_cbranch_scc1 %s_s" % lw)
    e("s_mov_b64 exec, 1"); e("v_mov_b32 v%d, 0" % T0); e("s_lshl_b32 s28, s%d, 7" % S_HEAD); e("s_add_u32 s28, s28, %d" % FL_KM); e("s_mov_b32 s29, 0")
    lab(lw)
    e("buffer_load_dword v%d, v%d, s[4:7], s28 offen sc0 sc1" % (T1, T0)); e("s_waitcnt vmcnt(0)"); e("v_readfirstlane_b32 s30, v%d" % T1)
    e("s_add_u32 s29, s29, 1"); e("s_cmp_gt_u32 s29, 0x80000"); e("s_cbranch_scc1 %s_d" % lw)
    e("s_cmp_gt_u32 s30, s%d" % S_SEG); e("s_cbranch_scc1 %s_d" % lw)
    e("s_add_u32 s30, s30, 2"); e("s_cmp_gt_u32 s30, s%d" % S_SEG); e("s_cbranch_scc1 %s_n" % lw)
    e("s_add_u32 s30, s30, 2"); e("s_cmp_gt_u32 s30, s%d" % S_SEG); e("s_cbranch_scc1 %s_m" % lw)
    e("s_sleep %d" % OPT.get("slpf", 32)); e("s_branch %s" % lw)
    lab(lw + "_m")
    e("s_sleep %d" % OPT.get("slp", 8)); e("s_branch %s" % lw)
    lab(lw + "_n")
    e("s_sleep %d" % OPT.get("slpn", 2)); e("s_branch %s" % lw)
    lab(lw + "_d")
    e("s_mov_b64 exec, s[26:27]")
    lab(lw + "_s")
    e("s_waitcnt vmcnt(0)"); e("s_barrier")
    rtk(8, S_SEG, 63)
    e("s_lshl_b32 s28, s%d, 16" % S_SEG); e("s_lshl_b32 s29, s%d, 11" % S_HEAD); e("s_add_u32 s28, s28, s29")
    e("s_lshl_b32 s29, s%d, 9" % S_WAVE); e("s_add_u32 s29, s29, s28"); e("s_add_u32 s29, s29, %d" % WS_KM)
    e("v_lshrrev_b32 v%d, 2, v%d" % (T0, V_L16))
    for u in range(2):
        e("buffer_load_dword v%d, v%d, s[4:7], s29 offen offset:%d sc1" % (T2 + u, T0, u * 256))
    e("s_lshl_b32 s29, s%d, 10" % S_EH); e("s_add_u32 s29, s29, s28"); e("s_add_u32 s29, s29, %d" % WS_VM)
    for i in range(4):
        e("buffer_load_dword v%d, v%d, s[4:7], s29 offen offset:%d sc1" % (VMF + 2 * i, T0, i * 256))
        e("v_mov_b32 v%d, 0" % (VMF + 2 * i + 1))
    e("v_and_b32 v%d, 0xf0, v%d" % (T4, V_L16)); e("v_lshlrev_b32 v%d, 1, v%d" % (T4, T4)); e("v_lshrrev_b32 v%d, 8, v%d" % (T1, V_L16)); e("v_lshlrev_b32 v%d, 3, v%d" % (T1, T1))
    e("v_add_u32 v%d, v%d, v%d" % (T4, T4, T1)); e("s_lshl_b32 s29, s%d, 10" % S_WAVE); e("s_add_u32 s29, s29, %d" % XL_KMI); e("v_add_u32 v%d, s29, v%d" % (T4, T4))
    e("s_waitcnt vmcnt(0)")
    for u in range(2):
        e("ds_write_b32 v%d, v%d offset:%d" % (T4, T2 + u, u * 512))
    e("s_waitcnt lgkmcnt(0)"); e("s_barrier")
    rtk(9, S_SEG, 63)
    e("v_lshrrev_b32 v%d, 1, v%d" % (T0, V_L16))
    e("v_add_u32 v%d, %d, v%d" % (T0, XL_KMI, T0))
    for kk in range(4):
        for b in range(2):
            A.ds("ds_read_b64_tr_b16 %s, v%d offset:%d" % (vr(KMF + 4 * kk + 2 * b, 2), T0, kk * 1024 + b * 512), ("km", kk))
    for kk in range(4):
        A.wait_lds(("km", kk))
        e("v_mfma_f32_16x16x32_bf16 %s, %s, %s, %s" % (vr(S + 8, 4), vr(KMF + 4 * kk, 4), vr(QF + 4 * kk, 4), "0" if kk == 0 else vr(S + 8, 4)))
    e("v_mov_b32 v%d, 0xff800000" % T5)
    for kt in range(2):
        for r in range(4):
            e("v_cmp_gt_i32 vcc, %d, v%d" % (16 * kt + r, V_THR)); e("s_nop 1"); e("v_cndmask_b32 v%d, v%d, v%d, vcc" % (S + 4 * kt + r, S + 4 * kt + r, T5))
    A.nop(2)
    e("v_max3_f32 v%d, v%d, v%d, v%d" % (T0, S, S + 1, S + 2)); e("v_max3_f32 v%d, v%d, v%d, v%d" % (T1, S + 4, S + 5, S + 6))
    e("v_max3_f32 v%d, v%d, v%d, v%d" % (T0, T0, S + 3, S + 7)); e("v_max3_f32 v%d, v%d, v%d, v%d" % (T1, T1, S + 8, S + 9))
    e("v_max_f32 v%d, v%d, v%d" % (T0, T0, T1))
    e("v_mov_b32 v%d, v%d" % (T1, T0)); A.nop(2); e("v_permlane16_swap_b32 v%d, v%d" % (T0, T1)); e("v_max_f32 v%d, v%d, v%d" % (T0, T0, T1))
    e("v_mov_b32 v%d, v%d" % (T1, T0)); A.nop(2); e("v_permlane32_swap_b32 v%d, v%d" % (T0, T1)); e("v_max_f32 v%d, v%d, v%d" % (T0, T0, T1))
    e("v_mul_f32 v%d, s%d, v%d" % (T0, S_C, T0))
    for i in range(10): e("v_fma_f32 v%d, v%d, s%d, -v%d" % (S + i, S + i, S_C, T0))
    for i in range(10): e("v_exp_f32 v%d, v%d" % (S + i, S + i))
    e("s_nop 0")
    e("v_add_f32 v%d, v%d, v%d" % (T2, S, S + 1)); e("v_add_f32 v%d, v%d, v%d" % (T3, S + 2, S + 3))
    for i in range(4, 10, 2):
        e("v_add_f32 v%d, v%d, v%d" % (T2, T2, S + i)); e("v_add_f32 v%d, v%d, v%d" % (T3, T3, S + i + 1))
    e("v_add_f32 v%d, v%d, v%d" % (T2, T2, T3))
    for i in range(4): e("v_cvt_pk_bf16_f32 v%d, v%d, v%d" % (S + i, S + 2 * i, S + 2 * i + 1))
    e("v_cvt_pk_bf16_f32 v%d, v%d, v%d" % (S + 10, S + 8, S + 9)); e("v_mov_b32 v%d, 0" % (S + 11))
    e("v_mov_b32 v%d, v%d" % (T3, T2)); A.nop(2); e("v_permlane16_swap_b32 v%d, v%d" % (T2, T3)); e("v_add_f32 v%d, v%d, v%d" % (T2, T2, T3))
    e("v_mov_b32 v%d, v%d" % (T3, T2)); A.nop(2); e("v_permlane32_swap_b32 v%d, v%d" % (T2, T3)); e("v_add_f32 v%d, v%d, v%d" % (T2, T2, T3))
    e("v_rcp_f32 v%d, v%d" % (T2, T2))
    for i in range(4):
        e("v_mfma_f32_16x16x32_bf16 %s, %s, %s, 0" % (vr(OO + 4 * i, 4), vr(VXF + 4 * i, 4), vr(S, 4)))
    for i in range(4):
        e("v_mfma_f32_16x16x16_bf16 %s, %s, %s, %s" % (vr(OO + 4 * i, 4), vr(VMF + 2 * i, 2), vr(S + 10, 2), vr(OO + 4 * i, 4)))
    A.nop(8)
    for i in range(16): e("v_mul_f32 v%d, v%d, v%d" % (OO + i, OO + i, T2))
    for j in range(2):
        for tsub in range(2):
            a0 = OO + (2 * j + tsub) * 4
            e("v_cvt_pk_bf16_f32 v%d, v%d, v%d" % (QF + 4 * j + 2 * tsub, a0, a0 + 1)); e("v_cvt_pk_bf16_f32 v%d, v%d, v%d" % (QF + 4 * j + 2 * tsub + 1, a0 + 2, a0 + 3))
    e("s_lshl_b32 s28, s%d, 12" % S_QT); e("s_lshl_b32 s29, s%d, 11" % S_EH); e("s_add_u32 s28, s28, s29"); e("s_add_u32 s28, s28, %d" % XL_OB); e("v_add_u32 v2, s28, v%d" % V_L16)
    for j in range(2):
        A.ds("ds_write_b128 v2, %s offset:%d" % (vr(QF + 4 * j, 4), j * 1024), "ow")
    A.wait_lds_all(); e("s_barrier")
    rtk(10, S_SEG, 63)
    e("v_add_u32 v2, %d, v%d" % (XL_OB, V_L16))
    ACC, AF, PKR = 12, 44, 60
    e("s_add_u32 s33, s%d, s%d" % (S_XPB, S_PAR2))
    for qt in range(2):
        for kk in range(4):
            A.ds("ds_read_b128 %s, v2 offset:%d" % (vr(AF + 4 * kk, 4), qt * 4096 + kk * 1024), ("o", kk))
        for kk in range(4):
            A.wait_lds(("o", kk))
            t, b = kk >> 1, kk & 1
            for nt in range(8):
                e("v_mfma_f32_16x16x32_bf16 %s, %s, %s, %s" % (vr(ACC + 4 * nt, 4), vr(AF + 4 * kk, 4), vr(V_WO + (nt * 2 + t) * 8 + 4 * b, 4), "0" if kk == 0 else vr(ACC + 4 * nt, 4)))
        A.nop(8)
        for p in range(4):
            for tsub in range(2):
                a0 = ACC + 4 * (2 * p + tsub)
                e("v_cvt_pk_bf16_f32 v%d, v%d, v%d" % (PKR + 4 * p + 2 * tsub, a0, a0 + 1)); e("v_cvt_pk_bf16_f32 v%d, v%d, v%d" % (PKR + 4 * p + 2 * tsub + 1, a0 + 2, a0 + 3))
            e("s_lshl_b32 s28, s%d, 17" % S_WAVE); e("s_add_u32 s28, s28, s33"); e("s_add_u32 s28, s28, %d" % ((qt * 16 + p) * 4 * 8192))
            e("buffer_store_dwordx4 %s, v%d, s[4:7], s28 offen" % (vr(PKR + 4 * p, 4), V_XPS))
        A.nop(2)
    e("s_waitcnt vmcnt(0)"); e("s_barrier")
    rtk(11, S_SEG, 63)
    lf = A.newlab("L_x2f")
    e("s_cmp_lg_u32 s%d, 0" % S_WAVE); e("s_cbranch_scc1 %s" % lf)
    e("s_add_u32 s28, s%d, 1" % S_K); e("v_mov_b32 v%d, s28" % T0); e("v_mov_b32 v%d, 0" % T1)
    e("s_lshl_b32 s28, s%d, 7" % S_TEAM); e("s_lshl_b32 s29, s%d, 2" % S_HEAD); e("s_add_u32 s28, s28, s29"); e("s_add_u32 s28, s28, %d" % FL_XP)
    e("s_mov_b64 exec, 1"); e("buffer_store_dword v%d, v%d, s[4:7], s28 offen" % (T0, T1)); e("s_mov_b64 exec, s[26:27]")
    lab(lf)
    lw = A.newlab("L_x2r")
    e("v_lshrrev_b32 v%d, 2, v%d" % (T0, V_L16)); e("v_and_b32 v%d, 127, v%d" % (T0, T0))
    e("s_lshl_b32 s28, s%d, 7" % S_TEAM); e("s_add_u32 s28, s28, %d" % FL_XP); e("s_mov_b32 s29, 0")
    e("v_add_u32 v%d, %d, v%d" % (T3, XL_SEL, V_L16)); e("ds_read_b128 v[44:47], v%d" % T3)
    lab(lw)
    e("buffer_load_dword v%d, v%d, s[4:7], s28 offen sc1" % (T1, T0)); e("s_waitcnt vmcnt(0)")
    e("v_cmp_ge_u32 vcc, s%d, v%d" % (S_K, T1))
    e("s_add_u32 s29, s29, 1"); e("s_cmp_gt_u32 s29, 0x80000"); e("s_cbranch_scc1 %s_d" % lw)
    e("s_cbranch_vccnz %s" % lw)
    lab(lw + "_d")
    rtk(12, S_SEG, 63)
    e("s_lshl_b32 s28, s%d, 2" % S_HEAD); e("s_add_u32 s28, s28, s%d" % S_WAVE); e("s_lshl_b32 s28, s28, 13"); e("s_add_u32 s28, s28, s33"); e("s_add_u32 s29, s28, 4096")
    for x in range(8):
        e("buffer_load_dwordx4 %s, v%d, s[4:7], s%d offen offset:%d sc1" % (vr(12 + 4 * x, 4), V_L16, 28 if x < 4 else 29, (x & 3) * 1024))
    e("s_waitcnt lgkmcnt(0)")
    for x in range(8):
        e("s_waitcnt vmcnt(%d)" % (7 - x))
        e("v_mfma_f32_16x16x32_bf16 v[48:51], %s, v[44:47], %s" % (vr(12 + 4 * x, 4), "0" if x == 0 else "v[48:51]"))
    e("v_lshrrev_b32 v%d, 8, v%d" % (T0, V_L16)); e("v_lshlrev_b32 v%d, 2, v%d" % (T0, T0))
    e("v_bfe_u32 v%d, v%d, 4, 2" % (T1, V_L16)); e("v_add_u32 v%d, v%d, v%d" % (T0, T0, T1)); e("v_lshlrev_b32 v%d, 11, v%d" % (T0, T0))
    e("v_bfe_u32 v%d, v%d, 6, 1" % (T1, V_L16)); e("v_lshlrev_b32 v%d, 3, v%d" % (T1, T1)); e("v_add_u32 v%d, v%d, v%d" % (T0, T0, T1))
    e("s_lshr_b32 s28, s%d, 4" % S_HEAD); e("s_lshl_b32 s28, s28, 4"); e("s_lshl_b32 s29, s%d, 5" % S_SEG); e("s_add_u32 s28, s28, s29"); e("s_lshl_b32 s28, s28, 11")
    e("s_bfe_u32 s29, s%d, 0x20002" % S_HEAD); e("s_lshl_b32 s29, s29, 8"); e("s_add_u32 s28, s28, s29")
    e("s_bfe_u32 s29, s%d, 0x10001" % S_HEAD); e("s_lshl_b32 s29, s29, 7"); e("s_add_u32 s28, s28, s29")
    e("s_and_b32 s29, s%d, 1" % S_HEAD); e("s_lshl_b32 s29, s29, 4"); e("s_add_u32 s28, s28, s29")
    e("s_lshl_b32 s29, s%d, 5" % S_WAVE); e("s_add_u32 s28, s28, s29"); e("s_add_u32 s28, s28, 1024")
    A.nop(4)
    e("v_cvt_pk_bf16_f32 v48, v48, v49"); e("v_cvt_pk_bf16_f32 v49, v50, v51")
    e("v_and_b32 v%d, 128, v%d" % (T1, V_L16)); e("v_cmp_eq_u32 vcc, 0, v%d" % T1)
    e("s_nop 1")
    e("s_mov_b64 exec, vcc")
    e("buffer_store_dwordx2 v[48:49], v%d, s[16:19], s28 offen" % T0)
    e("s_mov_b64 exec, s[26:27]")
    e("s_add_u32 s%d, s%d, 7" % (S_SEG, S_SEG)); e("s_xor_b32 s%d, s%d, 32768" % (S_XB, S_XB)); e("s_xor_b32 s%d, s%d, 0x100000" % (S_PAR2, S_PAR2))
    e("s_add_u32 s%d, s%d, 1" % (S_K, S_K))
    e("s_cmp_lt_u32 s%d, s%d" % (S_K, S_NSEG)); e("s_cbranch_scc1 L_x2")
    e("s_waitcnt vmcnt(0)")
    rt(7)
    e("s_branch L_end")

def xteam():
    L = VLANE
    lab("L_xteam")
    e("v_lshlrev_b32 v%d, 4, v%d" % (V_L16, L))
    e("s_load_dwordx2 s[30:31], s[0:1], %d" % KA["x"])
    e("v_lshrrev_b32 v1, 2, v%d" % L); e("v_lshrrev_b32 v2, 4, v%d" % L); e("v_xor_b32 v2, v2, v%d" % L); e("v_and_b32 v2, 3, v2"); e("v_lshlrev_b32 v2, 4, v2")
    e("v_lshlrev_b32 v1, 10, v1"); e("v_add_u32 v1, v1, v2")
    e("v_and_b32 v5, 15, v%d" % L); e("v_lshrrev_b32 v2, 2, v5"); e("v_lshrrev_b32 v34, 4, v%d" % L); e("v_xor_b32 v2, v2, v34"); e("v_and_b32 v2, 3, v2")
    e("v_lshlrev_b32 v5, 2, v5"); e("v_add_u32 v5, v5, v2"); e("v_lshlrev_b32 v5, 4, v5")
    e("s_waitcnt lgkmcnt(0)")
    srd(S_X, 30, 0x200000)
    if OPT["stage"] >= 3:
        lx = A.newlab("L_xi")
        e("s_cmp_lg_u32 s%d, 1" % S_WAVE); e("s_cbranch_scc1 %s" % lx)
        e("s_mov_b64 exec, 1")
        e("v_mov_b32 v32, 0"); e("s_lshl_b32 s28, s%d, 7" % S_TEAM); e("s_lshl_b32 s29, s%d, 2" % S_HEAD); e("s_add_u32 s28, s28, s29"); e("s_add_u32 s28, s28, %d" % FL_XP)
        e("buffer_store_dword v32, v32, s[4:7], s28 offen"); e("s_waitcnt vmcnt(0)")
        e("s_and_b32 s28, s%d, 3" % S_TEAM); e("s_lshl_b32 s28, s28, 6"); e("s_lshr_b32 s29, s%d, 2" % S_TEAM); e("s_lshl_b32 s29, s29, 2"); e("s_add_u32 s28, s28, s29"); e("s_add_u32 s28, s28, 16")
        e("v_mov_b32 v32, s28"); e("v_mov_b32 v33, 1")
        e("global_atomic_add v32, v33, s[24:25] sc1")
        e("s_mov_b64 exec, s[26:27]")
        lab(lx)
    if OPT.get("warm", 1):
        e("s_sub_u32 s28, s%d, 1" % S_TEAM); e("s_lshl_b32 s28, s28, 5"); e("s_add_u32 s28, s28, s%d" % S_HEAD); e("s_lshl_b32 s28, s28, 2"); e("s_add_u32 s28, s28, s%d" % S_WAVE)
        e("s_mul_i32 s28, s28, 5120")
        for which, base in ((0, 100), (3, 104)):
            p = S_PW + 2 * which
            e("s_mov_b32 s8, s%d" % p); e("s_mov_b32 s9, s%d" % (p + 1)); e("s_mov_b32 s10, 0x400000"); e("s_mov_b32 s11, 0x20000")
            for i in range(5):
                e("s_add_u32 s29, s28, %d" % (i * 1024))
                e("buffer_load_dwordx4 %s, v%d, s[8:11], s29 offen" % (vr(base, 4), V_L16))
    e("s_mov_b32 s%d, s%d" % (S_RANK, S_HEAD))
    e("s_sub_u32 s28, s%d, 1" % S_TEAM); e("s_lshl_b32 s28, s28, 5"); e("s_add_u32 s28, s28, s%d" % S_HEAD)
    e("s_mul_i32 s29, s28, 9363"); e("s_lshr_b32 s%d, s29, 16" % S_HEAD); e("s_mul_i32 s29, s%d, 7" % S_HEAD); e("s_sub_u32 s%d, s28, s29" % S_SUB)
    e("s_lshl_b32 s%d, s%d, 13" % (S_H13, S_HEAD)); e("s_lshl_b32 s%d, s%d, 8" % (S_H8, S_HEAD))
    e("s_cmp_eq_u32 s%d, 0" % S_SUB); e("s_cselect_b32 s%d, 10, 9" % S_NSEG)
    load_setup(32768)
    uk = units_qkv(1, "a", 128); uv = units_qkv(2, "v", 128)
    for u in uk + uv: u["perm"] = False
    rt(2)
    load_units(uk + uv, 8)
    e("s_barrier")
    rt(3)
    def xt_dma(seg_sgpr, buf_sgpr):
        e("s_lshr_b32 s28, s%d, 1" % S_WAVE); e("s_lshl_b32 s29, s%d, 15" % seg_sgpr); e("s_lshl_b32 s30, s28, 14"); e("s_add_u32 s29, s29, s30")
        e("s_and_b32 s30, s%d, 1" % S_WAVE); e("s_lshl_b32 s31, s30, 9"); e("s_add_u32 s29, s29, s31")
        e("s_lshl_b32 s31, s%d, 13" % S_WAVE); e("s_add_u32 s31, s31, s%d" % buf_sgpr)
        for i in range(8):
            e("s_add_u32 m0, s31, %d" % (i * 1024)); e("s_add_u32 s30, s29, %d" % (i * 64))
            e("buffer_load_dwordx4 v1, s[12:15], s30 offen lds")
    e("s_mov_b32 s%d, s%d" % (S_SEG, S_SUB)); e("s_mov_b32 s%d, 0" % S_K); e("s_mov_b32 s%d, 0" % S_XB)
    xt_dma(S_SEG, S_XB)
    if OPT["stage"] >= 2:
        wait_dbg_counter(24, 32, "L_x1_init")
    AK, AV, XF, PK = 40, 56, 72, 88
    lab("L_x1")
    e("s_waitcnt vmcnt(4)")
    l0 = A.newlab("L_x1a")
    e("s_cmp_lg_u32 s%d, 0" % S_K); e("s_cbranch_scc1 %s" % l0); e("s_waitcnt vmcnt(0)"); lab(l0)
    e("s_barrier")
    lf = A.newlab("L_x1f")
    e("s_cmp_lt_u32 s%d, 2" % S_K); e("s_cbranch_scc1 %s" % lf)
    e("s_cmp_lg_u32 s%d, 0" % S_WAVE); e("s_cbranch_scc1 %s" % lf)
    e("s_sub_u32 s28, s%d, 1" % S_K); e("v_mov_b32 v32, s28"); e("v_mov_b32 v33, 0")
    e("s_lshl_b32 s28, s%d, 7" % S_SUB); e("s_lshl_b32 s29, s%d, 2" % S_HEAD); e("s_add_u32 s28, s28, s29"); e("s_add_u32 s28, s28, %d" % (FL_KV + 128))
    e("s_mov_b64 exec, 1"); e("buffer_store_dword v32, v33, s[4:7], s28 offen sc0 sc1"); e("s_mov_b64 exec, s[26:27]")
    lab(lf)
    ln = A.newlab("L_x1n")
    e("s_add_u32 s32, s%d, 1" % S_K); e("s_cmp_ge_u32 s32, s%d" % S_NSEG); e("s_cbranch_scc1 %s" % ln)
    e("s_add_u32 s33, s%d, 7" % S_SEG); e("s_xor_b32 s36, s%d, 32768" % S_XB)
    xt_dma(33, 36)
    lab(ln)
    e("v_add_u32 v2, s%d, v5" % S_XB)
    A.lds = []
    def rdx(kk):
        for tt in range(2):
            A.ds("ds_read_b128 %s, v2 offset:%d" % (vr(XF + (kk % 2) * 8 + tt * 4, 4), (tt * 16 + kk) * 1024), ("x", kk))
    rdx(0); rdx(1)
    for kk in range(16):
        A.wait_lds(("x", kk))
        t, b = kk >> 1, kk & 1
        for u in range(2):
            for tt in range(2):
                xf = vr(XF + (kk % 2) * 8 + tt * 4, 4)
                ck = "0" if kk == 0 else vr(AK + (u * 2 + tt) * 4, 4)
                cv = "0" if kk == 0 else vr(AV + (u * 2 + tt) * 4, 4)
                e("v_mfma_f32_16x16x32_bf16 %s, %s, %s, %s" % (vr(AK + (u * 2 + tt) * 4, 4), ar(128 + (u * 8 + t) * 8 + 4 * b, 4), xf, ck))
                e("v_mfma_f32_16x16x32_bf16 %s, %s, %s, %s" % (vr(AV + (u * 2 + tt) * 4, 4), xf, vr(128 + (u * 8 + t) * 8 + 4 * b, 4), cv))
        if kk + 2 < 16: rdx(kk + 2)
    A.nop(8)
    for tt in range(2):
        for u in range(2):
            a0 = AK + (u * 2 + tt) * 4
            e("v_cvt_pk_bf16_f32 v%d, v%d, v%d" % (PK + tt * 4 + 2 * u, a0, a0 + 1)); e("v_cvt_pk_bf16_f32 v%d, v%d, v%d" % (PK + tt * 4 + 2 * u + 1, a0 + 2, a0 + 3))
    for u in range(2):
        for tt in range(2):
            a0 = AV + (u * 2 + tt) * 4
            e("v_cvt_pk_bf16_f32 v%d, v%d, v%d" % (PK + 8 + u * 4 + 2 * tt, a0, a0 + 1)); e("v_cvt_pk_bf16_f32 v%d, v%d, v%d" % (PK + 8 + u * 4 + 2 * tt + 1, a0 + 2, a0 + 3))
    e("s_lshl_b32 s28, s%d, 18" % S_SEG); e("s_add_u32 s28, s28, s%d" % S_H13)
    e("s_lshl_b32 s29, s%d, 10" % S_WAVE); e("s_add_u32 s29, s29, s28"); e("s_add_u32 s30, s29, %d" % (WS_KX + 4096)); e("s_add_u32 s29, s29, %d" % WS_KX)
    e("buffer_store_dwordx4 %s, v%d, s[4:7], s29 offen sc0 sc1" % (vr(PK, 4), V_L16))
    e("buffer_store_dwordx4 %s, v%d, s[4:7], s30 offen sc0 sc1" % (vr(PK + 4, 4), V_L16))
    e("s_lshl_b32 s29, s%d, 11" % S_WAVE); e("s_add_u32 s29, s29, s28"); e("s_add_u32 s29, s29, %d" % WS_VX)
    e("buffer_store_dwordx4 %s, v%d, s[4:7], s29 offen sc0 sc1" % (vr(PK + 8, 4), V_L16))
    e("buffer_store_dwordx4 %s, v%d, s[4:7], s29 offen offset:1024 sc0 sc1" % (vr(PK + 12, 4), V_L16))
    lf0 = A.newlab("L_x1f0")
    e("s_cmp_lg_u32 s%d, 0" % S_K); e("s_cbranch_scc1 %s" % lf0)
    e("s_waitcnt vmcnt(0)"); e("s_barrier")
    e("s_cmp_lg_u32 s%d, 0" % S_WAVE); e("s_cbranch_scc1 %s" % lf0)
    e("v_mov_b32 v32, 1"); e("v_mov_b32 v33, 0")
    e("s_lshl_b32 s28, s%d, 7" % S_SUB); e("s_lshl_b32 s29, s%d, 2" % S_HEAD); e("s_add_u32 s28, s28, s29"); e("s_add_u32 s28, s28, %d" % (FL_KV + 128))
    e("s_mov_b64 exec, 1"); e("buffer_store_dword v32, v33, s[4:7], s28 offen sc0 sc1"); e("s_mov_b64 exec, s[26:27]")
    lab(lf0)
    e("s_add_u32 s%d, s%d, 7" % (S_SEG, S_SEG)); e("s_xor_b32 s%d, s%d, 32768" % (S_XB, S_XB)); e("s_add_u32 s%d, s%d, 1" % (S_K, S_K))
    e("s_cmp_lt_u32 s%d, s%d" % (S_K, S_NSEG)); e("s_cbranch_scc1 L_x1")
    e("s_waitcnt vmcnt(0)"); e("s_barrier")
    rt(4)
    lf = A.newlab("L_x1g")
    e("s_cmp_lg_u32 s%d, 0" % S_WAVE); e("s_cbranch_scc1 %s" % lf)
    e("v_mov_b32 v32, s%d" % S_NSEG); e("v_mov_b32 v33, 0")
    e("s_lshl_b32 s28, s%d, 7" % S_SUB); e("s_lshl_b32 s29, s%d, 2" % S_HEAD); e("s_add_u32 s28, s28, s29"); e("s_add_u32 s28, s28, %d" % (FL_KV + 128))
    e("s_mov_b64 exec, 1"); e("buffer_store_dword v32, v33, s[4:7], s28 offen sc0 sc1"); e("s_mov_b64 exec, s[26:27]")
    lab(lf)
    e("s_waitcnt vmcnt(0)")
    if OPT["stage"] < 3:
        e("s_branch L_end"); return
    xphase2()

hdr = []
if OPT["final"]:
    hdr.append("; Fused kernel: branch A (short conv + long causal conv as Toeplitz MFMA) and branch B (memory-recurrent attention).")
    hdr.append("; One persistent workgroup per CU. Workgroups form teams by the XCD they actually run on (HW_REG_XCC_ID):")
hdr.append("; @launch grid=(256,1,1) block=(256,1,1) lds=%d" % LDS_TOTAL)
hdr.append('.amdgcn_target "amdgcn-amd-amdhsa--gfx950"')
hdr.append(".text\n.globl %s\n.p2align 8\n.type %s,@function\n%s:" % (KNAME, KNAME, KNAME))
prologue()
e("s_cmp_eq_u32 s%d, 0" % S_TEAM); e("s_cbranch_scc1 L_chain")
if OPT["stage"] >= 2: e("s_branch L_xteam")
else: e("s_branch L_end")
chain()
if OPT["stage"] >= 2: xteam()
lab("L_end")
e("s_endpgm")
tail = '''.section .rodata,"a"
.p2align 6
.amdhsa_kernel %s
  .amdhsa_next_free_vgpr 512
  .amdhsa_next_free_sgpr 102
  .amdhsa_accum_offset 256
  .amdhsa_group_segment_fixed_size 0
  .amdhsa_kernarg_size 128
  .amdhsa_user_sgpr_count 2
  .amdhsa_user_sgpr_kernarg_segment_ptr 1
  .amdhsa_system_sgpr_workgroup_id_x 1
.end_amdhsa_kernel
''' % KNAME
open(OUTP, "w").write("\n".join(hdr) + "\n" + A.text() + tail)
print("wrote", OUTP, len(A.L), "lines")
```

```python
import sys, os, struct, math
sys.path.insert(0, os.path.dirname(os.path.abspath(__file__)))
from asmlib import *

KNAME = "concat_heads__ssm_conv_h3__memory_aug_recurrent_mem_tr__prompt_kernel"
OPT = dict(final=0, nowait=0, stage=1, hist=0, stamps=0, nsteps=64, dly_red=0, dly_mem=0, slp=16, slpf=127, slpn=4, spec=0, pk=1, omask=1)
for a in sys.argv[1:]:
    if "=" in a:
        k, v = a.split("="); OPT[k] = int(v) if v.lstrip("-").isdigit() else v
OUTP = OPT.get("out", "chain.s")

KA = dict(q=0, k=8, v=16, shift=24, ssmk=32, ssmd=40, x=48, mem0=56, wq=64, wk=72, wv=80, wo=88, seg=96, out=104, dbg=112, ws=120)
WS_KX = 0x0000000
WS_VX = 0x1000000
WS_KM = 0x2000000
WS_VM = 0x3000000
WS_PB = 0x2C00000
WS_MB = 0x2CC0000
WS_FL = 0x2CD0000
WS_HIST = 0x2D00000
WS_STAMP = 0x2E00000
WS_XP = 0x4000000
FL_KV, FL_KM, FL_XP = WS_FL + 0x4000, WS_FL + 0x2000, WS_FL + 2048
WVSTRIDE = 28672
L_KX, L_VX, L_MEM, L_X, L_O, L_SEL, L_DUM = 114688, 131072, 147456, 155648, 159744, 161792, 162816
LDS_TOTAL = 163840
S_WS = 4
S_W = 8
S_XCC, S_WAVE, S_HEAD, S_TEAM = 20, 21, 22, 23
S_DBG = 24
S_ALL = 26
S_STEP, S_MCUR, S_MNXT, S_PCUR, S_RED, S_MQ, S_KXO, S_VXO = 40, 41, 42, 43, 44, 45, 46, 47
S_DMA = 39
S_LO8 = 48
S_LO32 = 50
S_C, S_SPIN, S_FIRST, S_PAR = 52, 53, 54, 55
S_PW = 56
S_ST = 64
S_MPREV, S_H13, S_H8, S_PPREV = 96, 97, 98, 99
S_RDY = 100
S_TAG = 99
V_L16, V_XWR, V_OWR, V_PS0, V_IDX, V_WVA = 0, 1, 2, 3, 4, 5
VT = 6
V_KX = 12
V_LD = 12
V_S = 28
V_MEM = 40
V_QK = 72
V_VA = 88
V_WVR = 96
V_WV0 = 112
V_WO = 128
VLANE = 30
VS = 32

A = Asm()
PSTF = str(OPT.get('pst', '')).replace('_', ' ')
PUBF = str(OPT.get('pub', '')).replace('_', ' ')
e, c, lab = A.e, A.c, A.lab
def v(i): return "v%d" % i

def srd(base_s, ptr_s, size):
    e("s_mov_b32 s%d, s%d" % (base_s, ptr_s)); e("s_mov_b32 s%d, s%d" % (base_s + 1, ptr_s + 1))
    e("s_mov_b32 s%d, 0x%x" % (base_s + 2, size)); e("s_mov_b32 s%d, 0x20000" % (base_s + 3))

TS = [int(x) for x in str(OPT.get("ts", "")).split(",") if x != ""]
def ts(i):
    if i in TS:
        k = TS.index(i)
        e("%s s[%d:%d]" % ("s_memrealtime" if OPT.get("rts", 0) else "s_memtime", 64 + 2 * k, 65 + 2 * k))
def stamp(i, lvl=1):
    ts(i)
    if OPT["stamps"] < lvl: return
    if OPT["stamps"] == 2 and lvl == 1: pass
    e("s_memtime s[82:83]"); e("s_waitcnt lgkmcnt(0)"); A.lds = []
    e("s_sub_u32 s81, s82, s80"); e("s_add_u32 s%d, s%d, s81" % (S_ST + i, S_ST + i)); e("s_mov_b32 s80, s82")

def bar_off(t): return (t & 3) * 64 + 16 + (t >> 2) * 4
WS_TRACE = 0x2F00000
def rtk(i, kreg, kval):
    if not OPT.get("trace", 0): return
    l = A.newlab("L_rtk")
    e("s_cmp_lg_u32 s%d, %d" % (kreg, kval)); e("s_cbranch_scc1 %s" % l)
    rt(i)
    lab(l)
def rt(i):
    if not OPT.get("trace", 0): return
    l = A.newlab("L_rt")
    e("s_cmp_lg_u32 s%d, 0" % S_WAVE); e("s_cbranch_scc1 %s" % l)
    e("s_memrealtime s[90:91]"); e("s_waitcnt lgkmcnt(0)")
    e("s_add_u32 s28, s93, %d" % (WS_TRACE + 4 * i))
    e("s_mov_b64 exec, 1"); e("v_mov_b32 v10, s90"); e("v_mov_b32 v11, 0"); e("buffer_store_dword v10, v11, s[4:7], s28 offen"); e("s_mov_b64 exec, s[26:27]")
    lab(l)
def prologue():
    e("s_cmp_ge_u32 s2, 256"); e("s_cbranch_scc1 L_end")
    if OPT.get("trace", 0): e("s_memrealtime s[94:95]")
    e("s_load_dwordx2 s[24:25], s[0:1], %d" % KA["dbg"])
    e("s_load_dwordx2 s[28:29], s[0:1], %d" % KA["ws"])
    e("s_load_dwordx4 s[56:59], s[0:1], %d" % KA["wq"])
    e("s_load_dwordx4 s[60:63], s[0:1], %d" % KA["wv"])
    e("s_getreg_b32 s%d, hwreg(HW_REG_XCC_ID)" % S_XCC)
    e("s_and_b32 s%d, s%d, 15" % (S_XCC, S_XCC))
    e("v_lshrrev_b32 v1, 6, v0"); e("s_nop 0"); e("v_readfirstlane_b32 s%d, v1" % S_WAVE)
    e("v_and_b32 v%d, 63, v0" % VLANE)
    e("s_mov_b64 s[26:27], exec")
    e("s_waitcnt lgkmcnt(0)")
    srd(S_WS, 28, 0x10000000)
    e("s_cmp_lg_u32 s%d, 0" % S_WAVE); e("s_cbranch_scc1 L_roles_wait")
    e("s_mov_b64 exec, 1")
    e("s_and_b32 s28, s%d, 3" % S_XCC); e("s_lshl_b32 s28, s28, 6"); e("s_lshr_b32 s29, s%d, 2" % S_XCC); e("s_lshl_b32 s29, s29, 2"); e("s_add_u32 s28, s28, s29")
    e("v_mov_b32 v3, s28"); e("v_mov_b32 v4, 1")
    e("global_atomic_add v5, v3, v4, s[24:25] sc0 sc1"); e("s_waitcnt vmcnt(0)")
    e("v_mov_b32 v3, %d" % L_DUM)
    e("ds_write_b32 v3, v5"); e("s_waitcnt lgkmcnt(0)")
    e("s_mov_b64 exec, s[26:27]")
    lab("L_roles_wait")
    e("s_barrier")
    e("v_mov_b32 v3, %d" % L_DUM); e("ds_read_b32 v4, v3"); e("s_waitcnt lgkmcnt(0)")
    e("v_readfirstlane_b32 s%d, v4" % S_HEAD); e("s_mov_b32 s%d, s%d" % (S_TEAM, S_XCC))
    e("s_barrier")
    e("s_cmp_ge_u32 s%d, 32" % S_HEAD); e("s_cbranch_scc1 L_end")
    e("s_cmp_ge_u32 s%d, 8" % S_TEAM); e("s_cbranch_scc1 L_end")
    e("s_lshl_b32 s%d, s%d, 13" % (S_H13, S_HEAD)); e("s_lshl_b32 s%d, s%d, 8" % (S_H8, S_HEAD))
    if OPT.get("trace", 0):
        l = A.newlab("L_rt")
        e("s_lshl_b32 s93, s%d, 5" % S_TEAM); e("s_add_u32 s93, s93, s%d" % S_HEAD); e("s_lshl_b32 s93, s93, 6")
        e("s_cmp_lg_u32 s%d, 0" % S_WAVE); e("s_cbranch_scc1 %s" % l)
        e("s_add_u32 s28, s93, %d" % WS_TRACE)
        e("s_mov_b64 exec, 1"); e("v_mov_b32 v10, s94"); e("v_mov_b32 v11, 0"); e("buffer_store_dword v10, v11, s[4:7], s28 offen"); e("s_mov_b64 exec, s[26:27]")
        lab(l)
    rt(1)

LW_VQ, LW_VO, LW_A0, LW_A1, LW_AO = 40, 41, 43, 44, 45
LW_WB = 53
LW_TMP = 72
def load_setup(wave_stride):
    L = VLANE; a, b_, c_, d_, f_ = VS, VS + 1, VS + 2, VS + 3, VS + 4
    e("s_mul_i32 s34, s%d, %d" % (S_WAVE, wave_stride))
    e("s_lshl_b32 s36, s%d, 20" % S_WAVE)
    e("v_lshrrev_b32 v%d, 2, v%d" % (a, L)); e("v_lshlrev_b32 v%d, 13, v%d" % (b_, a))
    e("v_lshrrev_b32 v%d, 5, v%d" % (c_, L)); e("v_lshlrev_b32 v%d, 1, v%d" % (c_, c_))
    e("v_and_b32 v%d, 3, v%d" % (d_, L)); e("v_xor_b32 v%d, v%d, v%d" % (d_, d_, c_)); e("v_lshlrev_b32 v%d, 4, v%d" % (d_, d_))
    e("v_add_u32 v%d, v%d, v%d" % (b_, b_, d_))
    e("s_lshl_b32 s29, s%d, 6" % S_WAVE); e("s_add_u32 s28, s%d, s29" % S_H8)
    e("v_add_u32 v%d, s28, v%d" % (LW_VQ, b_))
    e("v_lshrrev_b32 v%d, 4, v%d" % (a, L)); e("v_lshlrev_b32 v%d, 10, v%d" % (b_, a))
    e("s_lshl_b32 s28, s%d, 8" % S_WAVE); e("v_add_u32 v%d, s28, v%d" % (b_, b_))
    e("v_and_b32 v%d, 1, v%d" % (c_, a)); e("v_lshrrev_b32 v%d, 1, v%d" % (f_, a)); e("v_lshlrev_b32 v%d, 3, v%d" % (f_, f_)); e("v_add_u32 v%d, v%d, v%d" % (c_, c_, f_))
    e("v_and_b32 v%d, 15, v%d" % (d_, L)); e("v_xor_b32 v%d, v%d, v%d" % (d_, d_, c_)); e("v_lshlrev_b32 v%d, 4, v%d" % (d_, d_))
    e("v_add_u32 v%d, v%d, v%d" % (LW_VO, b_, d_))
    e("v_lshrrev_b32 v%d, 5, v%d" % (a, L)); e("v_lshlrev_b32 v%d, 10, v%d" % (a, a))
    e("v_bfe_u32 v%d, v%d, 4, 1" % (b_, L)); e("v_lshlrev_b32 v%d, 9, v%d" % (c_, b_)); e("v_add_u32 v%d, v%d, v%d" % (a, a, c_))
    e("v_bfe_u32 v%d, v%d, 2, 2" % (c_, L)); e("v_lshlrev_b32 v%d, 6, v%d" % (c_, c_)); e("v_add_u32 v%d, v%d, v%d" % (a, a, c_))
    e("v_and_b32 v%d, 3, v%d" % (c_, L)); e("v_lshlrev_b32 v%d, 3, v%d" % (c_, c_)); e("v_add_u32 v%d, v%d, v%d" % (a, a, c_))
    e("v_add_u32 v%d, s34, v%d" % (a, a))
    e("v_lshlrev_b32 v%d, 5, v%d" % (c_, b_)); e("v_add_u32 v%d, v%d, v%d" % (LW_A0, a, c_))
    e("v_xor_b32 v%d, 32, v%d" % (c_, c_)); e("v_add_u32 v%d, v%d, v%d" % (LW_A1, a, c_))
    e("v_lshrrev_b32 v%d, 4, v%d" % (a, L)); e("v_lshlrev_b32 v%d, 10, v%d" % (a, a))
    e("v_bfe_u32 v%d, v%d, 2, 2" % (c_, L)); e("v_lshlrev_b32 v%d, 8, v%d" % (d_, c_)); e("v_add_u32 v%d, v%d, v%d" % (a, a, d_))
    e("v_and_b32 v%d, 3, v%d" % (d_, L)); e("v_lshlrev_b32 v%d, 5, v%d" % (d_, d_)); e("v_add_u32 v%d, v%d, v%d" % (a, a, d_))
    e("v_add_u32 v%d, s34, v%d" % (a, a))
    e("v_bfe_u32 v%d, v%d, 3, 1" % (b_, L)); e("v_lshlrev_b32 v%d, 7, v%d" % (b_, b_))
    e("v_bfe_u32 v%d, v%d, 2, 1" % (c_, L)); e("v_lshlrev_b32 v%d, 4, v%d" % (c_, c_))
    for G in range(2):
        for Th in range(2):
            e("v_xor_b32 v%d, %d, v%d" % (d_, G * 128, b_)); e("v_xor_b32 v%d, %d, v%d" % (f_, Th * 16, c_))
            e("v_add_u32 v%d, v%d, v%d" % (d_, d_, f_)); e("v_add_u32 v%d, v%d, v%d" % (LW_AO + 2 * G + Th, a, d_))
    e("v_lshlrev_b32 v%d, 4, v%d" % (a, L)); e("v_add_u32 v%d, s34, v%d" % (LW_WB, a))

def reg(kind, n, cnt):
    return ar(n, cnt) if kind == "a" else vr(n, cnt)

def load_units(units, NS, hooks={}):
    cur_srd = [None]
    def set_srd(which):
        if cur_srd[0] == which: return
        cur_srd[0] = which
        p = S_PW + 2 * which
        e("s_mov_b32 s8, s%d" % p); e("s_mov_b32 s9, s%d" % (p + 1)); e("s_mov_b32 s10, 0x400000"); e("s_mov_b32 s11, 0x20000")
    def issue(n):
        u = units[n]; slot = n % NS
        set_srd(u["m"])
        for i in range(4):
            e("s_add_u32 m0, s34, %d" % (slot * 4096 + i * 1024))
            if u["kind"] == "qkv":
                if u.get("perm", True):
                    e("s_xor_b32 s28, s36, %d" % (u["t"] << 19)); e("s_add_u32 s28, s28, %d" % (i * 131072))
                else:
                    e("s_mov_b32 s28, %d" % ((64 * u["t"] + 16 * i) * 8192))
                A.vmem("buffer_load_dwordx4 v%d, s[8:11], s28 offen lds" % LW_VQ, ("w", n))
            else:
                qd = 2 * u["b"] + u["hb"]
                e("s_add_u32 s28, s35, %d" % ((64 * u["t"] + 16 * qd + 4 * i) * 1024))
                A.vmem("buffer_load_dwordx4 v%d, s[8:11], s28 offen lds" % LW_VO, ("w", n))
    e("s_lshl_b32 s35, s%d, 17" % S_HEAD)
    for n in range(min(NS, len(units))): issue(n)
    if "start" in hooks: hooks["start"]()
    for n, u in enumerate(units):
        slot = n % NS
        A.wait_vm(("w", n))
        if u["kind"] == "qkv":
            for uu in range(2):
                for b in range(2):
                    for hb in range(2):
                        if u["dest"] == "lds": d = vr(LW_TMP + uu * 8 + 4 * b + 2 * hb, 2)
                        elif u["dest"] == "flat": d = vr(u["base"] + uu * 8 + 4 * b + 2 * hb, 2)
                        else: d = reg(u["dest"], u["base"] + (uu * 8 + u["t"]) * 8 + 4 * b + 2 * hb, 2)
                        A.ds("ds_read_b64_tr_b16 %s, v%d offset:%d" % (d, LW_A0 + uu, slot * 4096 + b * 2048 + hb * 256), "tr")
            A.wait_lds_all()
            if u["dest"] == "lds":
                u["slot"] = slot
                for uu in range(2):
                    for b in range(2):
                        A.ds("ds_write_b128 v%d, %s offset:%d" % (LW_WB, vr(LW_TMP + uu * 8 + 4 * b, 4), slot * 4096 + uu * 2048 + b * 1024), "wb")
                A.wait_lds_all()
        else:
            for nt in range(8):
                d = reg(u["dest"], u["base"] + (nt * 2 + u["t"]) * 8 + 4 * u["b"] + 2 * u["hb"], 2)
                G, T = nt >> 2, nt & 3
                A.ds("ds_read_b64_tr_b16 %s, v%d offset:%d" % (d, LW_AO + 2 * G + (T >> 1), slot * 4096 + (T & 1) * 8), "tr")
            A.wait_lds_all()
        if n in hooks: hooks[n]()
        if n + NS < len(units): issue(n + NS)

def load_units_128(units, hooks={}):
    L = VLANE; a, b_, c_, d_, f_ = VS, VS + 1, VS + 2, VS + 3, VS + 4
    VQ0, VQ1, TA0, TA1 = 54, 55, 56, 57
    UO = 58
    TU0, TU1 = 58, 59
    AOU = [64, 65, 66, 67]
    WBU = 68
    e("v_lshrrev_b32 v%d, 3, v%d" % (a, L)); e("v_lshlrev_b32 v%d, 13, v%d" % (b_, a))
    e("s_lshr_b32 s28, s%d, 1" % S_WAVE); e("s_lshl_b32 s28, s28, 7"); e("s_add_u32 s28, s28, s%d" % S_H8); e("v_add_u32 v%d, s28, v%d" % (b_, b_))
    e("v_bfe_u32 v%d, v%d, 1, 1" % (c_, a))
    e("v_and_b32 v%d, 7, v%d" % (d_, L))
    for par, dst in ((0, VQ0), (1, VQ1)):
        e("v_or_b32 v%d, %d, v%d" % (f_, par << 1, c_)); e("v_lshlrev_b32 v%d, 1, v%d" % (f_, f_)); e("v_xor_b32 v%d, v%d, v%d" % (f_, f_, d_))
        e("v_lshlrev_b32 v%d, 4, v%d" % (f_, f_)); e("v_add_u32 v%d, v%d, v%d" % (dst, b_, f_))
    e("v_lshrrev_b32 v%d, 4, v%d" % (a, L)); e("v_lshlrev_b32 v%d, 10, v%d" % (a, a))
    e("v_bfe_u32 v%d, v%d, 2, 2" % (b_, L)); e("v_lshlrev_b32 v%d, 7, v%d" % (b_, b_)); e("v_add_u32 v%d, v%d, v%d" % (a, a, b_))
    e("v_and_b32 v%d, 3, v%d" % (b_, L)); e("v_lshlrev_b32 v%d, 3, v%d" % (b_, b_)); e("v_add_u32 v%d, v%d, v%d" % (a, a, b_))
    e("v_bfe_u32 v%d, v%d, 3, 1" % (b_, L)); e("v_bfe_u32 v%d, v%d, 4, 1" % (c_, L)); e("v_lshlrev_b32 v%d, 1, v%d" % (c_, c_)); e("v_or_b32 v%d, v%d, v%d" % (b_, b_, c_))
    e("s_and_b32 s28, s%d, 1" % S_WAVE); e("s_lshl_b32 s28, s28, 1")
    for u, dst in ((0, TA0), (1, TA1)):
        e("s_add_u32 s29, s28, %d" % u); e("v_xor_b32 v%d, s29, v%d" % (c_, b_)); e("v_lshlrev_b32 v%d, 5, v%d" % (c_, c_)); e("v_add_u32 v%d, v%d, v%d" % (c_, c_, a))
        e("v_add_u32 v%d, s34, v%d" % (dst, c_))
    e("s_lshl_b32 s33, s%d, 13" % S_WAVE); e("s_add_u32 s33, s33, %d" % L_KX); e("s_sub_u32 s32, s33, s34")
    e("v_add_u32 v%d, s32, v%d" % (TU0, TA0)); e("v_add_u32 v%d, s32, v%d" % (TU1, TA1))
    for k in range(4): e("v_add_u32 v%d, s32, v%d" % (AOU[k], LW_AO + k))
    e("s_lshl_b32 s35, s%d, 17" % S_HEAD)
    cur = [None]
    def set_srd(which):
        if cur[0] == which: return
        cur[0] = which
        p = S_PW + 2 * which
        e("s_mov_b32 s8, s%d" % p); e("s_mov_b32 s9, s%d" % (p + 1)); e("s_mov_b32 s10, 0x400000"); e("s_mov_b32 s11, 0x20000")
    def m0set(slot, off):
        if slot[0] == "R": e("s_add_u32 m0, s34, %d" % (slot[1] + off))
        else: e("s_add_u32 m0, s33, %d" % off)
    def issue(n):
        u = units[n]; set_srd(u["m"]); slot = u["raw"]
        if u["kind"] == "qkv":
            for i in range(8):
                e("s_xor_b32 s28, s36, %d" % (u["t"] << 19)); e("s_add_u32 s28, s28, %d" % (i * 65536)); m0set(slot, i * 1024); e("s_nop 0")
                A.vmem("buffer_load_dwordx4 v%d, s[8:11], s28 offen lds" % (VQ0 if i % 2 == 0 else VQ1), ("w", n))
        else:
            for hb in range(2):
                for i in range(4):
                    qd = 2 * u["b"] + hb
                    e("s_add_u32 s28, s35, %d" % ((64 * u["t"] + 16 * qd + 4 * i) * 1024)); m0set(slot, hb * 4096 + i * 1024); e("s_nop 0")
                    A.vmem("buffer_load_dwordx4 v%d, s[8:11], s28 offen lds" % LW_VO, ("w", n))
    prev = {}
    issued = set()
    def try_issue(done):
        for n in range(len(units)):
            if n in issued: continue
            dep = units[n]["dep"]
            if dep is not None and dep > done: break
            issue(n); issued.add(n)
    last = {}
    for n, u in enumerate(units):
        key = u["raw"]; u["dep"] = last.get(key); last[key] = n
        if u.get("dep_extra") is not None: u["dep"] = max(u["dep"] if u["dep"] is not None else -1, u["dep_extra"])
    try_issue(-1)
    if "start" in hooks: hooks["start"]()
    for n, u in enumerate(units):
        A.wait_vm(("w", n))
        slot = u["raw"]; isU = slot[0] == "U"; off = 0 if isU else slot[1]
        if u["kind"] == "qkv":
            for uu in range(2):
                for b in range(2):
                    for hb in range(2):
                        if u["dest"] == "lds": d = vr(LW_TMP + uu * 8 + 4 * b + 2 * hb, 2)
                        elif u["dest"] == "flat": d = vr(u["base"] + uu * 8 + 4 * b + 2 * hb, 2)
                        else: d = reg(u["dest"], u["base"] + (uu * 8 + u["t"]) * 8 + 4 * b + 2 * hb, 2)
                        ad = ((TU0, TU1) if isU else (TA0, TA1))[uu]
                        A.ds("ds_read_b64_tr_b16 %s, v%d offset:%d" % (d, ad, off + b * 4096 + hb * 512), "tr")
            A.wait_lds_all()
            if u["dest"] == "lds":
                for uu in range(2):
                    for b in range(2):
                        A.ds("ds_write_b128 v%d, %s offset:%d" % (LW_WB, vr(LW_TMP + uu * 8 + 4 * b, 4), u["slot"] * 4096 + uu * 2048 + b * 1024), "wb")
                A.wait_lds_all()
        else:
            for hb in range(2):
                for nt in range(8):
                    G, T = nt >> 2, nt & 3
                    d = reg(u["dest"], u["base"] + (nt * 2 + u["t"]) * 8 + 4 * u["b"] + 2 * hb, 2)
                    ad = (AOU if isU else [LW_AO + k for k in range(4)])[2 * G + (T >> 1)]
                    A.ds("ds_read_b64_tr_b16 %s, v%d offset:%d" % (d, ad, off + hb * 4096 + (T & 1) * 8), "tr")
            A.wait_lds_all()
        if n in hooks: hooks[n]()
        try_issue(n)

def load_units_reg(units, hooks={}, maxfly=60):
    SCR = 54
    SA0, SA1, SAO = 55, 56, 57
    SAOr = [57, 58, 59, 64]
    e("s_lshl_b32 s28, s%d, 13" % S_WAVE); e("s_add_u32 s28, s28, %d" % L_KX); e("s_sub_u32 s29, s28, s34")
    e("v_add_u32 v%d, s28, v%d" % (SCR, V_L16))
    e("v_add_u32 v%d, s29, v%d" % (SA0, LW_A0)); e("v_add_u32 v%d, s29, v%d" % (SA1, LW_A1))
    for k in range(4): e("v_add_u32 v%d, s29, v%d" % (SAOr[k], LW_AO + k))
    e("s_lshl_b32 s35, s%d, 17" % S_HEAD)
    cur_srd = [None]
    def set_srd(which):
        if cur_srd[0] == which: return
        cur_srd[0] = which
        p = S_PW + 2 * which
        e("s_mov_b32 s8, s%d" % p); e("s_mov_b32 s9, s%d" % (p + 1)); e("s_mov_b32 s10, 0x400000"); e("s_mov_b32 s11, 0x20000")
    def quads(u):
        if u["kind"] == "qkv":
            if u["dest"] == "flat": return [("v", u["base"] + 4 * i) for i in range(4)]
            b0 = u["base"] + u["t"] * 8
            return [(u["dest"], b0), (u["dest"], b0 + 4), (u["dest"], b0 + 64), (u["dest"], b0 + 68)]
        return [(u["dest"], u["base"] + (nt * 2 + u["t"]) * 8 + 4 * u["b"]) for nt in range(8)]
    def nloads(u): return 8 if u["kind"] == "wo" else 4
    def issue(n):
        u = units[n]; set_srd(u["m"])
        if u["kind"] == "qkv":
            for i in range(4):
                e("s_xor_b32 s28, s36, %d" % (u["t"] << 19)); e("s_add_u32 s28, s28, %d" % (i * 131072))
                if u["dest"] == "lds":
                    e("s_add_u32 m0, s34, %d" % (u["slot"] * 4096 + i * 1024)); e("s_nop 0")
                    A.vmem("buffer_load_dwordx4 v%d, s[8:11], s28 offen lds" % LW_VQ, ("w", n))
                else:
                    k, r = quads(u)[i]
                    A.vmem("buffer_load_dwordx4 %s, v%d, s[8:11], s28 offen" % (reg(k, r, 4), LW_VQ), ("w", n))
        else:
            for hb in range(2):
                for i in range(4):
                    qd = 2 * u["b"] + hb
                    e("s_add_u32 s28, s35, %d" % ((64 * u["t"] + 16 * qd + 4 * i) * 1024))
                    k, r = quads(u)[hb * 4 + i]
                    A.vmem("buffer_load_dwordx4 %s, v%d, s[8:11], s28 offen" % (reg(k, r, 4), LW_VO), ("w", n))
    nxt = [0]; fly = [0]
    def pump():
        while nxt[0] < len(units) and fly[0] + nloads(units[nxt[0]]) <= maxfly:
            issue(nxt[0]); fly[0] += nloads(units[nxt[0]]); nxt[0] += 1
    pump()
    for n, u in enumerate(units):
        A.wait_vm(("w", n)); fly[0] -= nloads(u)
        if u["kind"] == "qkv" and u["dest"] == "lds":
            slot = u["slot"]
            for uu in range(2):
                for b in range(2):
                    for hb in range(2):
                        A.ds("ds_read_b64_tr_b16 %s, v%d offset:%d" % (vr(LW_TMP + uu * 8 + 4 * b + 2 * hb, 2), LW_A0 + uu, slot * 4096 + b * 2048 + hb * 256), "tr")
            if n in hooks: hooks[n]()
            pump()
            A.wait_lds_all()
            for uu in range(2):
                for b in range(2):
                    A.ds("ds_write_b128 v%d, %s offset:%d" % (LW_WB, vr(LW_TMP + uu * 8 + 4 * b, 4), slot * 4096 + uu * 2048 + b * 1024), "wb")
            A.wait_lds_all()
        elif u["kind"] == "qkv":
            for i, (k, r) in enumerate(quads(u)):
                A.ds("ds_write_b128 v%d, %s offset:%d" % (SCR, reg(k, r, 4), i * 1024), "sw")
            if n in hooks: hooks[n]()
            pump()
            A.wait_lds_all()
            for uu in range(2):
                for b in range(2):
                    for hb in range(2):
                        if u["dest"] == "flat": d = vr(u["base"] + uu * 8 + 4 * b + 2 * hb, 2)
                        else: d = reg(u["dest"], u["base"] + (uu * 8 + u["t"]) * 8 + 4 * b + 2 * hb, 2)
                        A.ds("ds_read_b64_tr_b16 %s, v%d offset:%d" % (d, (SA0, SA1)[uu], b * 2048 + hb * 256), "tr")
            A.wait_lds_all()
        else:
            for i, (k, r) in enumerate(quads(u)):
                A.ds("ds_write_b128 v%d, %s offset:%d" % (SCR, reg(k, r, 4), i * 1024), "sw")
            if n in hooks: hooks[n]()
            pump()
            A.wait_lds_all()
            for hb in range(2):
                for nt in range(8):
                    G, T = nt >> 2, nt & 3
                    d = reg(u["dest"], u["base"] + (nt * 2 + u["t"]) * 8 + 4 * u["b"] + 2 * hb, 2)
                    A.ds("ds_read_b64_tr_b16 %s, v%d offset:%d" % (d, SAOr[2 * G + (T >> 1)], hb * 4096 + (T & 1) * 8), "tr")
            A.wait_lds_all()

def units_qkv(m, dest, base):
    return [dict(kind="qkv", m=m, t=t, dest=dest, base=base) for t in range(8)]
def units_wo(dest, base):
    return [dict(kind="wo", m=3, t=t, b=b, hb=hb, dest=dest, base=base) for t in range(2) for b in range(2) for hb in range(2)]

def pubaddr(dst, tmp):
    e("v_lshrrev_b32 v%d, 2, v%d" % (dst, V_L16)); e("v_and_b32 v%d, 0xc0, v%d" % (dst, dst))
    e("v_lshlrev_b32 v%d, 1, v%d" % (tmp, V_L16)); e("v_and_b32 v%d, 32, v%d" % (tmp, tmp)); e("v_add_u32 v%d, v%d, v%d" % (dst, dst, tmp))
    e("v_lshrrev_b32 v%d, 3, v%d" % (tmp, V_L16)); e("v_and_b32 v%d, 28, v%d" % (tmp, tmp)); e("v_add_u32 v%d, v%d, v%d" % (dst, dst, tmp))

def chain():
    L = VLANE; a, b_, c_, d_ = VS, VS + 1, VS + 2, VS + 3
    lab("L_chain")
    e("v_lshlrev_b32 v%d, 4, v%d" % (V_L16, L))
    e("s_mul_i32 s28, s%d, %d" % (S_WAVE, WVSTRIDE)); e("v_add_u32 v%d, s28, v%d" % (V_WVA, V_L16))
    e("v_and_b32 v%d, 15, v%d" % (a, L)); e("v_lshlrev_b32 v%d, 5, v%d" % (a, a)); e("v_lshrrev_b32 v%d, 4, v%d" % (b_, L)); e("v_lshlrev_b32 v%d, 3, v%d" % (b_, b_))
    e("v_add_u32 v%d, v%d, v%d" % (a, a, b_)); e("s_lshl_b32 s28, s%d, 10" % S_WAVE); e("s_add_u32 s28, s28, %d" % L_X); e("v_add_u32 v%d, s28, v%d" % (V_XWR, a))
    e("v_lshrrev_b32 v%d, 5, v%d" % (a, L)); e("v_lshlrev_b32 v%d, 8, v%d" % (a, a))
    e("v_bfe_u32 v%d, v%d, 2, 2" % (b_, L)); e("v_lshlrev_b32 v%d, 6, v%d" % (b_, b_)); e("v_add_u32 v%d, v%d, v%d" % (a, a, b_))
    e("v_and_b32 v%d, 1, v%d" % (b_, L)); e("v_lshlrev_b32 v%d, 5, v%d" % (b_, b_)); e("v_add_u32 v%d, v%d, v%d" % (a, a, b_))
    e("v_bfe_u32 v%d, v%d, 4, 1" % (b_, L)); e("v_lshlrev_b32 v%d, 3, v%d" % (b_, b_)); e("v_add_u32 v%d, v%d, v%d" % (a, a, b_))
    e("s_lshr_b32 s28, s%d, 1" % S_WAVE); e("s_lshl_b32 s28, s28, 10"); e("s_and_b32 s29, s%d, 1" % S_WAVE); e("s_lshl_b32 s29, s29, 9")
    e("s_add_u32 s28, s28, s29"); e("s_add_u32 s28, s28, %d" % L_O); e("v_add_u32 v%d, s28, v%d" % (a, a))
    e("v_and_b32 v%d, 2, v%d" % (b_, L)); e("v_cmp_ne_u32 vcc, 0, v%d" % b_); e("s_nop 1"); e("s_mov_b64 s[50:51], vcc")
    e("v_lshlrev_b32 v%d, 3, v%d" % (b_, L)); e("v_add_u32 v%d, %d, v%d" % (b_, L_DUM, b_))
    e("s_nop 0")
    e("v_cndmask_b32 v%d, v%d, v%d, vcc" % (V_OWR, b_, a))
    e("v_and_b32 v%d, 8, v%d" % (b_, L)); e("v_cmp_eq_u32 s[48:49], 0, v%d" % b_)
    e("v_bfe_u32 v%d, v%d, 2, 2" % (a, L)); e("s_lshl_b32 s28, s%d, 3" % S_WAVE); e("v_add_u32 v%d, s28, v%d" % (a, a))
    if OPT.get("swz", 1): e("v_add_u32 v%d, s%d, v%d" % (c_, S_HEAD, a))
    else: e("v_mov_b32 v%d, s%d" % (c_, S_HEAD))
    e("v_and_b32 v%d, 31, v%d" % (c_, c_)); e("v_lshlrev_b32 v%d, 8, v%d" % (c_, c_))
    e("v_lshlrev_b32 v%d, 13, v%d" % (a, a)); e("v_add_u32 v%d, v%d, v%d" % (a, a, c_))
    e("v_lshrrev_b32 v%d, 4, v%d" % (b_, L)); e("v_lshlrev_b32 v%d, 6, v%d" % (b_, b_)); e("v_add_u32 v%d, v%d, v%d" % (a, a, b_))
    e("v_and_b32 v%d, 3, v%d" % (b_, L)); e("v_lshlrev_b32 v%d, 4, v%d" % (b_, b_)); e("v_add_u32 v%d, v%d, v%d" % (V_PS0, a, b_))
    e("v_and_b32 v%d, 1, v%d" % (c_, L)); e("v_cmp_eq_u32 vcc, 0, v%d" % c_)
    e("v_mov_b32 v%d, 0xEEEEEEEE" % a); e("v_mov_b32 v%d, 0x44444444" % b_); e("v_cndmask_b32 v%d, v%d, v%d, vcc" % (V_IDX, a, b_))
    cval = struct.unpack("<I", struct.pack("<f", (128 ** -0.5) * math.log2(math.e)))[0]
    e("s_mov_b32 s%d, 0x%08x" % (S_C, cval))
    e("v_and_b32 v%d, 1, v%d" % (a, L)); e("v_lshlrev_b32 v%d, 4, v%d" % (a, a)); e("v_mov_b32 v%d, 0x3f80" % b_); e("v_lshlrev_b32 v%d, v%d, v%d" % (b_, a, b_))
    e("v_bfe_u32 v%d, v%d, 1, 2" % (a, L))
    for i in range(4):
        e("v_cmp_eq_u32 vcc, %d, v%d" % (i, a)); e("s_nop 1"); e("v_cndmask_b32 v%d, 0, v%d, vcc" % (12 + i, b_))
    e("v_add_u32 v%d, %d, v%d" % (a, L_SEL, V_L16))
    IPUB, IM0 = 60, 61
    e("ds_write_b128 v%d, v[12:15]" % a); e("s_waitcnt lgkmcnt(0)")
    def hook_start():
        pubaddr(60, c_)
        e("s_cmp_lg_u32 s%d, 0" % S_WAVE); e("s_cbranch_scc1 L_noinit")
        IPUB, IM0 = 60, 61
        e("s_load_dwordx2 s[30:31], s[0:1], %d" % KA["mem0"])
        e("v_lshrrev_b32 v%d, 4, v%d" % (a, L)); e("v_lshlrev_b32 v%d, 11, v%d" % (a, a))
        e("v_and_b32 v%d, 1, v%d" % (b_, L)); e("v_lshlrev_b32 v%d, 10, v%d" % (b_, b_)); e("v_add_u32 v%d, v%d, v%d" % (a, a, b_))
        e("v_bfe_u32 v%d, v%d, 1, 2" % (b_, L)); e("v_lshlrev_b32 v%d, 3, v%d" % (b_, b_)); e("v_add_u32 v%d, v%d, v%d" % (a, a, b_))
        e("v_bfe_u32 v%d, v%d, 3, 1" % (b_, L)); e("v_lshlrev_b32 v%d, 2, v%d" % (b_, b_)); e("v_add_u32 v%d, v%d, v%d" % (a, a, b_))
        e("s_lshl_b32 s29, s%d, 5" % S_HEAD); e("v_add_u32 v%d, s29, v%d" % (a, a))
        e("s_waitcnt lgkmcnt(0)")
        e("global_load_dword v%d, v%d, s[30:31]" % (IM0, a))
        for i in range(4): e("v_mov_b32 v%d, -1" % (12 + i))
        for b in range(2):
            for half in range(2):
                e("s_add_u32 s29, s%d, %d" % (S_H13, WS_PB + b * 0x40000 + half * 4096))
                for x in range(4):
                    e("buffer_store_dwordx4 v[12:15], v%d, s[4:7], s29 offen offset:%d" % (V_L16, x * 1024))
        for b in (1, 2):
            e("s_add_u32 s29, s%d, %d" % (S_H8, WS_MB + b * 8192))
            e("buffer_store_dword v12, v%d, s[4:7], s29 offen" % IPUB)
        e("v_lshlrev_b32 v%d, 12, v%d" % (a, L)); e("v_mov_b32 v%d, 0" % b_)
        e("s_lshl_b32 s29, s%d, 7" % S_HEAD); e("s_add_u32 s29, s29, %d" % FL_KV)
        e("s_mov_b64 exec, 0xff")
        e("buffer_store_dword v%d, v%d, s[4:7], s29 offen sc0 sc1" % (b_, a))
        e("s_mov_b64 exec, 1")
        e("s_lshl_b32 s29, s%d, 7" % S_HEAD); e("s_add_u32 s29, s29, %d" % FL_KM)
        e("buffer_store_dword v%d, v%d, s[4:7], s29 offen sc0 sc1" % (b_, a))
        e("s_mov_b64 exec, s[26:27]")
        lab("L_noinit")

    def hook_mem0():
        l = A.newlab("L_hk")
        e("s_cmp_lg_u32 s%d, 0" % S_WAVE); e("s_cbranch_scc1 %s" % l)
        e("s_add_u32 s29, s%d, %d" % (S_H8, WS_MB))
        e("buffer_store_dword v%d, v%d, s[4:7], s29 offen" % (IM0, IPUB))
        e("s_mov_b64 exec, 1")
        e("v_mov_b32 v62, 24"); e("v_mov_b32 v63, 1"); e("global_atomic_add v62, v63, s[24:25] sc1")
        e("s_mov_b64 exec, s[26:27]")
        lab(l)
    def hook_arrive():
        l = A.newlab("L_hk")
        e("s_cmp_lg_u32 s%d, 0" % S_WAVE); e("s_cbranch_scc1 %s" % l)
        e("s_mov_b64 exec, 1")
        e("v_mov_b32 v62, %d" % bar_off(0)); e("v_mov_b32 v63, 1"); e("global_atomic_add v62, v63, s[24:25] sc1")
        e("s_mov_b64 exec, s[26:27]")
        lab(l)
    load_setup(WVSTRIDE)
    wvu = units_qkv(2, "lds", 0); wvu[0]["dest"] = "flat"; wvu[0]["base"] = V_WV0
    rt(2)
    if OPT.get("regload", 0):
        for t in range(1, 8): wvu[t]["slot"] = t - 1
        wo_units = [dict(kind="wo", m=3, t=t, b=b, dest="v", base=V_WO) for t in range(2) for b in range(2)]
        units = wvu[1:] + [wvu[0]] + units_qkv(0, "a", 0) + units_qkv(1, "a", 128) + wo_units
        load_units_reg(units, {0: hook_mem0, OPT.get('harr', 16): hook_arrive}, maxfly=OPT.get('maxfly', 40))
    elif OPT.get("ld128", 0):
        wo_units = [dict(kind="wo", m=3, t=t, b=b, dest="v", base=V_WO) for t in range(2) for b in range(2)]
        first = units_qkv(0, "a", 0) + units_qkv(1, "a", 128) + wo_units + [wvu[0]]
        ring = [("R", 0), ("R", 8192), ("R", 16384), ("U", 0)]
        for n, u in enumerate(first): u["raw"] = ring[n % 4]
        for k in range(1, 8):
            wvu[k]["raw"] = ("U", 0) if k % 2 == 1 else ("R", 20480)
            wvu[k]["slot"] = k - 1
        units = first + wvu[1:]
        nf = len(first)
        wvu[2]["dep_extra"] = max(n for n, u in enumerate(first) if u["raw"] == ("R", 16384))
        load_units_128(units, {'start': hook_start, 4: hook_mem0, 8: hook_arrive})
    else:
        units = units_qkv(0, "a", 0) + units_qkv(1, "a", 128) + units_wo("v", V_WO) + wvu
        load_units(units, 7, {'start': hook_start, 7: hook_mem0, 14: hook_arrive})
    rt(3)
    wvslot = {u["t"]: u["slot"] for u in wvu[1:]}
    e("s_cmp_lg_u32 s%d, 0" % S_WAVE); e("s_cbranch_scc1 L_tb_done")
    e("s_mov_b64 exec, 1")
    e("v_mov_b32 v%d, %d" % (a, bar_off(0))); e("s_mov_b32 s29, 0")
    lab("L_tb")
    e("global_load_dword v%d, v%d, s[24:25] sc0 sc1" % (b_, a)); e("s_waitcnt vmcnt(0)"); e("v_readfirstlane_b32 s30, v%d" % b_)
    e("s_add_u32 s29, s29, 1"); e("s_cmp_gt_u32 s29, 0x40000"); e("s_cbranch_scc1 L_tb2")
    e("s_cmp_lt_u32 s30, 32"); e("s_cbranch_scc1 L_tb")
    lab("L_tb2")
    e("s_mov_b64 exec, s[26:27]")
    lab("L_tb_done")
    e("s_mov_b32 s%d, 0" % S_STEP)
    e("s_mov_b32 s%d, %d" % (S_MCUR, WS_MB)); e("s_mov_b32 s%d, %d" % (S_MPREV, WS_MB + 2 * 8192)); e("s_mov_b32 s%d, %d" % (S_PCUR, WS_PB))
    e("s_add_u32 s%d, s%d, %d" % (S_KXO, S_H13, WS_KX)); e("s_add_u32 s%d, s%d, %d" % (S_VXO, S_H13, WS_VX))
    e("s_mov_b32 s%d, 0" % S_SPIN); e("s_mov_b32 s%d, 0" % S_PAR); e("s_mov_b32 s37, %d" % (WS_HIST + 0x90000)); e("s_mov_b32 s38, %d" % (WS_HIST + 0x91000))
    def need_seg(target_sgpr_or_none):
        if OPT["stage"] < 2: return
        lok = A.newlab("L_rdy"); lp = A.newlab("L_rp")
        if target_sgpr_or_none is None: e("s_mov_b32 s14, %d" % (1 if OPT.get("l2warm", 0) else 0))
        else:
            e("s_add_u32 s14, s%d, %d" % (target_sgpr_or_none, 2 if OPT.get("l2warm", 0) else 1)); e("s_min_u32 s14, s14, 63")
        e("s_cmp_lt_u32 s14, s%d" % S_RDY); e("s_cbranch_scc1 %s" % lok)
        e("s_mov_b32 s17, 0")
        lab(lp)
        e("v_lshlrev_b32 v%d, 8, v%d" % (VT, V_L16))
        e("s_lshl_b32 s29, s%d, 7" % S_HEAD); e("s_add_u32 s29, s29, %d" % FL_KV)
        e("s_mov_b64 exec, 0xff")
        e("buffer_load_dword v%d, v%d, s[4:7], s29 offen sc0 sc1" % (VT + 1, VT))
        e("s_mov_b64 exec, s[26:27]")
        e("s_waitcnt vmcnt(0)")
        e("s_mov_b32 s15, 64")
        for t in range(1, 8):
            e("v_readlane_b32 s16, v%d, %d" % (VT + 1, t)); e("s_nop 0"); e("s_mul_i32 s16, s16, 7"); e("s_add_u32 s16, s16, %d" % (t - 1)); e("s_min_u32 s15, s15, s16")
        e("s_mov_b32 s%d, s15" % S_RDY)
        e("s_add_u32 s17, s17, 1"); e("s_cmp_gt_u32 s17, 0x40000"); e("s_cbranch_scc1 %s" % lok)
        e("s_cmp_lt_u32 s14, s%d" % S_RDY); e("s_cbranch_scc0 %s" % lp)
        lab(lok)
    def dma8(so, lb, par_sgpr):
        for i in range(8):
            if i % 4 == 0:
                e("s_add_u32 s28, s%d, %d" % (so, i * 1024)); e("s_add_u32 s29, s%d, %d" % (par_sgpr, lb + i * 1024)); e("s_mov_b32 m0, s29"); e("s_nop 0")
            e("buffer_load_dwordx4 v%d, s[4:7], s28 offen offset:%d sc1 lds" % (V_L16, (i % 4) * 1024))
    e("s_mov_b32 s%d, 0" % S_RDY)
    need_seg(None)
    l0 = A.newlab("L_pf"); l1 = A.newlab("L_pf")
    e("s_cmp_eq_u32 s%d, 1" % S_WAVE); e("s_cbranch_scc0 %s" % l0); dma8(S_KXO, L_KX, S_PAR); lab(l0)
    e("s_cmp_eq_u32 s%d, 2" % S_WAVE); e("s_cbranch_scc0 %s" % l1); dma8(S_VXO, L_VX, S_PAR); lab(l1)
    e("s_waitcnt vmcnt(0)"); e("s_barrier")
    rt(4)
    if OPT["stamps"]:
        for i in range(16): e("s_mov_b32 s%d, 0" % (S_ST + i))
        e("s_memtime s[82:83]"); e("s_waitcnt lgkmcnt(0)"); e("s_mov_b32 s80, s82")
    if not OPT["final"]:
        e("s_memtime s[84:85]"); e("s_memrealtime s[88:89]"); e("s_waitcnt lgkmcnt(0)")

    T0, T1, T2, T3, T4, T5 = range(VT, VT + 6)
    def wvreg(t): return V_WV0 if t == 0 else (V_WVR if t % 2 == 1 else V_KX)
    def rd_wv(t):
        r = wvreg(t)
        return [lambda u=u, b=b: A.ds("ds_read_b128 %s, v%d offset:%d" % (vr(r + 8 * u + 4 * b, 4), V_WVA, wvslot[t] * 4096 + u * 2048 + b * 1024), ("wv", t, u)) for u in range(2) for b in range(2)]
    def scalprep():
        e("s_add_u32 s%d, s%d, 0x40000" % (S_KXO, S_KXO)); e("s_add_u32 s%d, s%d, 0x40000" % (S_VXO, S_VXO))
        e("s_cmp_lt_u32 s%d, 2" % S_WAVE); e("s_cselect_b32 s%d, s%d, s%d" % (S_DMA, S_KXO, S_VXO)); e("s_lshr_b32 s29, s%d, 1" % S_WAVE); e("s_lshl_b32 s29, s29, 13"); e("s_add_u32 s29, s29, %d" % L_KX)
        e("s_lshl_b32 s19, s%d, 12" % S_WAVE); e("s_and_b32 s18, s19, 4096"); e("s_add_u32 s%d, s%d, s18" % (S_DMA, S_DMA))
        e("s_xor_b32 s18, s%d, 8192" % S_PAR); e("s_add_u32 s29, s29, s18"); e("s_add_u32 s29, s29, s19")
        e("s_mov_b32 m0, s29")
        e("s_add_u32 s12, s%d, %d" % (S_PAR, L_KX)); e("s_lshl_b32 s28, s%d, 11" % S_WAVE); e("s_add_u32 s13, s28, s%d" % S_PAR); e("s_add_u32 s13, s13, %d" % L_VX)
        if OPT["stage"] >= 3:
            e("s_max_u32 s34, s%d, 1" % S_STEP); e("s_sub_u32 s34, s34, 1"); e("s_lshl_b32 s101, s%d, 7" % S_HEAD); e("s_add_u32 s101, s101, %d" % FL_KM)
            e("s_mov_b32 s35, s38")
            e("s_lshl_b32 s28, s%d, 16" % S_STEP); e("s_lshl_b32 s29, s%d, 11" % S_HEAD); e("s_add_u32 s38, s28, s29"); e("s_lshl_b32 s29, s%d, 9" % S_WAVE); e("s_add_u32 s38, s38, s29"); e("s_add_u32 s38, s38, %d" % WS_KM)
            e("s_mov_b32 s36, s37"); e("s_add_u32 s37, s38, %d" % (WS_VM - WS_KM))
    def nextprep():
        ZS_ = V_KX + 12
        e("v_mfma_f32_32x32x16_bf16 %s, %s, %s, 0" % (vr(V_QK, 16), vr(ZS_, 4), vr(ZS_, 4)))
        e("v_mfma_f32_16x16x32_bf16 %s, %s, %s, 0" % (vr(V_VA, 4), vr(ZS_, 4), vr(ZS_, 4)))
        e("v_mfma_f32_16x16x32_bf16 %s, %s, %s, 0" % (vr(V_VA + 4, 4), vr(ZS_, 4), vr(ZS_, 4)))
        for f in rd_wv(1): f()
        e("s_lshl_b32 s28, s%d, 11" % S_WAVE); e("s_add_u32 s%d, s%d, s28" % (S_MQ, S_MCUR))
        if OPT["stage"] >= 2:
            lsk = A.newlab("L_sk63")
            e("s_cmp_eq_u32 s%d, 63" % S_STEP); e("s_cbranch_scc1 %s" % lsk)
            need_seg(S_STEP)
            lab(lsk)
        if not OPT.get("scal_top", 0): scalprep()
    for i in range(4): e("v_mov_b32 v%d, 0" % (V_KX + 12 + i))
    e("s_nop 1")
    A.lds = []
    nextprep()
    WV1_TAGS = list(A.lds)
    if OPT.get("align", 0): A.L.append(".p2align %d" % OPT["align"])
    if OPT.get("pad4", 0): e("s_nop 0")
    lab("L_step")
    A.lds = list(WV1_TAGS); A.vm = []
    QA, KA_ = V_QK, V_QK + 8
    ts(20)
    if OPT.get("steptrace", 0):
        l = A.newlab("L_stt")
        e("s_cmp_lg_u32 s%d, 2" % S_WAVE); e("s_cbranch_scc1 %s" % l)
        e("s_memrealtime s[90:91]"); e("s_waitcnt lgkmcnt(0)")
        e("s_lshl_b32 s28, s%d, 6" % S_HEAD); e("s_add_u32 s28, s28, s%d" % S_STEP); e("s_lshl_b32 s28, s28, 2"); e("s_add_u32 s28, s28, %d" % (WS_TRACE + 0x10000))
        e("s_mov_b64 exec, 1"); e("v_mov_b32 v10, s90"); e("v_mov_b32 v11, 0"); e("buffer_store_dword v10, v11, s[4:7], s28 offen"); e("s_mov_b64 exec, s[26:27]")
        lab(l)
    if OPT.get("red_sets", 1) == 2: e("s_waitcnt vmcnt(%d)" % (2 if OPT["hist"] else 1))
    for i in range(4): e("v_mov_b32 v%d, 0" % (V_S + i))
    e("s_lshl_b32 s28, s%d, 11" % S_WAVE)
    e("v_add_u32 v%d, s28, v%d" % (T2, V_L16)); e("v_add_u32 v%d, %d, v%d" % (T2, L_MEM, T2))
    for a2 in range(1, 4): e("v_xor_b32 v%d, %d, v%d" % (T2 + a2, a2 << 11, T2))
    def smf(acc, areg, breg):
        e("v_smfmac_f32_16x16x64_bf16 %s, %s, %s, v%d" % (vr(acc, 4), vr(areg, 4), breg, V_IDX))
    def areg_of(tau, own): return (own + 4 * tau) if tau < 2 else (V_MEM + 4 * tau)
    def qk_l(tau, own=V_MEM):
        areg = areg_of(tau, own)
        return [lambda acc=acc, base=base, u=u: smf(acc, areg, ar(base + (u * 8 + tau) * 8, 8)) for (acc, base, u) in ((QA, 0, 0), (KA_, 128, 0), (QA + 4, 0, 1), (KA_ + 4, 128, 1))]
    def vv_l(tau, own=V_MEM):
        areg = areg_of(tau, own)
        return [lambda u=u: smf(V_VA + 4 * u, areg, vr(wvreg(tau) + 8 * u, 8)) for u in range(2)]
    def poll_issue(base):
        for tau in range(2):
            e("buffer_load_dwordx4 %s, v%d, s[4:7], s%d offen offset:%d sc1" % (vr(base + 4 * tau, 4), V_L16, S_MQ, tau * 1024))
    def poll_check(M):
        e("v_max3_u32 v%d, v%d, v%d, v%d" % (T0, M, M + 1, M + 2)); e("v_max3_u32 v%d, v%d, v%d, v%d" % (T1, M + 3, M + 4, M + 5))
        e("v_max3_u32 v%d, v%d, v%d, v%d" % (T0, T0, M + 6, M + 7)); e("v_max_u32 v%d, v%d, v%d" % (T0, T0, T1))
        e("v_cmp_eq_u32 vcc, -1, v%d" % T0)
    SA, SB = V_MEM, V_MEM + 24
    if OPT.get("scal_top", 0): scalprep()
    for i in range(OPT["dly_mem"]): e("s_nop 7")
    if OPT.get("early_rd", 0):
        for f in rd_wv(2): f()
    poll_issue(SA)
    ts(21)
    if not OPT.get("early_rd", 0):
        for f in rd_wv(2): f()
    for i in range(OPT.get("gap_mem", 0)): e("s_nop 7")
    mem2 = OPT.get("mem_sets", 1) == 2
    spec = (not mem2) and OPT.get("spec", 1)
    if mem2: poll_issue(SB)
    lab("L_pmA")
    e("s_add_u32 s%d, s%d, 1" % (S_SPIN, S_SPIN))
    e("s_waitcnt vmcnt(%d)" % (2 if mem2 else 0))
    ts(22)
    if spec:
        M = SA
        q0 = qk_l(0, SA); q1 = qk_l(1, SA)
        q0[0](); e("v_max3_u32 v%d, v%d, v%d, v%d" % (T0, M, M + 1, M + 2)); e("v_max3_u32 v%d, v%d, v%d, v%d" % (T1, M + 3, M + 4, M + 5))
        q0[1](); e("ds_write_b128 v%d, %s" % (T2, vr(M, 4)))
        q0[2](); e("v_max3_u32 v%d, v%d, v%d, v%d" % (T0, T0, M + 6, M + 7)); e("v_max_u32 v%d, v%d, v%d" % (T0, T0, T1))
        q0[3](); e("ds_write_b128 v%d, %s offset:1024" % (T2, vr(M + 4, 4)))
        q1[0](); e("v_cmp_eq_u32 vcc, -1, v%d" % T0)
        q1[1](); e("v_add_u32 v%d, s12, v%d" % (T1, V_L16))
        e("s_cmp_gt_u32 s%d, 0x200000" % S_SPIN); e("s_cbranch_scc1 L_specok")
        if OPT["nowait"]: e("s_branch L_specok")
        e("s_cbranch_vccz L_specok")
        poll_issue(SA) if False else None
        e("s_waitcnt lgkmcnt(0)")
        poll_issue(SA)
        A.nop(6)
        e("v_mfma_f32_32x32x16_bf16 %s, %s, %s, 0" % (vr(V_QK, 16), vr(V_S, 4), vr(V_S, 4)))
        e("s_branch L_pmA")
        lab("L_specok")
        stamp(0)
        q1[2](); q1[3]()
    else:
        poll_check(SA)
        e("s_cmp_gt_u32 s%d, 0x200000" % S_SPIN); e("s_cbranch_scc1 L_goA")
        if OPT["nowait"]: e("s_branch L_goA")
        e("s_cbranch_vccz L_goA")
        poll_issue(SA)
        if mem2:
            e("s_waitcnt vmcnt(2)")
            poll_check(SB)
            e("s_nop 1")
            e("s_cbranch_vccz L_goB")
            poll_issue(SB)
        e("s_branch L_pmA")
    def rd_m(tau): return lambda: A.ds("ds_read_b128 %s, v%d offset:%d" % (vr(V_MEM + 4 * tau, 4), T2 + (tau >> 1), (tau & 1) * 1024), ("m", tau))
    def rd_kx(f):
        kk, kt = f >> 1, f & 1
        return lambda: A.ds("ds_read_b128 %s, v%d offset:%d" % (vr(V_MEM + 4 * f, 4), T1, (kt * 4 + kk) * 1024), ("kx", kk))
    def rd_vx(u): return lambda: A.ds("ds_read_b128 %s, v%d offset:%d" % (vr(V_KX + 4 * u, 4), T0, u * 1024), ("vx", u))
    def run(mf, fl=()):
        fl = list(fl)
        for f in mf:
            f()
            if fl: fl.pop(0)()
        for f in fl: f()
    def vv(tau, fl=()):
        vl = vv_l(tau); fl = list(fl)
        A.wait_lds(("wv", tau, 0)); vl[0]()
        if fl: fl.pop(0)()
        A.wait_lds(("wv", tau, 1)); vl[1]()
        for f in fl: f()
    lds_state = list(A.lds)
    for variant, own in ((("B", SB), ("A", SA)) if mem2 else (("A", SA),)):
        A.lds = list(lds_state)
        if not spec:
            lab("L_go" + variant)
            if variant == "A": stamp(0)
            else: ts(0)
            q0 = qk_l(0, own); q1 = qk_l(1, own)
            q0[0](); e("ds_write_b128 v%d, %s" % (T2, vr(own, 4)))
            q0[1](); e("ds_write_b128 v%d, %s offset:1024" % (T2, vr(own + 4, 4)))
            q0[2](); e("v_add_u32 v%d, s12, v%d" % (T1, V_L16))
            q0[3]()
            if mem2: e("s_waitcnt vmcnt(0)")
            for i2, f in enumerate(q1):
                f()
        if variant == "A": stamp(8, 2)
        A.wait_lds_all(); e("s_barrier")
        if variant == "A": stamp(9, 2)
        rd_m(2)(); rd_m(3)()
        run(vv_l(0, own), [rd_m(4), rd_m(5)])
        run(vv_l(1, own), [rd_m(6), rd_m(7)])
        if variant == "B": e("s_branch L_joinP0")
    lab("L_joinP0")
    e("v_add_u32 v%d, s13, v%d" % (T0, V_L16))
    KH = V_S + 4
    def kmrd(u):
        def f():
            if OPT["stage"] >= 3: A.ds("ds_read_b32 v%d, v%d offset:%d" % (KH + u, V_XWR, u * 512), ("kh", u))
        return f
    def kmst(u):
        def f():
            if OPT["stage"] >= 3 and not OPT.get("nokm", 0):
                A.wait_lds(("kh", u))
                e("buffer_store_dword v%d, v%d, s[4:7], s35 offen offset:%d sc0 sc1" % (KH + u, T2, u * 256))
        return f
    def vmst(u):
        def f():
            if OPT["stage"] >= 3 and not OPT.get("nokm", 0):
                if u == 0: e("v_lshrrev_b32 v%d, 2, v%d" % (T2, V_L16))
                e("buffer_store_dword v%d, v%d, s[4:7], s36 offen offset:%d sc0 sc1" % (V_S + 9 + u, T2, u * 256))
        return f
    def dma(i): return lambda: (None if OPT.get("nodma", 0) else e("buffer_load_dwordx4 v%d, s[4:7], s%d offen offset:%d sc1 lds" % (V_L16, S_DMA, i * 1024)))
    dpos = OPT.get("dmapos", 1)
    if dpos == 0:
        for i in range(4): dma(i)()
    if OPT.get("spread", 1):
        A.wait_lds(("m", 2)); run(qk_l(2), rd_wv(3))
        A.wait_lds(("m", 3)); run(qk_l(3), [rd_kx(0), rd_kx(1), dma(0)])
        vv(2, [dma(1)])
        ts(33)
        A.wait_lds(("m", 4)); run(qk_l(4), rd_wv(4))
        ts(34)
        A.wait_lds(("m", 5)); run(qk_l(5), [rd_kx(2), dma(2), kmrd(0), kmrd(1)])
        vv(3, [dma(3)])
        if OPT["stage"] >= 3:
            lfk = A.newlab("L_fkm")
            e("s_cmp_eq_u32 s%d, 1" % S_WAVE); e("s_cbranch_scc0 %s" % lfk)
            e("v_mov_b32 v%d, s34" % T4); e("s_mov_b64 exec, 1"); e("buffer_store_dword v%d, v%d, s[4:7], s101 offen sc0 sc1" % (T4, V_L16)); e("s_mov_b64 exec, s[26:27]")
            lab(lfk)
        ts(35)
        A.wait_lds(("m", 6)); run(qk_l(6), rd_wv(5))
        vv(4, [rd_kx(3), vmst(0)])
        ts(36)
        A.wait_lds(("m", 7)); run(qk_l(7), rd_wv(6))
        vv5fill = [vmst(1), kmst(0), kmst(1)]
    else:
        A.wait_lds(("m", 2)); run(qk_l(2), rd_wv(3))
        A.wait_lds(("m", 3)); run(qk_l(3), [rd_kx(0), rd_kx(1)] + ([dma(0), dma(1)] if dpos == 1 else []))
        vv(2, ([dma(2), dma(3)] if dpos == 1 else []) + [kmrd(0), kmrd(1), vmst(0), vmst(1)])
        ts(33)
        def warm():
            if OPT.get("l2warm", 0) and not OPT.get("nodma", 0):
                e("v_lshlrev_b32 v%d, 2, v%d" % (T5, V_L16)); e("s_mov_b32 m0, %d" % L_DUM); e("s_add_u32 s28, s%d, 0x40000" % S_DMA)
                e("buffer_load_dword v%d, s[4:7], s28 offen lds" % T5)
        warm()
        if OPT["stage"] >= 3:
            lfk = A.newlab("L_fkm")
            e("s_cmp_eq_u32 s%d, 1" % S_WAVE); e("s_cbranch_scc0 %s" % lfk)
            e("v_mov_b32 v%d, s34" % T4); e("s_mov_b64 exec, 1"); e("buffer_store_dword v%d, v%d, s[4:7], s101 offen sc0 sc1" % (T4, V_L16)); e("s_mov_b64 exec, s[26:27]")
            lab(lfk)
        A.wait_lds(("m", 4)); run(qk_l(4), rd_wv(4))
        ts(34)
        A.wait_lds(("m", 5)); run(qk_l(5), [rd_kx(2), kmst(0), kmst(1)])
        vv(3)
        ts(35)
        A.wait_lds(("m", 6)); run(qk_l(6), rd_wv(5))
        vv(4, [rd_kx(3)])
        ts(36)
        A.wait_lds(("m", 7)); run(qk_l(7), rd_wv(6))
    stamp(1)
    vv(5, vv5fill if OPT.get("spread", 1) else [])
    ts(70)
    e("v_lshrrev_b32 v%d, 1, v%d" % (T3, V_L16)); e("v_add_u32 v%d, %d, v%d" % (T3, L_X, T3))
    for u in range(2):
        q, k_ = QA + 4 * u, KA_ + 4 * u
        e("v_add_f32 v%d, v%d, v%d" % (k_, k_, k_ + 1)); e("v_add_f32 v%d, v%d, v%d" % (k_ + 2, k_ + 2, k_ + 3))
        e("v_add_f32 v%d, v%d, v%d" % (q, q, q + 1)); e("v_add_f32 v%d, v%d, v%d" % (q + 2, q + 2, q + 3))
        e("v_cvt_pk_bf16_f32 v%d, v%d, v%d" % (k_, k_, k_ + 2)); e("v_cvt_pk_bf16_f32 v%d, v%d, v%d" % (k_ + 1, q, q + 2))
        A.ds("ds_write_b64 v%d, %s offset:%d" % (V_XWR, vr(k_, 2), u * 512), "xw")
    ts(71)
    for f in rd_wv(7): f()
    ts(72)
    vv(6)
    ts(73)
    if OPT["stage"] >= 3 and OPT["nsteps"] == 64 and OPT["final"]:
        e("s_cmp_eq_u32 s%d, 63" % S_STEP); e("s_cbranch_scc1 L_tail63")
    if OPT["stage"] >= 3:
        pass
    va = V_VA
    ZS = V_KX + 12
    stamp(10, 2)
    A.wait_lds("xw"); e("s_barrier")
    stamp(11, 2)
    for kk in range(4):
        for b in range(2):
            A.ds("ds_read_b64_tr_b16 %s, v%d offset:%d" % (vr(V_QK + 4 * kk + 2 * b, 2), T3, kk * 1024 + b * 512), ("x", kk))
    stamp(2)
    def vpk(u):
        x = va + 4 * u
        return [lambda: e("v_add_f32 v%d, v%d, v%d" % (x, x, x + 1)), lambda: e("v_add_f32 v%d, v%d, v%d" % (x + 2, x + 2, x + 3)),
                lambda: e("v_cvt_pk_bf16_f32 v%d, v%d, v%d" % (x, x, x + 2)), lambda: e("v_mov_b32 v%d, 0" % (x + 1))]
    zs = [lambda i=i: e("v_mov_b32 v%d, 0" % (ZS + i)) for i in range(4)]
    sfill = {0: [[rd_kx(4)], [rd_kx(5)], [rd_kx(6)]], 1: [[lambda: vv_l(7)[0]()], [lambda: vv_l(7)[1]()], [rd_kx(7)]],
             2: [[rd_vx(0), zs[0]], [rd_vx(1), zs[1]], [zs[2], zs[3]]], 3: [vpk(0)[:2], vpk(0)[2:], vpk(1)[:2]]}
    for kk in range(4):
        A.wait_lds(("x", kk)); A.wait_lds(("kx", kk))
        if kk == 1: A.wait_lds(("wv", 7, 1))
        X = vr(V_QK + 4 * kk, 4)
        cs = lambda r: "0" if kk == 0 else vr(r, 4)
        for idx, (dst, a_op) in enumerate(((V_S, vr(V_MEM + kk * 8, 4)), (V_S + 4, vr(V_MEM + kk * 8 + 4, 4)), (V_S + 8, X))):
            e("v_mfma_f32_16x16x32_bf16 %s, %s, %s, %s" % (vr(dst, 4), a_op, X, cs(dst)))
            for f in sfill[kk][idx]: f()
    for f in vpk(1)[2:]: f()
    e("v_add_u32 v%d, %d, v%d" % (T5, L_O, V_L16))
    A.nop(1)
    stamp(3)
    S = V_S
    e("v_max3_f32 v%d, v%d, v%d, v%d" % (T0, S, S + 1, S + 2)); e("v_max3_f32 v%d, v%d, v%d, v%d" % (T1, S + 4, S + 5, S + 6))
    e("v_max3_f32 v%d, v%d, v%d, v%d" % (T0, T0, S + 3, S + 7)); e("v_max3_f32 v%d, v%d, v%d, v%d" % (T1, T1, S + 8, S + 9))
    e("v_max_f32 v%d, v%d, v%d" % (T0, T0, T1))
    e("v_mov_b32 v%d, v%d" % (T1, T0))
    A.nop(2)
    e("v_permlane16_swap_b32 v%d, v%d" % (T0, T1)); e("v_max_f32 v%d, v%d, v%d" % (T0, T0, T1))
    e("v_mov_b32 v%d, v%d" % (T1, T0))
    e("v_mov_b32 v%d, 0" % (S + 11)); e("s_nop 0")
    e("v_permlane32_swap_b32 v%d, v%d" % (T0, T1)); e("v_max_f32 v%d, v%d, v%d" % (T0, T0, T1))
    e("v_mul_f32 v%d, s%d, v%d" % (T0, S_C, T0))
    if OPT.get("pk", 0):
        for i in range(0, 10, 2): e("v_pk_fma_f32 %s, %s, s[%d:%d], %s op_sel_hi:[1,0,0] neg_lo:[0,0,1] neg_hi:[0,0,1]" % (vr(S + i, 2), vr(S + i, 2), S_C, S_C + 1, vr(T0, 2)))
    else:
        for i in range(10): e("v_fma_f32 v%d, v%d, s%d, -v%d" % (S + i, S + i, S_C, T0))
    for i in range(8): e("v_exp_f32 v%d, v%d" % (S + i, S + i))
    e("v_exp_f32 v%d, v%d" % (S + 8, S + 8))
    e("v_add_f32 v%d, v%d, v%d" % (T2, S, S + 1)); e("v_add_f32 v%d, v%d, v%d" % (T3, S + 2, S + 3))
    e("v_exp_f32 v%d, v%d" % (S + 9, S + 9))
    e("v_cvt_pk_bf16_f32 v%d, v%d, v%d" % (S, S, S + 1)); e("v_cvt_pk_bf16_f32 v%d, v%d, v%d" % (S + 1, S + 2, S + 3))
    e("v_cvt_pk_bf16_f32 v%d, v%d, v%d" % (S + 2, S + 4, S + 5)); e("v_cvt_pk_bf16_f32 v%d, v%d, v%d" % (S + 3, S + 6, S + 7))
    e("v_add_f32 v%d, v%d, v%d" % (T2, T2, S + 4)); e("v_add_f32 v%d, v%d, v%d" % (T3, T3, S + 5))
    stamp(12, 2)
    O0, O1 = V_QK + 4, V_QK + 8
    A.wait_lds(("vx", 1))
    e("v_mfma_f32_16x16x32_bf16 %s, %s, %s, 0" % (vr(O0, 4), vr(V_KX, 4), vr(S, 4)))
    e("v_cvt_pk_bf16_f32 v%d, v%d, v%d" % (S + 10, S + 8, S + 9))
    e("v_add_f32 v%d, v%d, v%d" % (T2, T2, S + 6))
    e("v_mfma_f32_16x16x32_bf16 %s, %s, %s, 0" % (vr(O1, 4), vr(V_KX + 4, 4), vr(S, 4)))
    e("v_add_f32 v%d, v%d, v%d" % (T3, T3, S + 7)); e("v_add_f32 v%d, v%d, v%d" % (T2, T2, S + 8))
    e("v_mfma_f32_16x16x16_bf16 %s, %s, %s, %s" % (vr(O0, 4), vr(va, 2), vr(S + 10, 2), vr(O0, 4)))
    e("v_add_f32 v%d, v%d, v%d" % (T3, T3, S + 9)); e("v_add_f32 v%d, v%d, v%d" % (T2, T2, T3))
    e("v_mfma_f32_16x16x16_bf16 %s, %s, %s, %s" % (vr(O1, 4), vr(va + 4, 2), vr(S + 10, 2), vr(O1, 4)))
    ts(63)
    e("v_mov_b32 v%d, v%d" % (T3, T2)); A.nop(2); e("v_permlane16_swap_b32 v%d, v%d" % (T2, T3)); e("v_add_f32 v%d, v%d, v%d" % (T2, T2, T3))
    e("v_mov_b32 v%d, v%d" % (T3, T2)); A.nop(2); e("v_permlane32_swap_b32 v%d, v%d" % (T2, T3)); e("v_add_f32 v%d, v%d, v%d" % (T2, T2, T3))
    e("v_rcp_f32 v%d, v%d" % (T2, T2))
    e("s_nop 0")
    ts(64)
    W0 = V_QK
    for r in range(2): e("v_mul_f32 v%d, v%d, v%d" % (O0 + r, O0 + r, T2)); e("v_mul_f32 v%d, v%d, v%d" % (O1 + r, O1 + r, T2))
    e("v_cvt_pk_bf16_f32 v%d, v%d, v%d" % (W0, O0, O0 + 1)); e("v_cvt_pk_bf16_f32 v%d, v%d, v%d" % (W0 + 1, O1, O1 + 1))
    if OPT.get("omask", 0): e("s_mov_b64 exec, s[50:51]")
    A.ds("ds_write_b64 v%d, %s" % (V_OWR, vr(W0, 2)), "ow")
    if OPT.get("omask", 0): e("s_mov_b64 exec, s[26:27]")
    for r in range(2, 4): e("v_mul_f32 v%d, v%d, v%d" % (O0 + r, O0 + r, T2)); e("v_mul_f32 v%d, v%d, v%d" % (O1 + r, O1 + r, T2))
    e("v_cvt_pk_bf16_f32 v%d, v%d, v%d" % (W0 + 2, O0 + 2, O0 + 3)); e("v_cvt_pk_bf16_f32 v%d, v%d, v%d" % (W0 + 3, O1 + 2, O1 + 3))
    if OPT.get("omask", 0): e("s_mov_b64 exec, s[50:51]")
    A.ds("ds_write_b64 v%d, %s offset:16" % (V_OWR, vr(W0 + 2, 2)), "ow")
    if OPT.get("omask", 0): e("s_mov_b64 exec, s[26:27]")
    if OPT["stage"] >= 3:
        e("v_mov_b32 v%d, v%d" % (V_S + 9, va)); e("v_mov_b32 v%d, v%d" % (V_S + 10, va + 4))
    ts(65)
    e("s_cmp_eq_u32 s%d, 63" % S_STEP); e("s_cbranch_scc1 L_chain_done")
    e("v_mfma_f32_32x32x16_bf16 %s, %s, %s, 0" % (vr(V_MEM, 16), vr(ZS, 4), vr(ZS, 4)))
    e("v_mfma_f32_32x32x16_bf16 %s, %s, %s, 0" % (vr(V_MEM + 16, 16), vr(ZS, 4), vr(ZS, 4)))
    e("v_add_u32 v%d, %d, v%d" % (T2, L_SEL, V_L16))
    A.ds("ds_read_b128 %s, v%d" % (vr(V_KX + 8, 4), T2), "sel")
    l3 = A.newlab("L_w3")
    e("s_cmp_eq_u32 s%d, 3" % S_WAVE); e("s_cbranch_scc0 %s" % l3); e("s_waitcnt vmcnt(%d)" % (8 if OPT["stage"] >= 3 else 4)); lab(l3)
    stamp(13, 2)
    A.wait_lds_all(); e("s_barrier")
    for t in range(2):
        A.ds("ds_read_b128 %s, v%d offset:%d" % (vr(V_KX + 4 * t, 4), T5, t * 1024), ("o", t))
    stamp(4)
    def wo(nt, t):
        e("v_smfmac_f32_16x16x64_bf16 %s, %s, %s, v%d" % (vr(V_MEM + 4 * nt, 4), vr(V_KX + 4 * t, 4), vr(V_WO + (nt * 2 + t) * 8, 8), V_IDX))
    def fin_l(nt, dst):
        T = V_MEM + 4 * nt
        return [lambda: e("v_add_f32 v%d, v%d, v%d" % (T, T, T + 1)), lambda: e("v_add_f32 v%d, v%d, v%d" % (T + 2, T + 2, T + 3)),
                lambda: e("v_cvt_pk_bf16_f32 v%d, v%d, v%d" % (dst, T, T + 2))] + ([lambda: e("v_bfi_b32 v%d, 1, s%d, v%d" % (dst, S_TAG, dst))] if (nt % 4 == 0 or OPT.get("fulltag", 0)) else [])
    A.wait_lds(("o", 0)); A.wait_lds(("o", 1))
    pub = [lambda: e("s_add_u32 s30, s%d, %d" % (S_PCUR, 4 * 8192)), lambda: e("s_bfe_u32 s%d, s%d, 0x10001" % (S_TAG, S_STEP)),
           lambda: e("v_lshrrev_b32 v%d, 2, v%d" % (T4, V_L16)), lambda: e("v_and_b32 v%d, 0xc0, v%d" % (T4, T4)),
           lambda: e("v_lshlrev_b32 v%d, 1, v%d" % (T3, V_L16)), lambda: e("v_and_b32 v%d, 32, v%d" % (T3, T3)), lambda: e("v_add_u32 v%d, v%d, v%d" % (T4, T4, T3)),
           lambda: e("v_lshrrev_b32 v%d, 3, v%d" % (T3, V_L16)), lambda: e("v_and_b32 v%d, 28, v%d" % (T3, T3)), lambda: e("v_add_u32 v%d, v%d, v%d" % (T4, T4, T3))]
    late = [lambda: e("s_add_u32 s%d, s%d, 8192" % (S_MNXT, S_MCUR)), lambda: e("s_cmp_eq_u32 s%d, %d" % (S_MNXT, WS_MB + 3 * 8192)), lambda: e("s_cselect_b32 s%d, %d, s%d" % (S_MNXT, WS_MB, S_MNXT)),
            lambda: e("s_add_u32 s%d, s%d, s%d" % (S_RED, S_PCUR, S_H13)), lambda: e("s_add_u32 s33, s%d, 4096" % S_RED), lambda: e("s_add_u32 s31, s%d, s%d" % (S_MNXT, S_H8))]
    q = pub[:]
    ts(60)
    for nt in range(8):
        if nt == 4: ts(61)
        for t in range(2):
            wo(nt, t)
            for _ in range(2):
                if q: q.pop(0)()
        if nt >= 2:
            q += fin_l(nt - 2, V_S + nt - 2)
            if nt - 2 == 3: q.append(lambda: e("buffer_store_dwordx4 %s, v%d, s[4:7], s%d offen %s" % (vr(V_S, 4), V_PS0, S_PCUR, PSTF)))
    ts(62)
    while q: q.pop(0)()
    for f in late[:3]: f()
    for nt in (6, 7):
        for f in fin_l(nt, V_S + nt): f()
    e("buffer_store_dwordx4 %s, v%d, s[4:7], s30 offen %s" % (vr(V_S + 4, 4), V_PS0, PSTF))
    for f in late[3:]: f()
    stamp(5)
    lp = A.newlab("L_nopois")
    e("s_cmp_eq_u32 s%d, 3" % S_WAVE); e("s_cbranch_scc0 %s" % lp)
    e("v_mov_b32 v%d, -1" % (V_S + 8))
    e("s_add_u32 s29, s%d, s%d" % (S_MPREV, S_H8))
    e("buffer_store_dword v%d, v%d, s[4:7], s29 offen" % (V_S + 8, T4))
    lab(lp)
    e("s_mov_b32 s%d, s%d" % (S_MPREV, S_MCUR))
    e("s_mov_b32 s%d, s%d" % (S_MCUR, S_MNXT)); e("s_xor_b32 s%d, s%d, 0x40000" % (S_PCUR, S_PCUR))
    e("s_xor_b32 s%d, s%d, 8192" % (S_PAR, S_PAR))
    e("s_add_u32 s%d, s%d, 1" % (S_STEP, S_STEP))
    nextprep()
    e("s_cmp_eq_u32 s%d, 0" % S_WAVE); e("s_cbranch_scc0 L_red_done")
    lab("L_reduce")
    QA_ = [V_MEM + 4 * x for x in range(8)]
    QB_ = [V_WVR, V_WVR + 4, V_WVR + 8, V_WVR + 12, V_VA, V_VA + 4, V_QK + 4, V_QK + 8]
    DA, DB = V_KX + 12, V_QK + 12
    assert OPT.get('red_sets', 1) == 1
    def red_issue(Q):
        for x in range(8):
            e("buffer_load_dwordx4 %s, v%d, s[4:7], s%d offen offset:%d sc1" % (vr(Q[x], 4), V_L16, S_RED if x < 4 else 33, (x & 3) * 1024))
    def red_proc(Q, D, tag, W, stampit=False):
        op = "0x80" if tag else "0xfe"
        for x in range(8):
            e("s_waitcnt vmcnt(%d)" % (W + 7 - x))
            if stampit and x in (0, 7): ts(41 + x)
            e("v_mfma_f32_16x16x32_bf16 %s, %s, %s, %s" % (vr(D, 4), vr(Q[x], 4), vr(V_KX + 8, 4), "0" if x == 0 else vr(D, 4)))
            a_ = Q[x]
            if OPT.get("fulltag", 0):
                if x == 0:
                    e("v_bitop3_b32 v%d, v%d, v%d, v%d bitop3:%s" % (T0, a_, a_ + 1, a_ + 2, op)); e("v_bitop3_b32 v%d, v%d, v%d, v%d bitop3:%s" % (T0, T0, a_ + 3, a_ + 3, op))
                else:
                    e("v_bitop3_b32 v%d, v%d, v%d, v%d bitop3:%s" % (T0, T0, a_, a_ + 1, op)); e("v_bitop3_b32 v%d, v%d, v%d, v%d bitop3:%s" % (T0, T0, a_ + 2, a_ + 3, op))
            else:
                if x == 1: e("v_bitop3_b32 v%d, v%d, v%d, v%d bitop3:%s" % (T0, Q[0], Q[1], Q[1], op))
                elif x in (3, 5, 7): e("v_bitop3_b32 v%d, v%d, v%d, v%d bitop3:%s" % (T0, T0, Q[x - 1], Q[x], op))
                if x == 3 and OPT.get("early", 0) and not OPT["nowait"]:
                    le = A.newlab("L_ee")
                    e("v_and_b32 v%d, 1, v%d" % (T1, T0)); e("v_cmp_ne_u32 vcc, %d, v%d" % (tag, T1))
                    e("s_cmp_gt_u32 s%d, 0x200000" % S_SPIN); e("s_cbranch_scc1 %s" % le)
                    e("s_cbranch_vccnz L_rretry%d" % tag)
                    lab(le)
        e("v_and_b32 v%d, 1, v%d" % (T0, T0))
        e("v_cmp_ne_u32 vcc, %d, v%d" % (tag, T0))
    two = OPT.get("red_sets", 1) == 2
    for i in range(OPT["dly_red"]): e("s_nop 7")
    red_issue(QA_)
    if two:
        for i in range(OPT.get("gap_red", 2)): e("s_nop 7")
        red_issue(QB_)
    ts(40)
    e("s_waitcnt lgkmcnt(0)")
    e("s_cmp_lg_u32 s%d, 0" % S_TAG); e("s_cbranch_scc1 L_prA1")
    for tag in range(2):
        lab("L_prA%d" % tag)
        e("s_add_u32 s%d, s%d, 1" % (S_SPIN, S_SPIN))
        red_proc(QA_, DA, tag, 8 if two else 0, True)
        e("s_cmp_gt_u32 s%d, 0x200000" % S_SPIN); e("s_cbranch_scc1 L_rgoA")
        if OPT["nowait"]: e("s_branch L_rgoA")
        e("s_cbranch_vccz L_rgoA")
        lab("L_rretry%d" % tag)
        red_issue(QA_)
        if two:
            red_proc(QB_, DB, tag, 8)
            e("s_nop 1")
            e("s_cbranch_vccz L_rgoB")
            red_issue(QB_)
        e("s_branch L_prA%d" % tag)
    if two:
        lab("L_rgoB")
        A.nop(4)
        e("v_cndmask_b32 v%d, v%d, v%d, s[48:49]" % (T0, DB + 2, DB)); e("v_cndmask_b32 v%d, v%d, v%d, s[48:49]" % (T1, DB + 3, DB + 1))
        e("s_branch L_rpub")
    lab("L_rgoA")
    A.nop(3)
    e("v_cndmask_b32 v%d, v%d, v%d, s[48:49]" % (T0, DA + 2, DA)); e("v_cndmask_b32 v%d, v%d, v%d, s[48:49]" % (T1, DA + 3, DA + 1))
    lab("L_rpub")
    ts(50)
    e("v_cvt_pk_bf16_f32 v%d, v%d, v%d" % (T0, T0, T1))
    e("buffer_store_dword v%d, v%d, s[4:7], s31 offen %s" % (T0, T4, PUBF))
    if OPT["hist"]:
        e("s_lshl_b32 s30, s%d, 13" % S_STEP); e("s_add_u32 s30, s30, s%d" % S_H8); e("s_add_u32 s30, s30, %d" % WS_HIST)
        e("buffer_store_dword v%d, v%d, s[4:7], s30 offen" % (T0, T4))
    lab("L_red_done")
    stamp(6)
    e("s_barrier")
    stamp(7)
    e("s_cmp_lt_u32 s%d, %d" % (S_STEP, OPT["nsteps"])); e("s_cbranch_scc1 L_step")
    if OPT["stage"] >= 3 and OPT["nsteps"] == 64 and OPT["final"]:
        e("s_branch L_chain_done")
        lab("L_tail63")
        e("s_waitcnt lgkmcnt(0)")
        for u in range(2): smf(V_VA + 4 * u, V_MEM + 28, vr(wvreg(7) + 8 * u, 8))
        e("v_lshrrev_b32 v6, 2, v%d" % V_L16)
        for u in range(2):
            e("buffer_store_dword v%d, v6, s[4:7], s38 offen offset:%d sc0 sc1" % (KA_ + 4 * u, u * 256))
        A.nop(8)
        for u in range(2):
            x = V_VA + 4 * u
            e("v_add_f32 v%d, v%d, v%d" % (x, x, x + 1)); e("v_add_f32 v%d, v%d, v%d" % (x + 2, x + 2, x + 3))
            e("v_cvt_pk_bf16_f32 v%d, v%d, v%d" % (x, x, x + 2))
            e("buffer_store_dword v%d, v6, s[4:7], s37 offen offset:%d sc0 sc1" % (x, u * 256))
        e("s_waitcnt vmcnt(0)"); e("s_barrier")
        lfk = A.newlab("L_fkm")
        e("s_cmp_eq_u32 s%d, 1" % S_WAVE); e("s_cbranch_scc0 L_end")
        e("v_mov_b32 v6, 64"); e("v_mov_b32 v7, 0")
        e("s_mov_b64 exec, 1"); e("buffer_store_dword v6, v7, s[4:7], s101 offen sc0 sc1"); e("s_mov_b64 exec, s[26:27]")
        e("s_waitcnt vmcnt(0)")
        e("s_branch L_end")
    lab("L_chain_done")
    rt(5)
    if OPT["stage"] >= 3:
        e("v_lshrrev_b32 v6, 2, v%d" % V_L16)
        for u in range(2): e("ds_read_b32 v%d, v%d offset:%d" % (8 + u, V_XWR, u * 512))
        for u in range(2):
            e("buffer_store_dword v%d, v6, s[4:7], s37 offen offset:%d sc0 sc1" % (V_S + 9 + u, u * 256))
        e("s_waitcnt lgkmcnt(0)")
        for u in range(2):
            e("buffer_store_dword v%d, v6, s[4:7], s38 offen offset:%d sc0 sc1" % (8 + u, u * 256))
        e("s_waitcnt vmcnt(0)"); e("s_barrier")
        lfk = A.newlab("L_fkm")
        e("s_cmp_eq_u32 s%d, 1" % S_WAVE); e("s_cbranch_scc0 %s" % lfk)
        e("v_mov_b32 v6, 64"); e("v_mov_b32 v7, 0"); e("s_lshl_b32 s28, s%d, 7" % S_HEAD); e("s_add_u32 s28, s28, %d" % FL_KM)
        e("s_mov_b64 exec, 1"); e("buffer_store_dword v6, v7, s[4:7], s28 offen sc0 sc1"); e("s_mov_b64 exec, s[26:27]")
        lab(lfk)
    if not OPT["final"]:
        e("s_memtime s[86:87]"); e("s_memrealtime s[90:91]"); e("s_waitcnt lgkmcnt(0)")
        e("s_sub_u32 s86, s86, s84"); e("s_sub_u32 s90, s90, s88")
        e("s_lshl_b32 s28, s%d, 2" % S_HEAD); e("s_add_u32 s28, s28, s%d" % S_WAVE); e("s_lshl_b32 s28, s28, 7"); e("s_add_u32 s28, s28, %d" % WS_STAMP)
        e("s_mov_b64 exec, 1"); e("v_mov_b32 v10, 0")
        vals = [86, 90, S_SPIN] + ([S_ST + i for i in range(16)] if OPT["stamps"] else []) + [64 + 2 * k for k in range(len(TS))]
        for i, r in enumerate(vals):
            e("v_mov_b32 v11, s%d" % r); e("buffer_store_dword v11, v10, s[4:7], s28 offen offset:%d" % (4 * i))
    e("s_waitcnt vmcnt(0)")
    e("s_branch L_end")

S_X = 12
S_SEG, S_K, S_NSEG, S_XB = 40, 41, 42, 43
S_RANK, S_SUB = 38, 37
def wait_dbg_counter(off_bytes_sgpr_or_int, target, lname):
    e("s_cmp_lg_u32 s%d, 0" % S_WAVE); e("s_cbranch_scc1 %s_x" % lname)
    e("s_mov_b64 exec, 1")
    if isinstance(off_bytes_sgpr_or_int, int): e("v_mov_b32 v32, %d" % off_bytes_sgpr_or_int)
    else: e("v_mov_b32 v32, %s" % off_bytes_sgpr_or_int)
    e("s_mov_b32 s29, 0")
    lab(lname)
    e("global_load_dword v33, v32, s[24:25] sc0 sc1"); e("s_waitcnt vmcnt(0)"); e("v_readfirstlane_b32 s30, v33")
    e("s_add_u32 s29, s29, 1"); e("s_cmp_gt_u32 s29, 0x40000"); e("s_cbranch_scc1 %s_d" % lname)
    e("s_cmp_ge_u32 s30, %d" % target); e("s_cbranch_scc1 %s_d" % lname)
    e("s_sleep 8"); e("s_branch %s" % lname)
    lab(lname + "_d")
    e("s_mov_b64 exec, s[26:27]")
    lab(lname + "_x")

CV_HS, CV_CS = 4416, 17664
CV_XR, CV_XS = 70656, 7680
CV_YB = 101376
def conv_task():
    lskip = A.newlab("L_cv_skip")
    e("s_cmp_lt_u32 s%d, 2" % S_TEAM); e("s_cbranch_scc1 %s" % lskip)
    e("s_cmp_gt_u32 s%d, 5" % S_TEAM); e("s_cbranch_scc1 %s" % lskip)
    TASK, CH = 44, 45
    e("s_sub_u32 s%d, s%d, 2" % (TASK, S_TEAM)); e("s_lshl_b32 s%d, s%d, 5" % (TASK, TASK)); e("s_add_u32 s%d, s%d, s%d" % (TASK, TASK, S_HEAD))
    e("s_lshl_b32 s%d, s%d, 2" % (CH, TASK)); e("s_add_u32 s%d, s%d, s%d" % (CH, CH, S_WAVE))
    e("s_load_dwordx4 s[64:67], s[0:1], %d" % KA["q"])
    e("s_load_dwordx4 s[68:71], s[0:1], %d" % KA["v"])
    e("s_load_dwordx4 s[72:75], s[0:1], %d" % KA["ssmk"])
    e("s_load_dwordx2 s[76:77], s[0:1], %d" % KA["out"])
    e("s_waitcnt lgkmcnt(0)")
    e("s_lshl_b32 s28, s%d, 5" % TASK); e("s_add_u32 s70, s70, s28"); e("s_addc_u32 s71, s71, 0")
    e("s_lshl_b32 s28, s%d, 3" % TASK); e("s_add_u32 s74, s74, s28"); e("s_addc_u32 s75, s75, 0")
    e("s_load_dwordx8 s[80:87], s[70:71], 0"); e("s_load_dwordx2 s[88:89], s[74:75], 0")
    LN = 2
    e("v_lshrrev_b32 v%d, 4, v%d" % (LN, V_L16))
    srd(8, 72, 0x200000)
    e("s_mul_i32 s32, s%d, %d" % (S_WAVE, CV_CS))
    e("s_lshl_b32 s33, s%d, 12" % CH)
    for r in range(4):
        for i in range(4):
            e("s_add_u32 m0, s32, %d" % (r * CV_HS + 64 + i * 1024)); e("s_add_u32 s28, s33, %d" % (i * 1024 + 2 * r))
            e("buffer_load_dwordx4 v%d, s[8:11], s28 offen lds" % V_L16)
    for i in range(4): e("v_mov_b32 v%d, 0" % (4 + i))
    e("v_bfe_u32 v8, v%d, 2, 2" % LN); e("v_mul_u32_u24 v8, %d, v8" % CV_HS); e("v_and_b32 v9, 3, v%d" % LN); e("v_lshlrev_b32 v9, 4, v9"); e("v_add_u32 v8, v8, v9"); e("v_add_u32 v8, s32, v8")
    e("ds_write_b128 v8, v[4:7]")
    e("v_and_b32 v9, 3, v%d" % LN); e("v_lshlrev_b32 v10, 1, v9"); e("v_add_u32 v10, s33, v10")
    e("buffer_load_ushort v11, v10, s[8:11], 0 offen")
    e("v_bfe_u32 v12, v%d, 2, 2" % LN); e("v_mul_u32_u24 v13, %d, v12" % (CV_HS - 2)); e("v_lshlrev_b32 v14, 1, v9"); e("v_add_u32 v13, v13, v14"); e("v_add_u32 v13, 64, v13"); e("v_add_u32 v13, s32, v13")
    e("v_cmp_lt_u32 vcc, v9, v12"); e("v_cmp_gt_u32 s[30:31], 16, v%d" % LN); e("s_nop 1"); e("s_and_b64 s[30:31], s[30:31], vcc")
    e("s_mul_i32 s28, s%d, %d" % (S_WAVE, CV_XS)); e("s_add_u32 s28, s28, %d" % CV_XR); e("v_add_u32 v8, s28, v%d" % V_L16)
    e("ds_write_b128 v8, v[4:7]"); e("ds_write_b128 v8, v[4:7] offset:1024")
    e("v_cmp_gt_u32 vcc, 32, v%d" % LN); e("s_nop 1"); e("s_mov_b64 exec, vcc"); e("ds_write_b128 v8, v[4:7] offset:2048"); e("s_mov_b64 exec, s[26:27]")
    e("s_waitcnt vmcnt(0)")
    e("s_mov_b64 exec, s[30:31]"); e("ds_write_b16 v13, v11"); e("s_mov_b64 exec, s[26:27]")
    srd(8, 66, 0x200000)
    srd(12, 68, 0x200000)
    TH = 3
    e("s_lshl_b32 s28, s%d, 6" % S_WAVE); e("v_add_u32 v%d, s28, v%d" % (TH, LN))
    e("v_lshlrev_b32 v4, 13, v%d" % TH); e("s_lshl_b32 s28, s%d, 3" % TASK); e("v_add_u32 v4, s28, v4")
    KR, VR = 16, 40
    for j in range(11):
        e("v_add_u32 v5, %d, v4" % ((j - 3) * 1024 & 0xffffffff))
        e("buffer_load_dwordx2 %s, v5, s[8:11], 0 offen" % vr(KR + 2 * j, 2))
    for j in range(8):
        e("v_add_u32 v5, %d, v4" % (j * 1024))
        e("buffer_load_dwordx2 %s, v5, s[12:15], 0 offen" % vr(VR + 2 * j, 2))
    e("s_waitcnt lgkmcnt(0)")
    SK = {}
    for cch in range(4):
        for j in range(4):
            src = 80 + 2 * cch + (j >> 1)
            dst = 96 + cch * 4 + j
            if j & 1: e("s_and_b32 s28, s%d, 0xffff0000" % src)
            else: e("s_lshl_b32 s28, s%d, 16" % src)
            e("v_mov_b32 v%d, s28" % dst)
            SK[(cch, j)] = dst
    for cch in range(4):
        src = 88 + (cch >> 1)
        if cch & 1: e("s_and_b32 s28, s%d, 0xffff0000" % src)
        else: e("s_lshl_b32 s28, s%d, 16" % src)
        e("v_mov_b32 v%d, s28" % (112 + cch))
    e("s_waitcnt vmcnt(0)")
    KV = 116
    XP = 56
    for cch in range(4):
        d, hi = cch >> 1, cch & 1
        U = 72
        for j in range(11):
            if hi: e("v_and_b32 v%d, 0xffff0000, v%d" % (U + j, KR + 2 * j + d))
            else: e("v_lshlrev_b32 v%d, 16, v%d" % (U + j, KR + 2 * j + d))
        for t in range(8):
            e("v_mul_f32 v%d, v%d, v%d" % (84 + t, U + t, SK[(cch, 3)]))
            for j in (2, 1, 0):
                e("v_fmac_f32 v%d, v%d, v%d" % (84 + t, U + t + 3 - j, SK[(cch, j)]))
            if hi: e("v_and_b32 v92, 0xffff0000, v%d" % (VR + 2 * t + d))
            else: e("v_lshlrev_b32 v92, 16, v%d" % (VR + 2 * t + d))
            e("v_mul_f32 v%d, v%d, v92" % (84 + t, 84 + t))
        for p in range(4):
            e("v_cvt_pk_bf16_f32 v%d, v%d, v%d" % (XP + 4 * cch + p, 84 + 7 - 2 * p, 84 + 6 - 2 * p))
    e("v_lshrrev_b32 v4, 2, v%d" % TH); e("v_mul_u32_u24 v4, 80, v4"); e("v_and_b32 v5, 3, v%d" % TH); e("v_lshlrev_b32 v5, 4, v5"); e("v_add_u32 v4, v4, v5")
    e("v_add_u32 v4, %d, v4" % (CV_XR + 32 * 80))
    e("s_waitcnt lgkmcnt(0)"); e("s_barrier")
    for cch in range(4):
        e("ds_write_b128 v4, %s offset:%d" % (vr(XP + 4 * cch, 4), cch * CV_XS))
    srd(8, 64, 0x200000)
    e("v_lshlrev_b32 v4, 13, v%d" % TH); e("s_lshl_b32 s28, s%d, 3" % TASK); e("v_add_u32 v4, s28, v4")
    QR = 16
    for j in range(8):
        e("v_add_u32 v5, %d, v4" % (j * 1024))
        e("buffer_load_dwordx2 %s, v5, s[8:11], 0 offen" % vr(QR + 2 * j, 2))
    e("s_waitcnt lgkmcnt(0)"); e("s_barrier")
    e("v_and_b32 v6, 31, v%d" % LN); e("v_lshrrev_b32 v7, 5, v%d" % LN)
    e("v_add_u32 v8, 1, v6"); e("v_and_b32 v8, 3, v8"); e("v_mul_u32_u24 v8, %d, v8" % CV_HS)
    e("v_lshlrev_b32 v9, 3, v7"); e("v_sub_u32 v9, v6, v9"); e("v_add_u32 v9, 25, v9"); e("v_lshrrev_b32 v9, 2, v9"); e("v_lshlrev_b32 v9, 3, v9")
    e("v_add_u32 v8, v8, v9"); e("v_add_u32 v8, s32, v8"); e("v_subrev_u32 v8, 32, v8")
    e("v_mul_u32_u24 v9, 80, v6"); e("v_lshlrev_b32 v10, 4, v7"); e("v_add_u32 v9, v9, v10")
    e("s_mul_i32 s28, s%d, %d" % (S_WAVE, CV_XS)); e("s_add_u32 s28, s28, %d" % (CV_XR - 31 * 80)); e("v_add_u32 v9, s28, v9")
    Y0, Y1 = 128, 144
    FA, FB = 72, 88
    steps = []
    for dl in range(64):
        for kk in range(2):
            steps.append((dl, kk))
    A.lds = []
    def issue(n):
        dl, kk = steps[n]; u = 2 * dl - kk
        ra = FA + (n % 4) * 4
        A.ds("ds_read_b64 %s, v8 offset:%d" % (vr(ra, 2), (u + 1) * 32), ("cv", n))
        A.ds("ds_read_b64 %s, v8 offset:%d" % (vr(ra + 2, 2), (u + 1) * 32 + 8), ("cv", n))
        rb = 88 + (n % 3) * 8
        A.ds("ds_read_b128 %s, v9 offset:%d" % (vr(rb, 4), (63 - dl) * 80 + kk * 32 + 2560), ("cv", n))
        if dl <= 31:
            A.ds("ds_read_b128 %s, v9 offset:%d" % (vr(rb + 4, 4), (63 - dl) * 80 + kk * 32), ("cv", n))
    issue(0); issue(1)
    first = [True, True]
    for n in range(len(steps)):
        dl, kk = steps[n]
        A.wait_lds(("cv", n))
        ra = FA + (n % 4) * 4; rb = 88 + (n % 3) * 8
        e("v_mfma_f32_32x32x16_bf16 %s, %s, %s, %s" % (ar(Y1, 16), vr(ra, 4), vr(rb, 4), "0" if n == 0 else ar(Y1, 16)))
        if dl <= 31:
            e("v_mfma_f32_32x32x16_bf16 %s, %s, %s, %s" % (ar(Y0, 16), vr(ra, 4), vr(rb + 4, 4), "0" if n == 0 else ar(Y0, 16)))
        if n + 2 < len(steps): issue(n + 2)
    A.nop(16)
    e("v_lshlrev_b32 v10, 6, v6"); e("v_lshlrev_b32 v11, 3, v7"); e("v_add_u32 v10, v10, v11")
    e("s_lshl_b32 s28, s%d, 12" % S_WAVE); e("s_add_u32 s28, s28, %d" % CV_YB); e("v_add_u32 v10, s28, v10")
    for tile, Y in ((0, Y0), (1, Y1)):
        for q4 in range(4):
            for r in range(4): e("v_accvgpr_read_b32 v%d, a%d" % (72 + r, Y + 4 * q4 + r))
            e("s_nop 0")
            e("v_cvt_pk_bf16_f32 v76, v72, v73"); e("v_cvt_pk_bf16_f32 v77, v74, v75")
            e("ds_write_b64 v10, v[76:77] offset:%d" % (tile * 2048 + q4 * 16))
            e("s_nop 1")
    e("s_waitcnt lgkmcnt(0)"); e("s_barrier")
    e("v_lshlrev_b32 v4, 4, v%d" % TH); e("v_add_u32 v4, %d, v4" % CV_YB)
    YR = 72
    for cch in range(4):
        e("ds_read_b128 %s, v4 offset:%d" % (vr(YR + 4 * cch, 4), cch * 4096))
    e("s_waitcnt lgkmcnt(0) vmcnt(0)")
    srd(8, 76, 0x400000)
    OUTR = 40
    for t in range(8):
        for pr in range(2):
            vals = []
            for h in range(2):
                cch = 2 * pr + h
                ysrc = YR + 4 * cch + (t >> 1)
                if t & 1: e("v_and_b32 v%d, 0xffff0000, v%d" % (92 + h, ysrc))
                else: e("v_lshlrev_b32 v%d, 16, v%d" % (92 + h, ysrc))
                p = (7 - t) >> 1
                ksrc = XP + 4 * cch + p
                if (7 - t) & 1: e("v_and_b32 v94, 0xffff0000, v%d" % ksrc)
                else: e("v_lshlrev_b32 v94, 16, v%d" % ksrc)
                e("v_fmac_f32 v%d, v94, v%d" % (92 + h, 112 + cch))
                qsrc = QR + 2 * t + pr
                if h: e("v_and_b32 v94, 0xffff0000, v%d" % qsrc)
                else: e("v_lshlrev_b32 v94, 16, v%d" % qsrc)
                e("v_mul_f32 v%d, v%d, v94" % (92 + h, 92 + h))
            e("v_cvt_pk_bf16_f32 v%d, v92, v93" % (OUTR + 2 * t + pr))
    e("v_lshlrev_b32 v4, 14, v%d" % TH); e("s_lshl_b32 s28, s%d, 3" % TASK); e("v_add_u32 v4, s28, v4")
    for t in range(8):
        e("v_add_u32 v5, %d, v4" % (t * 2048))
        e("buffer_store_dwordx2 %s, v5, s[8:11], 0 offen" % vr(OUTR + 2 * t, 2))
    e("s_waitcnt vmcnt(0)"); e("s_barrier")
    e("s_load_dwordx2 s[30:31], s[0:1], %d" % KA["x"]); e("s_waitcnt lgkmcnt(0)")
    srd(S_X, 30, 0x200000)
    lab(lskip)

XL_T0, XL_QB, XL_KMI, XL_OB, XL_SEL = 0, 65536, 73728, 77824, 86016
S_OUT = 16
S_QT, S_EH, S_XPB, S_PAR2 = 44, 45, 46, 47
def xt_dma_g(seg_sgpr, buf_sgpr):
    e("s_lshr_b32 s28, s%d, 1" % S_WAVE); e("s_lshl_b32 s29, s%d, 15" % seg_sgpr); e("s_lshl_b32 s30, s28, 14"); e("s_add_u32 s29, s29, s30")
    e("s_and_b32 s30, s%d, 1" % S_WAVE); e("s_lshl_b32 s31, s30, 9"); e("s_add_u32 s29, s29, s31")
    e("s_lshl_b32 s31, s%d, 13" % S_WAVE); e("s_add_u32 s31, s31, s%d" % buf_sgpr)
    for i in range(8):
        e("s_add_u32 m0, s31, %d" % (i * 1024)); e("s_add_u32 s30, s29, %d" % (i * 64))
        e("buffer_load_dwordx4 v1, s[12:15], s30 offen lds")

def xphase2():
    L = VLANE
    e("s_mov_b32 s%d, s%d" % (S_HEAD, S_RANK))
    e("s_lshl_b32 s%d, s%d, 13" % (S_H13, S_HEAD)); e("s_lshl_b32 s%d, s%d, 8" % (S_H8, S_HEAD))
    e("s_cmp_eq_u32 s%d, 1" % S_TEAM); e("s_cselect_b32 s%d, 10, 9" % S_NSEG)
    e("s_barrier")
    e("v_lshrrev_b32 v%d, 4, v%d" % (L, V_L16))
    load_setup(32768)
    uq = units_qkv(0, "a", 0)
    for u in uq: u["perm"] = False
    load_units(uq + units_wo("v", V_WO), 8)
    e("s_barrier")
    rt(5)
    if OPT.get("conv", 0): conv_task()
    rt(6)
    KXF, VXF, QF, S, KMF, VMF, OO = 12, 44, 60, 76, 88, 104, 112
    T0, T1, T2, T3, T4, T5 = 6, 7, 8, 9, 10, 11
    V_THR, V_XPS, V_XD = 3, 4, 1
    e("v_lshrrev_b32 v%d, 4, v%d" % (L, V_L16))
    e("s_load_dwordx2 s[30:31], s[0:1], %d" % KA["out"])
    e("s_and_b32 s%d, s%d, 1" % (S_QT, S_WAVE)); e("s_lshr_b32 s%d, s%d, 1" % (S_EH, S_WAVE))
    e("v_lshrrev_b32 v1, 2, v%d" % L); e("v_lshrrev_b32 v2, 4, v%d" % L); e("v_xor_b32 v2, v2, v%d" % L); e("v_and_b32 v2, 3, v2"); e("v_lshlrev_b32 v2, 4, v2")
    e("v_lshlrev_b32 v1, 10, v1"); e("v_add_u32 v1, v1, v2")
    e("v_and_b32 v5, 15, v%d" % L); e("v_lshrrev_b32 v2, 2, v5"); e("v_lshrrev_b32 v34, 4, v%d" % L); e("v_xor_b32 v2, v2, v34"); e("v_and_b32 v2, 3, v2")
    e("v_lshlrev_b32 v5, 2, v5"); e("v_add_u32 v5, v5, v2"); e("v_lshlrev_b32 v5, 4, v5")
    e("v_and_b32 v%d, 15, v%d" % (V_THR, L)); e("v_lshrrev_b32 v2, 4, v%d" % L); e("v_lshlrev_b32 v2, 2, v2"); e("v_sub_u32 v%d, v%d, v2" % (V_THR, V_THR))
    e("s_lshl_b32 s28, s%d, 4" % S_QT); e("v_add_u32 v%d, s28, v%d" % (V_THR, V_THR))
    e("v_bfe_u32 v%d, v%d, 2, 2" % (V_XPS, L)); e("v_lshlrev_b32 v%d, 13, v%d" % (V_XPS, V_XPS))
    e("v_lshrrev_b32 v2, 4, v%d" % L); e("v_lshlrev_b32 v2, 6, v2"); e("v_add_u32 v%d, v%d, v2" % (V_XPS, V_XPS))
    e("v_and_b32 v2, 3, v%d" % L); e("v_lshlrev_b32 v2, 4, v2"); e("v_add_u32 v%d, v%d, v2" % (V_XPS, V_XPS)); e("v_add_u32 v%d, s%d, v%d" % (V_XPS, S_H8, V_XPS))
    e("v_and_b32 v6, 1, v%d" % L); e("v_lshlrev_b32 v6, 4, v6"); e("v_mov_b32 v7, 0x3f80"); e("v_lshlrev_b32 v7, v6, v7")
    e("v_bfe_u32 v6, v%d, 1, 2" % L)
    for i in range(4):
        e("v_cmp_eq_u32 vcc, %d, v6" % i); e("s_nop 1"); e("v_cndmask_b32 v%d, 0, v7, vcc" % (12 + i))
    e("v_add_u32 v6, %d, v%d" % (XL_SEL, V_L16)); e("ds_write_b128 v6, v[12:15]")
    e("s_waitcnt lgkmcnt(0)")
    srd(S_OUT, 30, 0x400000)
    cval = struct.unpack("<I", struct.pack("<f", (128 ** -0.5) * math.log2(math.e)))[0]
    e("s_mov_b32 s%d, 0x%08x" % (S_C, cval))
    e("s_lshl_b32 s%d, s%d, 21" % (S_XPB, S_TEAM)); e("s_add_u32 s%d, s%d, %d" % (S_XPB, S_XPB, WS_XP))
    e("s_sub_u32 s%d, s%d, 1" % (S_SEG, S_TEAM)); e("s_mov_b32 s%d, 0" % S_K); e("s_mov_b32 s%d, 0" % S_XB); e("s_mov_b32 s%d, 0" % S_PAR2)
    xt_dma_g(S_SEG, S_XB)
    e("s_and_b32 s33, s%d, 3" % S_TEAM); e("s_lshl_b32 s33, s33, 6"); e("s_lshr_b32 s29, s%d, 2" % S_TEAM); e("s_lshl_b32 s29, s29, 2"); e("s_add_u32 s33, s33, s29"); e("s_add_u32 s33, s33, 16")
    wait_dbg_counter("s33", 32, "L_x2_init")
    lab("L_x2")
    A.lds = []; A.vm = []
    lkv = A.newlab("L_x2kv")
    e("s_cmp_lg_u32 s%d, 0" % S_WAVE); e("s_cbranch_scc1 %s_s" % lkv)
    e("s_mov_b64 exec, 1"); e("v_mov_b32 v6, 0"); e("s_lshl_b32 s28, s%d, 12" % S_TEAM); e("s_lshl_b32 s29, s%d, 7" % S_HEAD); e("s_add_u32 s28, s28, s29"); e("s_add_u32 s28, s28, %d" % FL_KV); e("s_mov_b32 s29, 0")
    lab(lkv)
    e("buffer_load_dword v7, v6, s[4:7], s28 offen sc0 sc1"); e("s_waitcnt vmcnt(0)"); e("v_readfirstlane_b32 s30, v7")
    e("s_add_u32 s29, s29, 1"); e("s_cmp_gt_u32 s29, 0x80000"); e("s_cbranch_scc1 %s_d" % lkv)
    e("s_cmp_gt_u32 s30, s%d" % S_K); e("s_cbranch_scc1 %s_d" % lkv)
    e("s_sleep 8"); e("s_branch %s" % lkv)
    lab(lkv + "_d")
    e("s_mov_b64 exec, s[26:27]")
    lab(lkv + "_s")
    e("s_waitcnt vmcnt(0)"); e("s_barrier")
    e("s_lshl_b32 s28, s%d, 18" % S_SEG); e("s_add_u32 s28, s28, s%d" % S_H13)
    e("s_add_u32 s29, s28, %d" % WS_KX); e("s_add_u32 s30, s29, 4096")
    for kt in range(2):
        for kk in range(4):
            A.vmem("buffer_load_dwordx4 %s, v%d, s[4:7], s%d offen offset:%d sc1" % (vr(KXF + (kt * 4 + kk) * 4, 4), V_L16, 29 + kt, kk * 1024), "kx")
    e("s_lshl_b32 s29, s%d, 12" % S_EH); e("s_add_u32 s29, s29, s28"); e("s_add_u32 s29, s29, %d" % WS_VX)
    for i in range(4):
        A.vmem("buffer_load_dwordx4 %s, v%d, s[4:7], s29 offen offset:%d sc1" % (vr(VXF + 4 * i, 4), V_L16, i * 1024), "vx")
    ln = A.newlab("L_x2n")
    e("s_add_u32 s32, s%d, 1" % S_K); e("s_cmp_ge_u32 s32, s%d" % S_NSEG); e("s_cbranch_scc1 %s" % ln)
    e("s_add_u32 s33, s%d, 7" % S_SEG); e("s_xor_b32 s36, s%d, 32768" % S_XB)
    xt_dma_g(33, 36)
    lab(ln)
    XF = KMF
    e("v_add_u32 v2, s%d, v5" % S_XB)
    def rdx(kk):
        for tt in range(2):
            A.ds("ds_read_b128 %s, v2 offset:%d" % (vr(XF + (kk % 2) * 8 + tt * 4, 4), (tt * 16 + kk) * 1024), ("x", kk))
    rdx(0); rdx(1)
    for kk in range(16):
        A.wait_lds(("x", kk))
        t, b = kk >> 1, kk & 1
        for u in range(2):
            for tt in range(2):
                xf = vr(XF + (kk % 2) * 8 + tt * 4, 4)
                cq = "0" if kk == 0 else vr(QF + (u * 2 + tt) * 4, 4)
                e("v_mfma_f32_16x16x32_bf16 %s, %s, %s, %s" % (vr(QF + (u * 2 + tt) * 4, 4), ar((u * 8 + t) * 8 + 4 * b, 4), xf, cq))
        if kk + 2 < 16: rdx(kk + 2)
    A.nop(8)
    for tt in range(2):
        for u in range(2):
            a0 = QF + (u * 2 + tt) * 4
            e("v_cvt_pk_bf16_f32 v%d, v%d, v%d" % (OO + tt * 4 + 2 * u, a0, a0 + 1)); e("v_cvt_pk_bf16_f32 v%d, v%d, v%d" % (OO + tt * 4 + 2 * u + 1, a0 + 2, a0 + 3))
    e("s_lshl_b32 s28, s%d, 10" % S_WAVE); e("s_add_u32 s28, s28, %d" % XL_QB); e("v_add_u32 v2, s28, v%d" % V_L16)
    for tt in range(2):
        A.ds("ds_write_b128 v2, %s offset:%d" % (vr(OO + tt * 4, 4), tt * 4096), "qw")
    A.wait_lds_all(); e("s_barrier")
    e("s_lshl_b32 s28, s%d, 12" % S_QT); e("s_add_u32 s28, s28, %d" % XL_QB); e("v_add_u32 v2, s28, v%d" % V_L16)
    for kk in range(4):
        A.ds("ds_read_b128 %s, v2 offset:%d" % (vr(QF + 4 * kk, 4), kk * 1024), ("q", kk))
    e("s_waitcnt vmcnt(12)")
    l12 = A.newlab("L_x2w")
    e("s_cmp_lt_u32 s32, s%d" % S_NSEG); e("s_cbranch_scc1 %s" % l12); e("s_waitcnt vmcnt(4)"); lab(l12)
    for kk in range(4):
        A.wait_lds(("q", kk))
        for kt in range(2):
            cs = "0" if kk == 0 else vr(S + 4 * kt, 4)
            e("v_mfma_f32_16x16x32_bf16 %s, %s, %s, %s" % (vr(S + 4 * kt, 4), vr(KXF + (kt * 4 + kk) * 4, 4), vr(QF + 4 * kk, 4), cs))
    lw = A.newlab("L_x2km")
    e("s_cmp_lg_u32 s%d, 0" % S_WAVE); e("s_cbranch_scc1 %s_s" % lw)
    e("s_mov_b64 exec, 1"); e("v_mov_b32 v%d, 0" % T0); e("s_lshl_b32 s28, s%d, 7" % S_HEAD); e("s_add_u32 s28, s28, %d" % FL_KM); e("s_mov_b32 s29, 0")
    lab(lw)
    e("buffer_load_dword v%d, v%d, s[4:7], s28 offen sc0 sc1" % (T1, T0)); e("s_waitcnt vmcnt(0)"); e("v_readfirstlane_b32 s30, v%d" % T1)
    e("s_add_u32 s29, s29, 1"); e("s_cmp_gt_u32 s29, 0x80000"); e("s_cbranch_scc1 %s_d" % lw)
    e("s_cmp_gt_u32 s30, s%d" % S_SEG); e("s_cbranch_scc1 %s_d" % lw)
    e("s_add_u32 s30, s30, 2"); e("s_cmp_gt_u32 s30, s%d" % S_SEG); e("s_cbranch_scc1 %s_n" % lw)
    e("s_add_u32 s30, s30, 2"); e("s_cmp_gt_u32 s30, s%d" % S_SEG); e("s_cbranch_scc1 %s_m" % lw)
    e("s_sleep %d" % OPT.get("slpf", 32)); e("s_branch %s" % lw)
    lab(lw + "_m")
    e("s_sleep %d" % OPT.get("slp", 8)); e("s_branch %s" % lw)
    lab(lw + "_n")
    e("s_sleep %d" % OPT.get("slpn", 2)); e("s_branch %s" % lw)
    lab(lw + "_d")
    e("s_mov_b64 exec, s[26:27]")
    lab(lw + "_s")
    e("s_waitcnt vmcnt(0)"); e("s_barrier")
    rtk(8, S_SEG, 63)
    e("s_lshl_b32 s28, s%d, 16" % S_SEG); e("s_lshl_b32 s29, s%d, 11" % S_HEAD); e("s_add_u32 s28, s28, s29")
    e("s_lshl_b32 s29, s%d, 9" % S_WAVE); e("s_add_u32 s29, s29, s28"); e("s_add_u32 s29, s29, %d" % WS_KM)
    e("v_lshrrev_b32 v%d, 2, v%d" % (T0, V_L16))
    for u in range(2):
        e("buffer_load_dword v%d, v%d, s[4:7], s29 offen offset:%d sc1" % (T2 + u, T0, u * 256))
    e("s_lshl_b32 s29, s%d, 10" % S_EH); e("s_add_u32 s29, s29, s28"); e("s_add_u32 s29, s29, %d" % WS_VM)
    for i in range(4):
        e("buffer_load_dword v%d, v%d, s[4:7], s29 offen offset:%d sc1" % (VMF + 2 * i, T0, i * 256))
        e("v_mov_b32 v%d, 0" % (VMF + 2 * i + 1))
    e("v_and_b32 v%d, 0xf0, v%d" % (T4, V_L16)); e("v_lshlrev_b32 v%d, 1, v%d" % (T4, T4)); e("v_lshrrev_b32 v%d, 8, v%d" % (T1, V_L16)); e("v_lshlrev_b32 v%d, 3, v%d" % (T1, T1))
    e("v_add_u32 v%d, v%d, v%d" % (T4, T4, T1)); e("s_lshl_b32 s29, s%d, 10" % S_WAVE); e("s_add_u32 s29, s29, %d" % XL_KMI); e("v_add_u32 v%d, s29, v%d" % (T4, T4))
    e("s_waitcnt vmcnt(0)")
    for u in range(2):
        e("ds_write_b32 v%d, v%d offset:%d" % (T4, T2 + u, u * 512))
    e("s_waitcnt lgkmcnt(0)"); e("s_barrier")
    rtk(9, S_SEG, 63)
    e("v_lshrrev_b32 v%d, 1, v%d" % (T0, V_L16))
    e("v_add_u32 v%d, %d, v%d" % (T0, XL_KMI, T0))
    for kk in range(4):
        for b in range(2):
            A.ds("ds_read_b64_tr_b16 %s, v%d offset:%d" % (vr(KMF + 4 * kk + 2 * b, 2), T0, kk * 1024 + b * 512), ("km", kk))
    for kk in range(4):
        A.wait_lds(("km", kk))
        e("v_mfma_f32_16x16x32_bf16 %s, %s, %s, %s" % (vr(S + 8, 4), vr(KMF + 4 * kk, 4), vr(QF + 4 * kk, 4), "0" if kk == 0 else vr(S + 8, 4)))
    e("v_mov_b32 v%d, 0xff800000" % T5)
    for kt in range(2):
        for r in range(4):
            e("v_cmp_gt_i32 vcc, %d, v%d" % (16 * kt + r, V_THR)); e("s_nop 1"); e("v_cndmask_b32 v%d, v%d, v%d, vcc" % (S + 4 * kt + r, S + 4 * kt + r, T5))
    A.nop(2)
    e("v_max3_f32 v%d, v%d, v%d, v%d" % (T0, S, S + 1, S + 2)); e("v_max3_f32 v%d, v%d, v%d, v%d" % (T1, S + 4, S + 5, S + 6))
    e("v_max3_f32 v%d, v%d, v%d, v%d" % (T0, T0, S + 3, S + 7)); e("v_max3_f32 v%d, v%d, v%d, v%d" % (T1, T1, S + 8, S + 9))
    e("v_max_f32 v%d, v%d, v%d" % (T0, T0, T1))
    e("v_mov_b32 v%d, v%d" % (T1, T0)); A.nop(2); e("v_permlane16_swap_b32 v%d, v%d" % (T0, T1)); e("v_max_f32 v%d, v%d, v%d" % (T0, T0, T1))
    e("v_mov_b32 v%d, v%d" % (T1, T0)); A.nop(2); e("v_permlane32_swap_b32 v%d, v%d" % (T0, T1)); e("v_max_f32 v%d, v%d, v%d" % (T0, T0, T1))
    e("v_mul_f32 v%d, s%d, v%d" % (T0, S_C, T0))
    for i in range(10): e("v_fma_f32 v%d, v%d, s%d, -v%d" % (S + i, S + i, S_C, T0))
    for i in range(10): e("v_exp_f32 v%d, v%d" % (S + i, S + i))
    e("s_nop 0")
    e("v_add_f32 v%d, v%d, v%d" % (T2, S, S + 1)); e("v_add_f32 v%d, v%d, v%d" % (T3, S + 2, S + 3))
    for i in range(4, 10, 2):
        e("v_add_f32 v%d, v%d, v%d" % (T2, T2, S + i)); e("v_add_f32 v%d, v%d, v%d" % (T3, T3, S + i + 1))
    e("v_add_f32 v%d, v%d, v%d" % (T2, T2, T3))
    for i in range(4): e("v_cvt_pk_bf16_f32 v%d, v%d, v%d" % (S + i, S + 2 * i, S + 2 * i + 1))
    e("v_cvt_pk_bf16_f32 v%d, v%d, v%d" % (S + 10, S + 8, S + 9)); e("v_mov_b32 v%d, 0" % (S + 11))
    e("v_mov_b32 v%d, v%d" % (T3, T2)); A.nop(2); e("v_permlane16_swap_b32 v%d, v%d" % (T2, T3)); e("v_add_f32 v%d, v%d, v%d" % (T2, T2, T3))
    e("v_mov_b32 v%d, v%d" % (T3, T2)); A.nop(2); e("v_permlane32_swap_b32 v%d, v%d" % (T2, T3)); e("v_add_f32 v%d, v%d, v%d" % (T2, T2, T3))
    e("v_rcp_f32 v%d, v%d" % (T2, T2))
    for i in range(4):
        e("v_mfma_f32_16x16x32_bf16 %s, %s, %s, 0" % (vr(OO + 4 * i, 4), vr(VXF + 4 * i, 4), vr(S, 4)))
    for i in range(4):
        e("v_mfma_f32_16x16x16_bf16 %s, %s, %s, %s" % (vr(OO + 4 * i, 4), vr(VMF + 2 * i, 2), vr(S + 10, 2), vr(OO + 4 * i, 4)))
    A.nop(8)
    for i in range(16): e("v_mul_f32 v%d, v%d, v%d" % (OO + i, OO + i, T2))
    for j in range(2):
        for tsub in range(2):
            a0 = OO + (2 * j + tsub) * 4
            e("v_cvt_pk_bf16_f32 v%d, v%d, v%d" % (QF + 4 * j + 2 * tsub, a0, a0 + 1)); e("v_cvt_pk_bf16_f32 v%d, v%d, v%d" % (QF + 4 * j + 2 * tsub + 1, a0 + 2, a0 + 3))
    e("s_lshl_b32 s28, s%d, 12" % S_QT); e("s_lshl_b32 s29, s%d, 11" % S_EH); e("s_add_u32 s28, s28, s29"); e("s_add_u32 s28, s28, %d" % XL_OB); e("v_add_u32 v2, s28, v%d" % V_L16)
    for j in range(2):
        A.ds("ds_write_b128 v2, %s offset:%d" % (vr(QF + 4 * j, 4), j * 1024), "ow")
    A.wait_lds_all(); e("s_barrier")
    rtk(10, S_SEG, 63)
    e("v_add_u32 v2, %d, v%d" % (XL_OB, V_L16))
    ACC, AF, PKR = 12, 44, 60
    e("s_add_u32 s33, s%d, s%d" % (S_XPB, S_PAR2))
    for qt in range(2):
        for kk in range(4):
            A.ds("ds_read_b128 %s, v2 offset:%d" % (vr(AF + 4 * kk, 4), qt * 4096 + kk * 1024), ("o", kk))
        for kk in range(4):
            A.wait_lds(("o", kk))
            t, b = kk >> 1, kk & 1
            for nt in range(8):
                e("v_mfma_f32_16x16x32_bf16 %s, %s, %s, %s" % (vr(ACC + 4 * nt, 4), vr(AF + 4 * kk, 4), vr(V_WO + (nt * 2 + t) * 8 + 4 * b, 4), "0" if kk == 0 else vr(ACC + 4 * nt, 4)))
        A.nop(8)
        for p in range(4):
            for tsub in range(2):
                a0 = ACC + 4 * (2 * p + tsub)
                e("v_cvt_pk_bf16_f32 v%d, v%d, v%d" % (PKR + 4 * p + 2 * tsub, a0, a0 + 1)); e("v_cvt_pk_bf16_f32 v%d, v%d, v%d" % (PKR + 4 * p + 2 * tsub + 1, a0 + 2, a0 + 3))
            e("s_lshl_b32 s28, s%d, 17" % S_WAVE); e("s_add_u32 s28, s28, s33"); e("s_add_u32 s28, s28, %d" % ((qt * 16 + p) * 4 * 8192))
            e("buffer_store_dwordx4 %s, v%d, s[4:7], s28 offen" % (vr(PKR + 4 * p, 4), V_XPS))
        A.nop(2)
    e("s_waitcnt vmcnt(0)"); e("s_barrier")
    rtk(11, S_SEG, 63)
    lf = A.newlab("L_x2f")
    e("s_cmp_lg_u32 s%d, 0" % S_WAVE); e("s_cbranch_scc1 %s" % lf)
    e("s_add_u32 s28, s%d, 1" % S_K); e("v_mov_b32 v%d, s28" % T0); e("v_mov_b32 v%d, 0" % T1)
    e("s_lshl_b32 s28, s%d, 7" % S_TEAM); e("s_lshl_b32 s29, s%d, 2" % S_HEAD); e("s_add_u32 s28, s28, s29"); e("s_add_u32 s28, s28, %d" % FL_XP)
    e("s_mov_b64 exec, 1"); e("buffer_store_dword v%d, v%d, s[4:7], s28 offen" % (T0, T1)); e("s_mov_b64 exec, s[26:27]")
    lab(lf)
    lw = A.newlab("L_x2r")
    e("v_lshrrev_b32 v%d, 2, v%d" % (T0, V_L16)); e("v_and_b32 v%d, 127, v%d" % (T0, T0))
    e("s_lshl_b32 s28, s%d, 7" % S_TEAM); e("s_add_u32 s28, s28, %d" % FL_XP); e("s_mov_b32 s29, 0")
    e("v_add_u32 v%d, %d, v%d" % (T3, XL_SEL, V_L16)); e("ds_read_b128 v[44:47], v%d" % T3)
    lab(lw)
    e("buffer_load_dword v%d, v%d, s[4:7], s28 offen sc1" % (T1, T0)); e("s_waitcnt vmcnt(0)")
    e("v_cmp_ge_u32 vcc, s%d, v%d" % (S_K, T1))
    e("s_add_u32 s29, s29, 1"); e("s_cmp_gt_u32 s29, 0x80000"); e("s_cbranch_scc1 %s_d" % lw)
    e("s_cbranch_vccnz %s" % lw)
    lab(lw + "_d")
    rtk(12, S_SEG, 63)
    e("s_lshl_b32 s28, s%d, 2" % S_HEAD); e("s_add_u32 s28, s28, s%d" % S_WAVE); e("s_lshl_b32 s28, s28, 13"); e("s_add_u32 s28, s28, s33"); e("s_add_u32 s29, s28, 4096")
    for x in range(8):
        e("buffer_load_dwordx4 %s, v%d, s[4:7], s%d offen offset:%d sc1" % (vr(12 + 4 * x, 4), V_L16, 28 if x < 4 else 29, (x & 3) * 1024))
    e("s_waitcnt lgkmcnt(0)")
    for x in range(8):
        e("s_waitcnt vmcnt(%d)" % (7 - x))
        e("v_mfma_f32_16x16x32_bf16 v[48:51], %s, v[44:47], %s" % (vr(12 + 4 * x, 4), "0" if x == 0 else "v[48:51]"))
    e("v_lshrrev_b32 v%d, 8, v%d" % (T0, V_L16)); e("v_lshlrev_b32 v%d, 2, v%d" % (T0, T0))
    e("v_bfe_u32 v%d, v%d, 4, 2" % (T1, V_L16)); e("v_add_u32 v%d, v%d, v%d" % (T0, T0, T1)); e("v_lshlrev_b32 v%d, 11, v%d" % (T0, T0))
    e("v_bfe_u32 v%d, v%d, 6, 1" % (T1, V_L16)); e("v_lshlrev_b32 v%d, 3, v%d" % (T1, T1)); e("v_add_u32 v%d, v%d, v%d" % (T0, T0, T1))
    e("s_lshr_b32 s28, s%d, 4" % S_HEAD); e("s_lshl_b32 s28, s28, 4"); e("s_lshl_b32 s29, s%d, 5" % S_SEG); e("s_add_u32 s28, s28, s29"); e("s_lshl_b32 s28, s28, 11")
    e("s_bfe_u32 s29, s%d, 0x20002" % S_HEAD); e("s_lshl_b32 s29, s29, 8"); e("s_add_u32 s28, s28, s29")
    e("s_bfe_u32 s29, s%d, 0x10001" % S_HEAD); e("s_lshl_b32 s29, s29, 7"); e("s_add_u32 s28, s28, s29")
    e("s_and_b32 s29, s%d, 1" % S_HEAD); e("s_lshl_b32 s29, s29, 4"); e("s_add_u32 s28, s28, s29")
    e("s_lshl_b32 s29, s%d, 5" % S_WAVE); e("s_add_u32 s28, s28, s29"); e("s_add_u32 s28, s28, 1024")
    A.nop(4)
    e("v_cvt_pk_bf16_f32 v48, v48, v49"); e("v_cvt_pk_bf16_f32 v49, v50, v51")
    e("v_and_b32 v%d, 128, v%d" % (T1, V_L16)); e("v_cmp_eq_u32 vcc, 0, v%d" % T1)
    e("s_nop 1")
    e("s_mov_b64 exec, vcc")
    e("buffer_store_dwordx2 v[48:49], v%d, s[16:19], s28 offen" % T0)
    e("s_mov_b64 exec, s[26:27]")
    e("s_add_u32 s%d, s%d, 7" % (S_SEG, S_SEG)); e("s_xor_b32 s%d, s%d, 32768" % (S_XB, S_XB)); e("s_xor_b32 s%d, s%d, 0x100000" % (S_PAR2, S_PAR2))
    e("s_add_u32 s%d, s%d, 1" % (S_K, S_K))
    e("s_cmp_lt_u32 s%d, s%d" % (S_K, S_NSEG)); e("s_cbranch_scc1 L_x2")
    e("s_waitcnt vmcnt(0)")
    rt(7)
    e("s_branch L_end")

def xteam():
    L = VLANE
    lab("L_xteam")
    e("v_lshlrev_b32 v%d, 4, v%d" % (V_L16, L))
    e("s_load_dwordx2 s[30:31], s[0:1], %d" % KA["x"])
    e("v_lshrrev_b32 v1, 2, v%d" % L); e("v_lshrrev_b32 v2, 4, v%d" % L); e("v_xor_b32 v2, v2, v%d" % L); e("v_and_b32 v2, 3, v2"); e("v_lshlrev_b32 v2, 4, v2")
    e("v_lshlrev_b32 v1, 10, v1"); e("v_add_u32 v1, v1, v2")
    e("v_and_b32 v5, 15, v%d" % L); e("v_lshrrev_b32 v2, 2, v5"); e("v_lshrrev_b32 v34, 4, v%d" % L); e("v_xor_b32 v2, v2, v34"); e("v_and_b32 v2, 3, v2")
    e("v_lshlrev_b32 v5, 2, v5"); e("v_add_u32 v5, v5, v2"); e("v_lshlrev_b32 v5, 4, v5")
    e("s_waitcnt lgkmcnt(0)")
    srd(S_X, 30, 0x200000)
    if OPT["stage"] >= 3:
        lx = A.newlab("L_xi")
        e("s_cmp_lg_u32 s%d, 1" % S_WAVE); e("s_cbranch_scc1 %s" % lx)
        e("s_mov_b64 exec, 1")
        e("v_mov_b32 v32, 0"); e("s_lshl_b32 s28, s%d, 7" % S_TEAM); e("s_lshl_b32 s29, s%d, 2" % S_HEAD); e("s_add_u32 s28, s28, s29"); e("s_add_u32 s28, s28, %d" % FL_XP)
        e("buffer_store_dword v32, v32, s[4:7], s28 offen"); e("s_waitcnt vmcnt(0)")
        e("s_and_b32 s28, s%d, 3" % S_TEAM); e("s_lshl_b32 s28, s28, 6"); e("s_lshr_b32 s29, s%d, 2" % S_TEAM); e("s_lshl_b32 s29, s29, 2"); e("s_add_u32 s28, s28, s29"); e("s_add_u32 s28, s28, 16")
        e("v_mov_b32 v32, s28"); e("v_mov_b32 v33, 1")
        e("global_atomic_add v32, v33, s[24:25] sc1")
        e("s_mov_b64 exec, s[26:27]")
        lab(lx)
    if OPT.get("warm", 1):
        e("s_sub_u32 s28, s%d, 1" % S_TEAM); e("s_lshl_b32 s28, s28, 5"); e("s_add_u32 s28, s28, s%d" % S_HEAD); e("s_lshl_b32 s28, s28, 2"); e("s_add_u32 s28, s28, s%d" % S_WAVE)
        e("s_mul_i32 s28, s28, 5120")
        for which, base in ((0, 100), (3, 104)):
            p = S_PW + 2 * which
            e("s_mov_b32 s8, s%d" % p); e("s_mov_b32 s9, s%d" % (p + 1)); e("s_mov_b32 s10, 0x400000"); e("s_mov_b32 s11, 0x20000")
            for i in range(5):
                e("s_add_u32 s29, s28, %d" % (i * 1024))
                e("buffer_load_dwordx4 %s, v%d, s[8:11], s29 offen" % (vr(base, 4), V_L16))
    e("s_mov_b32 s%d, s%d" % (S_RANK, S_HEAD))
    e("s_sub_u32 s28, s%d, 1" % S_TEAM); e("s_lshl_b32 s28, s28, 5"); e("s_add_u32 s28, s28, s%d" % S_HEAD)
    e("s_mul_i32 s29, s28, 9363"); e("s_lshr_b32 s%d, s29, 16" % S_HEAD); e("s_mul_i32 s29, s%d, 7" % S_HEAD); e("s_sub_u32 s%d, s28, s29" % S_SUB)
    e("s_lshl_b32 s%d, s%d, 13" % (S_H13, S_HEAD)); e("s_lshl_b32 s%d, s%d, 8" % (S_H8, S_HEAD))
    e("s_cmp_eq_u32 s%d, 0" % S_SUB); e("s_cselect_b32 s%d, 10, 9" % S_NSEG)
    load_setup(32768)
    uk = units_qkv(1, "a", 128); uv = units_qkv(2, "v", 128)
    for u in uk + uv: u["perm"] = False
    rt(2)
    load_units(uk + uv, 8)
    e("s_barrier")
    rt(3)
    def xt_dma(seg_sgpr, buf_sgpr):
        e("s_lshr_b32 s28, s%d, 1" % S_WAVE); e("s_lshl_b32 s29, s%d, 15" % seg_sgpr); e("s_lshl_b32 s30, s28, 14"); e("s_add_u32 s29, s29, s30")
        e("s_and_b32 s30, s%d, 1" % S_WAVE); e("s_lshl_b32 s31, s30, 9"); e("s_add_u32 s29, s29, s31")
        e("s_lshl_b32 s31, s%d, 13" % S_WAVE); e("s_add_u32 s31, s31, s%d" % buf_sgpr)
        for i in range(8):
            e("s_add_u32 m0, s31, %d" % (i * 1024)); e("s_add_u32 s30, s29, %d" % (i * 64))
            e("buffer_load_dwordx4 v1, s[12:15], s30 offen lds")
    e("s_mov_b32 s%d, s%d" % (S_SEG, S_SUB)); e("s_mov_b32 s%d, 0" % S_K); e("s_mov_b32 s%d, 0" % S_XB)
    xt_dma(S_SEG, S_XB)
    if OPT["stage"] >= 2:
        wait_dbg_counter(24, 32, "L_x1_init")
    AK, AV, XF, PK = 40, 56, 72, 88
    lab("L_x1")
    e("s_waitcnt vmcnt(4)")
    l0 = A.newlab("L_x1a")
    e("s_cmp_lg_u32 s%d, 0" % S_K); e("s_cbranch_scc1 %s" % l0); e("s_waitcnt vmcnt(0)"); lab(l0)
    e("s_barrier")
    lf = A.newlab("L_x1f")
    e("s_cmp_lt_u32 s%d, 2" % S_K); e("s_cbranch_scc1 %s" % lf)
    e("s_cmp_lg_u32 s%d, 0" % S_WAVE); e("s_cbranch_scc1 %s" % lf)
    e("s_sub_u32 s28, s%d, 1" % S_K); e("v_mov_b32 v32, s28"); e("v_mov_b32 v33, 0")
    e("s_lshl_b32 s28, s%d, 12" % S_SUB); e("s_lshl_b32 s29, s%d, 7" % S_HEAD); e("s_add_u32 s28, s28, s29"); e("s_add_u32 s28, s28, %d" % (FL_KV + 4096))
    e("s_mov_b64 exec, 1"); e("buffer_store_dword v32, v33, s[4:7], s28 offen sc0 sc1"); e("s_mov_b64 exec, s[26:27]")
    lab(lf)
    ln = A.newlab("L_x1n")
    e("s_add_u32 s32, s%d, 1" % S_K); e("s_cmp_ge_u32 s32, s%d" % S_NSEG); e("s_cbranch_scc1 %s" % ln)
    e("s_add_u32 s33, s%d, 7" % S_SEG); e("s_xor_b32 s36, s%d, 32768" % S_XB)
    xt_dma(33, 36)
    lab(ln)
    e("v_add_u32 v2, s%d, v5" % S_XB)
    A.lds = []
    def rdx(kk):
        for tt in range(2):
            A.ds("ds_read_b128 %s, v2 offset:%d" % (vr(XF + (kk % 2) * 8 + tt * 4, 4), (tt * 16 + kk) * 1024), ("x", kk))
    rdx(0); rdx(1)
    for kk in range(16):
        A.wait_lds(("x", kk))
        t, b = kk >> 1, kk & 1
        for u in range(2):
            for tt in range(2):
                xf = vr(XF + (kk % 2) * 8 + tt * 4, 4)
                ck = "0" if kk == 0 else vr(AK + (u * 2 + tt) * 4, 4)
                cv = "0" if kk == 0 else vr(AV + (u * 2 + tt) * 4, 4)
                e("v_mfma_f32_16x16x32_bf16 %s, %s, %s, %s" % (vr(AK + (u * 2 + tt) * 4, 4), ar(128 + (u * 8 + t) * 8 + 4 * b, 4), xf, ck))
                e("v_mfma_f32_16x16x32_bf16 %s, %s, %s, %s" % (vr(AV + (u * 2 + tt) * 4, 4), xf, vr(128 + (u * 8 + t) * 8 + 4 * b, 4), cv))
        if kk + 2 < 16: rdx(kk + 2)
    A.nop(8)
    for tt in range(2):
        for u in range(2):
            a0 = AK + (u * 2 + tt) * 4
            e("v_cvt_pk_bf16_f32 v%d, v%d, v%d" % (PK + tt * 4 + 2 * u, a0, a0 + 1)); e("v_cvt_pk_bf16_f32 v%d, v%d, v%d" % (PK + tt * 4 + 2 * u + 1, a0 + 2, a0 + 3))
    for u in range(2):
        for tt in range(2):
            a0 = AV + (u * 2 + tt) * 4
            e("v_cvt_pk_bf16_f32 v%d, v%d, v%d" % (PK + 8 + u * 4 + 2 * tt, a0, a0 + 1)); e("v_cvt_pk_bf16_f32 v%d, v%d, v%d" % (PK + 8 + u * 4 + 2 * tt + 1, a0 + 2, a0 + 3))
    e("s_lshl_b32 s28, s%d, 18" % S_SEG); e("s_add_u32 s28, s28, s%d" % S_H13)
    e("s_lshl_b32 s29, s%d, 10" % S_WAVE); e("s_add_u32 s29, s29, s28"); e("s_add_u32 s30, s29, %d" % (WS_KX + 4096)); e("s_add_u32 s29, s29, %d" % WS_KX)
    e("buffer_store_dwordx4 %s, v%d, s[4:7], s29 offen sc0 sc1" % (vr(PK, 4), V_L16))
    e("buffer_store_dwordx4 %s, v%d, s[4:7], s30 offen sc0 sc1" % (vr(PK + 4, 4), V_L16))
    e("s_lshl_b32 s29, s%d, 11" % S_WAVE); e("s_add_u32 s29, s29, s28"); e("s_add_u32 s29, s29, %d" % WS_VX)
    e("buffer_store_dwordx4 %s, v%d, s[4:7], s29 offen sc0 sc1" % (vr(PK + 8, 4), V_L16))
    e("buffer_store_dwordx4 %s, v%d, s[4:7], s29 offen offset:1024 sc0 sc1" % (vr(PK + 12, 4), V_L16))
    lf0 = A.newlab("L_x1f0")
    e("s_cmp_lg_u32 s%d, 0" % S_K); e("s_cbranch_scc1 %s" % lf0)
    e("s_waitcnt vmcnt(0)"); e("s_barrier")
    e("s_cmp_lg_u32 s%d, 0" % S_WAVE); e("s_cbranch_scc1 %s" % lf0)
    e("v_mov_b32 v32, 1"); e("v_mov_b32 v33, 0")
    e("s_lshl_b32 s28, s%d, 12" % S_SUB); e("s_lshl_b32 s29, s%d, 7" % S_HEAD); e("s_add_u32 s28, s28, s29"); e("s_add_u32 s28, s28, %d" % (FL_KV + 4096))
    e("s_mov_b64 exec, 1"); e("buffer_store_dword v32, v33, s[4:7], s28 offen sc0 sc1"); e("s_mov_b64 exec, s[26:27]")
    lab(lf0)
    e("s_add_u32 s%d, s%d, 7" % (S_SEG, S_SEG)); e("s_xor_b32 s%d, s%d, 32768" % (S_XB, S_XB)); e("s_add_u32 s%d, s%d, 1" % (S_K, S_K))
    e("s_cmp_lt_u32 s%d, s%d" % (S_K, S_NSEG)); e("s_cbranch_scc1 L_x1")
    e("s_waitcnt vmcnt(0)"); e("s_barrier")
    rt(4)
    lf = A.newlab("L_x1g")
    e("s_cmp_lg_u32 s%d, 0" % S_WAVE); e("s_cbranch_scc1 %s" % lf)
    e("v_mov_b32 v32, s%d" % S_NSEG); e("v_mov_b32 v33, 0")
    e("s_lshl_b32 s28, s%d, 12" % S_SUB); e("s_lshl_b32 s29, s%d, 7" % S_HEAD); e("s_add_u32 s28, s28, s29"); e("s_add_u32 s28, s28, %d" % (FL_KV + 4096))
    e("s_mov_b64 exec, 1"); e("buffer_store_dword v32, v33, s[4:7], s28 offen sc0 sc1"); e("s_mov_b64 exec, s[26:27]")
    lab(lf)
    e("s_waitcnt vmcnt(0)")
    if OPT["stage"] < 3:
        e("s_branch L_end"); return
    xphase2()

hdr = []
if OPT["final"]:
    hdr.append("; Fused kernel: branch A (short conv + long causal conv as Toeplitz MFMA) and branch B (memory-recurrent attention).")
    hdr.append("; One persistent workgroup per CU. Workgroups form teams by the XCD they actually run on (HW_REG_XCC_ID):")
hdr.append("; @launch grid=(256,1,1) block=(256,1,1) lds=%d" % LDS_TOTAL)
hdr.append('.amdgcn_target "amdgcn-amd-amdhsa--gfx950"')
hdr.append(".text\n.globl %s\n.p2align 8\n.type %s,@function\n%s:" % (KNAME, KNAME, KNAME))
prologue()
e("s_cmp_eq_u32 s%d, 0" % S_TEAM); e("s_cbranch_scc1 L_chain")
if OPT["stage"] >= 2: e("s_branch L_xteam")
else: e("s_branch L_end")
chain()
if OPT["stage"] >= 2: xteam()
lab("L_end")
e("s_endpgm")
tail = '''.section .rodata,"a"
.p2align 6
.amdhsa_kernel %s
  .amdhsa_next_free_vgpr 512
  .amdhsa_next_free_sgpr 102
  .amdhsa_accum_offset 256
  .amdhsa_group_segment_fixed_size 0
  .amdhsa_kernarg_size 128
  .amdhsa_user_sgpr_count 2
  .amdhsa_user_sgpr_kernarg_segment_ptr 1
  .amdhsa_system_sgpr_workgroup_id_x 1
.end_amdhsa_kernel
''' % KNAME
open(OUTP, "w").write("\n".join(hdr) + "\n" + A.text() + tail)
print("wrote", OUTP, len(A.L), "lines")
```
